```python
import torch

def _softmax(x, axis=-1):
    return torch.softmax(x, dim=axis)
def _gelu(x):
    return torch.nn.functional.gelu(x, approximate="tanh")
def _silu(x):
    return torch.nn.functional.silu(x)
def _sigmoid(x):
    return torch.sigmoid(x)
def _layernorm(x, axis=-1, eps=1e-5):
    m = x.mean(dim=axis, keepdim=True)
    v = x.var(dim=axis, keepdim=True, unbiased=False)
    return (x - m) / torch.sqrt(v + eps)
def _scatter_add(tgt, idx, src, axis=0):
    return tgt.clone().index_add_(axis, idx, src)
def _segment_sum(src, seg, n):
    out = torch.zeros((n,) + src.shape[1:], dtype=src.dtype)
    return out.index_add_(0, seg, src)
def _pad(x, pw):
    flat = tuple(v for pair in reversed(pw) for v in pair)
    return torch.nn.functional.pad(x, flat)

kernel_name = 'concat_heads__gqa_block_cached__gqa_block_cached__near_ridge'

def setup_inputs():

    _w = (lambda a: (lambda t: t.to(torch.bfloat16) if t.is_floating_point() else t)(torch.as_tensor(a)))
    def _A_setup():
        B, Sq, D = 16, 96, 512
        Hq, Hkv, Sk, Dh = 32, 32, 512, 128
        assert Hq % Hkv == 0, (Hq, Hkv)
        return {
            "x": _w((lambda *s: torch.randn(*s, dtype=torch.bfloat16) * 0.8)(B, Sq, D)),
            "k_cache": _w((lambda *s: torch.randn(*s, dtype=torch.bfloat16) * 0.8)(B, Hkv, Sk, Dh)),
            "v_cache": _w((lambda *s: torch.randn(*s, dtype=torch.bfloat16) * 0.05)(B, Hkv, Sk, Dh)),
            "wq": _w((lambda *s: torch.randn(*s, dtype=torch.bfloat16) * 0.8)(D, Hq * Dh) * (D ** -0.5)),
            "wo": _w((lambda *s: torch.randn(*s, dtype=torch.bfloat16) * 0.05)(Hq * Dh, D) * ((Hq * Dh) ** -0.5)),
        }
    _A_in = _A_setup()

    def _B_setup():
        B, Sq, D = 16, 96, 512
        Hq, Hkv, Sk, Dh = 32, 32, 512, 128
        assert Hq % Hkv == 0, (Hq, Hkv)
        return {
            "x": _w((lambda *s: torch.randn(*s, dtype=torch.bfloat16) * 0.8)(B, Sq, D)),
            "k_cache": _w((lambda *s: torch.randn(*s, dtype=torch.bfloat16) * 0.8)(B, Hkv, Sk, Dh)),
            "v_cache": _w((lambda *s: torch.randn(*s, dtype=torch.bfloat16) * 0.05)(B, Hkv, Sk, Dh)),
            "wq": _w((lambda *s: torch.randn(*s, dtype=torch.bfloat16) * 0.8)(D, Hq * Dh) * (D ** -0.5)),
            "wo": _w((lambda *s: torch.randn(*s, dtype=torch.bfloat16) * 0.05)(Hq * Dh, D) * ((Hq * Dh) ** -0.5)),
        }
    _B_in = _B_setup()

    return {
        "A_x": _A_in["x"],
        "A_k_cache": _A_in["k_cache"],
        "A_v_cache": _A_in["v_cache"],
        "A_wq": _A_in["wq"],
        "A_wo": _A_in["wo"],
        "B_x": _B_in["x"],
        "B_k_cache": _B_in["k_cache"],
        "B_v_cache": _B_in["v_cache"],
        "B_wq": _B_in["wq"],
        "B_wo": _B_in["wo"],
    }

def reference(A_x, A_k_cache, A_v_cache, A_wq, A_wo, B_x, B_k_cache, B_v_cache, B_wq, B_wo):
    def _A_ref(x, k_cache, v_cache, wq, wo):
        B, Sq, D = x.shape
        Hq, Dh = 32, 128
        Hkv = k_cache.shape[1]
        rep = Hq // Hkv
        q = (lambda x, *d: x.permute(*d))((x @ wq).reshape(B, Sq, Hq, Dh), 0, 2, 1, 3)
        k = (lambda x, n, axis: torch.repeat_interleave(x, n, dim=axis))(k_cache, rep, axis=1)
        v = (lambda x, n, axis: torch.repeat_interleave(x, n, dim=axis))(v_cache, rep, axis=1)
        scores = torch.einsum("bhqd,bhkd->bhqk", q, k) * (Dh ** -0.5)
        p = _softmax(scores, axis=-1)
        o = torch.einsum("bhqk,bhkd->bhqd", p, v)
        return (lambda x, *d: x.permute(*d))(o, 0, 2, 1, 3).reshape(B, Sq, Hq * Dh) @ wo

    def _B_ref(x, k_cache, v_cache, wq, wo):
        B, Sq, D = x.shape
        Hq, Dh = 32, 128
        Hkv = k_cache.shape[1]
        rep = Hq // Hkv
        q = (lambda x, *d: x.permute(*d))((x @ wq).reshape(B, Sq, Hq, Dh), 0, 2, 1, 3)
        k = (lambda x, n, axis: torch.repeat_interleave(x, n, dim=axis))(k_cache, rep, axis=1)
        v = (lambda x, n, axis: torch.repeat_interleave(x, n, dim=axis))(v_cache, rep, axis=1)
        scores = torch.einsum("bhqd,bhkd->bhqk", q, k) * (Dh ** -0.5)
        p = _softmax(scores, axis=-1)
        o = torch.einsum("bhqk,bhkd->bhqd", p, v)
        return (lambda x, *d: x.permute(*d))(o, 0, 2, 1, 3).reshape(B, Sq, Hq * Dh) @ wo

    a = _A_ref(A_x, A_k_cache, A_v_cache, A_wq, A_wo)
    b = _B_ref(B_x, B_k_cache, B_v_cache, B_wq, B_wo)
    return torch.concatenate([a, b], axis=-1)
```

```python
import re

def V(n, cnt=1):
    return list(range(n, n + cnt))
def AG(n, cnt=1):
    return list(range(256 + n, 256 + n + cnt))

def rname(regs):
    r0 = regs[0]
    assert regs == list(range(r0, r0 + len(regs))), regs
    p = 'v' if r0 < 256 else 'a'
    b = r0 % 256
    if len(regs) == 1:
        return f"{p}{b}"
    return f"{p}[{b}:{b+len(regs)-1}]"

class Op:
    def __init__(self, kind, text, rd=(), wr=(), crange=None, tag=None, cost=1):
        self.kind = kind; self.text = text
        self.rd = list(rd); self.wr = list(wr)
        self.crange = crange
        self.tag = tag
        self.cost = cost
    def __repr__(self):
        return f"<{self.kind} {self.text}>"

class Em:
    def __init__(self):
        self.lines = []
        self.pos = 0
        self.lastw = {}
        self.stdata = {}
        self.ds = []
        self.nops = 0
        self.waits = 0
        self.ninstr = 0
    def comment(self, s):
        self.lines.append(f"    ; {s}")
    def label(self, s):
        self.lines.append(f"{s}:")
    def raw(self, text, n=1):
        self.lines.append("    " + text)
        self.pos += n
        self.ninstr += 1
    def nop(self, n):
        while n > 0:
            k = min(n, 16)
            self.lines.append(f"    s_nop {k-1}")
            self.pos += k
            self.nops += k
            n -= k
    def wait_ds(self, n):
        n = min(n, 15)
        if len(self.ds) > n:
            self.lines.append(f"    s_waitcnt lgkmcnt({n})")
            self.pos += 1
            self.waits += 1
            self.ds = self.ds[len(self.ds) - n:] if n > 0 else []
    def fence(self, nops=12):
        self.lines.append("    s_waitcnt lgkmcnt(0)")
        self.pos += 1
        self.ds = []
        self.nop(nops)
        self.lastw = {}
        self.stdata = {}
    def emit(self, op):
        k = op.kind
        if k in ('salu', 'raw', 'bar'):
            self.raw(op.text)
            return
        touched = set(op.rd) | set(op.wr)
        last = -1
        for i, d in enumerate(self.ds):
            if d & touched:
                last = i
        if last >= 0:
            self.wait_ds(len(self.ds) - 1 - last)
        need = 0
        def req(p, n):
            nonlocal need
            have = self.pos - p - 1
            need = max(need, n - have)
        cr = set(op.crange) if op.crange else set()
        for r in op.rd:
            lw = self.lastw.get(r)
            if not lw: continue
            lk, lp, ld = lw
            if lk == 'mfma':
                if k == 'mfma' and r in cr:
                    if tuple(op.crange) == ld:
                        pass
                    else:
                        req(lp, 10)
                else:
                    req(lp, 12)
            elif lk in ('valu', 'trans', 'perm'):
                if k == 'mfma': req(lp, 2)
                elif k == 'perm': req(lp, 2)
                elif k == 'rdlane': req(lp, 1)
                elif lk == 'trans' and k != 'trans': req(lp, 1)
        for w in op.wr:
            lw = self.lastw.get(w)
            if lw and lw[0] == 'mfma' and k != 'mfma':
                req(lw[1], 12)
            if lw and lw[0] == 'mfma' and k == 'mfma' and tuple(op.wr) != lw[2]:
                req(lw[1], 12)
            sp = self.stdata.get(w)
            if sp is not None:
                req(sp, 2)
        if need > 0:
            self.nop(need)
        self.lines.append("    " + op.text)
        p = self.pos
        self.pos += 1
        self.ninstr += 1
        for w in op.wr:
            if k == 'dsr' or k == 'vmem':
                self.lastw.pop(w, None)
            else:
                self.lastw[w] = (k, p, tuple(op.wr) if k == 'mfma' else None)
        if k == 'dsr':
            self.ds.append(set(op.wr))
        elif k == 'dsw':
            self.ds.append(set())
        if k in ('dsw', 'vmem') and op.tag == 'store':
            for r in op.rd:
                self.stdata[r] = p
    def text(self):
        return "\n".join(self.lines) + "\n"

def mfma(D, A, B, C=None):
    if C is None:
        return Op('mfma', f"v_mfma_f32_32x32x16_bf16 {rname(D)}, {rname(A)}, {rname(B)}, 0", rd=A + B, wr=D)
    return Op('mfma', f"v_mfma_f32_32x32x16_bf16 {rname(D)}, {rname(A)}, {rname(B)}, {rname(C)}", rd=A + B + C, wr=D, crange=tuple(C))
def dsr128(D, addr, off):
    assert 0 <= off < 65536, off
    return Op('dsr', f"ds_read_b128 {rname(D)}, v{addr} offset:{off}", rd=[addr], wr=D)
def dstr(D, addr, off):
    assert 0 <= off < 65536, off
    return Op('dsr', f"ds_read_b64_tr_b16 {rname(D)}, v{addr} offset:{off}", rd=[addr], wr=D)
def dsw128(addr, S, off):
    assert 0 <= off < 65536, off
    return Op('dsw', f"ds_write_b128 v{addr}, {rname(S)} offset:{off}", rd=[addr] + S, tag='store')
def valu(text, rd, wr, kind='valu'):
    return Op(kind, text, rd=rd, wr=wr)
```

```python
from em import *
import math

class Frag:
    def __init__(self, reads, gate=None):
        self.reads = reads
        self.gate = gate
class MItem:
    def __init__(self, kind, D=None, B=None, acc=True, frag=None, texts=None, rd=(), wr=(), drain=False, A=None):
        self.kind = kind
        self.D = D; self.B = B; self.acc = acc; self.frag = frag; self.A = A
        self.texts = texts or []
        self.rd = list(rd); self.wr = list(wr)
        self.drain = drain
        if kind == 'mfma':
            self.rd = list(B) + (list(D) if acc else []) + (list(A) if A else [])
            self.wr = list(D)

def cost(op):
    return {'trans': 2}.get(op.kind, 1) * op.cost

def schedule(em, seq, frags, stage_base, NS, LA, budget=6.0, raw_delay=2, frag0=0, verbose=False):
    M = [x for x in seq if isinstance(x, MItem)]
    VL = [x for x in seq if not isinstance(x, MItem)]
    mi = 0; vi = 0
    lastw_m = {}; lastr_m = {}; lastw_v = {}; lastr_v = {}
    depM = [(-1, -1)] * len(VL)
    depV = [-1] * len(M)
    for x in seq:
        if isinstance(x, MItem):
            d = -1
            for r in x.rd:
                d = max(d, lastw_v.get(r, -1))
            for w in x.wr:
                d = max(d, lastw_v.get(w, -1), lastr_v.get(w, -1))
            depV[mi] = d
            for r in x.rd: lastr_m[r] = mi
            for w in x.wr: lastw_m[w] = mi
            mi += 1
        else:
            raw = -1; anyd = -1
            for r in x.rd:
                j = lastw_m.get(r, -1)
                if j >= 0 and M[j].kind == 'mfma': raw = max(raw, j)
                anyd = max(anyd, j)
            for w in x.wr:
                j = lastw_m.get(w, -1)
                if j >= 0 and M[j].kind == 'mfma': raw = max(raw, j)
                anyd = max(anyd, j, lastr_m.get(w, -1))
            depM[vi] = (raw, anyd)
            for r in x.rd: lastr_v[r] = vi
            for w in x.wr: lastw_v[w] = vi
            vi += 1
    for i in range(1, len(M)):
        depV[i] = max(depV[i], depV[i-1])
    dl = [len(M)] * len(VL)
    j = 0
    for i in range(len(M)):
        while j <= depV[i]:
            dl[j] = i; j += 1
    cum = [0.0]
    for v in VL: cum.append(cum[-1] + cost(v))
    first_use = {}; last_use = {}
    for i, m in enumerate(M):
        if m.kind == 'mfma' and m.frag is not None:
            first_use.setdefault(m.frag, i); last_use[m.frag] = i
    forder = sorted(first_use, key=lambda f: first_use[f])
    fidx = {f: k for k, f in enumerate(forder)}
    gates_done = set()
    nf = 0
    def stage(f):
        b = stage_base + 4 * ((fidx[f] + frag0) % NS)
        return V(b, 4)
    def emit_reads(cur):
        nonlocal nf
        n = 0
        while nf < len(forder):
            f = forder[nf]
            if first_use[f] - cur > LA: break
            k = fidx[f]
            if k >= NS and last_use[forder[k - NS]] >= cur: break
            g = frags[f].gate
            if g is not None and g not in gates_done: break
            st = stage(f)
            for (kind, addr, off, sub) in frags[f].reads:
                if kind == 'b128':
                    em.emit(dsr128(st, addr, off))
                else:
                    em.emit(dstr(st[sub:sub+2], addr, off))
                n += 1
            nf += 1
        return n
    vi = 0
    for i, m in enumerate(M):
        while vi <= depV[i]:
            em.emit(VL[vi]); vi += 1
        if m.kind == 'bar':
            if m.drain: em.wait_ds(0)
            for t in m.texts: em.raw(t)
            for w in m.wr: gates_done.add(w)
            emit_reads(i + 1)
            continue
        if m.frag is not None:
            while nf <= fidx[m.frag]:
                before = nf
                emit_reads(i)
                assert nf > before, ("frag reads blocked", i, m.frag, frags[m.frag].gate)
            A = stage(m.frag)
        else:
            A = m.A
        em.emit(mfma(m.D, A, m.B, m.D if m.acc else None))
        used = emit_reads(i + 1)
        need = 0.0
        seen = set()
        for k in range(vi, len(VL)):
            d = dl[k]
            if d in seen: pass
            gaps = max(1, d - i)
            if k + 1 == len(VL) or dl[k+1] != d:
                need = max(need, (cum[k+1] - cum[vi]) / gaps)
        q = max(need, 0.0)
        q = min(max(q, budget - used), max(need, budget))
        spent = 0.0
        while vi < len(VL) and spent + cost(VL[vi]) <= q + 0.5:
            raw, anyd = depM[vi]
            if anyd > i: break
            if raw >= 0 and raw > i - raw_delay: break
            em.emit(VL[vi]); spent += cost(VL[vi]); vi += 1
    while vi < len(VL):
        em.emit(VL[vi]); vi += 1
    return (len(forder) + frag0) % NS
```

```python
import sys, struct
from em import *
from sched import *

NAME = "concat_heads__gqa_block_cached__gqa_block_cached__near_ridge"
SL = 16640
K0, V0, WO0, WQ0, QB = 0, 2*SL, 4*SL, 6*SL, 8*SL
LDS_BYTES = 163840
C_SCALE = 1.4426950408889634 / (128 ** 0.5)
def f32bits(x): return struct.unpack("<I", struct.pack("<f", x))[0]

sK, sV, sWQ, sWO, sX, sWS = 8, 12, 16, 20, 24, 28
sWAVE, sC, sNC, sCNT = 32, 33, 34, 35
sT, sKOFF, sVOFF, sWOOFF, sWQCOL, sTMP = 40, 41, 42, 43, 44, 45
def srd(b): return f"s[{b}:{b+3}]"

aK, aV, aWO, aQB = 1, 2, 3, 4
mR = [5, 6]
LA_, LB_, ALPHA, NMC = 7, 8, 9, 10
T0, T1, T2, T3 = 11, 12, 13, 14
AUX = 15
STG = 16; NS = 8
OACC, QR, OP = 48, 112, 144
SR = [176, 208]
w_vkv, w_vlin, w_vwq, w_aWQ, w_aQB, w_aX = 1, 2, 3, 4, 5, 6
W_STG = 16; W_NS = 4
W_ACC = 32
def XF3(mt, ks):
    if mt < 2: return AG(mt * 128 + ks * 4, 4)
    return V(128 + ks * 4, 4)
def XFA(ks):
    return V(48 + ks * 4, 4) if ks < 16 else V(144 + (ks - 16) * 4, 4)

class P:
    LA = 5
    BUDGET = 6.0
    W_LA = 6
    W_BUDGET = 4.0
    KVPOL = " nt"
    WPOL = " nt"
    XPOL = " nt"
    STPOL = ""
    RDPOL = ""

gate_ctr = [1000]
def newgate():
    gate_ctr[0] += 1
    return gate_ctr[0]

def v3(op, d, a, b, c):
    return valu(f"{op} v{d}, v{a}, v{b}, v{c}", [a, b, c], [d])

def softmax_ops(j):
    p = j % 2
    S = SR[p]; mo = mR[p]; mn = mR[1 - p]
    ops = []
    T = [T0, T1, T2, T3]
    for k in range(4): ops.append(v3("v_max3_f32", T[k], S+8*k, S+8*k+1, S+8*k+2))
    for k in range(4): ops.append(v3("v_max3_f32", T[k], T[k], S+8*k+3, S+8*k+4))
    for k in range(4): ops.append(v3("v_max3_f32", T[k], T[k], S+8*k+5, S+8*k+6))
    ops.append(v3("v_max3_f32", T0, T0, S+7, T1))
    ops.append(v3("v_max3_f32", T2, T2, S+23, T3))
    ops.append(v3("v_max3_f32", T0, T0, S+15, S+31))
    ops.append(valu(f"v_max_f32 v{T0}, v{T0}, v{T2}", [T0, T2], [T0]))
    ops.append(valu(f"v_mov_b32 v{T1}, v{T0}", [T0], [T1]))
    ops.append(valu(f"v_permlane32_swap_b32 v{T0}, v{T1}", [T0, T1], [T0, T1], kind='perm'))
    if j == 0:
        ops.append(valu(f"v_max_f32 v{mn}, v{T0}, v{T1}", [T0, T1], [mn]))
    else:
        ops.append(v3("v_max3_f32", mn, T0, T1, mo))
    ops.append(valu(f"v_mul_f32 v{NMC}, s{sNC}, v{mn}", [mn], [NMC]))
    if j != 0:
        ops.append(valu(f"v_fma_f32 v{ALPHA}, v{mo}, s{sC}, v{NMC}", [mo, NMC], [ALPHA]))
        ops.append(valu(f"v_exp_f32 v{ALPHA}, v{ALPHA}", [ALPHA], [ALPHA], kind='trans'))
    def fma(i): return valu(f"v_fma_f32 v{S+i}, v{S+i}, s{sC}, v{NMC}", [S+i, NMC], [S+i])
    def ex(i): return valu(f"v_exp_f32 v{S+i}, v{S+i}", [S+i], [S+i], kind='trans')
    def add(i):
        l = LA_ if i % 2 == 0 else LB_
        if i < 2:
            if j == 0: return valu(f"v_mov_b32 v{l}, v{S+i}", [S+i], [l])
            return valu(f"v_fma_f32 v{l}, v{l}, v{ALPHA}, v{S+i}", [l, ALPHA, S+i], [l])
        return valu(f"v_add_f32 v{l}, v{l}, v{S+i}", [l, S+i], [l])
    def cvt(k): return valu(f"v_cvt_pk_bf16_f32 v{S+k}, v{S+2*k}, v{S+2*k+1}", [S+2*k, S+2*k+1], [S+k])
    resc = []
    if j != 0:
        for i in range(64):
            resc.append(valu(f"v_mul_f32 v{OACC+i}, v{ALPHA}, v{OACC+i}", [ALPHA, OACC+i], [OACC+i]))
    body = []
    for g in range(9):
        grp = []
        if g < 8:
            for i in range(4*g, 4*g+4): grp.append(fma(i))
        if g > 0:
            for i in range(4*(g-1), 4*g): grp.append(add(i))
            for k in range(2*(g-1), 2*g): grp.append(cvt(k))
        exs = [ex(i) for i in range(4*g, 4*g+4)] if g < 8 else []
        body.append((grp, exs))
    out = []
    ri = 0
    for g, (grp, exs) in enumerate(body):
        out += grp[:4] if g < 8 else grp
        rest = grp[4:] if g < 8 else []
        fill = rest + resc[ri:ri+8]
        ri += 8
        for e in exs:
            out.append(e)
            n = -(-len(fill) // max(1, len(exs) - exs.index(e)))
            out += fill[:n]; fill = fill[n:]
        out += fill
    out += resc[ri:]
    return ops + out

def finalize_ops():
    ops = []
    ops.append(valu(f"v_add_f32 v{T0}, v{LA_}, v{LB_}", [LA_, LB_], [T0]))
    ops.append(valu(f"v_mov_b32 v{T1}, v{T0}", [T0], [T1]))
    ops.append(valu(f"v_permlane32_swap_b32 v{T0}, v{T1}", [T0, T1], [T0, T1], kind='perm'))
    ops.append(valu(f"v_add_f32 v{T0}, v{T0}, v{T1}", [T0, T1], [T0]))
    ops.append(valu(f"v_rcp_f32 v{AUX}, v{T0}", [T0], [AUX], kind='trans'))
    for k in range(32):
        a, b = OACC + 2*k, OACC + 2*k + 1
        ops.append(valu(f"v_mul_f32 v{a}, v{AUX}, v{a}", [AUX, a], [a]))
        ops.append(valu(f"v_mul_f32 v{b}, v{AUX}, v{b}", [AUX, b], [b]))
        if k > 0:
            kk = k - 1
            ops.append(valu(f"v_cvt_pk_bf16_f32 v{OP+kk}, v{OACC+2*kk}, v{OACC+2*kk+1}", [OACC+2*kk, OACC+2*kk+1], [OP+kk]))
    ops.append(valu(f"v_cvt_pk_bf16_f32 v{OP+31}, v{OACC+62}, v{OACC+63}", [OACC+62, OACC+63], [OP+31]))
    return ops

def bar(gate, pre=(), rd=(), drain=False):
    return MItem('bar', texts=list(pre) + ["s_barrier"], rd=rd, wr=[gate], drain=drain)

def qk_items(frags, Sdst, kslot, gate):
    it = []
    for sub in range(2):
        for ks in range(8):
            frags.append(Frag([('b128', aK, K0 + kslot*SL + sub*512 + ks*32, 0)], gate))
            it.append(MItem('mfma', D=V(Sdst + 16*sub, 16), B=V(QR + 4*ks, 4), acc=(ks != 0), frag=len(frags)-1))
    return it
def opj_items(frags, ks, woff, gate, addr=aWO):
    it = []
    for nt in range(16):
        frags.append(Frag([('tr', addr, woff + t*2080 + nt*64, 2*t) for t in range(2)], gate))
        it.append(MItem('mfma', D=AG(16*nt, 16), B=V(OP + 4*ks, 4), acc=True, frag=len(frags)-1))
    return it
def pv_items(frags, S, vslot, gate, first):
    it = []
    for s in range(4):
        for dt in range(4):
            frags.append(Frag([('tr', aV, vslot*SL + t*2080 + s*256 + dt*64, 2*t) for t in range(2)], gate))
            it.append(MItem('mfma', D=V(OACC + 16*dt, 16), B=V(S + 4*s, 4), acc=not (first and s == 0), frag=len(frags)-1))
    return it

def attention_head(em):
    seq = []; frags = []
    gB_prev = None
    for j in range(8):
        p = j % 2
        gA = newgate(); gB = newgate()
        seq.append(bar(gA))
        if j == 0:
            seq += finalize_ops()
        if j == 7:
            for ks in range(8):
                op = dsr128(V(QR + 4*ks, 4), aQB, ks*1024)
                op.rd.append(gA)
                seq.append(op)
        qk = qk_items(frags, SR[1-p], (j+1) % 2, gB_prev)
        if j == 7:
            del frags[-16:]
            oj = opj_items(frags, j, (j % 2)*SL, gB_prev)
            qk = qk_items(frags, SR[1-p], (j+1) % 2, gB_prev)
            seq += oj + qk
        else:
            oj = opj_items(frags, j, (j % 2)*SL, gB_prev)
            seq += qk + oj
        seq += softmax_ops(j)
        seq.append(bar(gB))
        seq += pv_items(frags, SR[p], j % 2, gA, j == 0)
        gB_prev = gB
    schedule(em, seq, frags, STG, NS, P.LA, budget=P.BUDGET)

def dma(m0val, voff, srdb, soff, off=0, pol="", pre=None, rd=(), wr=()):
    lines = [f"s_mov_b32 m0, {m0val}", pre if pre else "s_nop 0",
             f"buffer_load_dwordx4 v{voff}, {srd(srdb)}, {soff} offen" + (f" offset:{off}" if off else "") + f"{pol} lds"]
    return Op('salu', "\n    ".join(lines), rd=rd, wr=wr, cost=2)

def perm16(j): return 4*(j % 4) + j // 4

def dma_kv(slotbase, srdb, soff):
    return [dma(slotbase + 1040*j - perm16(j)*256, w_vkv, srdb, soff, off=perm16(j)*256, pol=P.KVPOL) for j in range(16)]
def dma_wo(slotbase, soffreg):
    ops = []
    for jj in range(4):
        for jh in range(4):
            j = jh*4 + jj
            pre = f"s_add_u32 s{sTMP}, s{soffreg}, {jj*4096}" if jh == 0 else None
            ops.append(dma(slotbase + 1040*j - jh*1024, w_vlin, sWO, f"s{sTMP}", off=jh*1024, pol=P.WPOL, pre=pre))
    return ops
def dma_wq(slotbase, colreg, const):
    return [dma(slotbase + 1040*j, w_vwq, sWQ, f"s{sTMP+1}", pol=P.WPOL,
                pre=f"s_add_u32 s{sTMP+1}, s{colreg}, {const + perm16(j)*8192}") for j in range(16)]

def salu(text, rd=(), wr=()):
    return Op('salu', text, rd=rd, wr=wr, cost=0.5)

def qproj_items(frags, addr, base, gate, kq, acc_regs, xfrag, nmt):
    it = []
    for ks in range(8):
        for dt2 in range(2):
            frags.append(Frag([('tr', addr, base + t*1040 + ks*128 + dt2*64, 2*t) for t in range(2)], gate))
            for mt in range(nmt):
                it.append(MItem('mfma', D=acc_regs(dt2, mt), B=xfrag(mt, kq*8 + ks), acc=not (kq == 0 and ks == 0), frag=len(frags)-1))
    return it

def wave3_body(em):
    seq = []; frags = []
    acc = lambda dt2, mt: V(W_ACC + (dt2*3 + mt)*16, 16)
    lastB = None
    for kq in range(4):
        gA = newgate(); gB = newgate(); dA = newgate(); dB = newgate()
        rdA = [lastB] if lastB else []
        seq.append(bar(gA, pre=["s_waitcnt vmcnt(32)"], rd=rdA, drain=(kq == 0)))
        pre = [
            f"s_cmp_le_i32 s{sT}, 21\n    s_cselect_b32 s{sWQ+2}, s{sTMP+2}, 0",
            f"s_cmp_le_i32 s{sT}, 30\n    s_cselect_b32 s{sV+2}, 0x80000, 0",
        ]
        A = [salu(x, rd=[gA]) for x in pre]
        if kq == 3:
            A.append(salu(f"s_add_u32 s{sWQCOL}, s{sWQCOL}, 128", rd=[gA]))
        A += dma_wq(WQ0 + (kq % 2)*SL, sWQCOL, ((kq+1) % 4) * 128 * 8192)
        A += dma_kv(V0 + (kq % 2)*SL, sV, f"s{sVOFF}")
        A.append(salu(f"s_add_u32 s{sVOFF}, s{sVOFF}, 16384", wr=[dA]))
        items = qproj_items(frags, w_aWQ, ((kq+1) % 2)*SL, gA, kq, acc, XF3, 3)
        seq += A
        seq += items[:30]
        seq.append(bar(gB, pre=["s_waitcnt vmcnt(32)"], rd=[dA]))
        pre = [
            f"s_cmp_le_i32 s{sT}, 28\n    s_cselect_b32 s{sK+2}, 0x80000, 0",
            f"s_cmp_ge_i32 s{sT}, 6\n    s_cselect_b32 s{sWO+2}, 0x80000, 0",
        ]
        B = [salu(x, rd=[gB]) for x in pre]
        B += dma_kv(K0 + (kq % 2)*SL, sK, f"s{sKOFF}")
        B += dma_wo(WO0 + ((kq+1) % 2)*SL, sWOOFF)
        B.append(salu(f"s_add_u32 s{sKOFF}, s{sKOFF}, 16384\n    s_add_u32 s{sWOOFF}, s{sWOOFF}, 16384\n    s_add_u32 s{sT}, s{sT}, 1", wr=[dB]))
        seq += B
        seq += items[30:]
        if kq == 3:
            for dt2 in range(2):
                for mt in range(3):
                    a = acc(dt2, mt)[0]
                    for k in range(8):
                        seq.append(valu(f"v_cvt_pk_bf16_f32 v{a+k}, v{a+2*k}, v{a+2*k+1}", [a+2*k, a+2*k+1], [a+k]))
                    for s2 in range(2):
                        seq.append(dsw128(w_aQB, V(a + 4*s2, 4), mt*8192 + (dt2*2 + s2)*1024))
            seq.append(valu(f"v_xor_b32 v{w_aQB}, 0x1000, v{w_aQB}", [w_aQB], [w_aQB]))
        lastB = dB
    schedule(em, seq, frags, W_STG, W_NS, P.W_LA, budget=P.W_BUDGET)

def gen_main(em):
    R = em.raw
    em.label(f"{NAME}_kernel")
    R("s_cmp_ge_u32 s2, 256")
    R("s_cbranch_scc1 L_end")
    R("s_load_dwordx8 s[48:55], s[0:1], 0")
    R("s_load_dwordx2 s[56:57], s[0:1], 32")
    R("s_load_dwordx8 s[60:67], s[0:1], 40")
    R("s_load_dwordx2 s[68:69], s[0:1], 72")
    R("s_load_dwordx2 s[70:71], s[0:1], 96")
    R("v_lshrrev_b32 v1, 6, v0")
    R("v_and_b32 v0, 63, v0")
    R(f"v_readfirstlane_b32 s{sWAVE}, v1")
    R("s_and_b32 s3, s2, 7")
    R("s_lshr_b32 s4, s2, 3")
    R("s_lshr_b32 s5, s3, 2")
    R("s_and_b32 s3, s3, 3")
    R("s_lshl_b32 s3, s3, 1")
    R("s_lshr_b32 s6, s4, 4")
    R("s_add_u32 s3, s3, s6")
    R("s_and_b32 s4, s4, 15")
    R(f"s_mov_b32 s{sC}, {f32bits(C_SCALE):#x}")
    R(f"s_mov_b32 s{sNC}, {f32bits(-C_SCALE):#x}")
    R("s_waitcnt lgkmcnt(0)")
    R("s_cmp_eq_u32 s5, 0")
    for i in range(5):
        R(f"s_cselect_b64 s[{48+2*i}:{49+2*i}], s[{48+2*i}:{49+2*i}], s[{60+2*i}:{61+2*i}]")
    R("s_lshl_b32 s6, s4, 22")
    R("s_lshl_b32 s7, s3, 19")
    R("s_add_u32 s6, s6, s7")
    for (d, p) in ((sK, 50), (sV, 52)):
        R(f"s_add_u32 s{d}, s{p}, s6")
        R(f"s_addc_u32 s{d+1}, s{p+1}, 0")
        R(f"s_and_b32 s{d+1}, s{d+1}, 0xffff")
        R(f"s_mov_b32 s{d+2}, 0x80000")
        R(f"s_mov_b32 s{d+3}, 0x20000")
    R("s_lshl_b32 s6, s3, 10")
    R(f"s_add_u32 s{sWQ}, s54, s6")
    R(f"s_addc_u32 s{sWQ+1}, s55, 0")
    R(f"s_and_b32 s{sWQ+1}, s{sWQ+1}, 0xffff")
    R(f"s_sub_u32 s{sWQ+2}, 0x400000, s6")
    R(f"s_mov_b32 s{sTMP+2}, s{sWQ+2}")
    R(f"s_mov_b32 s{sWQ+3}, 0x20000")
    R(f"s_add_u32 s{sWO}, s56, s7")
    R(f"s_addc_u32 s{sWO+1}, s57, 0")
    R(f"s_and_b32 s{sWO+1}, s{sWO+1}, 0xffff")
    R(f"s_mov_b32 s{sWO+2}, 0x80000")
    R(f"s_mov_b32 s{sWO+3}, 0x20000")
    R("s_mul_i32 s6, s4, 98304")
    R(f"s_add_u32 s{sX}, s48, s6")
    R(f"s_addc_u32 s{sX+1}, s49, 0")
    R(f"s_and_b32 s{sX+1}, s{sX+1}, 0xffff")
    R(f"s_mov_b32 s{sX+2}, 98304")
    R(f"s_mov_b32 s{sX+3}, 0x20000")
    R("s_mul_i32 s6, s2, 98304")
    R(f"s_add_u32 s{sWS}, s70, s6")
    R(f"s_addc_u32 s{sWS+1}, s71, 0")
    R(f"s_and_b32 s{sWS+1}, s{sWS+1}, 0xffff")
    R(f"s_mov_b32 s{sWS+2}, 98304")
    R(f"s_mov_b32 s{sWS+3}, 0x20000")
    R("v_bfe_u32 v20, v0, 2, 2")
    R("v_lshrrev_b32 v21, 5, v0")
    R("v_bfe_u32 v22, v0, 4, 1")
    R("v_and_b32 v23, 1, v0")
    R("v_bfe_u32 v24, v0, 1, 1")
    R("v_lshlrev_b32 v25, 2, v20")
    R("v_lshl_add_u32 v26, v21, 1, v25")
    R("v_mul_u32_u24 v26, 1040, v26")
    R("v_lshl_add_u32 v26, v22, 5, v26")
    R("v_lshl_add_u32 v26, v23, 4, v26")
    R("v_lshl_add_u32 v26, v24, 3, v26")
    R("v_and_b32 v27, 31, v0")
    R("v_mul_u32_u24 v27, 1040, v27")
    R("v_lshl_add_u32 v27, v21, 4, v27")
    R(f"s_cmp_eq_u32 s{sWAVE}, 3")
    R("s_cbranch_scc1 L_wave3")

    R("v_and_b32 v28, 3, v0")
    R("v_lshl_add_u32 v28, v28, 2, v20")
    R("v_mul_u32_u24 v28, 1040, v28")
    R("v_lshl_add_u32 v28, v22, 8, v28")
    R(f"v_lshl_add_u32 v{aK}, v21, 4, v28")
    R("v_add_u32 v28, v25, v21")
    R("v_mul_u32_u24 v28, 1040, v28")
    R("v_and_b32 v29, 3, v0")
    R("v_lshl_add_u32 v29, v29, 3, v28")
    R("v_lshl_add_u32 v29, v22, 5, v29")
    R(f"v_add_u32 v{aV}, {V0}, v29")
    R("v_lshl_add_u32 v29, v23, 5, v28")
    R("v_lshl_add_u32 v29, v22, 4, v29")
    R("v_lshl_add_u32 v29, v24, 3, v29")
    R(f"v_add_u32 v{aWO}, {WO0}, v29")
    R(f"s_lshl_b32 s3, s{sWAVE}, 13")
    R(f"s_add_u32 s3, s3, {QB}")
    R(f"v_lshlrev_b32 v{aQB}, 4, v0")
    R(f"v_add_u32 v{aQB}, s3, v{aQB}")
    R(f"s_mul_i32 s3, s{sWAVE}, {32*1040}")
    R(f"v_add_u32 v{T3}, s3, v27")
    R(f"v_mov_b32 v{AUX}, v26")
    for i in range(256):
        R(f"v_accvgpr_write_b32 a{i}, 0")
    R("s_barrier")
    for ks in range(32):
        em.emit(dsr128(XFA(ks), T3, ks*32))
    em.wait_ds(0)
    R("s_barrier")
    locs = [WQ0, WQ0+SL, QB, V0, V0+SL, WO0, WO0+SL, WQ0]
    QA = SR[1]
    seq = []; frags = []
    g2 = None
    tmpaddr = [T0, T1]
    for ti in range(8):
        if ti in (3, 7):
            g2 = newgate()
            seq.append(bar(g2))
        ta = tmpaddr[ti % 2]
        ga = newgate()
        seq.append(valu(f"v_add_u32 v{ta}, {locs[ti]}, v{AUX}", [AUX], [ta]))
        seq.append(MItem('bar', texts=[], rd=[ta], wr=[ga]))
        its = qproj_items(frags, ta, 0, ga, ti % 4, lambda dt2, mt: V(QA + 16*dt2, 16), lambda mt, ks: XFA(ks), 1)
        for it in its: it.rd.append(ta)
        seq += its
        if ti % 4 == 3:
            dh = ti // 4
            for k in range(16):
                seq.append(valu(f"v_cvt_pk_bf16_f32 v{QR+16*dh+k}, v{QA+2*k}, v{QA+2*k+1}", [QA+2*k, QA+2*k+1], [QR+16*dh+k]))
    for i in range(64):
        seq.append(valu(f"v_mov_b32 v{OACC+i}, 0", [], [OACC+i]))
    seq.append(valu(f"v_mov_b32 v{LA_}, 1.0", [], [LA_]))
    seq.append(valu(f"v_mov_b32 v{LB_}, 0", [], [LB_]))
    gA = newgate(); gB = newgate()
    seq.append(bar(gA))
    seq += qk_items(frags, SR[0], 0, gA)
    seq.append(bar(gB))
    schedule(em, seq, frags, STG, NS, P.LA, budget=P.BUDGET)
    R(f"s_mov_b32 s{sCNT}, 4")
    em.fence()
    em.label("L_att_loop")
    n0 = em.ninstr; nn0 = em.nops; w0 = em.waits
    attention_head(em)
    print(f"attention head body: {em.ninstr-n0} instrs, {em.nops-nn0} nop states, {em.waits-w0} waits", file=sys.stderr)
    R(f"s_sub_u32 s{sCNT}, s{sCNT}, 1")
    R(f"s_cmp_lg_u32 s{sCNT}, 0")
    em.fence()
    R("s_cbranch_scc1 L_att_loop")
    seq = []; frags = []
    g1 = newgate(); g2 = newgate()
    seq.append(bar(g1))
    seq += finalize_ops()
    seq.append(valu(f"v_subrev_u32 v{T2}, {WO0}, v{aWO}", [aWO], [T2]))
    seq.append(valu(f"v_add_u32 v{T3}, {WQ0-WO0}, v{aWO}", [aWO], [T3]))
    ga = newgate()
    seq.append(MItem('bar', texts=[], rd=[T2, T3], wr=[ga]))
    for ks in range(2):
        seq += opj_items(frags, ks, ks*SL, g1)
    seq.append(bar(g2))
    for ks in range(2, 6):
        seq += opj_items(frags, ks, (ks-2)*SL, g2, addr=T2)
    for ks in range(6, 8):
        seq += opj_items(frags, ks, (ks-6)*SL, g2, addr=T3)
    schedule(em, seq, frags, STG, NS, P.LA, budget=P.BUDGET)
    R(f"s_lshl_b32 s3, s{sWAVE}, 15")
    R(f"v_lshlrev_b32 v{AUX}, 4, v0")
    em.nop(12)
    for nt in range(16):
        b = 48 + (nt % 4) * 16
        for r in range(16):
            em.emit(valu(f"v_accvgpr_read_b32 v{b+r}, a{16*nt+r}", AG(16*nt+r), [b+r]))
        for k in range(8):
            em.emit(valu(f"v_cvt_pk_bf16_f32 v{b+k}, v{b+2*k}, v{b+2*k+1}", [b+2*k, b+2*k+1], [b+k]))
        for q in range(2):
            off = (nt*2 + q) * 1024
            R(f"s_add_u32 s4, s3, {off}")
            em.emit(Op('vmem', f"buffer_store_dwordx4 v[{b+4*q}:{b+4*q+3}], v{AUX}, {srd(sWS)}, s4 offen{P.STPOL}", rd=V(b+4*q, 4) + [AUX], tag='store'))
    R("s_endpgm")

    em.label("L_wave3")
    em.lastw = {}; em.ds = []; em.stdata = {}
    R(f"v_lshlrev_b32 v{w_vlin}, 4, v0")
    R("v_lshrrev_b32 v28, 4, v0")
    R("v_and_b32 v29, 15, v0")
    R("v_lshlrev_b32 v29, 4, v29")
    R(f"v_lshl_add_u32 v{w_vkv}, v28, 12, v29")
    R("v_lshrrev_b32 v28, 3, v0")
    R("v_and_b32 v29, 7, v0")
    R("v_lshlrev_b32 v29, 4, v29")
    R(f"v_lshl_add_u32 v{w_vwq}, v28, 17, v29")
    R(f"v_add_u32 v{w_aWQ}, {WQ0}, v26")
    R(f"v_add_u32 v{w_aQB}, {QB}, v{w_vlin}")
    R(f"v_mov_b32 v{w_aX}, v27")
    R(f"v_add_u32 v7, {64*1040}, v27")
    R(f"s_mov_b32 s{sWQCOL}, 0")
    for m in range(96):
        em.emit(dma(m*1040 - (m % 4)*1024, w_vlin, sX, f"s{sTMP}", off=(m % 4)*1024, pol=P.XPOL,
                    pre=(f"s_mov_b32 s{sTMP}, {m*1024}" if m % 4 == 0 else None)))
    def wq0_tile(ti, loc):
        for o in dma_wq(loc, sWQCOL, (ti % 4)*128*8192 + (ti // 4)*128): em.emit(o)
    for ti in range(3): wq0_tile(ti, locs[ti])
    R("s_waitcnt vmcnt(48)")
    R("s_barrier")
    for mt in range(3):
        for ks in range(32):
            if mt < 2: em.emit(dsr128(XF3(mt, ks), w_aX, mt*32*1040 + ks*32))
            else: em.emit(dsr128(XF3(mt, ks), 7, ks*32))
    em.wait_ds(0)
    R("s_waitcnt vmcnt(0)")
    R("s_barrier")
    R(f"s_mov_b32 s{sKOFF}, 0")
    wq0_tile(3, locs[3])
    for o in dma_kv(K0, sK, f"s{sKOFF}"): em.emit(o)
    wq0_tile(4, locs[4]); wq0_tile(5, locs[5]); wq0_tile(6, locs[6])
    R(f"s_mov_b32 s{sKOFF}, 16384")
    for o in dma_kv(K0+SL, sK, f"s{sKOFF}"): em.emit(o)
    R("s_waitcnt vmcnt(16)")
    R("s_barrier")
    wq0_tile(7, locs[7])
    R(f"s_mov_b32 s{sWQCOL}, 256")
    for o in dma_wq(WQ0+SL, sWQCOL, 0): em.emit(o)
    R("s_waitcnt vmcnt(16)")
    R("s_barrier")
    R(f"s_mov_b32 s{sT}, -1")
    R(f"s_mov_b32 s{sKOFF}, {2*16384}")
    R(f"s_mov_b32 s{sVOFF}, 0")
    R(f"s_mov_b32 s{sWOOFF}, {(-7*16384) & 0xffffffff:#x}")
    R(f"s_mov_b32 s{sCNT}, 8")
    R("s_waitcnt vmcnt(0)")
    em.fence()
    em.label("L_w3_loop")
    n0 = em.ninstr; nn0 = em.nops; w0 = em.waits
    wave3_body(em)
    print(f"wave3 body: {em.ninstr-n0} instrs, {em.nops-nn0} nop states, {em.waits-w0} waits", file=sys.stderr)
    R(f"s_sub_u32 s{sCNT}, s{sCNT}, 1")
    R(f"s_cmp_lg_u32 s{sCNT}, 0")
    em.fence()
    R("s_cbranch_scc1 L_w3_loop")
    R("s_waitcnt vmcnt(32)")
    R("s_barrier")
    R("s_waitcnt vmcnt(0)")
    R("s_barrier")
    for o in dma_wo(WO0 + SL, sWOOFF): em.emit(o)
    R("s_waitcnt vmcnt(0)")
    R("s_barrier")
    for i, loc in enumerate([K0, K0+SL, V0, V0+SL, WQ0, WQ0+SL]):
        R(f"s_add_u32 s{sWOOFF}, s{sWOOFF}, 16384")
        for o in dma_wo(loc, sWOOFF): em.emit(o)
    R("s_waitcnt vmcnt(0)")
    R("s_barrier")
    em.label("L_end")
    R("s_endpgm")

def gen_reduce(em):
    R = em.raw
    em.lines.append(".p2align 8")
    em.lines.append(".globl reduce_kernel")
    em.lines.append(".type reduce_kernel,@function")
    em.label("reduce_kernel")
    R("s_cmp_ge_u32 s2, 768")
    R("s_cbranch_scc1 L_rend")
    R("s_load_dwordx2 s[4:5], s[0:1], 80")
    R("s_load_dwordx2 s[6:7], s[0:1], 96")
    R("v_lshrrev_b32 v1, 6, v0")
    R("v_and_b32 v0, 63, v0")
    R("s_and_b32 s8, s2, 7")
    R("s_lshr_b32 s9, s2, 3")
    R("s_mul_i32 s10, s9, 43691")
    R("s_lshr_b32 s10, s10, 17")
    R("s_mul_i32 s11, s10, 3")
    R("s_sub_u32 s11, s9, s11")
    R("s_lshr_b32 s12, s10, 4")
    R("s_and_b32 s13, s10, 15")
    R("v_and_b32 v2, 7, v0")
    R("v_bfe_u32 v3, v0, 3, 1")
    R("v_bfe_u32 v4, v0, 4, 1")
    R("v_lshrrev_b32 v5, 5, v0")
    R("v_lshl_add_u32 v2, v1, 3, v2")
    R("v_lshlrev_b32 v6, 11, v5")
    R("v_lshl_add_u32 v6, v3, 10, v6")
    R("v_lshl_add_u32 v6, v4, 9, v6")
    R("v_lshl_add_u32 v6, v2, 4, v6")
    R("s_lshl_b32 s14, s11, 15")
    R("s_lshl_b32 s15, s8, 12")
    R("s_add_u32 s14, s14, s15")
    R("s_lshl_b32 s15, s12, 2")
    R("s_lshl_b32 s16, s13, 3")
    R("s_add_u32 s15, s15, s16")
    R("s_mul_i32 s15, s15, 98304")
    R("s_add_u32 s14, s14, s15")
    R("s_waitcnt lgkmcnt(0)")
    R("s_mov_b32 s20, s6")
    R("s_and_b32 s21, s7, 0xffff")
    R(f"s_mov_b32 s22, {256*98304}")
    R("s_mov_b32 s23, 0x20000")
    R("s_mov_b32 s24, s4")
    R("s_and_b32 s25, s5, 0xffff")
    R(f"s_mov_b32 s26, {16*96*1024*2}")
    R("s_mov_b32 s27, 0x20000")
    for hg in range(8):
        d = ((hg // 2) + 128*(hg % 2)) * 98304
        R(f"s_add_u32 s17, s14, {d}")
        R(f"buffer_load_dwordx4 v[{8+4*hg}:{11+4*hg}], v6, s[20:23], s17 offen{P.RDPOL}")
    R("v_lshlrev_b32 v7, 11, v2")
    R("v_lshl_add_u32 v7, v5, 6, v7")
    R("v_lshl_add_u32 v7, v4, 5, v7")
    R("v_lshl_add_u32 v7, v3, 4, v7")
    R("s_mul_i32 s15, s13, 96")
    R("s_lshl_b32 s16, s11, 5")
    R("s_add_u32 s15, s15, s16")
    R("s_lshl_b32 s15, s15, 11")
    R("s_lshl_b32 s16, s12, 10")
    R("s_add_u32 s15, s15, s16")
    R("s_lshl_b32 s16, s8, 7")
    R("s_add_u32 s15, s15, s16")
    for hg in range(8):
        R(f"s_waitcnt vmcnt({7-hg})")
        for k in range(4):
            src = 8 + 4*hg + k
            if hg == 0:
                R(f"v_lshlrev_b32 v{40+2*k}, 16, v{src}")
                R(f"v_and_b32 v{41+2*k}, 0xffff0000, v{src}")
            else:
                R(f"v_lshlrev_b32 v48, 16, v{src}")
                R(f"v_and_b32 v49, 0xffff0000, v{src}")
                R(f"v_add_f32 v{40+2*k}, v{40+2*k}, v48")
                R(f"v_add_f32 v{41+2*k}, v{41+2*k}, v49")
    for k in range(4):
        R(f"v_cvt_pk_bf16_f32 v{52+k}, v{40+2*k}, v{41+2*k}")
    R("buffer_store_dwordx4 v[52:55], v7, s[24:27], s15 offen")
    em.label("L_rend")
    R("s_endpgm")

def build():
    ref = open(f"cdna_kernels/{NAME}.s.ref").read().splitlines()
    head = [l for l in ref if l.startswith(";") and "@launch" not in l]
    em = Em()
    gen_main(em)
    gen_reduce(em)
    out = []
    out += head
    out.append(f"; @launch kernel={NAME}_kernel grid=(256,1,1) block=(256,1,1) lds={LDS_BYTES}")
    out.append(f"; @launch kernel=reduce_kernel grid=(768,1,1) block=(256,1,1) lds=0")
    out.append('.amdgcn_target "amdgcn-amd-amdhsa--gfx950"')
    out.append(".text")
    out.append(f".globl {NAME}_kernel")
    out.append(".p2align 8")
    out.append(f".type {NAME}_kernel,@function")
    out.append(em.text())
    out.append('.section .rodata,"a"')
    for (k, nv, ao) in ((f"{NAME}_kernel", 512, 256), ("reduce_kernel", 64, 64)):
        out.append(".p2align 6")
        out.append(f".amdhsa_kernel {k}")
        out.append(f"  .amdhsa_next_free_vgpr {nv}")
        out.append("  .amdhsa_next_free_sgpr 102")
        out.append(f"  .amdhsa_accum_offset {ao}")
        out.append("  .amdhsa_group_segment_fixed_size 0")
        out.append("  .amdhsa_kernarg_size 104")
        out.append("  .amdhsa_user_sgpr_count 2")
        out.append("  .amdhsa_user_sgpr_kernarg_segment_ptr 1")
        out.append("  .amdhsa_system_sgpr_workgroup_id_x 1")
        out.append(".end_amdhsa_kernel")
    return "\n".join(out) + "\n"

if __name__ == "__main__":
    dst = sys.argv[1] if len(sys.argv) > 1 else f"cdna_kernels/{NAME}.s"
    for a in sys.argv[2:]:
        k, v = a.split("=")
        cur = getattr(P, k)
        setattr(P, k, type(cur)(v) if not isinstance(cur, str) else (" " + v if v else ""))
    open(dst, "w").write(build())
```

```python
import sys, struct
from em import *
from sched import *

NAME = "concat_heads__gqa_block_cached__gqa_block_cached__near_ridge"
SL = 16640
K0, V0, WO0, WQ0, QB = 0, 2*SL, 4*SL, 6*SL, 8*SL
LDS_BYTES = 163840
C_SCALE = 1.4426950408889634 / (128 ** 0.5)
def f32bits(x): return struct.unpack("<I", struct.pack("<f", x))[0]

sK, sV, sWQ, sWO, sX, sWS = 8, 12, 16, 20, 24, 28
sWAVE, sC, sNC, sCNT = 32, 33, 34, 35
sT, sKOFF, sVOFF, sWOOFF, sWQCOL, sTMP = 40, 41, 42, 43, 44, 45
def srd(b): return f"s[{b}:{b+3}]"

aK, aV, aWO, aQB = 1, 2, 3, 4
mR = [5, 6]
LA_, LB_, ALPHA, NMC = 7, 8, 9, 10
T0, T1, T2, T3 = 11, 12, 13, 14
AUX = 15
STG = 16; NS = 8
OACC, QR, OP = 48, 112, 144
SR = [176, 208]
w_vkv, w_vlin, w_vwq, w_aWQ, w_aQB, w_aX = 1, 2, 3, 4, 5, 6
W_STG = 16; W_NS = 4
W_ACC = 32
def XF3(mt, ks):
    if mt < 2: return AG(mt * 128 + ks * 4, 4)
    return V(128 + ks * 4, 4)
def XFA(ks):
    return V(48 + ks * 4, 4) if ks < 16 else V(144 + (ks - 16) * 4, 4)

class P:
    LA = 5
    BUDGET = 6.0
    W_LA = 6
    W_BUDGET = 4.0
    KVPOL = " nt"
    WPOL = " nt"
    XPOL = " nt"
    STPOL = ""
    RDPOL = ""
    STAMP = 0
    CYC = 0

gate_ctr = [1000]
def newgate():
    gate_ctr[0] += 1
    return gate_ctr[0]

def v3(op, d, a, b, c):
    return valu(f"{op} v{d}, v{a}, v{b}, v{c}", [a, b, c], [d])

def softmax_ops(j):
    p = j % 2
    S = SR[p]; mo = mR[p]; mn = mR[1 - p]
    ops = []
    T = [T0, T1, T2, T3]
    for k in range(4): ops.append(v3("v_max3_f32", T[k], S+8*k, S+8*k+1, S+8*k+2))
    for k in range(4): ops.append(v3("v_max3_f32", T[k], T[k], S+8*k+3, S+8*k+4))
    for k in range(4): ops.append(v3("v_max3_f32", T[k], T[k], S+8*k+5, S+8*k+6))
    ops.append(v3("v_max3_f32", T0, T0, S+7, T1))
    ops.append(v3("v_max3_f32", T2, T2, S+23, T3))
    ops.append(v3("v_max3_f32", T0, T0, S+15, S+31))
    ops.append(valu(f"v_max_f32 v{T0}, v{T0}, v{T2}", [T0, T2], [T0]))
    ops.append(valu(f"v_mov_b32 v{T1}, v{T0}", [T0], [T1]))
    ops.append(valu(f"v_permlane32_swap_b32 v{T0}, v{T1}", [T0, T1], [T0, T1], kind='perm'))
    if j == 0:
        ops.append(valu(f"v_max_f32 v{mn}, v{T0}, v{T1}", [T0, T1], [mn]))
    else:
        ops.append(v3("v_max3_f32", mn, T0, T1, mo))
    ops.append(valu(f"v_mul_f32 v{NMC}, s{sNC}, v{mn}", [mn], [NMC]))
    if j != 0:
        ops.append(valu(f"v_fma_f32 v{ALPHA}, v{mo}, s{sC}, v{NMC}", [mo, NMC], [ALPHA]))
        ops.append(valu(f"v_exp_f32 v{ALPHA}, v{ALPHA}", [ALPHA], [ALPHA], kind='trans'))
    def fma(i): return valu(f"v_fma_f32 v{S+i}, v{S+i}, s{sC}, v{NMC}", [S+i, NMC], [S+i])
    def ex(i): return valu(f"v_exp_f32 v{S+i}, v{S+i}", [S+i], [S+i], kind='trans')
    def add(i):
        l = LA_ if i % 2 == 0 else LB_
        if i < 2:
            if j == 0: return valu(f"v_mov_b32 v{l}, v{S+i}", [S+i], [l])
            return valu(f"v_fma_f32 v{l}, v{l}, v{ALPHA}, v{S+i}", [l, ALPHA, S+i], [l])
        return valu(f"v_add_f32 v{l}, v{l}, v{S+i}", [l, S+i], [l])
    def cvt(k): return valu(f"v_cvt_pk_bf16_f32 v{S+k}, v{S+2*k}, v{S+2*k+1}", [S+2*k, S+2*k+1], [S+k])
    resc = []
    if j != 0:
        for i in range(64):
            resc.append(valu(f"v_mul_f32 v{OACC+i}, v{ALPHA}, v{OACC+i}", [ALPHA, OACC+i], [OACC+i]))
    body = []
    for g in range(9):
        grp = []
        if g < 8:
            for i in range(4*g, 4*g+4): grp.append(fma(i))
        if g > 0:
            for i in range(4*(g-1), 4*g): grp.append(add(i))
            for k in range(2*(g-1), 2*g): grp.append(cvt(k))
        exs = [ex(i) for i in range(4*g, 4*g+4)] if g < 8 else []
        body.append((grp, exs))
    out = []
    ri = 0
    for g, (grp, exs) in enumerate(body):
        out += grp[:4] if g < 8 else grp
        rest = grp[4:] if g < 8 else []
        fill = rest + resc[ri:ri+8]
        ri += 8
        for e in exs:
            out.append(e)
            n = -(-len(fill) // max(1, len(exs) - exs.index(e)))
            out += fill[:n]; fill = fill[n:]
        out += fill
    out += resc[ri:]
    return ops + out

def finalize_ops():
    ops = []
    ops.append(valu(f"v_add_f32 v{T0}, v{LA_}, v{LB_}", [LA_, LB_], [T0]))
    ops.append(valu(f"v_mov_b32 v{T1}, v{T0}", [T0], [T1]))
    ops.append(valu(f"v_permlane32_swap_b32 v{T0}, v{T1}", [T0, T1], [T0, T1], kind='perm'))
    ops.append(valu(f"v_add_f32 v{T0}, v{T0}, v{T1}", [T0, T1], [T0]))
    ops.append(valu(f"v_rcp_f32 v{AUX}, v{T0}", [T0], [AUX], kind='trans'))
    for k in range(32):
        a, b = OACC + 2*k, OACC + 2*k + 1
        ops.append(valu(f"v_mul_f32 v{a}, v{AUX}, v{a}", [AUX, a], [a]))
        ops.append(valu(f"v_mul_f32 v{b}, v{AUX}, v{b}", [AUX, b], [b]))
        if k > 0:
            kk = k - 1
            ops.append(valu(f"v_cvt_pk_bf16_f32 v{OP+kk}, v{OACC+2*kk}, v{OACC+2*kk+1}", [OACC+2*kk, OACC+2*kk+1], [OP+kk]))
    ops.append(valu(f"v_cvt_pk_bf16_f32 v{OP+31}, v{OACC+62}, v{OACC+63}", [OACC+62, OACC+63], [OP+31]))
    return ops

STV = [240]
def stamp_txt():
    if not P.STAMP: return []
    return [("s_memtime s[96:97]" if P.CYC else "s_memrealtime s[96:97]"), "s_min_u32 m0, s98, 63", "s_waitcnt lgkmcnt(0)", f"v_writelane_b32 v{STV[0]}, s96, m0", "s_add_u32 s98, s98, 1"]
def stamp(em):
    if P.STAMP:
        em.wait_ds(0)
        for t in stamp_txt(): em.raw(t)
def stamp_store(em):
    if not P.STAMP: return
    R = em.raw
    R("s_lshl_b32 s3, s2, 2")
    R(f"s_add_u32 s3, s3, s{sWAVE}")
    R("s_lshl_b32 s3, s3, 8")
    R("s_add_u32 s92, s70, 0x2000000")
    R("s_addc_u32 s93, s71, 0")
    R("s_and_b32 s93, s93, 0xffff")
    R("s_mov_b32 s94, 0x40000")
    R("s_mov_b32 s95, 0x20000")
    R("v_lshlrev_b32 v0, 2, v0")
    R(f"buffer_store_dword v{STV[0]}, v0, s[92:95], s3 offen")
def bar(gate, pre=(), rd=(), drain=False, st=False):
    post = stamp_txt() if st else []
    if st and P.STAMP >= 2: pre = list(pre) + stamp_txt()
    return MItem('bar', texts=list(pre) + ["s_barrier"] + post, rd=rd, wr=[gate], drain=drain or bool(post))

def qk_items(frags, Sdst, kslot, gate):
    it = []
    for sub in range(2):
        for ks in range(8):
            frags.append(Frag([('b128', aK, K0 + kslot*SL + sub*512 + ks*32, 0)], gate))
            it.append(MItem('mfma', D=V(Sdst + 16*sub, 16), B=V(QR + 4*ks, 4), acc=(ks != 0), frag=len(frags)-1))
    return it
def opj_items(frags, ks, woff, gate, addr=aWO):
    it = []
    for nt in range(16):
        frags.append(Frag([('tr', addr, woff + t*2080 + nt*64, 2*t) for t in range(2)], gate))
        it.append(MItem('mfma', D=AG(16*nt, 16), B=V(OP + 4*ks, 4), acc=True, frag=len(frags)-1))
    return it
def pv_items(frags, S, vslot, gate, first):
    it = []
    for s in range(4):
        for dt in range(4):
            frags.append(Frag([('tr', aV, vslot*SL + t*2080 + s*256 + dt*64, 2*t) for t in range(2)], gate))
            it.append(MItem('mfma', D=V(OACC + 16*dt, 16), B=V(S + 4*s, 4), acc=not (first and s == 0), frag=len(frags)-1))
    return it

def attention_head(em):
    seq = []; frags = []
    gB_prev = None
    for j in range(8):
        p = j % 2
        gA = newgate(); gB = newgate()
        seq.append(bar(gA, st=True))
        if j == 0:
            seq += finalize_ops()
        if j == 7:
            for ks in range(8):
                op = dsr128(V(QR + 4*ks, 4), aQB, ks*1024)
                op.rd.append(gA)
                seq.append(op)
        qk = qk_items(frags, SR[1-p], (j+1) % 2, gB_prev)
        if j == 7:
            del frags[-16:]
            oj = opj_items(frags, j, (j % 2)*SL, gB_prev)
            qk = qk_items(frags, SR[1-p], (j+1) % 2, gB_prev)
            seq += oj + qk
        else:
            oj = opj_items(frags, j, (j % 2)*SL, gB_prev)
            seq += qk + oj
        seq += softmax_ops(j)
        seq.append(bar(gB, st=(P.STAMP >= 2)))
        seq += pv_items(frags, SR[p], j % 2, gA, j == 0)
        gB_prev = gB
    schedule(em, seq, frags, STG, NS, P.LA, budget=P.BUDGET)

def dma(m0val, voff, srdb, soff, off=0, pol="", pre=None, rd=(), wr=()):
    lines = [f"s_mov_b32 m0, {m0val}", pre if pre else "s_nop 0",
             f"buffer_load_dwordx4 v{voff}, {srd(srdb)}, {soff} offen" + (f" offset:{off}" if off else "") + f"{pol} lds"]
    return Op('salu', "\n    ".join(lines), rd=rd, wr=wr, cost=2)

def perm16(j): return 4*(j % 4) + j // 4

def dma_kv(slotbase, srdb, soff):
    return [dma(slotbase + 1040*j - perm16(j)*256, w_vkv, srdb, soff, off=perm16(j)*256, pol=P.KVPOL) for j in range(16)]
def dma_wo(slotbase, soffreg):
    ops = []
    for jj in range(4):
        for jh in range(4):
            j = jh*4 + jj
            pre = f"s_add_u32 s{sTMP}, s{soffreg}, {jj*4096}" if jh == 0 else None
            ops.append(dma(slotbase + 1040*j - jh*1024, w_vlin, sWO, f"s{sTMP}", off=jh*1024, pol=P.WPOL, pre=pre))
    return ops
def dma_wq(slotbase, colreg, const):
    return [dma(slotbase + 1040*j, w_vwq, sWQ, f"s{sTMP+1}", pol=P.WPOL,
                pre=f"s_add_u32 s{sTMP+1}, s{colreg}, {const + perm16(j)*8192}") for j in range(16)]

def salu(text, rd=(), wr=()):
    return Op('salu', text, rd=rd, wr=wr, cost=0.5)

def qproj_items(frags, addr, base, gate, kq, acc_regs, xfrag, nmt):
    it = []
    for ks in range(8):
        for dt2 in range(2):
            frags.append(Frag([('tr', addr, base + t*1040 + ks*128 + dt2*64, 2*t) for t in range(2)], gate))
            for mt in range(nmt):
                it.append(MItem('mfma', D=acc_regs(dt2, mt), B=xfrag(mt, kq*8 + ks), acc=not (kq == 0 and ks == 0), frag=len(frags)-1))
    return it

def wave3_body(em):
    seq = []; frags = []
    acc = lambda dt2, mt: V(W_ACC + (dt2*3 + mt)*16, 16)
    lastB = None
    for kq in range(4):
        gA = newgate(); gB = newgate(); dA = newgate(); dB = newgate()
        rdA = [lastB] if lastB else []
        seq.append(bar(gA, pre=stamp_txt() + ["s_waitcnt vmcnt(32)"] + (stamp_txt() if P.STAMP >= 2 else []), rd=rdA, drain=(kq == 0) or bool(P.STAMP)))
        pre = [
            f"s_cmp_le_i32 s{sT}, 21\n    s_cselect_b32 s{sWQ+2}, s{sTMP+2}, 0",
            f"s_cmp_le_i32 s{sT}, 30\n    s_cselect_b32 s{sV+2}, 0x80000, 0",
        ]
        A = [salu(x, rd=[gA]) for x in pre]
        if kq == 3:
            A.append(salu(f"s_add_u32 s{sWQCOL}, s{sWQCOL}, 128", rd=[gA]))
        A += dma_wq(WQ0 + (kq % 2)*SL, sWQCOL, ((kq+1) % 4) * 128 * 8192)
        A += dma_kv(V0 + (kq % 2)*SL, sV, f"s{sVOFF}")
        A.append(salu(f"s_add_u32 s{sVOFF}, s{sVOFF}, 16384", wr=[dA]))
        items = qproj_items(frags, w_aWQ, ((kq+1) % 2)*SL, gA, kq, acc, XF3, 3)
        seq += A
        seq += items[:30]
        s2 = stamp_txt() if P.STAMP >= 2 else []
        seq.append(bar(gB, pre=s2 + ["s_waitcnt vmcnt(32)"] + s2, rd=[dA], drain=bool(s2)))
        pre = [
            f"s_cmp_le_i32 s{sT}, 28\n    s_cselect_b32 s{sK+2}, 0x80000, 0",
            f"s_cmp_ge_i32 s{sT}, 6\n    s_cselect_b32 s{sWO+2}, 0x80000, 0",
        ]
        B = [salu(x, rd=[gB]) for x in pre]
        B += dma_kv(K0 + (kq % 2)*SL, sK, f"s{sKOFF}")
        B += dma_wo(WO0 + ((kq+1) % 2)*SL, sWOOFF)
        B.append(salu(f"s_add_u32 s{sKOFF}, s{sKOFF}, 16384\n    s_add_u32 s{sWOOFF}, s{sWOOFF}, 16384\n    s_add_u32 s{sT}, s{sT}, 1", wr=[dB]))
        seq += B
        seq += items[30:]
        if kq == 3:
            for dt2 in range(2):
                for mt in range(3):
                    a = acc(dt2, mt)[0]
                    for k in range(8):
                        seq.append(valu(f"v_cvt_pk_bf16_f32 v{a+k}, v{a+2*k}, v{a+2*k+1}", [a+2*k, a+2*k+1], [a+k]))
                    for s2 in range(2):
                        seq.append(dsw128(w_aQB, V(a + 4*s2, 4), mt*8192 + (dt2*2 + s2)*1024))
            seq.append(valu(f"v_xor_b32 v{w_aQB}, 0x1000, v{w_aQB}", [w_aQB], [w_aQB]))
        lastB = dB
    schedule(em, seq, frags, W_STG, W_NS, P.W_LA, budget=P.W_BUDGET)

def gen_main(em):
    R = em.raw
    em.label(f"{NAME}_kernel")
    R("s_cmp_ge_u32 s2, 256")
    R("s_cbranch_scc1 L_end")
    R("s_load_dwordx8 s[48:55], s[0:1], 0")
    R("s_load_dwordx2 s[56:57], s[0:1], 32")
    R("s_load_dwordx8 s[60:67], s[0:1], 40")
    R("s_load_dwordx2 s[68:69], s[0:1], 72")
    R("s_load_dwordx2 s[70:71], s[0:1], 96")
    R("v_lshrrev_b32 v1, 6, v0")
    R("v_and_b32 v0, 63, v0")
    R(f"v_readfirstlane_b32 s{sWAVE}, v1")
    R("s_and_b32 s3, s2, 7")
    R("s_lshr_b32 s4, s2, 3")
    R("s_lshr_b32 s5, s3, 2")
    R("s_and_b32 s3, s3, 3")
    R("s_lshl_b32 s3, s3, 1")
    R("s_lshr_b32 s6, s4, 4")
    R("s_add_u32 s3, s3, s6")
    R("s_and_b32 s4, s4, 15")
    R(f"s_mov_b32 s{sC}, {f32bits(C_SCALE):#x}")
    R(f"s_mov_b32 s{sNC}, {f32bits(-C_SCALE):#x}")
    R("s_waitcnt lgkmcnt(0)")
    R("s_cmp_eq_u32 s5, 0")
    for i in range(5):
        R(f"s_cselect_b64 s[{48+2*i}:{49+2*i}], s[{48+2*i}:{49+2*i}], s[{60+2*i}:{61+2*i}]")
    R("s_lshl_b32 s6, s4, 22")
    R("s_lshl_b32 s7, s3, 19")
    R("s_add_u32 s6, s6, s7")
    for (d, p) in ((sK, 50), (sV, 52)):
        R(f"s_add_u32 s{d}, s{p}, s6")
        R(f"s_addc_u32 s{d+1}, s{p+1}, 0")
        R(f"s_and_b32 s{d+1}, s{d+1}, 0xffff")
        R(f"s_mov_b32 s{d+2}, 0x80000")
        R(f"s_mov_b32 s{d+3}, 0x20000")
    R("s_lshl_b32 s6, s3, 10")
    R(f"s_add_u32 s{sWQ}, s54, s6")
    R(f"s_addc_u32 s{sWQ+1}, s55, 0")
    R(f"s_and_b32 s{sWQ+1}, s{sWQ+1}, 0xffff")
    R(f"s_sub_u32 s{sWQ+2}, 0x400000, s6")
    R(f"s_mov_b32 s{sTMP+2}, s{sWQ+2}")
    R(f"s_mov_b32 s{sWQ+3}, 0x20000")
    R(f"s_add_u32 s{sWO}, s56, s7")
    R(f"s_addc_u32 s{sWO+1}, s57, 0")
    R(f"s_and_b32 s{sWO+1}, s{sWO+1}, 0xffff")
    R(f"s_mov_b32 s{sWO+2}, 0x80000")
    R(f"s_mov_b32 s{sWO+3}, 0x20000")
    R("s_mul_i32 s6, s4, 98304")
    R(f"s_add_u32 s{sX}, s48, s6")
    R(f"s_addc_u32 s{sX+1}, s49, 0")
    R(f"s_and_b32 s{sX+1}, s{sX+1}, 0xffff")
    R(f"s_mov_b32 s{sX+2}, 98304")
    R(f"s_mov_b32 s{sX+3}, 0x20000")
    R("s_mul_i32 s6, s2, 98304")
    R(f"s_add_u32 s{sWS}, s70, s6")
    R(f"s_addc_u32 s{sWS+1}, s71, 0")
    R(f"s_and_b32 s{sWS+1}, s{sWS+1}, 0xffff")
    R(f"s_mov_b32 s{sWS+2}, 98304")
    R(f"s_mov_b32 s{sWS+3}, 0x20000")
    R("v_bfe_u32 v20, v0, 2, 2")
    R("v_lshrrev_b32 v21, 5, v0")
    R("v_bfe_u32 v22, v0, 4, 1")
    R("v_and_b32 v23, 1, v0")
    R("v_bfe_u32 v24, v0, 1, 1")
    R("v_lshlrev_b32 v25, 2, v20")
    R("v_lshl_add_u32 v26, v21, 1, v25")
    R("v_mul_u32_u24 v26, 1040, v26")
    R("v_lshl_add_u32 v26, v22, 5, v26")
    R("v_lshl_add_u32 v26, v23, 4, v26")
    R("v_lshl_add_u32 v26, v24, 3, v26")
    R("v_and_b32 v27, 31, v0")
    R("v_mul_u32_u24 v27, 1040, v27")
    R("v_lshl_add_u32 v27, v21, 4, v27")
    if P.STAMP:
        R("s_mov_b32 s98, 0")
        R("v_mov_b32 v240, 0")
        R("v_mov_b32 v15, 0")
    R(f"s_cmp_eq_u32 s{sWAVE}, 3")
    R("s_cbranch_scc1 L_wave3")
    STV[0] = 240
    stamp(em)

    R("v_and_b32 v28, 3, v0")
    R("v_lshl_add_u32 v28, v28, 2, v20")
    R("v_mul_u32_u24 v28, 1040, v28")
    R("v_lshl_add_u32 v28, v22, 8, v28")
    R(f"v_lshl_add_u32 v{aK}, v21, 4, v28")
    R("v_add_u32 v28, v25, v21")
    R("v_mul_u32_u24 v28, 1040, v28")
    R("v_and_b32 v29, 3, v0")
    R("v_lshl_add_u32 v29, v29, 3, v28")
    R("v_lshl_add_u32 v29, v22, 5, v29")
    R(f"v_add_u32 v{aV}, {V0}, v29")
    R("v_lshl_add_u32 v29, v23, 5, v28")
    R("v_lshl_add_u32 v29, v22, 4, v29")
    R("v_lshl_add_u32 v29, v24, 3, v29")
    R(f"v_add_u32 v{aWO}, {WO0}, v29")
    R(f"s_lshl_b32 s3, s{sWAVE}, 13")
    R(f"s_add_u32 s3, s3, {QB}")
    R(f"v_lshlrev_b32 v{aQB}, 4, v0")
    R(f"v_add_u32 v{aQB}, s3, v{aQB}")
    R(f"s_mul_i32 s3, s{sWAVE}, {32*1040}")
    R(f"v_add_u32 v{T3}, s3, v27")
    R(f"v_mov_b32 v{AUX}, v26")
    for i in range(256):
        R(f"v_accvgpr_write_b32 a{i}, 0")
    R("s_barrier")
    stamp(em)
    for ks in range(32):
        em.emit(dsr128(XFA(ks), T3, ks*32))
    em.wait_ds(0)
    R("s_barrier")
    stamp(em)
    locs = [WQ0, WQ0+SL, QB, V0, V0+SL, WO0, WO0+SL, WQ0]
    QA = SR[1]
    seq = []; frags = []
    g2 = None
    tmpaddr = [T0, T1]
    for ti in range(8):
        if ti in (3, 7):
            g2 = newgate()
            seq.append(bar(g2, st=True))
        ta = tmpaddr[ti % 2]
        ga = newgate()
        seq.append(valu(f"v_add_u32 v{ta}, {locs[ti]}, v{AUX}", [AUX], [ta]))
        seq.append(MItem('bar', texts=[], rd=[ta], wr=[ga]))
        its = qproj_items(frags, ta, 0, ga, ti % 4, lambda dt2, mt: V(QA + 16*dt2, 16), lambda mt, ks: XFA(ks), 1)
        for it in its: it.rd.append(ta)
        seq += its
        if ti % 4 == 3:
            dh = ti // 4
            for k in range(16):
                seq.append(valu(f"v_cvt_pk_bf16_f32 v{QR+16*dh+k}, v{QA+2*k}, v{QA+2*k+1}", [QA+2*k, QA+2*k+1], [QR+16*dh+k]))
    for i in range(64):
        seq.append(valu(f"v_mov_b32 v{OACC+i}, 0", [], [OACC+i]))
    seq.append(valu(f"v_mov_b32 v{LA_}, 1.0", [], [LA_]))
    seq.append(valu(f"v_mov_b32 v{LB_}, 0", [], [LB_]))
    gA = newgate(); gB = newgate()
    seq.append(bar(gA, st=True))
    seq += qk_items(frags, SR[0], 0, gA)
    seq.append(bar(gB))
    schedule(em, seq, frags, STG, NS, P.LA, budget=P.BUDGET)
    R(f"s_mov_b32 s{sCNT}, 4")
    em.fence()
    em.label("L_att_loop")
    n0 = em.ninstr; nn0 = em.nops; w0 = em.waits
    attention_head(em)
    print(f"attention head body: {em.ninstr-n0} instrs, {em.nops-nn0} nop states, {em.waits-w0} waits", file=sys.stderr)
    R(f"s_sub_u32 s{sCNT}, s{sCNT}, 1")
    R(f"s_cmp_lg_u32 s{sCNT}, 0")
    em.fence()
    R("s_cbranch_scc1 L_att_loop")
    seq = []; frags = []
    g1 = newgate(); g2 = newgate()
    seq.append(bar(g1, st=True))
    seq += finalize_ops()
    seq.append(valu(f"v_subrev_u32 v{T2}, {WO0}, v{aWO}", [aWO], [T2]))
    seq.append(valu(f"v_add_u32 v{T3}, {WQ0-WO0}, v{aWO}", [aWO], [T3]))
    ga = newgate()
    seq.append(MItem('bar', texts=[], rd=[T2, T3], wr=[ga]))
    for ks in range(2):
        seq += opj_items(frags, ks, ks*SL, g1)
    seq.append(bar(g2, st=True))
    for ks in range(2, 6):
        seq += opj_items(frags, ks, (ks-2)*SL, g2, addr=T2)
    for ks in range(6, 8):
        seq += opj_items(frags, ks, (ks-6)*SL, g2, addr=T3)
    schedule(em, seq, frags, STG, NS, P.LA, budget=P.BUDGET)
    stamp(em)
    R(f"s_lshl_b32 s3, s{sWAVE}, 15")
    R(f"v_lshlrev_b32 v{AUX}, 4, v0")
    em.nop(12)
    for nt in range(16):
        b = 48 + (nt % 4) * 16
        for r in range(16):
            em.emit(valu(f"v_accvgpr_read_b32 v{b+r}, a{16*nt+r}", AG(16*nt+r), [b+r]))
        for k in range(8):
            em.emit(valu(f"v_cvt_pk_bf16_f32 v{b+k}, v{b+2*k}, v{b+2*k+1}", [b+2*k, b+2*k+1], [b+k]))
        for q in range(2):
            off = (nt*2 + q) * 1024
            R(f"s_add_u32 s4, s3, {off}")
            em.emit(Op('vmem', f"buffer_store_dwordx4 v[{b+4*q}:{b+4*q+3}], v{AUX}, {srd(sWS)}, s4 offen{P.STPOL}", rd=V(b+4*q, 4) + [AUX], tag='store'))
    stamp(em)
    if P.STAMP: R("s_waitcnt vmcnt(0)")
    stamp(em)
    stamp_store(em)
    R("s_endpgm")

    em.label("L_wave3")
    em.lastw = {}; em.ds = []; em.stdata = {}
    STV[0] = 15
    stamp(em)
    R(f"v_lshlrev_b32 v{w_vlin}, 4, v0")
    R("v_lshrrev_b32 v28, 4, v0")
    R("v_and_b32 v29, 15, v0")
    R("v_lshlrev_b32 v29, 4, v29")
    R(f"v_lshl_add_u32 v{w_vkv}, v28, 12, v29")
    R("v_lshrrev_b32 v28, 3, v0")
    R("v_and_b32 v29, 7, v0")
    R("v_lshlrev_b32 v29, 4, v29")
    R(f"v_lshl_add_u32 v{w_vwq}, v28, 17, v29")
    R(f"v_add_u32 v{w_aWQ}, {WQ0}, v26")
    R(f"v_add_u32 v{w_aQB}, {QB}, v{w_vlin}")
    R(f"v_mov_b32 v{w_aX}, v27")
    R(f"v_add_u32 v7, {64*1040}, v27")
    R(f"s_mov_b32 s{sWQCOL}, 0")
    for m in range(96):
        em.emit(dma(m*1040 - (m % 4)*1024, w_vlin, sX, f"s{sTMP}", off=(m % 4)*1024, pol=P.XPOL,
                    pre=(f"s_mov_b32 s{sTMP}, {m*1024}" if m % 4 == 0 else None)))
    def wq0_tile(ti, loc):
        for o in dma_wq(loc, sWQCOL, (ti % 4)*128*8192 + (ti // 4)*128): em.emit(o)
    for ti in range(3): wq0_tile(ti, locs[ti])
    R("s_waitcnt vmcnt(48)")
    R("s_barrier")
    for mt in range(3):
        for ks in range(32):
            if mt < 2: em.emit(dsr128(XF3(mt, ks), w_aX, mt*32*1040 + ks*32))
            else: em.emit(dsr128(XF3(mt, ks), 7, ks*32))
    em.wait_ds(0)
    R("s_waitcnt vmcnt(0)")
    R("s_barrier")
    R(f"s_mov_b32 s{sKOFF}, 0")
    wq0_tile(3, locs[3])
    for o in dma_kv(K0, sK, f"s{sKOFF}"): em.emit(o)
    wq0_tile(4, locs[4]); wq0_tile(5, locs[5]); wq0_tile(6, locs[6])
    R(f"s_mov_b32 s{sKOFF}, 16384")
    for o in dma_kv(K0+SL, sK, f"s{sKOFF}"): em.emit(o)
    R("s_waitcnt vmcnt(16)")
    R("s_barrier")
    wq0_tile(7, locs[7])
    R(f"s_mov_b32 s{sWQCOL}, 256")
    for o in dma_wq(WQ0+SL, sWQCOL, 0): em.emit(o)
    R("s_waitcnt vmcnt(16)")
    R("s_barrier")
    R(f"s_mov_b32 s{sT}, -1")
    R(f"s_mov_b32 s{sKOFF}, {2*16384}")
    R(f"s_mov_b32 s{sVOFF}, 0")
    R(f"s_mov_b32 s{sWOOFF}, {(-7*16384) & 0xffffffff:#x}")
    R(f"s_mov_b32 s{sCNT}, 8")
    R("s_waitcnt vmcnt(0)")
    em.fence()
    em.label("L_w3_loop")
    n0 = em.ninstr; nn0 = em.nops; w0 = em.waits
    wave3_body(em)
    print(f"wave3 body: {em.ninstr-n0} instrs, {em.nops-nn0} nop states, {em.waits-w0} waits", file=sys.stderr)
    R(f"s_sub_u32 s{sCNT}, s{sCNT}, 1")
    R(f"s_cmp_lg_u32 s{sCNT}, 0")
    em.fence()
    R("s_cbranch_scc1 L_w3_loop")
    R("s_waitcnt vmcnt(32)")
    R("s_barrier")
    R("s_waitcnt vmcnt(0)")
    R("s_barrier")
    for o in dma_wo(WO0 + SL, sWOOFF): em.emit(o)
    R("s_waitcnt vmcnt(0)")
    R("s_barrier")
    for i, loc in enumerate([K0, K0+SL, V0, V0+SL, WQ0, WQ0+SL]):
        R(f"s_add_u32 s{sWOOFF}, s{sWOOFF}, 16384")
        for o in dma_wo(loc, sWOOFF): em.emit(o)
    R("s_waitcnt vmcnt(0)")
    R("s_barrier")
    stamp(em)
    stamp_store(em)
    em.label("L_end")
    R("s_endpgm")

def gen_reduce(em):
    R = em.raw
    em.lines.append(".p2align 8")
    em.lines.append(".globl reduce_kernel")
    em.lines.append(".type reduce_kernel,@function")
    em.label("reduce_kernel")
    R("s_cmp_ge_u32 s2, 768")
    R("s_cbranch_scc1 L_rend")
    R("s_load_dwordx2 s[4:5], s[0:1], 80")
    R("s_load_dwordx2 s[6:7], s[0:1], 96")
    R("v_lshrrev_b32 v1, 6, v0")
    R("v_and_b32 v0, 63, v0")
    R("s_and_b32 s8, s2, 7")
    R("s_lshr_b32 s9, s2, 3")
    R("s_mul_i32 s10, s9, 43691")
    R("s_lshr_b32 s10, s10, 17")
    R("s_mul_i32 s11, s10, 3")
    R("s_sub_u32 s11, s9, s11")
    R("s_lshr_b32 s12, s10, 4")
    R("s_and_b32 s13, s10, 15")
    R("v_and_b32 v2, 7, v0")
    R("v_bfe_u32 v3, v0, 3, 1")
    R("v_bfe_u32 v4, v0, 4, 1")
    R("v_lshrrev_b32 v5, 5, v0")
    R("v_lshl_add_u32 v2, v1, 3, v2")
    R("v_lshlrev_b32 v6, 11, v5")
    R("v_lshl_add_u32 v6, v3, 10, v6")
    R("v_lshl_add_u32 v6, v4, 9, v6")
    R("v_lshl_add_u32 v6, v2, 4, v6")
    R("s_lshl_b32 s14, s11, 15")
    R("s_lshl_b32 s15, s8, 12")
    R("s_add_u32 s14, s14, s15")
    R("s_lshl_b32 s15, s12, 2")
    R("s_lshl_b32 s16, s13, 3")
    R("s_add_u32 s15, s15, s16")
    R("s_mul_i32 s15, s15, 98304")
    R("s_add_u32 s14, s14, s15")
    R("s_waitcnt lgkmcnt(0)")
    R("s_mov_b32 s20, s6")
    R("s_and_b32 s21, s7, 0xffff")
    R(f"s_mov_b32 s22, {256*98304}")
    R("s_mov_b32 s23, 0x20000")
    R("s_mov_b32 s24, s4")
    R("s_and_b32 s25, s5, 0xffff")
    R(f"s_mov_b32 s26, {16*96*1024*2}")
    R("s_mov_b32 s27, 0x20000")
    for hg in range(8):
        d = ((hg // 2) + 128*(hg % 2)) * 98304
        R(f"s_add_u32 s17, s14, {d}")
        R(f"buffer_load_dwordx4 v[{8+4*hg}:{11+4*hg}], v6, s[20:23], s17 offen{P.RDPOL}")
    R("v_lshlrev_b32 v7, 11, v2")
    R("v_lshl_add_u32 v7, v5, 6, v7")
    R("v_lshl_add_u32 v7, v4, 5, v7")
    R("v_lshl_add_u32 v7, v3, 4, v7")
    R("s_mul_i32 s15, s13, 96")
    R("s_lshl_b32 s16, s11, 5")
    R("s_add_u32 s15, s15, s16")
    R("s_lshl_b32 s15, s15, 11")
    R("s_lshl_b32 s16, s12, 10")
    R("s_add_u32 s15, s15, s16")
    R("s_lshl_b32 s16, s8, 7")
    R("s_add_u32 s15, s15, s16")
    for hg in range(8):
        R(f"s_waitcnt vmcnt({7-hg})")
        for k in range(4):
            src = 8 + 4*hg + k
            if hg == 0:
                R(f"v_lshlrev_b32 v{40+2*k}, 16, v{src}")
                R(f"v_and_b32 v{41+2*k}, 0xffff0000, v{src}")
            else:
                R(f"v_lshlrev_b32 v48, 16, v{src}")
                R(f"v_and_b32 v49, 0xffff0000, v{src}")
                R(f"v_add_f32 v{40+2*k}, v{40+2*k}, v48")
                R(f"v_add_f32 v{41+2*k}, v{41+2*k}, v49")
    for k in range(4):
        R(f"v_cvt_pk_bf16_f32 v{52+k}, v{40+2*k}, v{41+2*k}")
    R("buffer_store_dwordx4 v[52:55], v7, s[24:27], s15 offen")
    em.label("L_rend")
    R("s_endpgm")

def build():
    ref = open(f"cdna_kernels/{NAME}.s.ref").read().splitlines()
    head = [l for l in ref if l.startswith(";") and "@launch" not in l]
    em = Em()
    gen_main(em)
    gen_reduce(em)
    out = []
    out += head
    out.append(f"; @launch kernel={NAME}_kernel grid=(256,1,1) block=(256,1,1) lds={LDS_BYTES}")
    out.append(f"; @launch kernel=reduce_kernel grid=(768,1,1) block=(256,1,1) lds=0")
    out.append('.amdgcn_target "amdgcn-amd-amdhsa--gfx950"')
    out.append(".text")
    out.append(f".globl {NAME}_kernel")
    out.append(".p2align 8")
    out.append(f".type {NAME}_kernel,@function")
    out.append(em.text())
    out.append('.section .rodata,"a"')
    for (k, nv, ao) in ((f"{NAME}_kernel", 512, 256), ("reduce_kernel", 64, 64)):
        out.append(".p2align 6")
        out.append(f".amdhsa_kernel {k}")
        out.append(f"  .amdhsa_next_free_vgpr {nv}")
        out.append("  .amdhsa_next_free_sgpr 102")
        out.append(f"  .amdhsa_accum_offset {ao}")
        out.append("  .amdhsa_group_segment_fixed_size 0")
        out.append("  .amdhsa_kernarg_size 104")
        out.append("  .amdhsa_user_sgpr_count 2")
        out.append("  .amdhsa_user_sgpr_kernarg_segment_ptr 1")
        out.append("  .amdhsa_system_sgpr_workgroup_id_x 1")
        out.append(".end_amdhsa_kernel")
    return "\n".join(out) + "\n"

if __name__ == "__main__":
    dst = sys.argv[1] if len(sys.argv) > 1 else f"cdna_kernels/{NAME}.s"
    for a in sys.argv[2:]:
        k, v = a.split("=")
        cur = getattr(P, k)
        setattr(P, k, type(cur)(v) if not isinstance(cur, str) else (" " + v if v else ""))
    open(dst, "w").write(build())
```

```python
import sys, struct
from em import *
from sched import *

NAME = "concat_heads__gqa_block_cached__gqa_block_cached__near_ridge"
SL = 16640
K0, V0, WO0, WQ0, QB = 0, 2*SL, 4*SL, 6*SL, 8*SL
LDS_BYTES = 163840
C_SCALE = 1.4426950408889634 / (128 ** 0.5)
def f32bits(x): return struct.unpack("<I", struct.pack("<f", x))[0]

sK, sV, sWQ, sWO, sX, sWS = 8, 12, 16, 20, 24, 28
sWAVE, sC, sNC, sCNT = 32, 33, 34, 35
sT, sKOFF, sVOFF, sWOOFF, sWQCOL, sTMP = 40, 41, 42, 43, 44, 45
def srd(b): return f"s[{b}:{b+3}]"

aK, aV, aWO, aQB = 1, 2, 3, 4
mR = [5, 6]
LA_, LB_, ALPHA, NMC = 7, 8, 9, 10
T0, T1, T2, T3 = 11, 12, 13, 14
AUX = 15
STG = 16; NS = 8
OACC, QR, OP = 48, 112, 144
SR = [176, 208]
w_vkv, w_vlin, w_vwq, w_aWQ, w_aQB, w_aX = 1, 2, 3, 4, 5, 6
W_STG = 16; W_NS = 4
W_ACC = 32
def XF3(mt, ks):
    if mt < 2: return AG(mt * 128 + ks * 4, 4)
    return V(128 + ks * 4, 4)
def XFA(ks):
    return V(48 + ks * 4, 4) if ks < 16 else V(144 + (ks - 16) * 4, 4)

class P:
    LA = 5
    BUDGET = 6.0
    W_LA = 6
    W_BUDGET = 4.0
    KVPOL = " nt"
    WPOL = " nt"
    XPOL = " nt"
    STPOL = ""
    RDPOL = ""
    STAMP = 0
    CYC = 0
    DBG = 0

gate_ctr = [1000]
def newgate():
    gate_ctr[0] += 1
    return gate_ctr[0]

def v3(op, d, a, b, c):
    return valu(f"{op} v{d}, v{a}, v{b}, v{c}", [a, b, c], [d])

def softmax_ops(j):
    p = j % 2
    S = SR[p]; mo = mR[p]; mn = mR[1 - p]
    ops = []
    T = [T0, T1, T2, T3]
    for k in range(4): ops.append(v3("v_max3_f32", T[k], S+8*k, S+8*k+1, S+8*k+2))
    for k in range(4): ops.append(v3("v_max3_f32", T[k], T[k], S+8*k+3, S+8*k+4))
    for k in range(4): ops.append(v3("v_max3_f32", T[k], T[k], S+8*k+5, S+8*k+6))
    ops.append(v3("v_max3_f32", T0, T0, S+7, T1))
    ops.append(v3("v_max3_f32", T2, T2, S+23, T3))
    ops.append(v3("v_max3_f32", T0, T0, S+15, S+31))
    ops.append(valu(f"v_max_f32 v{T0}, v{T0}, v{T2}", [T0, T2], [T0]))
    ops.append(valu(f"v_mov_b32 v{T1}, v{T0}", [T0], [T1]))
    ops.append(valu(f"v_permlane32_swap_b32 v{T0}, v{T1}", [T0, T1], [T0, T1], kind='perm'))
    if j == 0:
        ops.append(valu(f"v_max_f32 v{mn}, v{T0}, v{T1}", [T0, T1], [mn]))
    else:
        ops.append(v3("v_max3_f32", mn, T0, T1, mo))
    ops.append(valu(f"v_mul_f32 v{NMC}, s{sNC}, v{mn}", [mn], [NMC]))
    if j != 0:
        ops.append(valu(f"v_fma_f32 v{ALPHA}, v{mo}, s{sC}, v{NMC}", [mo, NMC], [ALPHA]))
        ops.append(valu(f"v_exp_f32 v{ALPHA}, v{ALPHA}", [ALPHA], [ALPHA], kind='trans'))
    def fma(i): return valu(f"v_fma_f32 v{S+i}, v{S+i}, s{sC}, v{NMC}", [S+i, NMC], [S+i])
    def ex(i): return valu(f"v_exp_f32 v{S+i}, v{S+i}", [S+i], [S+i], kind='trans')
    def add(i):
        l = LA_ if i % 2 == 0 else LB_
        if i < 2:
            if j == 0: return valu(f"v_mov_b32 v{l}, v{S+i}", [S+i], [l])
            return valu(f"v_fma_f32 v{l}, v{l}, v{ALPHA}, v{S+i}", [l, ALPHA, S+i], [l])
        return valu(f"v_add_f32 v{l}, v{l}, v{S+i}", [l, S+i], [l])
    def cvt(k): return valu(f"v_cvt_pk_bf16_f32 v{S+k}, v{S+2*k}, v{S+2*k+1}", [S+2*k, S+2*k+1], [S+k])
    resc = []
    if j != 0:
        for i in range(64):
            resc.append(valu(f"v_mul_f32 v{OACC+i}, v{ALPHA}, v{OACC+i}", [ALPHA, OACC+i], [OACC+i]))
    body = []
    for g in range(9):
        grp = []
        if g < 8:
            for i in range(4*g, 4*g+4): grp.append(fma(i))
        if g > 0:
            for i in range(4*(g-1), 4*g): grp.append(add(i))
            for k in range(2*(g-1), 2*g): grp.append(cvt(k))
        exs = [ex(i) for i in range(4*g, 4*g+4)] if g < 8 else []
        body.append((grp, exs))
    out = []
    ri = 0
    for g, (grp, exs) in enumerate(body):
        out += grp[:4] if g < 8 else grp
        rest = grp[4:] if g < 8 else []
        fill = rest + resc[ri:ri+8]
        ri += 8
        for e in exs:
            out.append(e)
            n = -(-len(fill) // max(1, len(exs) - exs.index(e)))
            out += fill[:n]; fill = fill[n:]
        out += fill
    out += resc[ri:]
    return ops + out

def finalize_ops():
    ops = []
    ops.append(valu(f"v_add_f32 v{T0}, v{LA_}, v{LB_}", [LA_, LB_], [T0]))
    ops.append(valu(f"v_mov_b32 v{T1}, v{T0}", [T0], [T1]))
    ops.append(valu(f"v_permlane32_swap_b32 v{T0}, v{T1}", [T0, T1], [T0, T1], kind='perm'))
    ops.append(valu(f"v_add_f32 v{T0}, v{T0}, v{T1}", [T0, T1], [T0]))
    ops.append(valu(f"v_rcp_f32 v{AUX}, v{T0}", [T0], [AUX], kind='trans'))
    for k in range(32):
        a, b = OACC + 2*k, OACC + 2*k + 1
        ops.append(valu(f"v_mul_f32 v{a}, v{AUX}, v{a}", [AUX, a], [a]))
        ops.append(valu(f"v_mul_f32 v{b}, v{AUX}, v{b}", [AUX, b], [b]))
        if k > 0:
            kk = k - 1
            ops.append(valu(f"v_cvt_pk_bf16_f32 v{OP+kk}, v{OACC+2*kk}, v{OACC+2*kk+1}", [OACC+2*kk, OACC+2*kk+1], [OP+kk]))
    ops.append(valu(f"v_cvt_pk_bf16_f32 v{OP+31}, v{OACC+62}, v{OACC+63}", [OACC+62, OACC+63], [OP+31]))
    return ops

STV = [240]
def stamp_txt():
    if not P.STAMP: return []
    return [("s_memtime s[96:97]" if P.CYC else "s_memrealtime s[96:97]"), "s_min_u32 m0, s98, 63", "s_waitcnt lgkmcnt(0)", f"v_writelane_b32 v{STV[0]}, s96, m0", "s_add_u32 s98, s98, 1"]
def stamp(em):
    if P.STAMP:
        em.wait_ds(0)
        for t in stamp_txt(): em.raw(t)
def stamp_store(em):
    if not P.STAMP: return
    R = em.raw
    R("s_lshl_b32 s3, s2, 2")
    R(f"s_add_u32 s3, s3, s{sWAVE}")
    R("s_lshl_b32 s3, s3, 8")
    R("s_add_u32 s92, s70, 0x2000000")
    R("s_addc_u32 s93, s71, 0")
    R("s_and_b32 s93, s93, 0xffff")
    R("s_mov_b32 s94, 0x40000")
    R("s_mov_b32 s95, 0x20000")
    R("v_lshlrev_b32 v0, 2, v0")
    R(f"buffer_store_dword v{STV[0]}, v0, s[92:95], s3 offen")
def bar(gate, pre=(), rd=(), drain=False, st=False):
    post = stamp_txt() if st else []
    if st and P.STAMP >= 2: pre = list(pre) + stamp_txt()
    return MItem('bar', texts=list(pre) + ["s_barrier"] + post, rd=rd, wr=[gate], drain=drain or bool(post))

def qk_items(frags, Sdst, kslot, gate):
    it = []
    for sub in range(2):
        for ks in range(8):
            frags.append(Frag([('b128', aK, K0 + kslot*SL + sub*512 + ks*32, 0)], gate))
            it.append(MItem('mfma', D=V(Sdst + 16*sub, 16), B=V(QR + 4*ks, 4), acc=(ks != 0), frag=len(frags)-1))
    return it
def opj_items(frags, ks, woff, gate, addr=aWO):
    it = []
    for nt in range(16):
        frags.append(Frag([('tr', addr, woff + t*2080 + nt*64, 2*t) for t in range(2)], gate))
        it.append(MItem('mfma', D=AG(16*nt, 16), B=V(OP + 4*ks, 4), acc=True, frag=len(frags)-1))
    return it
def pv_items(frags, S, vslot, gate, first):
    it = []
    for s in range(4):
        for dt in range(4):
            frags.append(Frag([('tr', aV, vslot*SL + t*2080 + s*256 + dt*64, 2*t) for t in range(2)], gate))
            it.append(MItem('mfma', D=V(OACC + 16*dt, 16), B=V(S + 4*s, 4), acc=not (first and s == 0), frag=len(frags)-1))
    return it

def attention_head(em):
    seq = []; frags = []
    gB_prev = None
    for j in range(8):
        p = j % 2
        gA = newgate(); gB = newgate()
        seq.append(bar(gA, st=True))
        if j == 0:
            seq += finalize_ops()
        if j == 7:
            for ks in range(8):
                op = dsr128(V(QR + 4*ks, 4), aQB, ks*1024)
                op.rd.append(gA)
                seq.append(op)
        qk = qk_items(frags, SR[1-p], (j+1) % 2, gB_prev)
        if j == 7:
            del frags[-16:]
            oj = opj_items(frags, j, (j % 2)*SL, gB_prev)
            qk = qk_items(frags, SR[1-p], (j+1) % 2, gB_prev)
            seq += oj + qk
        else:
            oj = opj_items(frags, j, (j % 2)*SL, gB_prev)
            seq += qk + oj
        seq += softmax_ops(j)
        seq.append(bar(gB, st=(P.STAMP >= 2)))
        seq += pv_items(frags, SR[p], j % 2, gA, j == 0)
        gB_prev = gB
    schedule(em, seq, frags, STG, NS, P.LA, budget=P.BUDGET)

def dma(m0val, voff, srdb, soff, off=0, pol="", pre=None, rd=(), wr=()):
    lines = [f"s_mov_b32 m0, {m0val}", pre if pre else "s_nop 0",
             f"buffer_load_dwordx4 v{voff}, {srd(srdb)}, {soff} offen" + (f" offset:{off}" if off else "") + f"{pol} lds"]
    return Op('salu', "\n    ".join(lines), rd=rd, wr=wr, cost=2)

def perm16(j): return 4*(j % 4) + j // 4

def dma_kv(slotbase, srdb, soff):
    return [dma(slotbase + 1040*j - perm16(j)*256, w_vkv, srdb, soff, off=perm16(j)*256, pol=P.KVPOL) for j in range(16)]
def dma_wo(slotbase, soffreg):
    ops = []
    for jj in range(4):
        for jh in range(4):
            j = jh*4 + jj
            pre = f"s_add_u32 s{sTMP}, s{soffreg}, {jj*4096}" if jh == 0 else None
            ops.append(dma(slotbase + 1040*j - jh*1024, w_vlin, sWO, f"s{sTMP}", off=jh*1024, pol=P.WPOL, pre=pre))
    return ops
def dma_wq(slotbase, colreg, const):
    return [dma(slotbase + 1040*j, w_vwq, sWQ, f"s{sTMP+1}", pol=P.WPOL,
                pre=f"s_add_u32 s{sTMP+1}, s{colreg}, {const + perm16(j)*8192}") for j in range(16)]

def salu(text, rd=(), wr=()):
    return Op('salu', text, rd=rd, wr=wr, cost=0.5)

def qproj_items(frags, addr, base, gate, kq, acc_regs, xfrag, nmt):
    it = []
    for ks in range(8):
        for dt2 in range(2):
            frags.append(Frag([('tr', addr, base + t*1040 + ks*128 + dt2*64, 2*t) for t in range(2)], gate))
            for mt in range(nmt):
                it.append(MItem('mfma', D=acc_regs(dt2, mt), B=xfrag(mt, kq*8 + ks), acc=not (kq == 0 and ks == 0), frag=len(frags)-1))
    return it

def wave3_body(em):
    seq = []; frags = []
    acc = lambda dt2, mt: V(W_ACC + (dt2*3 + mt)*16, 16)
    lastB = None
    for kq in range(4):
        gA = newgate(); gB = newgate(); dA = newgate(); dB = newgate()
        rdA = [lastB] if lastB else []
        seq.append(bar(gA, pre=stamp_txt() + ["s_waitcnt vmcnt(32)"] + (stamp_txt() if P.STAMP >= 2 else []), rd=rdA, drain=(kq == 0) or bool(P.STAMP)))
        pre = [
            f"s_cmp_le_i32 s{sT}, 21\n    s_cselect_b32 s{sWQ+2}, s{sTMP+2}, 0",
            f"s_cmp_le_i32 s{sT}, 30\n    s_cselect_b32 s{sV+2}, 0x80000, 0",
        ]
        A = [salu(x, rd=[gA]) for x in pre]
        if kq == 3:
            A.append(salu(f"s_add_u32 s{sWQCOL}, s{sWQCOL}, 128", rd=[gA]))
        A += dma_wq(WQ0 + (kq % 2)*SL, sWQCOL, ((kq+1) % 4) * 128 * 8192)
        A += dma_kv(V0 + (kq % 2)*SL, sV, f"s{sVOFF}")
        A.append(salu(f"s_add_u32 s{sVOFF}, s{sVOFF}, 16384", wr=[dA]))
        items = qproj_items(frags, w_aWQ, ((kq+1) % 2)*SL, gA, kq, acc, XF3, 3)
        seq += A
        seq += items[:30]
        s2 = stamp_txt() if P.STAMP >= 2 else []
        seq.append(bar(gB, pre=s2 + ["s_waitcnt vmcnt(32)"] + s2, rd=[dA], drain=bool(s2)))
        pre = [
            f"s_cmp_le_i32 s{sT}, 28\n    s_cselect_b32 s{sK+2}, 0x80000, 0",
            f"s_cmp_ge_i32 s{sT}, 6\n    s_cselect_b32 s{sWO+2}, 0x80000, 0",
        ]
        B = [salu(x, rd=[gB]) for x in pre]
        B += dma_kv(K0 + (kq % 2)*SL, sK, f"s{sKOFF}")
        B += dma_wo(WO0 + ((kq+1) % 2)*SL, sWOOFF)
        B.append(salu(f"s_add_u32 s{sKOFF}, s{sKOFF}, 16384\n    s_add_u32 s{sWOOFF}, s{sWOOFF}, 16384\n    s_add_u32 s{sT}, s{sT}, 1", wr=[dB]))
        seq += B
        seq += items[30:]
        if kq == 3:
            for dt2 in range(2):
                for mt in range(3):
                    a = acc(dt2, mt)[0]
                    for k in range(8):
                        seq.append(valu(f"v_cvt_pk_bf16_f32 v{a+k}, v{a+2*k}, v{a+2*k+1}", [a+2*k, a+2*k+1], [a+k]))
                    for s2 in range(2):
                        seq.append(dsw128(w_aQB, V(a + 4*s2, 4), mt*8192 + (dt2*2 + s2)*1024))
            seq.append(valu(f"v_xor_b32 v{w_aQB}, 0x1000, v{w_aQB}", [w_aQB], [w_aQB]))
        lastB = dB
    schedule(em, seq, frags, W_STG, W_NS, P.W_LA, budget=P.W_BUDGET)

def gen_main(em):
    R = em.raw
    em.label(f"{NAME}_kernel")
    R("s_cmp_ge_u32 s2, 256")
    R("s_cbranch_scc1 L_end")
    R("s_load_dwordx8 s[48:55], s[0:1], 0")
    R("s_load_dwordx2 s[56:57], s[0:1], 32")
    R("s_load_dwordx8 s[60:67], s[0:1], 40")
    R("s_load_dwordx2 s[68:69], s[0:1], 72")
    R("s_load_dwordx2 s[70:71], s[0:1], 96")
    R("v_lshrrev_b32 v1, 6, v0")
    R("v_and_b32 v0, 63, v0")
    R(f"v_readfirstlane_b32 s{sWAVE}, v1")
    R("s_and_b32 s3, s2, 7")
    R("s_lshr_b32 s4, s2, 3")
    R("s_lshr_b32 s5, s3, 2")
    R("s_and_b32 s3, s3, 3")
    R("s_lshl_b32 s3, s3, 1")
    R("s_lshr_b32 s6, s4, 4")
    R("s_add_u32 s3, s3, s6")
    R("s_and_b32 s4, s4, 15")
    R(f"s_mov_b32 s{sC}, {f32bits(C_SCALE):#x}")
    R(f"s_mov_b32 s{sNC}, {f32bits(-C_SCALE):#x}")
    R("s_waitcnt lgkmcnt(0)")
    R("s_cmp_eq_u32 s5, 0")
    for i in range(5):
        R(f"s_cselect_b64 s[{48+2*i}:{49+2*i}], s[{48+2*i}:{49+2*i}], s[{60+2*i}:{61+2*i}]")
    R("s_lshl_b32 s6, s4, 22")
    R("s_lshl_b32 s7, s3, 19")
    R("s_add_u32 s6, s6, s7")
    for (d, p) in ((sK, 50), (sV, 52)):
        R(f"s_add_u32 s{d}, s{p}, s6")
        R(f"s_addc_u32 s{d+1}, s{p+1}, 0")
        R(f"s_and_b32 s{d+1}, s{d+1}, 0xffff")
        R(f"s_mov_b32 s{d+2}, 0x80000")
        R(f"s_mov_b32 s{d+3}, 0x20000")
    R("s_lshl_b32 s6, s3, 10")
    R(f"s_add_u32 s{sWQ}, s54, s6")
    R(f"s_addc_u32 s{sWQ+1}, s55, 0")
    R(f"s_and_b32 s{sWQ+1}, s{sWQ+1}, 0xffff")
    R(f"s_sub_u32 s{sWQ+2}, 0x400000, s6")
    R(f"s_mov_b32 s{sTMP+2}, s{sWQ+2}")
    R(f"s_mov_b32 s{sWQ+3}, 0x20000")
    R(f"s_add_u32 s{sWO}, s56, s7")
    R(f"s_addc_u32 s{sWO+1}, s57, 0")
    R(f"s_and_b32 s{sWO+1}, s{sWO+1}, 0xffff")
    R(f"s_mov_b32 s{sWO+2}, 0x80000")
    R(f"s_mov_b32 s{sWO+3}, 0x20000")
    R("s_mul_i32 s6, s4, 98304")
    R(f"s_add_u32 s{sX}, s48, s6")
    R(f"s_addc_u32 s{sX+1}, s49, 0")
    R(f"s_and_b32 s{sX+1}, s{sX+1}, 0xffff")
    R(f"s_mov_b32 s{sX+2}, 98304")
    R(f"s_mov_b32 s{sX+3}, 0x20000")
    R("s_mul_i32 s6, s2, 98304")
    R(f"s_add_u32 s{sWS}, s70, s6")
    R(f"s_addc_u32 s{sWS+1}, s71, 0")
    R(f"s_and_b32 s{sWS+1}, s{sWS+1}, 0xffff")
    R(f"s_mov_b32 s{sWS+2}, 98304")
    R(f"s_mov_b32 s{sWS+3}, 0x20000")
    R("v_bfe_u32 v20, v0, 2, 2")
    R("v_lshrrev_b32 v21, 5, v0")
    R("v_bfe_u32 v22, v0, 4, 1")
    R("v_and_b32 v23, 1, v0")
    R("v_bfe_u32 v24, v0, 1, 1")
    R("v_lshlrev_b32 v25, 2, v20")
    R("v_lshl_add_u32 v26, v21, 1, v25")
    R("v_mul_u32_u24 v26, 1040, v26")
    R("v_lshl_add_u32 v26, v22, 5, v26")
    R("v_lshl_add_u32 v26, v23, 4, v26")
    R("v_lshl_add_u32 v26, v24, 3, v26")
    R("v_and_b32 v27, 31, v0")
    R("v_mul_u32_u24 v27, 1040, v27")
    R("v_lshl_add_u32 v27, v21, 4, v27")
    if P.STAMP:
        R("s_mov_b32 s98, 0")
        R("v_mov_b32 v240, 0")
        R("v_mov_b32 v15, 0")
    R(f"s_cmp_eq_u32 s{sWAVE}, 3")
    R("s_cbranch_scc1 L_wave3")
    STV[0] = 240
    stamp(em)

    R("v_and_b32 v28, 3, v0")
    R("v_lshl_add_u32 v28, v28, 2, v20")
    R("v_mul_u32_u24 v28, 1040, v28")
    R("v_lshl_add_u32 v28, v22, 8, v28")
    R(f"v_lshl_add_u32 v{aK}, v21, 4, v28")
    R("v_add_u32 v28, v25, v21")
    R("v_mul_u32_u24 v28, 1040, v28")
    R("v_and_b32 v29, 3, v0")
    R("v_lshl_add_u32 v29, v29, 3, v28")
    R("v_lshl_add_u32 v29, v22, 5, v29")
    R(f"v_add_u32 v{aV}, {V0}, v29")
    R("v_lshl_add_u32 v29, v23, 5, v28")
    R("v_lshl_add_u32 v29, v22, 4, v29")
    R("v_lshl_add_u32 v29, v24, 3, v29")
    R(f"v_add_u32 v{aWO}, {WO0}, v29")
    R(f"s_lshl_b32 s3, s{sWAVE}, 13")
    R(f"s_add_u32 s3, s3, {QB}")
    R(f"v_lshlrev_b32 v{aQB}, 4, v0")
    R(f"v_add_u32 v{aQB}, s3, v{aQB}")
    R(f"s_mul_i32 s3, s{sWAVE}, {32*1040}")
    R(f"v_add_u32 v{T3}, s3, v27")
    R(f"v_mov_b32 v{AUX}, v26")
    for i in range(256):
        R(f"v_accvgpr_write_b32 a{i}, 0")
    R("s_barrier")
    stamp(em)
    for ks in range(32):
        em.emit(dsr128(XFA(ks), T3, ks*32))
    em.wait_ds(0)
    R("s_barrier")
    stamp(em)
    locs = [WQ0, WQ0+SL, QB, V0, V0+SL, WO0, WO0+SL, WQ0]
    QA = SR[1]
    seq = []; frags = []
    g2 = None
    tmpaddr = [T0, T1]
    for ti in range(8):
        if ti in (3, 7):
            g2 = newgate()
            seq.append(bar(g2, st=True))
        ta = tmpaddr[ti % 2]
        ga = newgate()
        seq.append(valu(f"v_add_u32 v{ta}, {locs[ti]}, v{AUX}", [AUX], [ta]))
        seq.append(MItem('bar', texts=[], rd=[ta], wr=[ga]))
        its = qproj_items(frags, ta, 0, ga, ti % 4, lambda dt2, mt: V(QA + 16*dt2, 16), lambda mt, ks: XFA(ks), 1)
        for it in its: it.rd.append(ta)
        seq += its
        if ti % 4 == 3:
            dh = ti // 4
            for k in range(16):
                seq.append(valu(f"v_cvt_pk_bf16_f32 v{QR+16*dh+k}, v{QA+2*k}, v{QA+2*k+1}", [QA+2*k, QA+2*k+1], [QR+16*dh+k]))
    for i in range(64):
        seq.append(valu(f"v_mov_b32 v{OACC+i}, 0", [], [OACC+i]))
    seq.append(valu(f"v_mov_b32 v{LA_}, 1.0", [], [LA_]))
    seq.append(valu(f"v_mov_b32 v{LB_}, 0", [], [LB_]))
    gA = newgate(); gB = newgate()
    seq.append(bar(gA, st=True))
    seq += qk_items(frags, SR[0], 0, gA)
    seq.append(bar(gB))
    schedule(em, seq, frags, STG, NS, P.LA, budget=P.BUDGET)
    R(f"s_mov_b32 s{sCNT}, 4")
    em.fence()
    em.label("L_att_loop")
    n0 = em.ninstr; nn0 = em.nops; w0 = em.waits
    attention_head(em)
    print(f"attention head body: {em.ninstr-n0} instrs, {em.nops-nn0} nop states, {em.waits-w0} waits", file=sys.stderr)
    R(f"s_sub_u32 s{sCNT}, s{sCNT}, 1")
    R(f"s_cmp_lg_u32 s{sCNT}, 0")
    em.fence()
    R("s_cbranch_scc1 L_att_loop")
    seq = []; frags = []
    g1 = newgate(); g2 = newgate()
    seq.append(bar(g1, st=True))
    seq += finalize_ops()
    seq.append(valu(f"v_subrev_u32 v{T2}, {WO0}, v{aWO}", [aWO], [T2]))
    seq.append(valu(f"v_add_u32 v{T3}, {WQ0-WO0}, v{aWO}", [aWO], [T3]))
    ga = newgate()
    seq.append(MItem('bar', texts=[], rd=[T2, T3], wr=[ga]))
    for ks in range(2):
        seq += opj_items(frags, ks, ks*SL, g1)
    seq.append(bar(g2, st=True))
    for ks in range(2, 6):
        seq += opj_items(frags, ks, (ks-2)*SL, g2, addr=T2)
    for ks in range(6, 8):
        seq += opj_items(frags, ks, (ks-6)*SL, g2, addr=T3)
    schedule(em, seq, frags, STG, NS, P.LA, budget=P.BUDGET)
    stamp(em)
    R(f"s_lshl_b32 s3, s{sWAVE}, 15")
    R(f"v_lshlrev_b32 v{AUX}, 4, v0")
    em.nop(12)
    for nt in range(16):
        b = 48 + (nt % 4) * 16
        for r in range(16):
            em.emit(valu(f"v_accvgpr_read_b32 v{b+r}, a{16*nt+r}", AG(16*nt+r), [b+r]))
        for k in range(8):
            em.emit(valu(f"v_cvt_pk_bf16_f32 v{b+k}, v{b+2*k}, v{b+2*k+1}", [b+2*k, b+2*k+1], [b+k]))
        for q in range(2):
            off = (nt*2 + q) * 1024
            R(f"s_add_u32 s4, s3, {off}")
            em.emit(Op('vmem', f"buffer_store_dwordx4 v[{b+4*q}:{b+4*q+3}], v{AUX}, {srd(sWS)}, s4 offen{P.STPOL}", rd=V(b+4*q, 4) + [AUX], tag='store'))
    stamp(em)
    if P.STAMP: R("s_waitcnt vmcnt(0)")
    stamp(em)
    stamp_store(em)
    if P.DBG:
        R("s_load_dwordx2 s[72:73], s[0:1], 88")
        R("v_readlane_b32 s76, v240, 0")
        R("v_readlane_b32 s77, v240, 6")
        R("v_readlane_b32 s78, v240, 38")
        R("v_readlane_b32 s79, v240, 42")
        R("v_readlane_b32 s80, v240, 1")
        R("s_waitcnt lgkmcnt(0)")
        R("s_and_b32 s73, s73, 0xffff")
        R("s_mov_b32 s74, 256")
        R("s_mov_b32 s75, 0x20000")
        R("s_not_b32 s81, s76")
        R("s_sub_u32 s77, s77, s76")
        R("s_sub_u32 s78, s78, s76")
        R("s_sub_u32 s82, s79, s76")
        R("s_not_b32 s83, s82")
        R("s_sub_u32 s80, s80, s76")
        R("v_mov_b32 v1, 0")
        for i, sr in enumerate([81, 76, 79, 77, 78, 82, 83, 80]):
            R(f"v_writelane_b32 v1, s{sr}, {i}")
        R("v_cmp_gt_u32 vcc, 32, v0")
        R("s_and_saveexec_b64 s[84:85], vcc")
        R("buffer_atomic_umax v1, v0, s[72:75], 0 offen")
        R("s_waitcnt vmcnt(0)")
    R("s_endpgm")

    em.label("L_wave3")
    em.lastw = {}; em.ds = []; em.stdata = {}
    STV[0] = 15
    stamp(em)
    R(f"v_lshlrev_b32 v{w_vlin}, 4, v0")
    R("v_lshrrev_b32 v28, 4, v0")
    R("v_and_b32 v29, 15, v0")
    R("v_lshlrev_b32 v29, 4, v29")
    R(f"v_lshl_add_u32 v{w_vkv}, v28, 12, v29")
    R("v_lshrrev_b32 v28, 3, v0")
    R("v_and_b32 v29, 7, v0")
    R("v_lshlrev_b32 v29, 4, v29")
    R(f"v_lshl_add_u32 v{w_vwq}, v28, 17, v29")
    R(f"v_add_u32 v{w_aWQ}, {WQ0}, v26")
    R(f"v_add_u32 v{w_aQB}, {QB}, v{w_vlin}")
    R(f"v_mov_b32 v{w_aX}, v27")
    R(f"v_add_u32 v7, {64*1040}, v27")
    R(f"s_mov_b32 s{sWQCOL}, 0")
    for m in range(96):
        em.emit(dma(m*1040 - (m % 4)*1024, w_vlin, sX, f"s{sTMP}", off=(m % 4)*1024, pol=P.XPOL,
                    pre=(f"s_mov_b32 s{sTMP}, {m*1024}" if m % 4 == 0 else None)))
    def wq0_tile(ti, loc):
        for o in dma_wq(loc, sWQCOL, (ti % 4)*128*8192 + (ti // 4)*128): em.emit(o)
    for ti in range(3): wq0_tile(ti, locs[ti])
    R("s_waitcnt vmcnt(48)")
    R("s_barrier")
    for mt in range(3):
        for ks in range(32):
            if mt < 2: em.emit(dsr128(XF3(mt, ks), w_aX, mt*32*1040 + ks*32))
            else: em.emit(dsr128(XF3(mt, ks), 7, ks*32))
    em.wait_ds(0)
    R("s_waitcnt vmcnt(0)")
    R("s_barrier")
    R(f"s_mov_b32 s{sKOFF}, 0")
    wq0_tile(3, locs[3])
    for o in dma_kv(K0, sK, f"s{sKOFF}"): em.emit(o)
    wq0_tile(4, locs[4]); wq0_tile(5, locs[5]); wq0_tile(6, locs[6])
    R(f"s_mov_b32 s{sKOFF}, 16384")
    for o in dma_kv(K0+SL, sK, f"s{sKOFF}"): em.emit(o)
    R("s_waitcnt vmcnt(16)")
    R("s_barrier")
    wq0_tile(7, locs[7])
    R(f"s_mov_b32 s{sWQCOL}, 256")
    for o in dma_wq(WQ0+SL, sWQCOL, 0): em.emit(o)
    R("s_waitcnt vmcnt(16)")
    R("s_barrier")
    R(f"s_mov_b32 s{sT}, -1")
    R(f"s_mov_b32 s{sKOFF}, {2*16384}")
    R(f"s_mov_b32 s{sVOFF}, 0")
    R(f"s_mov_b32 s{sWOOFF}, {(-7*16384) & 0xffffffff:#x}")
    R(f"s_mov_b32 s{sCNT}, 8")
    R("s_waitcnt vmcnt(0)")
    em.fence()
    em.label("L_w3_loop")
    n0 = em.ninstr; nn0 = em.nops; w0 = em.waits
    wave3_body(em)
    print(f"wave3 body: {em.ninstr-n0} instrs, {em.nops-nn0} nop states, {em.waits-w0} waits", file=sys.stderr)
    R(f"s_sub_u32 s{sCNT}, s{sCNT}, 1")
    R(f"s_cmp_lg_u32 s{sCNT}, 0")
    em.fence()
    R("s_cbranch_scc1 L_w3_loop")
    R("s_waitcnt vmcnt(32)")
    R("s_barrier")
    R("s_waitcnt vmcnt(0)")
    R("s_barrier")
    for o in dma_wo(WO0 + SL, sWOOFF): em.emit(o)
    R("s_waitcnt vmcnt(0)")
    R("s_barrier")
    for i, loc in enumerate([K0, K0+SL, V0, V0+SL, WQ0, WQ0+SL]):
        R(f"s_add_u32 s{sWOOFF}, s{sWOOFF}, 16384")
        for o in dma_wo(loc, sWOOFF): em.emit(o)
    R("s_waitcnt vmcnt(0)")
    R("s_barrier")
    stamp(em)
    stamp_store(em)
    em.label("L_end")
    R("s_endpgm")

def gen_reduce(em):
    R = em.raw
    em.lines.append(".p2align 8")
    em.lines.append(".globl reduce_kernel")
    em.lines.append(".type reduce_kernel,@function")
    em.label("reduce_kernel")
    R("s_cmp_ge_u32 s2, 768")
    R("s_cbranch_scc1 L_rend")
    R("s_load_dwordx2 s[4:5], s[0:1], 80")
    R("s_load_dwordx2 s[6:7], s[0:1], 96")
    R("v_lshrrev_b32 v1, 6, v0")
    R("v_and_b32 v0, 63, v0")
    R("s_and_b32 s8, s2, 7")
    R("s_lshr_b32 s9, s2, 3")
    R("s_mul_i32 s10, s9, 43691")
    R("s_lshr_b32 s10, s10, 17")
    R("s_mul_i32 s11, s10, 3")
    R("s_sub_u32 s11, s9, s11")
    R("s_lshr_b32 s12, s10, 4")
    R("s_and_b32 s13, s10, 15")
    R("v_and_b32 v2, 7, v0")
    R("v_bfe_u32 v3, v0, 3, 1")
    R("v_bfe_u32 v4, v0, 4, 1")
    R("v_lshrrev_b32 v5, 5, v0")
    R("v_lshl_add_u32 v2, v1, 3, v2")
    R("v_lshlrev_b32 v6, 11, v5")
    R("v_lshl_add_u32 v6, v3, 10, v6")
    R("v_lshl_add_u32 v6, v4, 9, v6")
    R("v_lshl_add_u32 v6, v2, 4, v6")
    R("s_lshl_b32 s14, s11, 15")
    R("s_lshl_b32 s15, s8, 12")
    R("s_add_u32 s14, s14, s15")
    R("s_lshl_b32 s15, s12, 2")
    R("s_lshl_b32 s16, s13, 3")
    R("s_add_u32 s15, s15, s16")
    R("s_mul_i32 s15, s15, 98304")
    R("s_add_u32 s14, s14, s15")
    R("s_waitcnt lgkmcnt(0)")
    R("s_mov_b32 s20, s6")
    R("s_and_b32 s21, s7, 0xffff")
    R(f"s_mov_b32 s22, {256*98304}")
    R("s_mov_b32 s23, 0x20000")
    R("s_mov_b32 s24, s4")
    R("s_and_b32 s25, s5, 0xffff")
    R(f"s_mov_b32 s26, {16*96*1024*2}")
    R("s_mov_b32 s27, 0x20000")
    for hg in range(8):
        d = ((hg // 2) + 128*(hg % 2)) * 98304
        R(f"s_add_u32 s17, s14, {d}")
        R(f"buffer_load_dwordx4 v[{8+4*hg}:{11+4*hg}], v6, s[20:23], s17 offen{P.RDPOL}")
    R("v_lshlrev_b32 v7, 11, v2")
    R("v_lshl_add_u32 v7, v5, 6, v7")
    R("v_lshl_add_u32 v7, v4, 5, v7")
    R("v_lshl_add_u32 v7, v3, 4, v7")
    R("s_mul_i32 s15, s13, 96")
    R("s_lshl_b32 s16, s11, 5")
    R("s_add_u32 s15, s15, s16")
    R("s_lshl_b32 s15, s15, 11")
    R("s_lshl_b32 s16, s12, 10")
    R("s_add_u32 s15, s15, s16")
    R("s_lshl_b32 s16, s8, 7")
    R("s_add_u32 s15, s15, s16")
    for hg in range(8):
        R(f"s_waitcnt vmcnt({7-hg})")
        for k in range(4):
            src = 8 + 4*hg + k
            if hg == 0:
                R(f"v_lshlrev_b32 v{40+2*k}, 16, v{src}")
                R(f"v_and_b32 v{41+2*k}, 0xffff0000, v{src}")
            else:
                R(f"v_lshlrev_b32 v48, 16, v{src}")
                R(f"v_and_b32 v49, 0xffff0000, v{src}")
                R(f"v_add_f32 v{40+2*k}, v{40+2*k}, v48")
                R(f"v_add_f32 v{41+2*k}, v{41+2*k}, v49")
    for k in range(4):
        R(f"v_cvt_pk_bf16_f32 v{52+k}, v{40+2*k}, v{41+2*k}")
    R("buffer_store_dwordx4 v[52:55], v7, s[24:27], s15 offen")
    em.label("L_rend")
    R("s_endpgm")

def build():
    ref = open(f"cdna_kernels/{NAME}.s.ref").read().splitlines()
    head = [l for l in ref if l.startswith(";") and "@launch" not in l]
    em = Em()
    gen_main(em)
    gen_reduce(em)
    out = []
    out += head
    out.append(f"; @launch kernel={NAME}_kernel grid=(256,1,1) block=(256,1,1) lds={LDS_BYTES}")
    out.append(f"; @launch kernel=reduce_kernel grid=(768,1,1) block=(256,1,1) lds=0")
    out.append('.amdgcn_target "amdgcn-amd-amdhsa--gfx950"')
    out.append(".text")
    out.append(f".globl {NAME}_kernel")
    out.append(".p2align 8")
    out.append(f".type {NAME}_kernel,@function")
    out.append(em.text())
    out.append('.section .rodata,"a"')
    for (k, nv, ao) in ((f"{NAME}_kernel", 512, 256), ("reduce_kernel", 64, 64)):
        out.append(".p2align 6")
        out.append(f".amdhsa_kernel {k}")
        out.append(f"  .amdhsa_next_free_vgpr {nv}")
        out.append("  .amdhsa_next_free_sgpr 102")
        out.append(f"  .amdhsa_accum_offset {ao}")
        out.append("  .amdhsa_group_segment_fixed_size 0")
        out.append("  .amdhsa_kernarg_size 104")
        out.append("  .amdhsa_user_sgpr_count 2")
        out.append("  .amdhsa_user_sgpr_kernarg_segment_ptr 1")
        out.append("  .amdhsa_system_sgpr_workgroup_id_x 1")
        out.append(".end_amdhsa_kernel")
    return "\n".join(out) + "\n"

if __name__ == "__main__":
    dst = sys.argv[1] if len(sys.argv) > 1 else f"cdna_kernels/{NAME}.s"
    for a in sys.argv[2:]:
        k, v = a.split("=")
        cur = getattr(P, k)
        setattr(P, k, type(cur)(v) if not isinstance(cur, str) else (" " + v if v else ""))
    open(dst, "w").write(build())
```

```python
import sys, struct
from em import *
from sched import *

NAME = "concat_heads__gqa_block_cached__gqa_block_cached__near_ridge"
SL = 16640
K0, V0, WO0, WQ0, QB = 0, 2*SL, 4*SL, 6*SL, 8*SL
LDS_BYTES = 163840
C_SCALE = 1.4426950408889634 / (128 ** 0.5)
def f32bits(x): return struct.unpack("<I", struct.pack("<f", x))[0]

sK, sV, sWQ, sWO, sX, sWS = 8, 12, 16, 20, 24, 28
sWAVE, sC, sNC, sCNT = 32, 33, 34, 35
sT, sKOFF, sVOFF, sWOOFF, sWQCOL, sTMP = 40, 41, 42, 43, 44, 45
def srd(b): return f"s[{b}:{b+3}]"

aK, aV, aWO, aQB = 1, 2, 3, 4
mR = [5, 6]
LA_, LB_, ALPHA, NMC = 7, 8, 9, 10
T0, T1, T2, T3 = 11, 12, 13, 14
AUX = 15
STG = 16; NS = 8
OACC, QR, OP = 48, 112, 144
SR = [176, 208]
w_vkv, w_vlin, w_vwq, w_aWQ, w_aQB, w_aX = 1, 2, 3, 4, 5, 6
W_STG = 16; W_NS = 4
W_ACC = 32
def XF3(mt, ks):
    if mt < 2: return AG(mt * 128 + ks * 4, 4)
    return V(128 + ks * 4, 4)
def XFA(ks):
    return V(48 + ks * 4, 4) if ks < 16 else V(144 + (ks - 16) * 4, 4)

class P:
    LA = 5
    BUDGET = 6.0
    W_LA = 6
    W_BUDGET = 4.0
    KVPOL = " nt"
    WPOL = " nt"
    XPOL = " nt"
    STPOL = ""
    RDPOL = ""
    STAMP = 0
    CYC = 0
    DBG = 0

gate_ctr = [1000]
def newgate():
    gate_ctr[0] += 1
    return gate_ctr[0]

def v3(op, d, a, b, c):
    return valu(f"{op} v{d}, v{a}, v{b}, v{c}", [a, b, c], [d])

def softmax_ops(j):
    p = j % 2
    S = SR[p]; mo = mR[p]; mn = mR[1 - p]
    ops = []
    T = [T0, T1, T2, T3]
    for k in range(4): ops.append(v3("v_max3_f32", T[k], S+8*k, S+8*k+1, S+8*k+2))
    for k in range(4): ops.append(v3("v_max3_f32", T[k], T[k], S+8*k+3, S+8*k+4))
    for k in range(4): ops.append(v3("v_max3_f32", T[k], T[k], S+8*k+5, S+8*k+6))
    ops.append(v3("v_max3_f32", T0, T0, S+7, T1))
    ops.append(v3("v_max3_f32", T2, T2, S+23, T3))
    ops.append(v3("v_max3_f32", T0, T0, S+15, S+31))
    ops.append(valu(f"v_max_f32 v{T0}, v{T0}, v{T2}", [T0, T2], [T0]))
    ops.append(valu(f"v_mov_b32 v{T1}, v{T0}", [T0], [T1]))
    ops.append(valu(f"v_permlane32_swap_b32 v{T0}, v{T1}", [T0, T1], [T0, T1], kind='perm'))
    if j == 0:
        ops.append(valu(f"v_max_f32 v{mn}, v{T0}, v{T1}", [T0, T1], [mn]))
    else:
        ops.append(v3("v_max3_f32", mn, T0, T1, mo))
    ops.append(valu(f"v_mul_f32 v{NMC}, s{sNC}, v{mn}", [mn], [NMC]))
    if j != 0:
        ops.append(valu(f"v_fma_f32 v{ALPHA}, v{mo}, s{sC}, v{NMC}", [mo, NMC], [ALPHA]))
        ops.append(valu(f"v_exp_f32 v{ALPHA}, v{ALPHA}", [ALPHA], [ALPHA], kind='trans'))
    def fma(i): return valu(f"v_fma_f32 v{S+i}, v{S+i}, s{sC}, v{NMC}", [S+i, NMC], [S+i])
    def ex(i): return valu(f"v_exp_f32 v{S+i}, v{S+i}", [S+i], [S+i], kind='trans')
    def add(i):
        l = LA_ if i % 2 == 0 else LB_
        if i < 2:
            if j == 0: return valu(f"v_mov_b32 v{l}, v{S+i}", [S+i], [l])
            return valu(f"v_fma_f32 v{l}, v{l}, v{ALPHA}, v{S+i}", [l, ALPHA, S+i], [l])
        return valu(f"v_add_f32 v{l}, v{l}, v{S+i}", [l, S+i], [l])
    def cvt(k): return valu(f"v_cvt_pk_bf16_f32 v{S+k}, v{S+2*k}, v{S+2*k+1}", [S+2*k, S+2*k+1], [S+k])
    resc = []
    if j != 0:
        for i in range(64):
            resc.append(valu(f"v_mul_f32 v{OACC+i}, v{ALPHA}, v{OACC+i}", [ALPHA, OACC+i], [OACC+i]))
    body = []
    for g in range(9):
        grp = []
        if g < 8:
            for i in range(4*g, 4*g+4): grp.append(fma(i))
        if g > 0:
            for i in range(4*(g-1), 4*g): grp.append(add(i))
            for k in range(2*(g-1), 2*g): grp.append(cvt(k))
        exs = [ex(i) for i in range(4*g, 4*g+4)] if g < 8 else []
        body.append((grp, exs))
    out = []
    ri = 0
    for g, (grp, exs) in enumerate(body):
        out += grp[:4] if g < 8 else grp
        rest = grp[4:] if g < 8 else []
        fill = rest + resc[ri:ri+8]
        ri += 8
        for e in exs:
            out.append(e)
            n = -(-len(fill) // max(1, len(exs) - exs.index(e)))
            out += fill[:n]; fill = fill[n:]
        out += fill
    out += resc[ri:]
    return ops + out

def finalize_ops():
    ops = []
    ops.append(valu(f"v_add_f32 v{T0}, v{LA_}, v{LB_}", [LA_, LB_], [T0]))
    ops.append(valu(f"v_mov_b32 v{T1}, v{T0}", [T0], [T1]))
    ops.append(valu(f"v_permlane32_swap_b32 v{T0}, v{T1}", [T0, T1], [T0, T1], kind='perm'))
    ops.append(valu(f"v_add_f32 v{T0}, v{T0}, v{T1}", [T0, T1], [T0]))
    ops.append(valu(f"v_rcp_f32 v{AUX}, v{T0}", [T0], [AUX], kind='trans'))
    for k in range(32):
        a, b = OACC + 2*k, OACC + 2*k + 1
        ops.append(valu(f"v_mul_f32 v{a}, v{AUX}, v{a}", [AUX, a], [a]))
        ops.append(valu(f"v_mul_f32 v{b}, v{AUX}, v{b}", [AUX, b], [b]))
        if k > 0:
            kk = k - 1
            ops.append(valu(f"v_cvt_pk_bf16_f32 v{OP+kk}, v{OACC+2*kk}, v{OACC+2*kk+1}", [OACC+2*kk, OACC+2*kk+1], [OP+kk]))
    ops.append(valu(f"v_cvt_pk_bf16_f32 v{OP+31}, v{OACC+62}, v{OACC+63}", [OACC+62, OACC+63], [OP+31]))
    return ops

STV = [240]
def stamp_txt():
    if not P.STAMP: return []
    return [("s_memtime s[96:97]" if P.CYC else "s_memrealtime s[96:97]"), "s_min_u32 m0, s98, 63", "s_waitcnt lgkmcnt(0)", f"v_writelane_b32 v{STV[0]}, s96, m0", "s_add_u32 s98, s98, 1"]
def stamp(em):
    if P.STAMP:
        em.wait_ds(0)
        for t in stamp_txt(): em.raw(t)
def stamp_store(em):
    if not P.STAMP: return
    R = em.raw
    R("s_lshl_b32 s3, s2, 2")
    R(f"s_add_u32 s3, s3, s{sWAVE}")
    R("s_lshl_b32 s3, s3, 8")
    R("s_add_u32 s92, s70, 0x2000000")
    R("s_addc_u32 s93, s71, 0")
    R("s_and_b32 s93, s93, 0xffff")
    R("s_mov_b32 s94, 0x40000")
    R("s_mov_b32 s95, 0x20000")
    R("v_lshlrev_b32 v0, 2, v0")
    R(f"buffer_store_dword v{STV[0]}, v0, s[92:95], s3 offen")
def bar(gate, pre=(), rd=(), drain=False, st=False):
    post = stamp_txt() if st else []
    if st and P.STAMP >= 2: pre = list(pre) + stamp_txt()
    return MItem('bar', texts=list(pre) + ["s_barrier"] + post, rd=rd, wr=[gate], drain=drain or bool(post))

def qk_items(frags, Sdst, kslot, gate):
    it = []
    for sub in range(2):
        for ks in range(8):
            frags.append(Frag([('b128', aK, K0 + kslot*SL + sub*512 + ks*32, 0)], gate))
            it.append(MItem('mfma', D=V(Sdst + 16*sub, 16), B=V(QR + 4*ks, 4), acc=(ks != 0), frag=len(frags)-1))
    return it
def opj_items(frags, ks, woff, gate, addr=aWO):
    it = []
    for nt in range(16):
        frags.append(Frag([('tr', addr, woff + t*2080 + nt*64, 2*t) for t in range(2)], gate))
        it.append(MItem('mfma', D=AG(16*nt, 16), B=V(OP + 4*ks, 4), acc=True, frag=len(frags)-1))
    return it
def pv_items(frags, S, vslot, gate, first):
    it = []
    for s in range(4):
        for dt in range(4):
            frags.append(Frag([('tr', aV, vslot*SL + t*2080 + s*256 + dt*64, 2*t) for t in range(2)], gate))
            it.append(MItem('mfma', D=V(OACC + 16*dt, 16), B=V(S + 4*s, 4), acc=not (first and s == 0), frag=len(frags)-1))
    return it

def attention_head(em):
    seq = []; frags = []
    gB_prev = None
    for j in range(8):
        p = j % 2
        gA = newgate(); gB = newgate()
        seq.append(bar(gA, st=True))
        if j == 0:
            seq += finalize_ops()
        if j == 7:
            for ks in range(8):
                op = dsr128(V(QR + 4*ks, 4), aQB, ks*1024)
                op.rd.append(gA)
                seq.append(op)
        qk = qk_items(frags, SR[1-p], (j+1) % 2, gB_prev)
        if j == 7:
            del frags[-16:]
            oj = opj_items(frags, j, (j % 2)*SL, gB_prev)
            qk = qk_items(frags, SR[1-p], (j+1) % 2, gB_prev)
            seq += oj + qk
        else:
            oj = opj_items(frags, j, (j % 2)*SL, gB_prev)
            seq += qk + oj
        seq += softmax_ops(j)
        seq.append(bar(gB, st=(P.STAMP >= 2)))
        seq += pv_items(frags, SR[p], j % 2, gA, j == 0)
        gB_prev = gB
    schedule(em, seq, frags, STG, NS, P.LA, budget=P.BUDGET)

def dma(m0val, voff, srdb, soff, off=0, pol="", pre=None, rd=(), wr=()):
    lines = [f"s_mov_b32 m0, {m0val}", pre if pre else "s_nop 0",
             f"buffer_load_dwordx4 v{voff}, {srd(srdb)}, {soff} offen" + (f" offset:{off}" if off else "") + f"{pol} lds"]
    return Op('salu', "\n    ".join(lines), rd=rd, wr=wr, cost=2)

def perm16(j): return 4*(j % 4) + j // 4

def dma_kv(slotbase, srdb, soff):
    return [dma(slotbase + 1040*j - perm16(j)*256, w_vkv, srdb, soff, off=perm16(j)*256, pol=P.KVPOL) for j in range(16)]
def dma_wo(slotbase, soffreg):
    ops = []
    for jj in range(4):
        for jh in range(4):
            j = jh*4 + jj
            pre = f"s_add_u32 s{sTMP}, s{soffreg}, {jj*4096}" if jh == 0 else None
            ops.append(dma(slotbase + 1040*j - jh*1024, w_vlin, sWO, f"s{sTMP}", off=jh*1024, pol=P.WPOL, pre=pre))
    return ops
def dma_wq(slotbase, colreg, const):
    return [dma(slotbase + 1040*j, w_vwq, sWQ, f"s{sTMP+1}", pol=P.WPOL,
                pre=f"s_add_u32 s{sTMP+1}, s{colreg}, {const + perm16(j)*8192}") for j in range(16)]

def salu(text, rd=(), wr=()):
    return Op('salu', text, rd=rd, wr=wr, cost=0.5)

def qproj_items(frags, addr, base, gate, kq, acc_regs, xfrag, nmt):
    it = []
    for ks in range(8):
        for dt2 in range(2):
            frags.append(Frag([('tr', addr, base + t*1040 + ks*128 + dt2*64, 2*t) for t in range(2)], gate))
            for mt in range(nmt):
                it.append(MItem('mfma', D=acc_regs(dt2, mt), B=xfrag(mt, kq*8 + ks), acc=not (kq == 0 and ks == 0), frag=len(frags)-1))
    return it

def wave3_body(em):
    seq = []; frags = []
    acc = lambda dt2, mt: V(W_ACC + (dt2*3 + mt)*16, 16)
    lastB = None
    for kq in range(4):
        gA = newgate(); gB = newgate(); dA = newgate(); dB = newgate()
        rdA = [lastB] if lastB else []
        seq.append(bar(gA, pre=stamp_txt() + ["s_waitcnt vmcnt(32)"] + (stamp_txt() if P.STAMP >= 2 else []), rd=rdA, drain=(kq == 0) or bool(P.STAMP)))
        pre = [
            f"s_cmp_le_i32 s{sT}, 21\n    s_cselect_b32 s{sWQ+2}, s{sTMP+2}, 0",
            f"s_cmp_le_i32 s{sT}, 30\n    s_cselect_b32 s{sV+2}, 0x80000, 0",
        ]
        A = [salu(x, rd=[gA]) for x in pre]
        if kq == 3:
            A.append(salu(f"s_add_u32 s{sWQCOL}, s{sWQCOL}, 128", rd=[gA]))
        A += dma_wq(WQ0 + (kq % 2)*SL, sWQCOL, ((kq+1) % 4) * 128 * 8192)
        A += dma_kv(V0 + (kq % 2)*SL, sV, f"s{sVOFF}")
        A.append(salu(f"s_add_u32 s{sVOFF}, s{sVOFF}, 16384", wr=[dA]))
        items = qproj_items(frags, w_aWQ, ((kq+1) % 2)*SL, gA, kq, acc, XF3, 3)
        seq += A
        seq += items[:30]
        s2 = stamp_txt() if P.STAMP >= 2 else []
        seq.append(bar(gB, pre=s2 + ["s_waitcnt vmcnt(32)"] + s2, rd=[dA], drain=bool(s2)))
        pre = [
            f"s_cmp_le_i32 s{sT}, 28\n    s_cselect_b32 s{sK+2}, 0x80000, 0",
            f"s_cmp_ge_i32 s{sT}, 6\n    s_cselect_b32 s{sWO+2}, 0x80000, 0",
        ]
        B = [salu(x, rd=[gB]) for x in pre]
        B += dma_kv(K0 + (kq % 2)*SL, sK, f"s{sKOFF}")
        B += dma_wo(WO0 + ((kq+1) % 2)*SL, sWOOFF)
        B.append(salu(f"s_add_u32 s{sKOFF}, s{sKOFF}, 16384\n    s_add_u32 s{sWOOFF}, s{sWOOFF}, 16384\n    s_add_u32 s{sT}, s{sT}, 1", wr=[dB]))
        seq += B
        seq += items[30:]
        if kq == 3:
            for dt2 in range(2):
                for mt in range(3):
                    a = acc(dt2, mt)[0]
                    for k in range(8):
                        seq.append(valu(f"v_cvt_pk_bf16_f32 v{a+k}, v{a+2*k}, v{a+2*k+1}", [a+2*k, a+2*k+1], [a+k]))
                    for s2 in range(2):
                        seq.append(dsw128(w_aQB, V(a + 4*s2, 4), mt*8192 + (dt2*2 + s2)*1024))
            seq.append(valu(f"v_xor_b32 v{w_aQB}, 0x1000, v{w_aQB}", [w_aQB], [w_aQB]))
        lastB = dB
    schedule(em, seq, frags, W_STG, W_NS, P.W_LA, budget=P.W_BUDGET)

def gen_main(em):
    R = em.raw
    em.label(f"{NAME}_kernel")
    R("s_cmp_ge_u32 s2, 256")
    R("s_cbranch_scc1 L_end")
    R("s_load_dwordx8 s[48:55], s[0:1], 0")
    R("s_load_dwordx2 s[56:57], s[0:1], 32")
    R("s_load_dwordx8 s[60:67], s[0:1], 40")
    R("s_load_dwordx2 s[68:69], s[0:1], 72")
    R("s_load_dwordx2 s[70:71], s[0:1], 96")
    R("v_lshrrev_b32 v1, 6, v0")
    R("v_and_b32 v0, 63, v0")
    R(f"v_readfirstlane_b32 s{sWAVE}, v1")
    R("s_and_b32 s3, s2, 7")
    R("s_lshr_b32 s4, s2, 3")
    R("s_lshr_b32 s5, s3, 2")
    R("s_and_b32 s3, s3, 3")
    R("s_lshl_b32 s3, s3, 1")
    R("s_lshr_b32 s6, s4, 4")
    R("s_add_u32 s3, s3, s6")
    R("s_and_b32 s4, s4, 15")
    R(f"s_mov_b32 s{sC}, {f32bits(C_SCALE):#x}")
    R(f"s_mov_b32 s{sNC}, {f32bits(-C_SCALE):#x}")
    R("s_waitcnt lgkmcnt(0)")
    R("s_cmp_eq_u32 s5, 0")
    for i in range(5):
        R(f"s_cselect_b64 s[{48+2*i}:{49+2*i}], s[{48+2*i}:{49+2*i}], s[{60+2*i}:{61+2*i}]")
    R("s_lshl_b32 s6, s4, 22")
    R("s_lshl_b32 s7, s3, 19")
    R("s_add_u32 s6, s6, s7")
    for (d, p) in ((sK, 50), (sV, 52)):
        R(f"s_add_u32 s{d}, s{p}, s6")
        R(f"s_addc_u32 s{d+1}, s{p+1}, 0")
        R(f"s_and_b32 s{d+1}, s{d+1}, 0xffff")
        R(f"s_mov_b32 s{d+2}, 0x80000")
        R(f"s_mov_b32 s{d+3}, 0x20000")
    R("s_lshl_b32 s6, s3, 10")
    R(f"s_add_u32 s{sWQ}, s54, s6")
    R(f"s_addc_u32 s{sWQ+1}, s55, 0")
    R(f"s_and_b32 s{sWQ+1}, s{sWQ+1}, 0xffff")
    R(f"s_sub_u32 s{sWQ+2}, 0x400000, s6")
    R(f"s_mov_b32 s{sTMP+2}, s{sWQ+2}")
    R(f"s_mov_b32 s{sWQ+3}, 0x20000")
    R(f"s_add_u32 s{sWO}, s56, s7")
    R(f"s_addc_u32 s{sWO+1}, s57, 0")
    R(f"s_and_b32 s{sWO+1}, s{sWO+1}, 0xffff")
    R(f"s_mov_b32 s{sWO+2}, 0x80000")
    R(f"s_mov_b32 s{sWO+3}, 0x20000")
    R("s_mul_i32 s6, s4, 98304")
    R(f"s_add_u32 s{sX}, s48, s6")
    R(f"s_addc_u32 s{sX+1}, s49, 0")
    R(f"s_and_b32 s{sX+1}, s{sX+1}, 0xffff")
    R(f"s_mov_b32 s{sX+2}, 98304")
    R(f"s_mov_b32 s{sX+3}, 0x20000")
    R("s_mul_i32 s6, s2, 98304")
    R(f"s_add_u32 s{sWS}, s70, s6")
    R(f"s_addc_u32 s{sWS+1}, s71, 0")
    R(f"s_and_b32 s{sWS+1}, s{sWS+1}, 0xffff")
    R(f"s_mov_b32 s{sWS+2}, 98304")
    R(f"s_mov_b32 s{sWS+3}, 0x20000")
    R("v_bfe_u32 v20, v0, 2, 2")
    R("v_lshrrev_b32 v21, 5, v0")
    R("v_bfe_u32 v22, v0, 4, 1")
    R("v_and_b32 v23, 1, v0")
    R("v_bfe_u32 v24, v0, 1, 1")
    R("v_lshlrev_b32 v25, 2, v20")
    R("v_lshl_add_u32 v26, v21, 1, v25")
    R("v_mul_u32_u24 v26, 1040, v26")
    R("v_lshl_add_u32 v26, v22, 5, v26")
    R("v_lshl_add_u32 v26, v23, 4, v26")
    R("v_lshl_add_u32 v26, v24, 3, v26")
    R("v_and_b32 v27, 31, v0")
    R("v_mul_u32_u24 v27, 1040, v27")
    R("v_lshl_add_u32 v27, v21, 4, v27")
    if P.STAMP:
        R("s_mov_b32 s98, 0")
        R("v_mov_b32 v240, 0")
        R("v_mov_b32 v15, 0")
    R(f"s_cmp_eq_u32 s{sWAVE}, 3")
    R("s_cbranch_scc1 L_wave3")
    STV[0] = 240
    stamp(em)

    R("v_and_b32 v28, 3, v0")
    R("v_lshl_add_u32 v28, v28, 2, v20")
    R("v_mul_u32_u24 v28, 1040, v28")
    R("v_lshl_add_u32 v28, v22, 8, v28")
    R(f"v_lshl_add_u32 v{aK}, v21, 4, v28")
    R("v_add_u32 v28, v25, v21")
    R("v_mul_u32_u24 v28, 1040, v28")
    R("v_and_b32 v29, 3, v0")
    R("v_lshl_add_u32 v29, v29, 3, v28")
    R("v_lshl_add_u32 v29, v22, 5, v29")
    R(f"v_add_u32 v{aV}, {V0}, v29")
    R("v_lshl_add_u32 v29, v23, 5, v28")
    R("v_lshl_add_u32 v29, v22, 4, v29")
    R("v_lshl_add_u32 v29, v24, 3, v29")
    R(f"v_add_u32 v{aWO}, {WO0}, v29")
    R(f"s_lshl_b32 s3, s{sWAVE}, 13")
    R(f"s_add_u32 s3, s3, {QB}")
    R(f"v_lshlrev_b32 v{aQB}, 4, v0")
    R(f"v_add_u32 v{aQB}, s3, v{aQB}")
    R(f"s_mul_i32 s3, s{sWAVE}, {32*1040}")
    R(f"v_add_u32 v{T3}, s3, v27")
    R(f"v_mov_b32 v{AUX}, v26")
    for i in range(256):
        R(f"v_accvgpr_write_b32 a{i}, 0")
    R("s_barrier")
    stamp(em)
    for ks in range(32):
        em.emit(dsr128(XFA(ks), T3, ks*32))
    em.wait_ds(0)
    R("s_barrier")
    stamp(em)
    locs = [WQ0, WQ0+SL, QB, V0, V0+SL, WO0, WO0+SL, WQ0]
    QA = SR[1]
    seq = []; frags = []
    g2 = None
    tmpaddr = [T0, T1]
    for ti in range(8):
        if ti in (3, 7):
            g2 = newgate()
            seq.append(bar(g2, st=True))
        ta = tmpaddr[ti % 2]
        ga = newgate()
        seq.append(valu(f"v_add_u32 v{ta}, {locs[ti]}, v{AUX}", [AUX], [ta]))
        seq.append(MItem('bar', texts=[], rd=[ta], wr=[ga]))
        its = qproj_items(frags, ta, 0, ga, ti % 4, lambda dt2, mt: V(QA + 16*dt2, 16), lambda mt, ks: XFA(ks), 1)
        for it in its: it.rd.append(ta)
        seq += its
        if ti % 4 == 3:
            dh = ti // 4
            for k in range(16):
                seq.append(valu(f"v_cvt_pk_bf16_f32 v{QR+16*dh+k}, v{QA+2*k}, v{QA+2*k+1}", [QA+2*k, QA+2*k+1], [QR+16*dh+k]))
    for i in range(64):
        seq.append(valu(f"v_mov_b32 v{OACC+i}, 0", [], [OACC+i]))
    seq.append(valu(f"v_mov_b32 v{LA_}, 1.0", [], [LA_]))
    seq.append(valu(f"v_mov_b32 v{LB_}, 0", [], [LB_]))
    gA = newgate(); gB = newgate()
    seq.append(bar(gA, st=True))
    seq += qk_items(frags, SR[0], 0, gA)
    seq.append(bar(gB))
    schedule(em, seq, frags, STG, NS, P.LA, budget=P.BUDGET)
    R(f"s_mov_b32 s{sCNT}, 4")
    em.fence()
    em.label("L_att_loop")
    n0 = em.ninstr; nn0 = em.nops; w0 = em.waits
    attention_head(em)
    print(f"attention head body: {em.ninstr-n0} instrs, {em.nops-nn0} nop states, {em.waits-w0} waits", file=sys.stderr)
    R(f"s_sub_u32 s{sCNT}, s{sCNT}, 1")
    R(f"s_cmp_lg_u32 s{sCNT}, 0")
    em.fence()
    R("s_cbranch_scc1 L_att_loop")
    seq = []; frags = []
    g1 = newgate(); g2 = newgate()
    seq.append(bar(g1, st=True))
    seq += finalize_ops()
    seq.append(valu(f"v_subrev_u32 v{T2}, {WO0}, v{aWO}", [aWO], [T2]))
    seq.append(valu(f"v_add_u32 v{T3}, {WQ0-WO0}, v{aWO}", [aWO], [T3]))
    ga = newgate()
    seq.append(MItem('bar', texts=[], rd=[T2, T3], wr=[ga]))
    for ks in range(2):
        seq += opj_items(frags, ks, ks*SL, g1)
    seq.append(bar(g2, st=True))
    for ks in range(2, 6):
        seq += opj_items(frags, ks, (ks-2)*SL, g2, addr=T2)
    for ks in range(6, 8):
        seq += opj_items(frags, ks, (ks-6)*SL, g2, addr=T3)
    schedule(em, seq, frags, STG, NS, P.LA, budget=P.BUDGET)
    stamp(em)
    R(f"s_lshl_b32 s3, s{sWAVE}, 15")
    R(f"v_lshlrev_b32 v{AUX}, 4, v0")
    em.nop(12)
    for nt in range(16):
        b = 48 + (nt % 4) * 16
        for r in range(16):
            em.emit(valu(f"v_accvgpr_read_b32 v{b+r}, a{16*nt+r}", AG(16*nt+r), [b+r]))
        for k in range(8):
            em.emit(valu(f"v_cvt_pk_bf16_f32 v{b+k}, v{b+2*k}, v{b+2*k+1}", [b+2*k, b+2*k+1], [b+k]))
        for q in range(2):
            off = (nt*2 + q) * 1024
            R(f"s_add_u32 s4, s3, {off}")
            em.emit(Op('vmem', f"buffer_store_dwordx4 v[{b+4*q}:{b+4*q+3}], v{AUX}, {srd(sWS)}, s4 offen{P.STPOL}", rd=V(b+4*q, 4) + [AUX], tag='store'))
    stamp(em)
    if P.STAMP: R("s_waitcnt vmcnt(0)")
    stamp(em)
    stamp_store(em)
    if P.DBG:
        R("s_load_dwordx2 s[72:73], s[0:1], 88")
        R("v_readlane_b32 s76, v240, 0")
        R("v_readlane_b32 s77, v240, 6")
        R("v_readlane_b32 s78, v240, 38")
        R("v_readlane_b32 s79, v240, 42")
        R("v_readlane_b32 s80, v240, 1")
        R("s_waitcnt lgkmcnt(0)")
        R("s_and_b32 s73, s73, 0xffff")
        R("s_mov_b32 s74, 256")
        R("s_mov_b32 s75, 0x20000")
        R("s_not_b32 s81, s76")
        R("s_sub_u32 s77, s77, s76")
        R("s_sub_u32 s78, s78, s76")
        R("s_sub_u32 s82, s79, s76")
        R("s_not_b32 s83, s82")
        R("s_sub_u32 s80, s80, s76")
        R("v_mov_b32 v1, 0")
        for i, sr in enumerate([81, 76, 79, 77, 78, 82, 83, 80]):
            R(f"v_writelane_b32 v1, s{sr}, {i}")
        R("v_cmp_gt_u32 vcc, 32, v0")
        R("s_and_saveexec_b64 s[84:85], vcc")
        R("buffer_atomic_umax v1, v0, s[72:75], 0 offen")
        R("s_waitcnt vmcnt(0)")
    R("s_endpgm")

    em.label("L_wave3")
    em.lastw = {}; em.ds = []; em.stdata = {}
    STV[0] = 15
    stamp(em)
    R(f"v_lshlrev_b32 v{w_vlin}, 4, v0")
    R("v_lshrrev_b32 v28, 4, v0")
    R("v_and_b32 v29, 15, v0")
    R("v_lshlrev_b32 v29, 4, v29")
    R(f"v_lshl_add_u32 v{w_vkv}, v28, 12, v29")
    R("v_lshrrev_b32 v28, 3, v0")
    R("v_and_b32 v29, 7, v0")
    R("v_lshlrev_b32 v29, 4, v29")
    R(f"v_lshl_add_u32 v{w_vwq}, v28, 17, v29")
    R(f"v_add_u32 v{w_aWQ}, {WQ0}, v26")
    R(f"v_add_u32 v{w_aQB}, {QB}, v{w_vlin}")
    R(f"v_mov_b32 v{w_aX}, v27")
    R(f"v_add_u32 v7, {64*1040}, v27")
    R(f"s_mov_b32 s{sWQCOL}, 0")
    for m in range(96):
        em.emit(dma(m*1040 - (m % 4)*1024, w_vlin, sX, f"s{sTMP}", off=(m % 4)*1024, pol=P.XPOL,
                    pre=(f"s_mov_b32 s{sTMP}, {m*1024}" if m % 4 == 0 else None)))
    def wq0_tile(ti, loc):
        for o in dma_wq(loc, sWQCOL, (ti % 4)*128*8192 + (ti // 4)*128): em.emit(o)
    for ti in range(3): wq0_tile(ti, locs[ti])
    R("s_waitcnt vmcnt(48)")
    R("s_barrier")
    for mt in range(3):
        for ks in range(32):
            if mt < 2: em.emit(dsr128(XF3(mt, ks), w_aX, mt*32*1040 + ks*32))
            else: em.emit(dsr128(XF3(mt, ks), 7, ks*32))
    em.wait_ds(0)
    R("s_waitcnt vmcnt(0)")
    R("s_barrier")
    R(f"s_mov_b32 s{sKOFF}, 0")
    wq0_tile(3, locs[3])
    for o in dma_kv(K0, sK, f"s{sKOFF}"): em.emit(o)
    wq0_tile(4, locs[4]); wq0_tile(5, locs[5]); wq0_tile(6, locs[6])
    R(f"s_mov_b32 s{sKOFF}, 16384")
    for o in dma_kv(K0+SL, sK, f"s{sKOFF}"): em.emit(o)
    R("s_waitcnt vmcnt(16)")
    R("s_barrier")
    wq0_tile(7, locs[7])
    R(f"s_mov_b32 s{sWQCOL}, 256")
    for o in dma_wq(WQ0+SL, sWQCOL, 0): em.emit(o)
    R("s_waitcnt vmcnt(16)")
    R("s_barrier")
    R(f"s_mov_b32 s{sT}, -1")
    R(f"s_mov_b32 s{sKOFF}, {2*16384}")
    R(f"s_mov_b32 s{sVOFF}, 0")
    R(f"s_mov_b32 s{sWOOFF}, {(-7*16384) & 0xffffffff:#x}")
    R(f"s_mov_b32 s{sCNT}, 8")
    R("s_waitcnt vmcnt(0)")
    em.fence()
    em.label("L_w3_loop")
    n0 = em.ninstr; nn0 = em.nops; w0 = em.waits
    wave3_body(em)
    print(f"wave3 body: {em.ninstr-n0} instrs, {em.nops-nn0} nop states, {em.waits-w0} waits", file=sys.stderr)
    R(f"s_sub_u32 s{sCNT}, s{sCNT}, 1")
    R(f"s_cmp_lg_u32 s{sCNT}, 0")
    em.fence()
    R("s_cbranch_scc1 L_w3_loop")
    R("s_waitcnt vmcnt(32)")
    R("s_barrier")
    R("s_waitcnt vmcnt(0)")
    R("s_barrier")
    for o in dma_wo(WO0 + SL, sWOOFF): em.emit(o)
    R("s_waitcnt vmcnt(0)")
    R("s_barrier")
    for i, loc in enumerate([K0, K0+SL, V0, V0+SL, WQ0, WQ0+SL]):
        R(f"s_add_u32 s{sWOOFF}, s{sWOOFF}, 16384")
        for o in dma_wo(loc, sWOOFF): em.emit(o)
    R("s_waitcnt vmcnt(0)")
    R("s_barrier")
    stamp(em)
    stamp_store(em)
    em.label("L_end")
    R("s_endpgm")

def gen_reduce(em):
    R = em.raw
    em.lines.append(".p2align 8")
    em.lines.append(".globl reduce_kernel")
    em.lines.append(".type reduce_kernel,@function")
    em.label("reduce_kernel")
    R("s_cmp_ge_u32 s2, 768")
    R("s_cbranch_scc1 L_rend")
    R("s_load_dwordx2 s[4:5], s[0:1], 80")
    R("s_load_dwordx2 s[6:7], s[0:1], 96")
    if P.DBG:
        R("s_memrealtime s[40:41]")
        R("s_load_dwordx2 s[32:33], s[0:1], 88")
    R("v_lshrrev_b32 v1, 6, v0")
    R("v_and_b32 v0, 63, v0")
    R("s_and_b32 s8, s2, 7")
    R("s_lshr_b32 s9, s2, 3")
    R("s_mul_i32 s10, s9, 43691")
    R("s_lshr_b32 s10, s10, 17")
    R("s_mul_i32 s11, s10, 3")
    R("s_sub_u32 s11, s9, s11")
    R("s_lshr_b32 s12, s10, 4")
    R("s_and_b32 s13, s10, 15")
    R("v_and_b32 v2, 7, v0")
    R("v_bfe_u32 v3, v0, 3, 1")
    R("v_bfe_u32 v4, v0, 4, 1")
    R("v_lshrrev_b32 v5, 5, v0")
    R("v_lshl_add_u32 v2, v1, 3, v2")
    R("v_lshlrev_b32 v6, 11, v5")
    R("v_lshl_add_u32 v6, v3, 10, v6")
    R("v_lshl_add_u32 v6, v4, 9, v6")
    R("v_lshl_add_u32 v6, v2, 4, v6")
    R("s_lshl_b32 s14, s11, 15")
    R("s_lshl_b32 s15, s8, 12")
    R("s_add_u32 s14, s14, s15")
    R("s_lshl_b32 s15, s12, 2")
    R("s_lshl_b32 s16, s13, 3")
    R("s_add_u32 s15, s15, s16")
    R("s_mul_i32 s15, s15, 98304")
    R("s_add_u32 s14, s14, s15")
    R("s_waitcnt lgkmcnt(0)")
    R("s_mov_b32 s20, s6")
    R("s_and_b32 s21, s7, 0xffff")
    R(f"s_mov_b32 s22, {256*98304}")
    R("s_mov_b32 s23, 0x20000")
    R("s_mov_b32 s24, s4")
    R("s_and_b32 s25, s5, 0xffff")
    R(f"s_mov_b32 s26, {16*96*1024*2}")
    R("s_mov_b32 s27, 0x20000")
    for hg in range(8):
        d = ((hg // 2) + 128*(hg % 2)) * 98304
        R(f"s_add_u32 s17, s14, {d}")
        R(f"buffer_load_dwordx4 v[{8+4*hg}:{11+4*hg}], v6, s[20:23], s17 offen{P.RDPOL}")
    R("v_lshlrev_b32 v7, 11, v2")
    R("v_lshl_add_u32 v7, v5, 6, v7")
    R("v_lshl_add_u32 v7, v4, 5, v7")
    R("v_lshl_add_u32 v7, v3, 4, v7")
    R("s_mul_i32 s15, s13, 96")
    R("s_lshl_b32 s16, s11, 5")
    R("s_add_u32 s15, s15, s16")
    R("s_lshl_b32 s15, s15, 11")
    R("s_lshl_b32 s16, s12, 10")
    R("s_add_u32 s15, s15, s16")
    R("s_lshl_b32 s16, s8, 7")
    R("s_add_u32 s15, s15, s16")
    for hg in range(8):
        R(f"s_waitcnt vmcnt({7-hg})")
        for k in range(4):
            src = 8 + 4*hg + k
            if hg == 0:
                R(f"v_lshlrev_b32 v{40+2*k}, 16, v{src}")
                R(f"v_and_b32 v{41+2*k}, 0xffff0000, v{src}")
            else:
                R(f"v_lshlrev_b32 v48, 16, v{src}")
                R(f"v_and_b32 v49, 0xffff0000, v{src}")
                R(f"v_add_f32 v{40+2*k}, v{40+2*k}, v48")
                R(f"v_add_f32 v{41+2*k}, v{41+2*k}, v49")
    for k in range(4):
        R(f"v_cvt_pk_bf16_f32 v{52+k}, v{40+2*k}, v{41+2*k}")
    R("buffer_store_dwordx4 v[52:55], v7, s[24:27], s15 offen")
    if P.DBG:
        R("s_waitcnt vmcnt(0)")
        R("s_memrealtime s[42:43]")
        R("s_sub_u32 s36, s32, 512")
        R("s_subb_u32 s37, s33, 0")
        R("s_and_b32 s37, s37, 0xffff")
        R("s_mov_b32 s38, 256")
        R("s_mov_b32 s39, 0x20000")
        R("s_and_b32 s33, s33, 0xffff")
        R("s_mov_b32 s34, 256")
        R("s_mov_b32 s35, 0x20000")
        R("v_lshlrev_b32 v0, 2, v0")
        R("buffer_load_dword v1, v0, s[36:39], 0 offen")
        R("s_waitcnt vmcnt(0) lgkmcnt(0)")
        R("s_not_b32 s40, s40")
        R("v_writelane_b32 v1, s40, 8")
        R("v_writelane_b32 v1, s42, 9")
        R("v_cmp_gt_u32 vcc, 40, v0")
        R("s_and_saveexec_b64 s[44:45], vcc")
        R("buffer_atomic_umax v1, v0, s[32:35], 0 offen")
        R("s_waitcnt vmcnt(0)")
    em.label("L_rend")
    R("s_endpgm")

def build():
    ref = open(f"cdna_kernels/{NAME}.s.ref").read().splitlines()
    head = [l for l in ref if l.startswith(";") and "@launch" not in l]
    em = Em()
    gen_main(em)
    gen_reduce(em)
    out = []
    out += head
    out.append(f"; @launch kernel={NAME}_kernel grid=(256,1,1) block=(256,1,1) lds={LDS_BYTES}")
    out.append(f"; @launch kernel=reduce_kernel grid=(768,1,1) block=(256,1,1) lds=0")
    out.append('.amdgcn_target "amdgcn-amd-amdhsa--gfx950"')
    out.append(".text")
    out.append(f".globl {NAME}_kernel")
    out.append(".p2align 8")
    out.append(f".type {NAME}_kernel,@function")
    out.append(em.text())
    out.append('.section .rodata,"a"')
    for (k, nv, ao) in ((f"{NAME}_kernel", 512, 256), ("reduce_kernel", 64, 64)):
        out.append(".p2align 6")
        out.append(f".amdhsa_kernel {k}")
        out.append(f"  .amdhsa_next_free_vgpr {nv}")
        out.append("  .amdhsa_next_free_sgpr 102")
        out.append(f"  .amdhsa_accum_offset {ao}")
        out.append("  .amdhsa_group_segment_fixed_size 0")
        out.append("  .amdhsa_kernarg_size 104")
        out.append("  .amdhsa_user_sgpr_count 2")
        out.append("  .amdhsa_user_sgpr_kernarg_segment_ptr 1")
        out.append("  .amdhsa_system_sgpr_workgroup_id_x 1")
        out.append(".end_amdhsa_kernel")
    return "\n".join(out) + "\n"

if __name__ == "__main__":
    dst = sys.argv[1] if len(sys.argv) > 1 else f"cdna_kernels/{NAME}.s"
    for a in sys.argv[2:]:
        k, v = a.split("=")
        cur = getattr(P, k)
        setattr(P, k, type(cur)(v) if not isinstance(cur, str) else (" " + v if v else ""))
    open(dst, "w").write(build())
```

```python
import re

def V(n, cnt=1):
    return list(range(n, n + cnt))
def AG(n, cnt=1):
    return list(range(256 + n, 256 + n + cnt))

def rname(regs):
    r0 = regs[0]
    assert regs == list(range(r0, r0 + len(regs))), regs
    p = 'v' if r0 < 256 else 'a'
    b = r0 % 256
    if len(regs) == 1:
        return f"{p}{b}"
    return f"{p}[{b}:{b+len(regs)-1}]"

class Op:
    def __init__(self, kind, text, rd=(), wr=(), crange=None, tag=None, cost=1):
        self.kind = kind; self.text = text
        self.rd = list(rd); self.wr = list(wr)
        self.crange = crange
        self.tag = tag
        self.cost = cost
    def __repr__(self):
        return f"<{self.kind} {self.text}>"

class Em:
    def __init__(self):
        self.lines = []
        self.pos = 0
        self.lastw = {}
        self.cread = {}
        self.stdata = {}
        self.ds = []
        self.nops = 0
        self.waits = 0
        self.ninstr = 0
    def comment(self, s):
        self.lines.append(f"    ; {s}")
    def label(self, s):
        self.lines.append(f"{s}:")
    def raw(self, text, n=1):
        self.lines.append("    " + text)
        self.pos += n
        self.ninstr += 1
    def nop(self, n):
        while n > 0:
            k = min(n, 16)
            self.lines.append(f"    s_nop {k-1}")
            self.pos += k
            self.nops += k
            n -= k
    def wait_ds(self, n):
        n = min(n, 15)
        if len(self.ds) > n:
            self.lines.append(f"    s_waitcnt lgkmcnt({n})")
            self.pos += 1
            self.waits += 1
            self.ds = self.ds[len(self.ds) - n:] if n > 0 else []
    def wait_regs(self, regs):
        touched = set(regs); last = -1
        for i, d in enumerate(self.ds):
            if d & touched: last = i
        if last >= 0:
            self.wait_ds(len(self.ds) - 1 - last)
    def fence(self, nops=12):
        self.lines.append("    s_waitcnt lgkmcnt(0)")
        self.pos += 1
        self.ds = []
        self.nop(nops)
        self.lastw = {}
        self.stdata = {}
        self.cread = {}
    def reset(self):
        self.lastw = {}; self.stdata = {}; self.cread = {}; self.ds = []
    def emit(self, op):
        k = op.kind
        if k == 'm0':
            self.raw(op.text); self.m0pos = self.pos - 1
            return
        if k == 'dma':
            if self.pos - getattr(self, 'm0pos', -10) - 1 < 1:
                self.nop(1)
            self.raw(op.text)
            return
        if k in ('salu', 'raw', 'bar'):
            self.raw(op.text)
            return
        touched = set(op.rd) | set(op.wr)
        last = -1
        for i, d in enumerate(self.ds):
            if d & touched:
                last = i
        if last >= 0:
            self.wait_ds(len(self.ds) - 1 - last)
        need = 0
        def req(p, n):
            nonlocal need
            have = self.pos - p - 1
            need = max(need, n - have)
        cr = set(op.crange) if op.crange else set()
        for r in op.rd:
            lw = self.lastw.get(r)
            if not lw: continue
            lk, lp, ld = lw
            if lk == 'mfma':
                if k == 'mfma' and r in cr:
                    if tuple(op.crange) == ld:
                        pass
                    else:
                        req(lp, 10)
                else:
                    req(lp, 12)
            elif lk in ('valu', 'trans', 'perm'):
                if k == 'mfma': req(lp, 2)
                elif k == 'perm': req(lp, 2)
                elif k == 'rdlane': req(lp, 1)
                elif lk == 'trans' and k != 'trans': req(lp, 1)
        for w in op.wr:
            lw = self.lastw.get(w)
            if lw and lw[0] == 'mfma' and k != 'mfma':
                req(lw[1], 12)
            if lw and lw[0] == 'mfma' and k == 'mfma' and tuple(op.wr) != lw[2]:
                req(lw[1], 12)
            sp = self.stdata.get(w)
            if sp is not None:
                req(sp, 2)
            cp = self.cread.get(w)
            if cp is not None and k != 'mfma':
                req(cp, 7)
        if need > 0:
            self.nop(need)
        self.lines.append("    " + op.text)
        p = self.pos
        self.pos += 1
        self.ninstr += 1
        for w in op.wr:
            if k == 'dsr' or k == 'vmem':
                self.lastw.pop(w, None)
            else:
                self.lastw[w] = (k, p, tuple(op.wr) if k == 'mfma' else None)
        if k == 'mfma' and op.crange:
            for r in op.crange: self.cread[r] = p
        if k == 'dsr':
            self.ds.append(set(op.wr))
        elif k == 'dsw':
            self.ds.append(set())
        if k in ('dsw', 'vmem') and op.tag == 'store':
            for r in op.rd:
                self.stdata[r] = p
    def text(self):
        return "\n".join(self.lines) + "\n"

def mfma(D, A, B, C=None):
    if C is None:
        return Op('mfma', f"v_mfma_f32_32x32x16_bf16 {rname(D)}, {rname(A)}, {rname(B)}, 0", rd=A + B, wr=D)
    return Op('mfma', f"v_mfma_f32_32x32x16_bf16 {rname(D)}, {rname(A)}, {rname(B)}, {rname(C)}", rd=A + B + C, wr=D, crange=tuple(C))
def dsr128(D, addr, off):
    assert 0 <= off < 65536, off
    return Op('dsr', f"ds_read_b128 {rname(D)}, v{addr} offset:{off}", rd=[addr], wr=D)
def dstr(D, addr, off):
    assert 0 <= off < 65536, off
    return Op('dsr', f"ds_read_b64_tr_b16 {rname(D)}, v{addr} offset:{off}", rd=[addr], wr=D)
def dsw128(addr, S, off):
    assert 0 <= off < 65536, off
    return Op('dsw', f"ds_write_b128 v{addr}, {rname(S)} offset:{off}", rd=[addr] + S, tag='store')
def valu(text, rd, wr, kind='valu'):
    return Op(kind, text, rd=rd, wr=wr)
```

```python
from em import *
import math

class Frag:
    def __init__(self, reads, gate=None):
        self.reads = reads
        self.gate = gate
class MItem:
    def __init__(self, kind, D=None, B=None, acc=True, frag=None, texts=None, rd=(), wr=(), drain=False, A=None, C=None):
        self.kind = kind
        self.D = D; self.B = B; self.acc = acc; self.frag = frag; self.A = A; self.C = C
        self.texts = texts or []
        self.rd = list(rd); self.wr = list(wr)
        self.drain = drain
        if kind == 'mfma':
            self.rd = list(B) + (list(D) if acc else []) + (list(A) if A else []) + (list(C) if C else [])
            self.wr = list(D)

def cost(op):
    return {'trans': 2, 'dma': 3}.get(op.kind, 1) * op.cost

def schedule(em, seq, frags, stage_base, NS, LA, budget=6.0, raw_delay=2, frag0=0, verbose=False, pair=True):
    M = [x for x in seq if isinstance(x, MItem)]
    VL = [x for x in seq if not isinstance(x, MItem)]
    mi = 0; vi = 0
    lastw_m = {}; lastr_m = {}; lastw_v = {}; lastr_v = {}
    depM = [(-1, -1)] * len(VL)
    depV = [-1] * len(M)
    for x in seq:
        if isinstance(x, MItem):
            d = -1
            for r in x.rd:
                d = max(d, lastw_v.get(r, -1))
            for w in x.wr:
                d = max(d, lastw_v.get(w, -1), lastr_v.get(w, -1))
            depV[mi] = d
            for r in x.rd: lastr_m[r] = mi
            for w in x.wr: lastw_m[w] = mi
            mi += 1
        else:
            raw = -1; anyd = -1
            for r in x.rd:
                j = lastw_m.get(r, -1)
                if j >= 0 and M[j].kind == 'mfma': raw = max(raw, j)
                anyd = max(anyd, j)
            for w in x.wr:
                j = lastw_m.get(w, -1)
                if j >= 0 and M[j].kind == 'mfma': raw = max(raw, j)
                anyd = max(anyd, j, lastr_m.get(w, -1))
            depM[vi] = (raw, anyd)
            for r in x.rd: lastr_v[r] = vi
            for w in x.wr: lastw_v[w] = vi
            vi += 1
    for i in range(1, len(M)):
        depV[i] = max(depV[i], depV[i-1])
    dl = [len(M)] * len(VL)
    j = 0
    for i in range(len(M)):
        while j <= depV[i]:
            dl[j] = i; j += 1
    cum = [0.0]
    for v in VL: cum.append(cum[-1] + cost(v))
    first_use = {}; last_use = {}
    for i, m in enumerate(M):
        if m.kind == 'mfma' and m.frag is not None:
            first_use.setdefault(m.frag, i); last_use[m.frag] = i
    forder = sorted(first_use, key=lambda f: first_use[f])
    fidx = {f: k for k, f in enumerate(forder)}
    gates_done = set()
    nf = 0
    def stage(f):
        b = stage_base + 4 * ((fidx[f] + frag0) % NS)
        return V(b, 4)
    def emit_reads(cur):
        nonlocal nf
        n = 0
        while nf < len(forder):
            f = forder[nf]
            if first_use[f] - cur > LA: break
            k = fidx[f]
            if k >= NS and last_use[forder[k - NS]] >= cur: break
            g = frags[f].gate
            if g is not None and g not in gates_done: break
            st = stage(f)
            for (kind, addr, off, sub) in frags[f].reads:
                if kind == 'b128':
                    em.emit(dsr128(st, addr, off))
                else:
                    em.emit(dstr(st[sub:sub+2], addr, off))
                n += 1
            nf += 1
        return n
    vi = 0
    for i, m in enumerate(M):
        while vi <= depV[i]:
            em.emit(VL[vi]); vi += 1
        if m.kind == 'bar':
            if m.drain: em.wait_ds(0)
            for t in m.texts: em.raw(t)
            for w in m.wr: gates_done.add(w)
            emit_reads(i + 1)
            continue
        if m.frag is not None:
            while nf <= fidx[m.frag]:
                before = nf
                emit_reads(i)
                assert nf > before, ("frag reads blocked", i, m.frag, frags[m.frag].gate)
            A = stage(m.frag)
        else:
            A = m.A
        if pair and m.frag is not None and any(set(A) & d for d in em.ds):
            k = fidx[m.frag] + 1
            if k < nf:
                em.wait_regs(list(A) + stage(forder[k]))
        C = m.C if m.C is not None else (m.D if m.acc else None)
        em.emit(mfma(m.D, A, m.B, C))
        used = emit_reads(i + 1)
        need = 0.0
        seen = set()
        for k in range(vi, len(VL)):
            d = dl[k]
            if d in seen: pass
            gaps = max(1, d - i)
            if k + 1 == len(VL) or dl[k+1] != d:
                need = max(need, (cum[k+1] - cum[vi]) / gaps)
        q = max(need, 0.0)
        q = min(max(q, budget - used), max(need, budget))
        spent = 0.0
        while vi < len(VL) and spent + cost(VL[vi]) <= q + 0.5:
            raw, anyd = depM[vi]
            if anyd > i: break
            if raw >= 0 and raw > i - raw_delay: break
            em.emit(VL[vi]); spent += cost(VL[vi]); vi += 1
    while vi < len(VL):
        em.emit(VL[vi]); vi += 1
    return (len(forder) + frag0) % NS
```

```python
import sys, struct
from em import *
from sched import *

NAME = "concat_heads__gqa_block_cached__gqa_block_cached__near_ridge"
SL = 16640
K0, V0, WO0, WQ0, QB = 0, 2*SL, 4*SL, 6*SL, 8*SL
LDS_BYTES = 163840
M0_NULL = 0x30000
C_SCALE = 1.4426950408889634 / (128 ** 0.5)
def f32bits(x): return struct.unpack("<I", struct.pack("<f", x))[0]

sK, sV, sWQ, sWO, sX, sWS = 8, 12, 16, 20, 24, 28
sWAVE, sC, sTHR, sCNT = 32, 33, 34, 35
sM0W, sM0K, sM0V, sM0N = 36, 37, 38, 39
sT, sKOFF, sVOFF, sWOOFF, sWQCOL, sTMP = 40, 41, 42, 43, 44, 45
def srd(b): return f"s[{b}:{b+3}]"

aK, aV, aWO, aQB, vKV = 1, 2, 3, 4, 5
LA_, LB_, ALPHA, DELTA = 7, 8, 9, 10
T0, T1, T2, T3 = 11, 12, 13, 14
AUX = 15
STG = 16; NS = 8
OACC, QR, OP = 48, 112, 144
SR = [176, 208]
NEGM = 240
w_vlin, w_vwq, w_aWQ, w_aQB, w_aX = 2, 3, 4, 1, 7
W_STG = 16; W_NS = 4
W_ACC = 32
def XF3(mt, ks):
    if mt < 2: return AG(mt * 128 + ks * 4, 4)
    return V(128 + ks * 4, 4)
def XFA(ks):
    return V(48 + ks * 4, 4) if ks < 16 else V(144 + (ks - 16) * 4, 4)

class P:
    LA = 5
    BUDGET = 6.0
    W_LA = 6
    W_BUDGET = 6.0
    W_SPLIT = 30
    KVPOL = " nt"
    WPOL = ""
    XPOL = ""
    STPOL = " nt"
    RDPOL = " nt"
    THR = 8.0
    STAMP = 0
    CYC = 0
    PAIR = 1

gate_ctr = [1000]
def newgate():
    gate_ctr[0] += 1
    return gate_ctr[0]

STV = 6
def stamp_txt():
    if not P.STAMP: return []
    return [("s_memtime s[96:97]" if P.CYC else "s_memrealtime s[96:97]"), "s_min_u32 m0, s98, 63", "s_waitcnt lgkmcnt(0)",
            f"v_writelane_b32 v{STV}, s96, m0", "s_add_u32 s98, s98, 1"]
def stamp(em):
    if P.STAMP:
        em.wait_ds(0)
        for t in stamp_txt(): em.raw(t)
def stamp_store(em):
    if not P.STAMP: return
    R = em.raw
    R("s_lshl_b32 s3, s2, 2")
    R(f"s_add_u32 s3, s3, s{sWAVE}")
    R("s_lshl_b32 s3, s3, 8")
    R("s_add_u32 s92, s70, 0x2000000")
    R("s_addc_u32 s93, s71, 0")
    R("s_and_b32 s93, s93, 0xffff")
    R("s_mov_b32 s94, 0x40000")
    R("s_mov_b32 s95, 0x20000")
    R("v_lshlrev_b32 v0, 2, v0")
    R(f"buffer_store_dword v{STV}, v0, s[92:95], s3 offen")
def bar(gate, pre=(), rd=(), drain=False, st=0):
    s1 = stamp_txt() if (st and P.STAMP >= st) else []
    s2 = stamp_txt() if (st and P.STAMP >= 2) else []
    return MItem('bar', texts=s2 + list(pre) + ["s_barrier"] + s1, rd=rd, wr=[gate], drain=drain or bool(s1))

def v3(op, d, a, b, c):
    return valu(f"{op} v{d}, v{a}, v{b}, v{c}", [a, b, c], [d])
def salu(text, rd=(), wr=()):
    return Op('salu', text, rd=rd, wr=wr, cost=text.count("\n") + 1)

def interleave(main, extra, start=0, every=3):
    out = []; e = list(extra)
    for i, o in enumerate(main):
        out.append(o)
        if e and i >= start and (i - start) % every == every - 1:
            out.append(e.pop(0))
    return out + e

def maxtree_ops(S):
    ops = []
    T = [T0, T1, T2, T3]
    for k in range(4): ops.append(v3("v_max3_f32", T[k], S+8*k, S+8*k+1, S+8*k+2))
    for k in range(4): ops.append(v3("v_max3_f32", T[k], T[k], S+8*k+3, S+8*k+4))
    for k in range(4): ops.append(v3("v_max3_f32", T[k], T[k], S+8*k+5, S+8*k+6))
    ops.append(v3("v_max3_f32", T0, T0, S+7, T1))
    ops.append(v3("v_max3_f32", T2, T2, S+23, T3))
    ops.append(v3("v_max3_f32", T0, T0, S+15, S+31))
    ops.append(valu(f"v_max_f32 v{T0}, v{T0}, v{T2}", [T0, T2], [T0]))
    ops.append(valu(f"v_mov_b32 v{T1}, v{T0}", [T0], [T1]))
    ops.append(valu(f"v_permlane32_swap_b32 v{T0}, v{T1}", [T0, T1], [T0, T1], kind='perm'))
    ops.append(valu(f"v_max_f32 v{DELTA}, v{T0}, v{T1}", [T0, T1], [DELTA]))
    return ops

def first_tile_ops(S):
    ops = []
    for i in range(16):
        ops.append(valu(f"v_sub_f32 v{NEGM+i}, 0, v{DELTA}", [DELTA], [NEGM+i]))
    for i in range(32):
        ops.append(valu(f"v_sub_f32 v{S+i}, v{S+i}, v{DELTA}", [S+i, DELTA], [S+i]))
    return ops

rare_blocks = []
def check_op(S, tag):
    regs = V(S, 32) + V(NEGM, 16) + V(OACC, 64) + [LA_, LB_, DELTA, ALPHA]
    rare_blocks.append((S, tag))
    t = f"v_cmp_lt_f32 vcc, s{sTHR}, v{DELTA}\n    s_cbranch_vccnz L_rare_{tag}\nL_back_{tag}:"
    op = Op('raw', t, rd=regs, wr=regs, cost=2)
    op.noraw = True
    return op
def emit_rare(em):
    R = em.raw
    for (S, tag) in rare_blocks:
        em.label(f"L_rare_{tag}")
        R("s_nop 15")
        R(f"v_max_f32 v{DELTA}, 0, v{DELTA}")
        R(f"v_sub_f32 v{ALPHA}, 0, v{DELTA}")
        R(f"v_exp_f32 v{ALPHA}, v{ALPHA}")
        for i in range(32): R(f"v_sub_f32 v{S+i}, v{S+i}, v{DELTA}")
        for i in range(16): R(f"v_sub_f32 v{NEGM+i}, v{NEGM+i}, v{DELTA}")
        for i in range(64): R(f"v_mul_f32 v{OACC+i}, v{ALPHA}, v{OACC+i}")
        R(f"v_mul_f32 v{LA_}, v{ALPHA}, v{LA_}")
        R(f"v_mul_f32 v{LB_}, v{ALPHA}, v{LB_}")
        R("s_nop 3")
        R(f"s_branch L_back_{tag}")

def exp_ops(S, first):
    def ex(i): return valu(f"v_exp_f32 v{S+i}, v{S+i}", [S+i], [S+i], kind='trans')
    def add(i):
        l = LA_ if i % 2 == 0 else LB_
        if i < 2 and first: return valu(f"v_mov_b32 v{l}, v{S+i}", [S+i], [l])
        return valu(f"v_add_f32 v{l}, v{l}, v{S+i}", [l, S+i], [l])
    def cvt(k): return valu(f"v_cvt_pk_bf16_f32 v{S+k}, v{S+2*k}, v{S+2*k+1}", [S+2*k, S+2*k+1], [S+k])
    out = []
    for k in range(17):
        if k < 16: out.append(ex(2*k))
        if k > 0: out.append(add(2*k-2))
        if k < 16: out.append(ex(2*k+1))
        if k > 0:
            out.append(add(2*k-1)); out.append(cvt(k-1))
    return out

def finalize_ops():
    ops = []
    ops.append(valu(f"v_add_f32 v{T2}, v{LA_}, v{LB_}", [LA_, LB_], [T2]))
    ops.append(valu(f"v_mov_b32 v{T3}, v{T2}", [T2], [T3]))
    ops.append(valu(f"v_permlane32_swap_b32 v{T2}, v{T3}", [T2, T3], [T2, T3], kind='perm'))
    ops.append(valu(f"v_add_f32 v{T2}, v{T2}, v{T3}", [T2, T3], [T2]))
    ops.append(valu(f"v_rcp_f32 v{AUX}, v{T2}", [T2], [AUX], kind='trans'))
    for k in range(33):
        if k < 32:
            a, b = OACC + 2*k, OACC + 2*k + 1
            ops.append(valu(f"v_mul_f32 v{a}, v{AUX}, v{a}", [AUX, a], [a]))
            ops.append(valu(f"v_mul_f32 v{b}, v{AUX}, v{b}", [AUX, b], [b]))
        if k > 0:
            kk = k - 1
            ops.append(valu(f"v_cvt_pk_bf16_f32 v{OP+kk}, v{OACC+2*kk}, v{OACC+2*kk+1}", [OACC+2*kk, OACC+2*kk+1], [OP+kk]))
    return ops

def qk_items(frags, Sdst, kslot, gate, negm):
    it = []
    for sub in range(2):
        for ks in range(8):
            frags.append(Frag([('b128', aK, K0 + kslot*SL + sub*512 + ks*32, 0)], gate))
            it.append(MItem('mfma', D=V(Sdst + 16*sub, 16), B=V(QR + 4*ks, 4), acc=(ks != 0), frag=len(frags)-1,
                            C=(V(NEGM, 16) if (ks == 0 and negm) else None)))
    return it
def opj_item(frags, ks, nt, woff, gate, addr):
    frags.append(Frag([('tr', addr, woff + t*2080 + nt*64, 2*t) for t in range(2)], gate))
    return MItem('mfma', D=AG(16*nt, 16), B=V(OP + 4*ks, 4), acc=True, frag=len(frags)-1)
def opj_items(frags, ks, woff, gate, addr=aWO):
    return [opj_item(frags, ks, nt, woff, gate, addr) for nt in range(16)]
def pv_items(frags, S, vslot, gate, first):
    it = []
    for s in range(4):
        for dt in range(4):
            frags.append(Frag([('tr', aV, vslot*SL + t*2080 + s*256 + dt*64, 2*t) for t in range(2)], gate))
            it.append(MItem('mfma', D=V(OACC + 16*dt, 16), B=V(S + 4*s, 4), acc=not (first and s == 0), frag=len(frags)-1))
    return it

def dma_pair(m0txt, voff, srdb, soff, off, pol, rd=(), wr=()):
    a = Op('m0', m0txt, rd=rd)
    b = Op('dma', f"buffer_load_dwordx4 v{voff}, {srd(srdb)}, {soff} offen" + (f" offset:{off}" if off else "") + f"{pol} lds", wr=wr)
    return [a, b]

def kvq_ops(slotbase, srdb, offreg, m0reg, lim, gate, done):
    ops = [salu(f"s_cmp_le_i32 s{sT}, {lim}\n    s_cselect_b32 s{srdb+2}, 0x80000, 0\n    s_cselect_b32 s{m0reg}, s{sM0W}, s{sM0N}", rd=[gate])]
    for i in range(4):
        ops += dma_pair(f"s_add_u32 m0, s{m0reg}, {slotbase + 16*i}", vKV, srdb, f"s{offreg}", 1024*i, P.KVPOL)
    ops.append(salu(f"s_add_u32 s{offreg}, s{offreg}, 16384", wr=[done]))
    return ops

def attention_head(em):
    seq = []; frags = []
    gA_prev = None; dA_prev = None
    for j in range(8):
        p = j % 2
        gA = newgate(); gB = newgate(); dB = newgate(); dA = newgate()
        seq.append(bar(gB, pre=["s_waitcnt vmcnt(4)"], rd=[dA_prev] if dA_prev else [], st=2))
        kq = kvq_ops(K0 + p*SL, sK, sKOFF, sM0K, 28, gB, dB)
        kq.append(salu(f"s_add_u32 s{sT}, s{sT}, 1"))
        mt = maxtree_ops(SR[p])
        if j == 0: mt += first_tile_ops(SR[p])
        seq += interleave(mt, kq, every=2)
        seq += pv_items(frags, SR[1-p], 1-p, gA_prev, j == 1)
        seq.append(bar(gA, pre=["s_waitcnt vmcnt(4)"], rd=[dB], st=1))
        vq = kvq_ops(V0 + (1-p)*SL, sV, sVOFF, sM0V, 30, gA, dA)
        pre = []
        if j == 0:
            pre += finalize_ops()
        else:
            pre.append(check_op(SR[p], f"{j}"))
        if j == 7:
            for ks in range(8):
                op = dsr128(V(QR + 4*ks, 4), aQB, ks*1024)
                op.rd.append(gA)
                pre.append(op)
        seq += pre
        if j == 0:
            seq += qk_items(frags, SR[1-p], 1-p, gB, True)
            seq += opj_items(frags, j, p*SL, gB)
        else:
            seq += opj_items(frags, j, p*SL, gB)
            seq += qk_items(frags, SR[1-p], 1-p, gB, j != 7)
        seq += interleave(exp_ops(SR[p], j == 0), vq, every=3)
        gA_prev = gA; dA_prev = dA
    schedule(em, seq, frags, STG, NS, P.LA, budget=P.BUDGET, pair=P.PAIR)

def perm16(j): return 4*(j % 4) + j // 4

def dma_kv_full(slotbase, srdb, soff):
    ops = []
    for j in range(16):
        ops += dma_pair(f"s_mov_b32 m0, {slotbase + 1040*j - perm16(j)*256}", vKV, srdb, soff, perm16(j)*256, P.KVPOL)
    return ops
def dma_wo(slotbase, soffreg):
    ops = []
    for jj in range(4):
        for jh in range(4):
            j = jh*4 + jj
            pr = dma_pair(f"s_mov_b32 m0, {slotbase + 1040*j - jh*1024}", w_vlin, sWO, f"s{sTMP}", jh*1024, P.WPOL)
            if jh == 0: pr.insert(1, salu(f"s_add_u32 s{sTMP}, s{soffreg}, {jj*4096}"))
            ops += pr
    return ops
def dma_wq(slotbase, colreg, const):
    ops = []
    for j in range(16):
        pr = dma_pair(f"s_mov_b32 m0, {slotbase + 1040*j}", w_vwq, sWQ, f"s{sTMP+1}", 0, P.WPOL)
        pr.insert(1, salu(f"s_add_u32 s{sTMP+1}, s{colreg}, {const + perm16(j)*8192}"))
        ops += pr
    return ops

def qproj_items(frags, addr, base, gate, kq, acc_regs, xfrag, nmt):
    it = []
    for dt2 in range(2):
        for ks in range(8):
            frags.append(Frag([('tr', addr, base + t*1040 + ks*128 + dt2*64, 2*t) for t in range(2)], gate))
            for mt in range(nmt):
                it.append(MItem('mfma', D=acc_regs(dt2, mt), B=xfrag(mt, kq*8 + ks), acc=not (kq == 0 and ks == 0), frag=len(frags)-1))
    return it

def scale_cvt(a, dst):
    ops = []
    for k in range(9):
        if k < 8:
            ops.append(valu(f"v_mul_f32 v{a+2*k}, s{sC}, v{a+2*k}", [a+2*k], [a+2*k]))
            ops.append(valu(f"v_mul_f32 v{a+2*k+1}, s{sC}, v{a+2*k+1}", [a+2*k+1], [a+2*k+1]))
        if k > 0:
            kk = k - 1
            ops.append(valu(f"v_cvt_pk_bf16_f32 v{dst+kk}, v{a+2*kk}, v{a+2*kk+1}", [a+2*kk, a+2*kk+1], [dst+kk]))
    return ops

def wave3_body(em):
    seq = []; frags = []
    acc = lambda dt2, mt: V(W_ACC + (dt2*3 + mt)*16, 16)
    lastB = None
    for kq in range(4):
        gA = newgate(); gB = newgate(); dA = newgate(); dB = newgate()
        rdA = [lastB] if lastB else []
        seq.append(bar(gA, pre=stamp_txt() + ["s_waitcnt vmcnt(20)"], rd=rdA, drain=bool(P.STAMP)))
        A = [salu(f"s_cmp_le_i32 s{sT}, 21\n    s_cselect_b32 s{sWQ+2}, s{sTMP+2}, 0", rd=[gA])]
        if kq == 3:
            A.append(salu(f"s_add_u32 s{sWQCOL}, s{sWQCOL}, 128"))
        A += dma_wq(WQ0 + (kq % 2)*SL, sWQCOL, ((kq+1) % 4) * 128 * 8192)
        A += kvq_ops(V0 + (kq % 2)*SL, sV, sVOFF, sM0V, 30, gA, dA)
        items = qproj_items(frags, w_aWQ, ((kq+1) % 2)*SL, gA, kq, acc, XF3, 3)
        seq += A
        def cv(dt2):
            ops = []
            for mt in range(3):
                a = acc(dt2, mt)[0]
                ops += scale_cvt(a, a)
                for s2 in range(2):
                    ops.append(dsw128(w_aQB, V(a + 4*s2, 4), mt*8192 + (dt2*2 + s2)*1024))
            return ops
        seq += items[:P.W_SPLIT]
        seq.append(bar(gB, pre=["s_waitcnt vmcnt(20)"], rd=[dA]))
        B = kvq_ops(K0 + (kq % 2)*SL, sK, sKOFF, sM0K, 28, gB, newgate())
        B.append(salu(f"s_cmp_ge_i32 s{sT}, 6\n    s_cselect_b32 s{sWO+2}, 0x80000, 0"))
        B += dma_wo(WO0 + ((kq+1) % 2)*SL, sWOOFF)
        B.append(salu(f"s_add_u32 s{sWOOFF}, s{sWOOFF}, 16384\n    s_add_u32 s{sT}, s{sT}, 1", wr=[dB]))
        if kq == 3:
            B = interleave(B, cv(0), every=1)
        seq += B
        seq += items[P.W_SPLIT:]
        if kq == 3:
            seq += cv(1)
            seq.append(valu(f"v_xor_b32 v{w_aQB}, 0x1000, v{w_aQB}", [w_aQB], [w_aQB]))
        lastB = dB
    schedule(em, seq, frags, W_STG, W_NS, P.W_LA, budget=P.W_BUDGET, pair=False)

class VM:
    def __init__(self, em, init): self.em = em; self.q = list(init)
    def issue(self, tag, ops):
        n = 0
        for o in ops:
            self.em.emit(o)
            if o.kind == 'dma': n += 1
        self.q.append((tag, n))
    def need(self, *tags):
        last = -1
        for i, (t, n) in enumerate(self.q):
            if t in tags: last = i
        if last >= 0:
            n = sum(c for (_, c) in self.q[last+1:])
            self.em.raw(f"s_waitcnt vmcnt({min(n, 63)})")
            self.q = self.q[last+1:]

def gen_main(em):
    R = em.raw
    em.label(f"{NAME}_kernel")
    R("s_cmp_ge_u32 s2, 256")
    R("s_cbranch_scc1 L_end")
    R("s_load_dwordx8 s[48:55], s[0:1], 0")
    R("s_load_dwordx2 s[56:57], s[0:1], 32")
    R("s_load_dwordx8 s[60:67], s[0:1], 40")
    R("s_load_dwordx2 s[68:69], s[0:1], 72")
    R("s_load_dwordx2 s[70:71], s[0:1], 96")
    R("v_lshrrev_b32 v1, 6, v0")
    R("v_and_b32 v0, 63, v0")
    R(f"v_readfirstlane_b32 s{sWAVE}, v1")
    R("s_and_b32 s3, s2, 7")
    R("s_lshr_b32 s4, s2, 3")
    R("s_lshr_b32 s5, s3, 2")
    R("s_and_b32 s3, s3, 3")
    R("s_lshl_b32 s3, s3, 1")
    R("s_lshr_b32 s6, s4, 4")
    R("s_add_u32 s3, s3, s6")
    R("s_and_b32 s4, s4, 15")
    R(f"s_mov_b32 s{sC}, {f32bits(C_SCALE):#x}")
    R(f"s_mov_b32 s{sTHR}, {f32bits(P.THR):#x}")
    R(f"s_mul_i32 s{sM0W}, s{sWAVE}, 4160")
    R(f"s_mov_b32 s{sM0N}, {M0_NULL:#x}")
    R("s_waitcnt lgkmcnt(0)")
    R("s_cmp_eq_u32 s5, 0")
    for i in range(5):
        R(f"s_cselect_b64 s[{48+2*i}:{49+2*i}], s[{48+2*i}:{49+2*i}], s[{60+2*i}:{61+2*i}]")
    R("s_lshl_b32 s6, s4, 22")
    R("s_lshl_b32 s7, s3, 19")
    R("s_add_u32 s6, s6, s7")
    for (d, p) in ((sK, 50), (sV, 52)):
        R(f"s_add_u32 s{d}, s{p}, s6")
        R(f"s_addc_u32 s{d+1}, s{p+1}, 0")
        R(f"s_and_b32 s{d+1}, s{d+1}, 0xffff")
        R(f"s_mov_b32 s{d+2}, 0x80000")
        R(f"s_mov_b32 s{d+3}, 0x20000")
    R("s_lshl_b32 s6, s3, 10")
    R(f"s_add_u32 s{sWQ}, s54, s6")
    R(f"s_addc_u32 s{sWQ+1}, s55, 0")
    R(f"s_and_b32 s{sWQ+1}, s{sWQ+1}, 0xffff")
    R(f"s_sub_u32 s{sWQ+2}, 0x400000, s6")
    R(f"s_mov_b32 s{sTMP+2}, s{sWQ+2}")
    R(f"s_mov_b32 s{sWQ+3}, 0x20000")
    R(f"s_add_u32 s{sWO}, s56, s7")
    R(f"s_addc_u32 s{sWO+1}, s57, 0")
    R(f"s_and_b32 s{sWO+1}, s{sWO+1}, 0xffff")
    R(f"s_mov_b32 s{sWO+2}, 0x80000")
    R(f"s_mov_b32 s{sWO+3}, 0x20000")
    R("s_mul_i32 s6, s4, 98304")
    R(f"s_add_u32 s{sX}, s48, s6")
    R(f"s_addc_u32 s{sX+1}, s49, 0")
    R(f"s_and_b32 s{sX+1}, s{sX+1}, 0xffff")
    R(f"s_mov_b32 s{sX+2}, 98304")
    R(f"s_mov_b32 s{sX+3}, 0x20000")
    R("s_mul_i32 s6, s2, 98304")
    R(f"s_add_u32 s{sWS}, s70, s6")
    R(f"s_addc_u32 s{sWS+1}, s71, 0")
    R(f"s_and_b32 s{sWS+1}, s{sWS+1}, 0xffff")
    R(f"s_mov_b32 s{sWS+2}, 98304")
    R(f"s_mov_b32 s{sWS+3}, 0x20000")
    R("v_bfe_u32 v20, v0, 2, 2")
    R("v_lshrrev_b32 v21, 5, v0")
    R("v_bfe_u32 v22, v0, 4, 1")
    R("v_and_b32 v23, 1, v0")
    R("v_bfe_u32 v24, v0, 1, 1")
    R("v_lshlrev_b32 v25, 2, v20")
    R("v_lshl_add_u32 v26, v21, 1, v25")
    R("v_mul_u32_u24 v26, 1040, v26")
    R("v_lshl_add_u32 v26, v22, 5, v26")
    R("v_lshl_add_u32 v26, v23, 4, v26")
    R("v_lshl_add_u32 v26, v24, 3, v26")
    R("v_and_b32 v27, 31, v0")
    R("v_mul_u32_u24 v27, 1040, v27")
    R("v_lshl_add_u32 v27, v21, 4, v27")
    R("v_lshrrev_b32 v28, 4, v0")
    R("v_and_b32 v29, 15, v0")
    R("v_lshlrev_b32 v29, 4, v29")
    R(f"v_lshl_add_u32 v{vKV}, v28, 12, v29")
    R(f"s_lshl_b32 s{sVOFF}, s{sWAVE}, 8")
    R(f"s_add_u32 s{sKOFF}, s{sVOFF}, {2*16384}")
    R(f"s_mov_b32 s{sT}, -1")
    if P.STAMP:
        R("s_mov_b32 s98, 0")
        R(f"v_mov_b32 v{STV}, 0")
    stamp(em)
    R(f"s_cmp_eq_u32 s{sWAVE}, 3")
    R("s_cbranch_scc1 L_wave3")

    R("v_and_b32 v28, 3, v0")
    R("v_lshl_add_u32 v28, v28, 2, v20")
    R("v_mul_u32_u24 v28, 1040, v28")
    R("v_lshl_add_u32 v28, v22, 8, v28")
    R(f"v_lshl_add_u32 v{aK}, v21, 4, v28")
    R("v_add_u32 v28, v25, v21")
    R("v_mul_u32_u24 v28, 1040, v28")
    R("v_and_b32 v29, 3, v0")
    R("v_lshl_add_u32 v29, v29, 3, v28")
    R("v_lshl_add_u32 v29, v22, 5, v29")
    R(f"v_add_u32 v{aV}, {V0}, v29")
    R("v_lshl_add_u32 v29, v23, 5, v28")
    R("v_lshl_add_u32 v29, v22, 4, v29")
    R("v_lshl_add_u32 v29, v24, 3, v29")
    R(f"v_add_u32 v{aWO}, {WO0}, v29")
    R(f"s_lshl_b32 s3, s{sWAVE}, 13")
    R(f"s_add_u32 s3, s3, {QB}")
    R(f"v_lshlrev_b32 v{aQB}, 4, v0")
    R(f"v_add_u32 v{aQB}, s3, v{aQB}")
    R(f"s_mul_i32 s3, s{sWAVE}, {32*1040}")
    R(f"v_add_u32 v{T3}, s3, v27")
    R(f"v_mov_b32 v{AUX}, v26")
    for i in range(8): R(f"v_mov_b32 v{16+i}, 0")
    R("s_nop 1")
    for nt in range(16):
        R(f"v_mfma_f32_32x32x16_bf16 a[{16*nt}:{16*nt+15}], v[16:19], v[20:23], 0")
    R("s_barrier")
    stamp(em)
    for ks in range(32):
        em.emit(dsr128(XFA(ks), T3, ks*32))
    em.wait_ds(0)
    R("s_barrier")
    stamp(em)
    locs = [WQ0, WQ0+SL, QB, V0, V0+SL, WO0, WO0+SL, WQ0]
    QA = SR[1]
    seq = []; frags = []
    tmpaddr = [T0, T1]
    for ti in range(8):
        if ti in (3, 7):
            seq.append(bar(newgate(), st=1))
        ta = tmpaddr[ti % 2]
        ga = newgate()
        seq.append(valu(f"v_add_u32 v{ta}, {locs[ti]}, v{AUX}", [AUX], [ta]))
        seq.append(MItem('bar', texts=[], rd=[ta], wr=[ga]))
        its = qproj_items(frags, ta, 0, ga, ti % 4, lambda dt2, mt: V(QA + 16*dt2, 16), lambda mt, ks: XFA(ks), 1)
        for it in its: it.rd.append(ta)
        seq += its[:8]
        if ti % 4 == 3: seq += scale_cvt(QA, QR + 16*(ti//4))
        seq += its[8:]
        if ti % 4 == 3: seq += scale_cvt(QA + 16, QR + 16*(ti//4) + 8)
    for i in range(64):
        seq.append(valu(f"v_mov_b32 v{OACC+i}, 0", [], [OACC+i]))
    for i in range(16):
        seq.append(valu(f"v_mov_b32 v{SR[1]+i}, 0", [], [SR[1]+i]))
    seq.append(valu(f"v_mov_b32 v{LA_}, 1.0", [], [LA_]))
    seq.append(valu(f"v_mov_b32 v{LB_}, 0", [], [LB_]))
    gA = newgate()
    seq.append(bar(gA, st=1))
    seq += kvq_ops(V0, sV, sVOFF, sM0V, 30, gA, newgate())
    seq += qk_items(frags, SR[0], 0, gA, False)
    schedule(em, seq, frags, STG, NS, P.LA, budget=P.BUDGET)
    R(f"s_mov_b32 s{sCNT}, 4")
    em.fence()
    em.label("L_att_loop")
    n0 = em.ninstr; nn0 = em.nops; w0 = em.waits
    attention_head(em)
    print(f"attention head body: {em.ninstr-n0} instrs, {em.nops-nn0} nop states, {em.waits-w0} waits", file=sys.stderr)
    R(f"s_sub_u32 s{sCNT}, s{sCNT}, 1")
    R(f"s_cmp_lg_u32 s{sCNT}, 0")
    em.fence()
    R("s_cbranch_scc1 L_att_loop")
    seq = []; frags = []
    gB = newgate(); g1 = newgate(); g2 = newgate()
    seq.append(bar(gB, st=2))
    seq.append(valu(f"v_subrev_u32 v{T0}, {WO0}, v{aWO}", [aWO], [T0]))
    seq.append(valu(f"v_lshlrev_b32 v{T1}, 4, v0", [], [T1]))
    seq.append(salu(f"s_lshl_b32 s3, s{sWAVE}, 15"))
    seq += pv_items(frags, SR[1], 1, None, False)
    seq.append(bar(g1, st=1, rd=[T0]))
    seq += finalize_ops()
    for ks in range(4):
        seq += opj_items(frags, ks, ks*SL, g1)
    seq.append(bar(g2, st=1))
    for nt in range(16):
        for ks in range(4, 8):
            seq.append(opj_item(frags, ks, nt, (ks-4)*SL, g2, T0))
        b = 176 + (nt % 4) * 16
        for r in range(16):
            seq.append(valu(f"v_accvgpr_read_b32 v{b+r}, a{16*nt+r}", AG(16*nt+r), [b+r]))
        for k in range(8):
            seq.append(valu(f"v_cvt_pk_bf16_f32 v{b+k}, v{b+2*k}, v{b+2*k+1}", [b+2*k, b+2*k+1], [b+k]))
        for q in range(2):
            off = (nt*2 + q) * 1024
            if off % 4096 == 0:
                seq.append(salu(f"s_add_u32 s4, s3, {off}"))
            seq.append(Op('vmem', f"buffer_store_dwordx4 v[{b+4*q}:{b+4*q+3}], v{T1}, {srd(sWS)}, s4 offen offset:{off % 4096}{P.STPOL}", rd=V(b+4*q, 4) + [T1], tag='store'))
    schedule(em, seq, frags, STG, NS, P.LA, budget=8.0)
    stamp(em)
    if P.STAMP: R("s_waitcnt vmcnt(0)")
    stamp(em)
    stamp_store(em)
    R("s_endpgm")
    emit_rare(em)

    em.label("L_wave3")
    em.reset()
    R(f"v_lshlrev_b32 v{w_vlin}, 4, v0")
    R("v_lshrrev_b32 v28, 3, v0")
    R("v_and_b32 v29, 7, v0")
    R("v_lshlrev_b32 v29, 4, v29")
    R(f"v_lshl_add_u32 v{w_vwq}, v28, 17, v29")
    R(f"v_add_u32 v{w_aWQ}, {WQ0}, v26")
    R(f"v_add_u32 v{w_aQB}, {QB}, v{w_vlin}")
    R(f"v_mov_b32 v{w_aX}, v27")
    R(f"v_add_u32 v8, {64*1040}, v27")
    R(f"s_mov_b32 s{sWQCOL}, 0")
    R(f"s_mov_b32 s{sTMP}, 0")
    R(f"s_mov_b32 s3, 0")
    em.label("L_xload")
    for i in range(4):
        R(f"s_add_u32 m0, s3, {16*i}")
        R("s_nop 0")
        R(f"buffer_load_dwordx4 v{w_vlin}, {srd(sX)}, s{sTMP} offen offset:{1024*i}{P.XPOL} lds")
    R(f"s_add_u32 s3, s3, 4160")
    R(f"s_add_u32 s{sTMP}, s{sTMP}, 4096")
    R(f"s_cmp_lt_u32 s{sTMP}, 98304")
    R("s_cbranch_scc1 L_xload")
    def wq0_tile(ti, loc):
        for o in dma_wq(loc, sWQCOL, (ti % 4)*128*8192 + (ti // 4)*128): em.emit(o)
    for ti in range(3): wq0_tile(ti, locs[ti])
    R("s_waitcnt vmcnt(48)")
    R("s_barrier")
    for mt in range(3):
        for ks in range(32):
            if mt < 2: em.emit(dsr128(XF3(mt, ks), w_aX, mt*32*1040 + ks*32))
            else: em.emit(dsr128(XF3(mt, ks), 8, ks*32))
    em.wait_ds(0)
    R("s_waitcnt vmcnt(0)")
    R("s_barrier")
    wq0_tile(3, locs[3])
    for o in dma_kv_full(K0, sK, "0"): em.emit(o)
    wq0_tile(4, locs[4]); wq0_tile(5, locs[5]); wq0_tile(6, locs[6])
    R(f"s_mov_b32 s3, 16384")
    for o in dma_kv_full(K0+SL, sK, "s3"): em.emit(o)
    R("s_waitcnt vmcnt(16)")
    R("s_barrier")
    wq0_tile(7, locs[7])
    R(f"s_mov_b32 s{sWQCOL}, 256")
    for o in dma_wq(WQ0+SL, sWQCOL, 0): em.emit(o)
    R("s_waitcnt vmcnt(16)")
    R("s_barrier")
    R(f"s_mov_b32 s{sWOOFF}, {(-7*16384) & 0xffffffff:#x}")
    R(f"s_mov_b32 s{sCNT}, 6")
    R("s_waitcnt vmcnt(0)")
    em.fence(2)
    em.label("L_w3_loop")
    n0 = em.ninstr; nn0 = em.nops; w0 = em.waits
    wave3_body(em)
    print(f"wave3 body: {em.ninstr-n0} instrs, {em.nops-nn0} nop states, {em.waits-w0} waits", file=sys.stderr)
    R(f"s_sub_u32 s{sCNT}, s{sCNT}, 1")
    R(f"s_cmp_lg_u32 s{sCNT}, 0")
    em.fence(2)
    R("s_cbranch_scc1 L_w3_loop")
    vm = VM(em, [("A22", 20), ("B22", 20)])
    R(f"s_add_u32 s3, s{sWOOFF}, {(26-17)*16384}")
    for t in range(23, 32):
        stamp(em)
        vm.need(f"A{t-1}", f"TT{t}")
        R("s_barrier")
        if t <= 30:
            vm.issue(f"A{t}", kvq_ops(V0 + ((t+1) % 2)*SL, sV, sVOFF, sM0V, 30, 0, 0))
        if t == 23:
            vm.issue("TT32", dma_wo(WQ0, 3))
            R("s_add_u32 s3, s3, 16384")
        if t == 24:
            vm.issue("TT32", dma_wo(WQ0+SL, 3))
            R("s_add_u32 s3, s3, 16384")
        if t == 31:
            vm.issue("TT32", dma_wo(V0, 3))
            R("s_add_u32 s3, s3, 16384")
        vm.need(f"B{t-1}")
        R("s_barrier")
        ops = []
        if t <= 28:
            ops += kvq_ops(K0 + ((t+1) % 2)*SL, sK, sKOFF, sM0K, 28, 0, 0)
        ops += dma_wo(WO0 + (t % 2)*SL, sWOOFF)
        ops.append(salu(f"s_add_u32 s{sWOOFF}, s{sWOOFF}, 16384\n    s_add_u32 s{sT}, s{sT}, 1"))
        vm.issue(f"B{t}", ops)
        if t in (29, 30):
            vm.issue("TT32", dma_wo(K0 + (t-29)*SL, 3))
            R("s_add_u32 s3, s3, 16384")
    stamp(em)
    R("s_waitcnt vmcnt(0)")
    R("s_barrier")
    for o in dma_wo(V0+SL, 3): em.emit(o)
    R("s_waitcnt vmcnt(0)")
    R("s_barrier")
    stamp(em)
    stamp_store(em)
    em.label("L_end")
    R("s_endpgm")

def gen_reduce(em):
    R = em.raw
    em.lines.append(".p2align 8")
    em.lines.append(".globl reduce_kernel")
    em.lines.append(".type reduce_kernel,@function")
    em.label("reduce_kernel")
    R("s_cmp_ge_u32 s2, 768")
    R("s_cbranch_scc1 L_rend")
    R("s_load_dwordx2 s[4:5], s[0:1], 80")
    R("s_load_dwordx2 s[6:7], s[0:1], 96")
    R("v_lshrrev_b32 v1, 6, v0")
    R("v_and_b32 v0, 63, v0")
    R("s_and_b32 s8, s2, 7")
    R("s_lshr_b32 s9, s2, 3")
    R("s_mul_i32 s10, s9, 43691")
    R("s_lshr_b32 s10, s10, 17")
    R("s_mul_i32 s11, s10, 3")
    R("s_sub_u32 s11, s9, s11")
    R("s_lshr_b32 s12, s10, 4")
    R("s_and_b32 s13, s10, 15")
    R("v_and_b32 v2, 7, v0")
    R("v_bfe_u32 v3, v0, 3, 1")
    R("v_bfe_u32 v4, v0, 4, 1")
    R("v_lshrrev_b32 v5, 5, v0")
    R("v_lshl_add_u32 v2, v1, 3, v2")
    R("v_lshlrev_b32 v6, 11, v5")
    R("v_lshl_add_u32 v6, v3, 10, v6")
    R("v_lshl_add_u32 v6, v4, 9, v6")
    R("v_lshl_add_u32 v6, v2, 4, v6")
    R("s_lshl_b32 s14, s11, 15")
    R("s_lshl_b32 s15, s8, 12")
    R("s_add_u32 s14, s14, s15")
    R("s_lshl_b32 s15, s12, 2")
    R("s_lshl_b32 s16, s13, 3")
    R("s_add_u32 s15, s15, s16")
    R("s_mul_i32 s15, s15, 98304")
    R("s_add_u32 s14, s14, s15")
    R("s_waitcnt lgkmcnt(0)")
    R("s_mov_b32 s20, s6")
    R("s_and_b32 s21, s7, 0xffff")
    R(f"s_mov_b32 s22, {256*98304}")
    R("s_mov_b32 s23, 0x20000")
    R("s_mov_b32 s24, s4")
    R("s_and_b32 s25, s5, 0xffff")
    R(f"s_mov_b32 s26, {16*96*1024*2}")
    R("s_mov_b32 s27, 0x20000")
    for hg in range(8):
        d = ((hg // 2) + 128*(hg % 2)) * 98304
        R(f"s_add_u32 s17, s14, {d}")
        R(f"buffer_load_dwordx4 v[{8+4*hg}:{11+4*hg}], v6, s[20:23], s17 offen{P.RDPOL}")
    R("v_lshlrev_b32 v7, 11, v2")
    R("v_lshl_add_u32 v7, v5, 6, v7")
    R("v_lshl_add_u32 v7, v4, 5, v7")
    R("v_lshl_add_u32 v7, v3, 4, v7")
    R("s_mul_i32 s15, s13, 96")
    R("s_lshl_b32 s16, s11, 5")
    R("s_add_u32 s15, s15, s16")
    R("s_lshl_b32 s15, s15, 11")
    R("s_lshl_b32 s16, s12, 10")
    R("s_add_u32 s15, s15, s16")
    R("s_lshl_b32 s16, s8, 7")
    R("s_add_u32 s15, s15, s16")
    for hg in range(8):
        R(f"s_waitcnt vmcnt({7-hg})")
        for k in range(4):
            src = 8 + 4*hg + k
            if hg == 0:
                R(f"v_lshlrev_b32 v{40+2*k}, 16, v{src}")
                R(f"v_and_b32 v{41+2*k}, 0xffff0000, v{src}")
            else:
                R(f"v_lshlrev_b32 v48, 16, v{src}")
                R(f"v_and_b32 v49, 0xffff0000, v{src}")
                R(f"v_add_f32 v{40+2*k}, v{40+2*k}, v48")
                R(f"v_add_f32 v{41+2*k}, v{41+2*k}, v49")
    for k in range(4):
        R(f"v_cvt_pk_bf16_f32 v{52+k}, v{40+2*k}, v{41+2*k}")
    R("buffer_store_dwordx4 v[52:55], v7, s[24:27], s15 offen")
    em.label("L_rend")
    R("s_endpgm")

def build():
    ref = open(f"cdna_kernels/{NAME}.s.ref").read().splitlines()
    head = [l for l in ref if l.startswith(";") and "@launch" not in l]
    em = Em()
    gen_main(em)
    gen_reduce(em)
    out = []
    out += head
    out.append(f"; @launch kernel={NAME}_kernel grid=(256,1,1) block=(256,1,1) lds={LDS_BYTES}")
    out.append(f"; @launch kernel=reduce_kernel grid=(768,1,1) block=(256,1,1) lds=0")
    out.append('.amdgcn_target "amdgcn-amd-amdhsa--gfx950"')
    out.append(".text")
    out.append(f".globl {NAME}_kernel")
    out.append(".p2align 8")
    out.append(f".type {NAME}_kernel,@function")
    out.append(em.text())
    out.append('.section .rodata,"a"')
    for (k, nv, ao) in ((f"{NAME}_kernel", 512, 256), ("reduce_kernel", 64, 64)):
        out.append(".p2align 6")
        out.append(f".amdhsa_kernel {k}")
        out.append(f"  .amdhsa_next_free_vgpr {nv}")
        out.append("  .amdhsa_next_free_sgpr 102")
        out.append(f"  .amdhsa_accum_offset {ao}")
        out.append("  .amdhsa_group_segment_fixed_size 0")
        out.append("  .amdhsa_kernarg_size 104")
        out.append("  .amdhsa_user_sgpr_count 2")
        out.append("  .amdhsa_user_sgpr_kernarg_segment_ptr 1")
        out.append("  .amdhsa_system_sgpr_workgroup_id_x 1")
        out.append(".end_amdhsa_kernel")
    return "\n".join(out) + "\n"

if __name__ == "__main__":
    dst = sys.argv[1] if len(sys.argv) > 1 else f"cdna_kernels/{NAME}.s"
    for a in sys.argv[2:]:
        k, v = a.split("=")
        cur = getattr(P, k)
        setattr(P, k, type(cur)(v) if not isinstance(cur, str) else (" " + v if v else ""))
    open(dst, "w").write(build())
```

```python
import sys, struct
from em import *
from sched import *

NAME = "concat_heads__gqa_block_cached__gqa_block_cached__near_ridge"
SL = 16640
K0, V0, WO0, WQ0, QB = 0, 2*SL, 4*SL, 6*SL, 8*SL
LDS_BYTES = 163840
M0_NULL = 0x30000
WLOC = [3*SL, 4*SL, QB, 3*SL, 4*SL, 2*SL, 5*SL, QB]
C_SCALE = 1.4426950408889634 / (128 ** 0.5)
def f32bits(x): return struct.unpack("<I", struct.pack("<f", x))[0]

sK, sV, sWQ, sWO, sX, sWS = 8, 12, 16, 20, 24, 28
sWAVE, sC, sTHR, sCNT = 32, 33, 34, 35
sM0W, sM0K, sM0V, sM0N = 36, 37, 38, 39
sT, sKOFF, sVOFF, sWOOFF, sWQCOL, sTMP = 40, 41, 42, 43, 44, 45
def srd(b): return f"s[{b}:{b+3}]"

aK, aV, aWO, aQB, vKV = 1, 2, 3, 4, 5
LA_, LB_, ALPHA, DELTA = 7, 8, 9, 10
T0, T1, T2, T3 = 11, 12, 13, 14
AUX = 15
STG = 16; NS = 8
OACC, QR, OP = 48, 112, 144
SR = [176, 208]
NEGM = 240
w_vlin, w_vwq, w_aWQ, w_aQB, w_aX = 2, 3, 4, 1, 7
W_STG = 16; W_NS = 4
W_ACC = 32
def XF3(mt, ks):
    if mt < 2: return AG(mt * 128 + ks * 4, 4)
    return V(128 + ks * 4, 4)
def XFA(ks):
    return V(48 + ks * 4, 4) if ks < 16 else V(144 + (ks - 16) * 4, 4)

class P:
    LA = 5
    BUDGET = 6.0
    W_LA = 6
    W_BUDGET = 6.0
    W_SPLIT = 30
    KVPOL = " nt"
    WPOL = ""
    XPOL = ""
    STPOL = " nt"
    RDPOL = " nt"
    THR = 8.0
    STAMP = 0
    CYC = 0
    PAIR = 1
    NODMA = 0
    DBG = 0

gate_ctr = [1000]
def newgate():
    gate_ctr[0] += 1
    return gate_ctr[0]

STV = 6
def stamp_txt():
    if not P.STAMP: return []
    return [("s_memtime s[96:97]" if P.CYC else "s_memrealtime s[96:97]"), "s_min_u32 m0, s98, 63", "s_waitcnt lgkmcnt(0)",
            f"v_writelane_b32 v{STV}, s96, m0", "s_add_u32 s98, s98, 1"]
def stamp(em):
    if P.STAMP:
        em.wait_ds(0)
        for t in stamp_txt(): em.raw(t)
def stamp_store(em):
    if not P.STAMP: return
    R = em.raw
    R("s_lshl_b32 s3, s2, 2")
    R(f"s_add_u32 s3, s3, s{sWAVE}")
    R("s_lshl_b32 s3, s3, 8")
    R("s_add_u32 s92, s70, 0x2000000")
    R("s_addc_u32 s93, s71, 0")
    R("s_and_b32 s93, s93, 0xffff")
    R("s_mov_b32 s94, 0x40000")
    R("s_mov_b32 s95, 0x20000")
    R("v_lshlrev_b32 v0, 2, v0")
    R(f"buffer_store_dword v{STV}, v0, s[92:95], s3 offen")
def bar(gate, pre=(), rd=(), drain=False, st=0):
    s1 = stamp_txt() if (st and P.STAMP >= st) else []
    s2 = stamp_txt() if (st and P.STAMP >= 2) else []
    return MItem('bar', texts=s2 + list(pre) + ["s_barrier"] + s1, rd=rd, wr=[gate], drain=drain or bool(s1))

def v3(op, d, a, b, c):
    return valu(f"{op} v{d}, v{a}, v{b}, v{c}", [a, b, c], [d])
def salu(text, rd=(), wr=()):
    return Op('salu', text, rd=rd, wr=wr, cost=text.count("\n") + 1)

def interleave(main, extra, start=0, every=3):
    out = []; e = list(extra)
    for i, o in enumerate(main):
        out.append(o)
        if e and i >= start and (i - start) % every == every - 1:
            out.append(e.pop(0))
    return out + e

def maxtree_ops(S):
    ops = []
    T = [T0, T1, T2, T3]
    for k in range(4): ops.append(v3("v_max3_f32", T[k], S+8*k, S+8*k+1, S+8*k+2))
    for k in range(4): ops.append(v3("v_max3_f32", T[k], T[k], S+8*k+3, S+8*k+4))
    for k in range(4): ops.append(v3("v_max3_f32", T[k], T[k], S+8*k+5, S+8*k+6))
    ops.append(v3("v_max3_f32", T0, T0, S+7, T1))
    ops.append(v3("v_max3_f32", T2, T2, S+23, T3))
    ops.append(v3("v_max3_f32", T0, T0, S+15, S+31))
    ops.append(valu(f"v_max_f32 v{T0}, v{T0}, v{T2}", [T0, T2], [T0]))
    ops.append(valu(f"v_mov_b32 v{T1}, v{T0}", [T0], [T1]))
    ops.append(valu(f"v_permlane32_swap_b32 v{T0}, v{T1}", [T0, T1], [T0, T1], kind='perm'))
    ops.append(valu(f"v_max_f32 v{DELTA}, v{T0}, v{T1}", [T0, T1], [DELTA]))
    return ops

def first_tile_ops(S):
    ops = []
    for i in range(16):
        ops.append(valu(f"v_sub_f32 v{NEGM+i}, 0, v{DELTA}", [DELTA], [NEGM+i]))
    for i in range(32):
        ops.append(valu(f"v_sub_f32 v{S+i}, v{S+i}, v{DELTA}", [S+i, DELTA], [S+i]))
    return ops

rare_blocks = []
def check_op(S, tag):
    regs = V(S, 32) + V(NEGM, 16) + V(OACC, 64) + [LA_, LB_, DELTA, ALPHA]
    rare_blocks.append((S, tag))
    t = f"v_cmp_lt_f32 vcc, s{sTHR}, v{DELTA}\n    s_cbranch_vccnz L_rare_{tag}\nL_back_{tag}:"
    op = Op('raw', t, rd=regs, wr=regs, cost=2)
    op.noraw = True
    return op
def emit_rare(em):
    R = em.raw
    for (S, tag) in rare_blocks:
        em.label(f"L_rare_{tag}")
        R("s_nop 15")
        R(f"v_max_f32 v{DELTA}, 0, v{DELTA}")
        R(f"v_sub_f32 v{ALPHA}, 0, v{DELTA}")
        R(f"v_exp_f32 v{ALPHA}, v{ALPHA}")
        for i in range(32): R(f"v_sub_f32 v{S+i}, v{S+i}, v{DELTA}")
        for i in range(16): R(f"v_sub_f32 v{NEGM+i}, v{NEGM+i}, v{DELTA}")
        for i in range(64): R(f"v_mul_f32 v{OACC+i}, v{ALPHA}, v{OACC+i}")
        R(f"v_mul_f32 v{LA_}, v{ALPHA}, v{LA_}")
        R(f"v_mul_f32 v{LB_}, v{ALPHA}, v{LB_}")
        R("s_nop 3")
        R(f"s_branch L_back_{tag}")

def exp_ops(S, first):
    def ex(i): return valu(f"v_exp_f32 v{S+i}, v{S+i}", [S+i], [S+i], kind='trans')
    def add(i):
        l = LA_ if i % 2 == 0 else LB_
        if i < 2 and first: return valu(f"v_mov_b32 v{l}, v{S+i}", [S+i], [l])
        return valu(f"v_add_f32 v{l}, v{l}, v{S+i}", [l, S+i], [l])
    def cvt(k): return valu(f"v_cvt_pk_bf16_f32 v{S+k}, v{S+2*k}, v{S+2*k+1}", [S+2*k, S+2*k+1], [S+k])
    out = []
    for k in range(17):
        if k < 16: out.append(ex(2*k))
        if k > 0: out.append(add(2*k-2))
        if k < 16: out.append(ex(2*k+1))
        if k > 0:
            out.append(add(2*k-1)); out.append(cvt(k-1))
    return out

def finalize_ops():
    ops = []
    ops.append(valu(f"v_add_f32 v{T2}, v{LA_}, v{LB_}", [LA_, LB_], [T2]))
    ops.append(valu(f"v_mov_b32 v{T3}, v{T2}", [T2], [T3]))
    ops.append(valu(f"v_permlane32_swap_b32 v{T2}, v{T3}", [T2, T3], [T2, T3], kind='perm'))
    ops.append(valu(f"v_add_f32 v{T2}, v{T2}, v{T3}", [T2, T3], [T2]))
    ops.append(valu(f"v_rcp_f32 v{AUX}, v{T2}", [T2], [AUX], kind='trans'))
    for k in range(33):
        if k < 32:
            a, b = OACC + 2*k, OACC + 2*k + 1
            ops.append(valu(f"v_mul_f32 v{a}, v{AUX}, v{a}", [AUX, a], [a]))
            ops.append(valu(f"v_mul_f32 v{b}, v{AUX}, v{b}", [AUX, b], [b]))
        if k > 0:
            kk = k - 1
            ops.append(valu(f"v_cvt_pk_bf16_f32 v{OP+kk}, v{OACC+2*kk}, v{OACC+2*kk+1}", [OACC+2*kk, OACC+2*kk+1], [OP+kk]))
    return ops

def qk_items(frags, Sdst, kslot, gate, negm):
    it = []
    for sub in range(2):
        for ks in range(8):
            frags.append(Frag([('b128', aK, K0 + kslot*SL + sub*512 + ks*32, 0)], gate))
            it.append(MItem('mfma', D=V(Sdst + 16*sub, 16), B=V(QR + 4*ks, 4), acc=(ks != 0), frag=len(frags)-1,
                            C=(V(NEGM, 16) if (ks == 0 and negm) else None)))
    return it
def opj_item(frags, ks, nt, woff, gate, addr):
    frags.append(Frag([('tr', addr, woff + t*2080 + nt*64, 2*t) for t in range(2)], gate))
    return MItem('mfma', D=AG(16*nt, 16), B=V(OP + 4*ks, 4), acc=True, frag=len(frags)-1)
def opj_items(frags, ks, woff, gate, addr=aWO):
    return [opj_item(frags, ks, nt, woff, gate, addr) for nt in range(16)]
def pv_items(frags, S, vslot, gate, first):
    it = []
    for s in range(4):
        for dt in range(4):
            frags.append(Frag([('tr', aV, vslot*SL + t*2080 + s*256 + dt*64, 2*t) for t in range(2)], gate))
            it.append(MItem('mfma', D=V(OACC + 16*dt, 16), B=V(S + 4*s, 4), acc=not (first and s == 0), frag=len(frags)-1))
    return it

def dma_pair(m0txt, voff, srdb, soff, off, pol, rd=(), wr=()):
    a = Op('m0', m0txt, rd=rd)
    b = Op('dma', f"buffer_load_dwordx4 v{voff}, {srd(srdb)}, {soff} offen" + (f" offset:{off}" if off else "") + f"{pol} lds", wr=wr)
    return [a, b]

def kvq_ops(slotbase, srdb, offreg, m0reg, lim, gate, done):
    if P.NODMA: lim = -100
    ops = [salu(f"s_cmp_le_i32 s{sT}, {lim}\n    s_cselect_b32 s{srdb+2}, 0x80000, 0\n    s_cselect_b32 s{m0reg}, s{sM0W}, s{sM0N}", rd=[gate])]
    for i in range(4):
        ops += dma_pair(f"s_add_u32 m0, s{m0reg}, {slotbase + 16*i}", vKV, srdb, f"s{offreg}", 1024*i, P.KVPOL)
    ops.append(salu(f"s_add_u32 s{offreg}, s{offreg}, 16384", wr=[done]))
    return ops

def attention_head(em):
    seq = []; frags = []
    gA_prev = None; dA_prev = None
    for j in range(8):
        p = j % 2
        gA = newgate(); gB = newgate(); dB = newgate(); dA = newgate()
        seq.append(bar(gB, pre=["s_waitcnt vmcnt(4)"], rd=[dA_prev] if dA_prev else [], st=2))
        kq = kvq_ops(K0 + p*SL, sK, sKOFF, sM0K, 28, gB, dB)
        kq.append(salu(f"s_add_u32 s{sT}, s{sT}, 1"))
        mt = maxtree_ops(SR[p])
        if j == 0: mt += first_tile_ops(SR[p])
        seq += interleave(mt, kq, every=2)
        seq += pv_items(frags, SR[1-p], 1-p, gA_prev, j == 1)
        seq.append(bar(gA, pre=["s_waitcnt vmcnt(4)"], rd=[dB], st=1))
        vq = kvq_ops(V0 + (1-p)*SL, sV, sVOFF, sM0V, 30, gA, dA)
        pre = []
        if j == 0:
            pre += finalize_ops()
        else:
            pre.append(check_op(SR[p], f"{j}"))
        if j == 7:
            for ks in range(8):
                op = dsr128(V(QR + 4*ks, 4), aQB, ks*1024)
                op.rd.append(gA)
                pre.append(op)
        seq += pre
        if j == 0:
            seq += qk_items(frags, SR[1-p], 1-p, gB, True)
            seq += opj_items(frags, j, p*SL, gB)
        else:
            seq += opj_items(frags, j, p*SL, gB)
            seq += qk_items(frags, SR[1-p], 1-p, gB, j != 7)
        seq += interleave(exp_ops(SR[p], j == 0), vq, every=3)
        gA_prev = gA; dA_prev = dA
    schedule(em, seq, frags, STG, NS, P.LA, budget=P.BUDGET, pair=P.PAIR)

def perm16(j): return 4*(j % 4) + j // 4

def dma_kv_full(slotbase, srdb, soff):
    ops = []
    for j in range(16):
        ops += dma_pair(f"s_mov_b32 m0, {slotbase + 1040*j - perm16(j)*256}", vKV, srdb, soff, perm16(j)*256, P.KVPOL)
    return ops
def dma_wo(slotbase, soffreg):
    ops = []
    for jj in range(4):
        for jh in range(4):
            j = jh*4 + jj
            pr = dma_pair(f"s_mov_b32 m0, {slotbase + 1040*j - jh*1024}", w_vlin, sWO, f"s{sTMP}", jh*1024, P.WPOL)
            if jh == 0: pr.insert(1, salu(f"s_add_u32 s{sTMP}, s{soffreg}, {jj*4096}"))
            ops += pr
    return ops
def dma_wq(slotbase, colreg, const):
    ops = []
    for j in range(16):
        pr = dma_pair(f"s_mov_b32 m0, {slotbase + 1040*j}", w_vwq, sWQ, f"s{sTMP+1}", 0, P.WPOL)
        pr.insert(1, salu(f"s_add_u32 s{sTMP+1}, s{colreg}, {const + perm16(j)*8192}"))
        ops += pr
    return ops

def qproj_items(frags, addr, base, gate, kq, acc_regs, xfrag, nmt):
    it = []
    for dt2 in range(2):
        for ks in range(8):
            frags.append(Frag([('tr', addr, base + t*1040 + ks*128 + dt2*64, 2*t) for t in range(2)], gate))
            for mt in range(nmt):
                it.append(MItem('mfma', D=acc_regs(dt2, mt), B=xfrag(mt, kq*8 + ks), acc=not (kq == 0 and ks == 0), frag=len(frags)-1))
    return it

def scale_cvt(a, dst):
    ops = []
    for k in range(9):
        if k < 8:
            ops.append(valu(f"v_mul_f32 v{a+2*k}, s{sC}, v{a+2*k}", [a+2*k], [a+2*k]))
            ops.append(valu(f"v_mul_f32 v{a+2*k+1}, s{sC}, v{a+2*k+1}", [a+2*k+1], [a+2*k+1]))
        if k > 0:
            kk = k - 1
            ops.append(valu(f"v_cvt_pk_bf16_f32 v{dst+kk}, v{a+2*kk}, v{a+2*kk+1}", [a+2*kk, a+2*kk+1], [dst+kk]))
    return ops

def w3_acc(dt2, mt): return V(W_ACC + (dt2*3 + mt)*16, 16)
def w3_cv(dt2):
    ops = []
    for mt in range(3):
        a = w3_acc(dt2, mt)[0]
        ops += scale_cvt(a, a)
        for s2 in range(2):
            ops.append(dsw128(w_aQB, V(a + 4*s2, 4), mt*8192 + (dt2*2 + s2)*1024))
    return ops

def wave3_body(em):
    seq = []; frags = []
    lastB = None
    for kq in (1, 2, 3, 0):
        par = kq % 2
        gA = newgate(); gB = newgate(); dA = newgate(); dB = newgate()
        rdA = [lastB] if lastB else []
        seq.append(bar(gA, pre=stamp_txt() + ["s_waitcnt vmcnt(20)"], rd=rdA, drain=bool(P.STAMP)))
        A = [salu(f"s_cmp_le_i32 s{sT}, {-100 if P.NODMA else 20}\n    s_cselect_b32 s{sWQ+2}, s{sTMP+2}, 0", rd=[gA])]
        if kq == 3:
            A.append(salu(f"s_add_u32 s{sWQCOL}, s{sWQCOL}, 128"))
        A += dma_wq(WQ0 + (1-par)*SL, sWQCOL, ((kq+1) % 4) * 128 * 8192)
        A += kvq_ops(V0 + (1-par)*SL, sV, sVOFF, sM0V, 30, gA, dA)
        items = qproj_items(frags, w_aWQ, par*SL, gA, kq, w3_acc, XF3, 3)
        if kq == 0:
            c = w3_cv(1) + [valu(f"v_xor_b32 v{w_aQB}, 0x1000, v{w_aQB}", [w_aQB], [w_aQB])]
            A = interleave(c, A, every=1)
        seq += A
        seq += items[:P.W_SPLIT]
        seq.append(bar(gB, pre=["s_waitcnt vmcnt(20)"], rd=[dA]))
        B = kvq_ops(K0 + (1-par)*SL, sK, sKOFF, sM0K, 28, gB, newgate())
        B.append(salu(f"s_cmp_ge_i32 s{sT}, {100 if P.NODMA else 6}\n    s_cselect_b32 s{sWO+2}, 0x80000, 0"))
        B += dma_wo(WO0 + par*SL, sWOOFF)
        B.append(salu(f"s_add_u32 s{sWOOFF}, s{sWOOFF}, 16384\n    s_add_u32 s{sT}, s{sT}, 1", wr=[dB]))
        if kq == 3:
            B = interleave(B, w3_cv(0), every=1)
        seq += B
        seq += items[P.W_SPLIT:]
        lastB = dB
    schedule(em, seq, frags, W_STG, W_NS, P.W_LA, budget=P.W_BUDGET, pair=False)

class VM:
    def __init__(self, em, init): self.em = em; self.q = list(init)
    def issue(self, tag, ops):
        n = 0
        for o in ops:
            self.em.emit(o)
            if o.kind == 'dma': n += 1
        self.q.append((tag, n))
    def need(self, *tags):
        last = -1
        for i, (t, n) in enumerate(self.q):
            if t in tags: last = i
        if last >= 0:
            n = sum(c for (_, c) in self.q[last+1:])
            self.em.raw(f"s_waitcnt vmcnt({min(n, 63)})")
            self.q = self.q[last+1:]

def gen_main(em):
    R = em.raw
    em.label(f"{NAME}_kernel")
    R("s_cmp_ge_u32 s2, 256")
    R("s_cbranch_scc1 L_end")
    R("s_load_dwordx8 s[48:55], s[0:1], 0")
    R("s_load_dwordx2 s[56:57], s[0:1], 32")
    R("s_load_dwordx8 s[60:67], s[0:1], 40")
    R("s_load_dwordx2 s[68:69], s[0:1], 72")
    R("s_load_dwordx2 s[70:71], s[0:1], 96")
    R("v_lshrrev_b32 v1, 6, v0")
    R("v_and_b32 v0, 63, v0")
    R(f"v_readfirstlane_b32 s{sWAVE}, v1")
    R("s_and_b32 s3, s2, 7")
    R("s_lshr_b32 s4, s2, 3")
    R("s_lshr_b32 s5, s3, 2")
    R("s_and_b32 s3, s3, 3")
    R("s_lshl_b32 s3, s3, 1")
    R("s_lshr_b32 s6, s4, 4")
    R("s_add_u32 s3, s3, s6")
    R("s_and_b32 s4, s4, 15")
    R(f"s_mov_b32 s{sC}, {f32bits(C_SCALE):#x}")
    R(f"s_mov_b32 s{sTHR}, {f32bits(P.THR):#x}")
    R(f"s_mul_i32 s{sM0W}, s{sWAVE}, 4160")
    R(f"s_mov_b32 s{sM0N}, {M0_NULL:#x}")
    R("s_waitcnt lgkmcnt(0)")
    R("s_cmp_eq_u32 s5, 0")
    for i in range(5):
        R(f"s_cselect_b64 s[{48+2*i}:{49+2*i}], s[{48+2*i}:{49+2*i}], s[{60+2*i}:{61+2*i}]")
    R("s_lshl_b32 s6, s4, 22")
    R("s_lshl_b32 s7, s3, 19")
    R("s_add_u32 s6, s6, s7")
    for (d, p) in ((sK, 50), (sV, 52)):
        R(f"s_add_u32 s{d}, s{p}, s6")
        R(f"s_addc_u32 s{d+1}, s{p+1}, 0")
        R(f"s_and_b32 s{d+1}, s{d+1}, 0xffff")
        R(f"s_mov_b32 s{d+2}, 0x80000")
        R(f"s_mov_b32 s{d+3}, 0x20000")
    R("s_lshl_b32 s6, s3, 10")
    R(f"s_add_u32 s{sWQ}, s54, s6")
    R(f"s_addc_u32 s{sWQ+1}, s55, 0")
    R(f"s_and_b32 s{sWQ+1}, s{sWQ+1}, 0xffff")
    R(f"s_sub_u32 s{sWQ+2}, 0x400000, s6")
    R(f"s_mov_b32 s{sTMP+2}, s{sWQ+2}")
    R(f"s_mov_b32 s{sWQ+3}, 0x20000")
    R(f"s_add_u32 s{sWO}, s56, s7")
    R(f"s_addc_u32 s{sWO+1}, s57, 0")
    R(f"s_and_b32 s{sWO+1}, s{sWO+1}, 0xffff")
    R(f"s_mov_b32 s{sWO+2}, 0x80000")
    R(f"s_mov_b32 s{sWO+3}, 0x20000")
    R("s_mul_i32 s6, s4, 98304")
    R(f"s_add_u32 s{sX}, s48, s6")
    R(f"s_addc_u32 s{sX+1}, s49, 0")
    R(f"s_and_b32 s{sX+1}, s{sX+1}, 0xffff")
    R(f"s_mov_b32 s{sX+2}, 98304")
    R(f"s_mov_b32 s{sX+3}, 0x20000")
    R("s_mul_i32 s6, s2, 98304")
    R(f"s_add_u32 s{sWS}, s70, s6")
    R(f"s_addc_u32 s{sWS+1}, s71, 0")
    R(f"s_and_b32 s{sWS+1}, s{sWS+1}, 0xffff")
    R(f"s_mov_b32 s{sWS+2}, 98304")
    R(f"s_mov_b32 s{sWS+3}, 0x20000")
    R("v_bfe_u32 v20, v0, 2, 2")
    R("v_lshrrev_b32 v21, 5, v0")
    R("v_bfe_u32 v22, v0, 4, 1")
    R("v_and_b32 v23, 1, v0")
    R("v_bfe_u32 v24, v0, 1, 1")
    R("v_lshlrev_b32 v25, 2, v20")
    R("v_lshl_add_u32 v26, v21, 1, v25")
    R("v_mul_u32_u24 v26, 1040, v26")
    R("v_lshl_add_u32 v26, v22, 5, v26")
    R("v_lshl_add_u32 v26, v23, 4, v26")
    R("v_lshl_add_u32 v26, v24, 3, v26")
    R("v_and_b32 v27, 15, v0")
    R("v_mul_u32_u24 v27, 1040, v27")
    R("v_lshl_add_u32 v27, v22, 9, v27")
    R("v_lshl_add_u32 v27, v21, 4, v27")
    R("v_lshrrev_b32 v28, 4, v0")
    R("v_and_b32 v29, 15, v0")
    R("v_lshlrev_b32 v29, 4, v29")
    R(f"v_lshl_add_u32 v{vKV}, v28, 12, v29")
    R(f"s_lshl_b32 s{sVOFF}, s{sWAVE}, 8")
    R(f"s_add_u32 s{sKOFF}, s{sVOFF}, {2*16384}")
    R(f"s_mov_b32 s{sT}, -1")
    if P.STAMP:
        R("s_mov_b32 s98, 0")
        R(f"v_mov_b32 v{STV}, 0")
    stamp(em)
    R(f"s_cmp_eq_u32 s{sWAVE}, 3")
    R("s_cbranch_scc1 L_wave3")

    R("v_and_b32 v28, 3, v0")
    R("v_lshl_add_u32 v28, v28, 2, v20")
    R("v_mul_u32_u24 v28, 1040, v28")
    R("v_lshl_add_u32 v28, v22, 8, v28")
    R(f"v_lshl_add_u32 v{aK}, v21, 4, v28")
    R("v_add_u32 v28, v25, v21")
    R("v_mul_u32_u24 v28, 1040, v28")
    R("v_and_b32 v29, 3, v0")
    R("v_lshl_add_u32 v29, v29, 3, v28")
    R("v_lshl_add_u32 v29, v22, 5, v29")
    R(f"v_add_u32 v{aV}, {V0}, v29")
    R("v_lshl_add_u32 v29, v23, 5, v28")
    R("v_lshl_add_u32 v29, v22, 4, v29")
    R("v_lshl_add_u32 v29, v24, 3, v29")
    R(f"v_add_u32 v{aWO}, {WO0}, v29")
    R(f"s_lshl_b32 s3, s{sWAVE}, 13")
    R(f"s_add_u32 s3, s3, {QB}")
    R(f"v_lshlrev_b32 v{aQB}, 4, v0")
    R(f"v_add_u32 v{aQB}, s3, v{aQB}")
    R(f"v_mov_b32 v{AUX}, v26")
    R(f"s_mul_i32 s3, s{sWAVE}, {SL}")
    R(f"v_add_u32 v{T2}, s3, v27")
    R(f"v_add_u32 v{T3}, {5*SL}, v{T2}")
    for i in range(8): R(f"v_mov_b32 v{16+i}, 0")
    R("s_nop 1")
    for nt in range(16):
        R(f"v_mfma_f32_32x32x16_bf16 a[{16*nt}:{16*nt+15}], v[16:19], v[20:23], 0")
    QA = SR[1]
    seq = []; frags = []
    tmpaddr = [T0, T1]
    for ti in range(8):
        if ti in (0, 2, 3, 6):
            g = newgate()
            xr = []
            if ti in (2, 3):
                for ks in range(16): xr += XFA(ks + 16*(ti-2))
            seq.append(bar(g, st=1, drain=True, rd=xr))
            if ti in (0, 2):
                for ks in range(16):
                    op = dsr128(XFA(ks + 8*ti), T2 if ti == 0 else T3, ks*32)
                    op.rd.append(g)
                    seq.append(op)
        ta = tmpaddr[ti % 2]
        ga = newgate()
        seq.append(valu(f"v_add_u32 v{ta}, {WLOC[ti]}, v{AUX}", [AUX], [ta]))
        seq.append(MItem('bar', texts=[], rd=[ta], wr=[ga]))
        its = qproj_items(frags, ta, 0, ga, ti % 4, lambda dt2, mt: V(QA + 16*dt2, 16), lambda mt, ks: XFA(ks), 1)
        for it in its: it.rd.append(ta)
        seq += its[:8]
        if ti % 4 == 3: seq += scale_cvt(QA, QR + 16*(ti//4))
        seq += its[8:]
        if ti % 4 == 3: seq += scale_cvt(QA + 16, QR + 16*(ti//4) + 8)
    for i in range(64):
        seq.append(valu(f"v_mov_b32 v{OACC+i}, 0", [], [OACC+i]))
    for i in range(16):
        seq.append(valu(f"v_mov_b32 v{SR[1]+i}, 0", [], [SR[1]+i]))
    seq.append(valu(f"v_mov_b32 v{LA_}, 1.0", [], [LA_]))
    seq.append(valu(f"v_mov_b32 v{LB_}, 0", [], [LB_]))
    gA = newgate()
    seq.append(bar(gA, st=1))
    seq += kvq_ops(V0, sV, sVOFF, sM0V, 30, gA, newgate())
    seq += qk_items(frags, SR[0], 0, gA, False)
    schedule(em, seq, frags, STG, NS, P.LA, budget=P.BUDGET)
    R(f"s_mov_b32 s{sCNT}, 4")
    em.fence()
    em.label("L_att_loop")
    n0 = em.ninstr; nn0 = em.nops; w0 = em.waits
    attention_head(em)
    print(f"attention head body: {em.ninstr-n0} instrs, {em.nops-nn0} nop states, {em.waits-w0} waits", file=sys.stderr)
    R(f"s_sub_u32 s{sCNT}, s{sCNT}, 1")
    R(f"s_cmp_lg_u32 s{sCNT}, 0")
    em.fence()
    R("s_cbranch_scc1 L_att_loop")
    seq = []; frags = []
    gB = newgate(); g1 = newgate()
    seq.append(bar(gB, st=2))
    seq.append(valu(f"v_subrev_u32 v{T0}, {WO0}, v{aWO}", [aWO], [T0]))
    seq.append(valu(f"v_add_u32 v{DELTA}, {QB-WO0}, v{aWO}", [aWO], [DELTA]))
    seq.append(valu(f"v_lshlrev_b32 v{T1}, 4, v0", [], [T1]))
    seq.append(salu(f"s_lshl_b32 s3, s{sWAVE}, 15"))
    seq += pv_items(frags, SR[1], 1, None, False)
    seq.append(bar(g1, st=1, rd=[T0, DELTA]))
    seq += finalize_ops()
    for nt in range(16):
        for ks in range(8):
            if ks < 4: seq.append(opj_item(frags, ks, nt, ks*SL, g1, aWO))
            elif ks < 7: seq.append(opj_item(frags, ks, nt, (ks-4)*SL, g1, T0))
            else: seq.append(opj_item(frags, ks, nt, 0, g1, DELTA))
        b = 176 + (nt % 4) * 16
        for r in range(16):
            seq.append(valu(f"v_accvgpr_read_b32 v{b+r}, a{16*nt+r}", AG(16*nt+r), [b+r]))
        for k in range(8):
            seq.append(valu(f"v_cvt_pk_bf16_f32 v{b+k}, v{b+2*k}, v{b+2*k+1}", [b+2*k, b+2*k+1], [b+k]))
        for q in range(2):
            off = (nt*2 + q) * 1024
            if off % 4096 == 0:
                seq.append(salu(f"s_add_u32 s4, s3, {off}"))
            seq.append(Op('vmem', f"buffer_store_dwordx4 v[{b+4*q}:{b+4*q+3}], v{T1}, {srd(sWS)}, s4 offen offset:{off % 4096}{P.STPOL}", rd=V(b+4*q, 4) + [T1], tag='store'))
    schedule(em, seq, frags, STG, NS, P.LA, budget=P.BUDGET)
    stamp(em)
    if P.STAMP: R("s_waitcnt vmcnt(0)")
    stamp(em)
    stamp_store(em)
    if P.DBG:
        R(f"s_cmp_lg_u32 s{sWAVE}, 0")
        R("s_cbranch_scc1 L_dbgskip")
        R("s_load_dwordx2 s[72:73], s[0:1], 88")
        R(f"v_readlane_b32 s76, v{STV}, 0")
        idx = [1, 5, 6, 14, 22, 30, 38, 40]
        for i, l in enumerate(idx): R(f"v_readlane_b32 s{80+i}, v{STV}, {l}")
        R("s_waitcnt lgkmcnt(0)")
        R("s_and_b32 s73, s73, 0xffff")
        R("s_mov_b32 s74, 256")
        R("s_mov_b32 s75, 0x20000")
        R("v_mov_b32 v1, 0")
        R("v_mov_b32 v2, 0")
        R("s_not_b32 s77, s76")
        R("v_writelane_b32 v2, s77, 8")
        R("v_writelane_b32 v2, s87, 9")
        for i in range(8):
            R(f"s_sub_u32 s{80+i}, s{80+i}, s76")
            R(f"v_writelane_b32 v1, s{80+i}, {i}")
        R("v_cmp_gt_u32 vcc, 40, v0")
        R("s_and_saveexec_b64 s[78:79], vcc")
        R("buffer_atomic_add v1, v0, s[72:75], 0 offen")
        R("buffer_atomic_umax v2, v0, s[72:75], 0 offen")
        R("s_waitcnt vmcnt(0)")
        em.label("L_dbgskip")
    R("s_endpgm")
    emit_rare(em)

    em.label("L_wave3")
    em.reset()
    R(f"v_lshlrev_b32 v{w_vlin}, 4, v0")
    R("v_lshrrev_b32 v28, 3, v0")
    R("v_and_b32 v29, 7, v0")
    R("v_lshlrev_b32 v29, 4, v29")
    R(f"v_lshl_add_u32 v{w_vwq}, v28, 17, v29")
    R(f"v_add_u32 v{w_aWQ}, {WQ0}, v26")
    R(f"v_add_u32 v{w_aQB}, {QB}, v{w_vlin}")
    R(f"v_mov_b32 v{w_aX}, v27")
    R(f"v_add_u32 v8, {5*SL}, v27")
    R("v_and_b32 v29, 31, v0")
    R("v_lshlrev_b32 v29, 4, v29")
    R("v_lshl_add_u32 v9, v21, 14, v29")
    R(f"s_mov_b32 s{sWQCOL}, 0")
    vm = VM(em, [])
    def xt(mt, kh, loc):
        ops = []
        for j in range(16):
            pr = dma_pair(f"s_mov_b32 m0, {loc + 1040*j - (j % 4)*1024}", 9, sX, f"s{sTMP}", (j % 4)*1024, P.XPOL)
            if j % 4 == 0: pr.insert(1, salu(f"s_mov_b32 s{sTMP}, {mt*32768 + kh*512 + j*1024}"))
            ops += pr
        return ops
    def w0(ti): return dma_wq(WLOC[ti], sWQCOL, (ti % 4)*128*8192 + (ti // 4)*128)
    for mt in range(3): vm.issue("X0", xt(mt, 0, mt*SL))
    vm.issue("W0", w0(0)); vm.issue("W1", w0(1))
    for mt in range(3): vm.issue("X1", xt(mt, 1, (5+mt)*SL))
    vm.issue("W2", w0(2))
    vm.need("W1")
    R("s_barrier")
    for mt in range(3):
        for ks in range(16):
            em.emit(dsr128(XF3(mt, ks), w_aX, mt*SL + ks*32))
    em.wait_ds(0)
    vm.need("W2")
    R("s_barrier")
    vm.issue("W3", w0(3)); vm.issue("W4", w0(4)); vm.issue("W5", w0(5))
    vm.issue("K0", dma_kv_full(K0, sK, "0"))
    R(f"s_mov_b32 s3, 16384")
    vm.issue("K1", dma_kv_full(K0+SL, sK, "s3"))
    for mt in range(3):
        for ks in range(16):
            em.emit(dsr128(XF3(mt, 16+ks), 8, mt*SL + ks*32))
    em.wait_ds(0)
    vm.need("W5")
    R("s_barrier")
    vm.issue("W6", w0(6)); vm.issue("W7", w0(7))
    R(f"s_mov_b32 s{sWQCOL}, 256")
    vm.issue("U0", dma_wq(WQ0, sWQCOL, 0))
    vm.issue("U1", dma_wq(WQ0+SL, sWQCOL, 128*8192))
    vm.need("W7")
    R("s_barrier")
    vm.need("U0")
    frags = []
    seq = qproj_items(frags, w_aWQ, 0, None, 0, w3_acc, XF3, 3)
    schedule(em, seq, frags, W_STG, W_NS, P.W_LA, budget=P.W_BUDGET, pair=False)
    R(f"s_mov_b32 s{sWOOFF}, {(-7*16384) & 0xffffffff:#x}")
    R(f"s_mov_b32 s{sCNT}, 6")
    R("s_waitcnt vmcnt(0)")
    em.fence(2)
    em.label("L_w3_loop")
    n0 = em.ninstr; nn0 = em.nops; w0 = em.waits
    wave3_body(em)
    print(f"wave3 body: {em.ninstr-n0} instrs, {em.nops-nn0} nop states, {em.waits-w0} waits", file=sys.stderr)
    R(f"s_sub_u32 s{sCNT}, s{sCNT}, 1")
    R(f"s_cmp_lg_u32 s{sCNT}, 0")
    em.fence(2)
    R("s_cbranch_scc1 L_w3_loop")
    vm = VM(em, [("A22", 20), ("B22", 20)])
    R(f"s_add_u32 s3, s{sWOOFF}, {(26-17)*16384}")
    for t in range(23, 32):
        stamp(em)
        vm.need(f"A{t-1}", f"TT{t}")
        R("s_barrier")
        if t <= 30:
            vm.issue(f"A{t}", kvq_ops(V0 + ((t+1) % 2)*SL, sV, sVOFF, sM0V, 30, 0, 0))
        if t == 23:
            vm.issue("TT32", dma_wo(WQ0, 3))
            R("s_add_u32 s3, s3, 16384")
        if t == 24:
            vm.issue("TT32", dma_wo(WQ0+SL, 3))
            R("s_add_u32 s3, s3, 16384")
        if t == 25:
            R(f"s_add_u32 s4, s3, {3*16384}")
            vm.issue("TT32", dma_wo(QB, 4))
        if t == 31:
            vm.issue("TT32", dma_wo(V0, 3))
            R("s_add_u32 s3, s3, 16384")
        vm.need(f"B{t-1}")
        R("s_barrier")
        ops = []
        if t <= 28:
            ops += kvq_ops(K0 + ((t+1) % 2)*SL, sK, sKOFF, sM0K, 28, 0, 0)
        ops += dma_wo(WO0 + (t % 2)*SL, sWOOFF)
        ops.append(salu(f"s_add_u32 s{sWOOFF}, s{sWOOFF}, 16384\n    s_add_u32 s{sT}, s{sT}, 1"))
        vm.issue(f"B{t}", ops)
        if t in (29, 30):
            vm.issue("TT32", dma_wo(K0 + (t-29)*SL, 3))
            R("s_add_u32 s3, s3, 16384")
    stamp(em)
    R("s_waitcnt vmcnt(0)")
    R("s_barrier")
    stamp(em)
    stamp_store(em)
    em.label("L_end")
    R("s_endpgm")

def gen_reduce(em):
    R = em.raw
    em.lines.append(".p2align 8")
    em.lines.append(".globl reduce_kernel")
    em.lines.append(".type reduce_kernel,@function")
    em.label("reduce_kernel")
    R("s_cmp_ge_u32 s2, 768")
    R("s_cbranch_scc1 L_rend")
    R("s_load_dwordx2 s[4:5], s[0:1], 80")
    R("s_load_dwordx2 s[6:7], s[0:1], 96")
    if P.DBG:
        R("s_memrealtime s[40:41]")
        R("s_load_dwordx2 s[32:33], s[0:1], 88")
    R("v_lshrrev_b32 v1, 6, v0")
    R("v_and_b32 v0, 63, v0")
    R("s_and_b32 s8, s2, 7")
    R("s_lshr_b32 s9, s2, 3")
    R("s_mul_i32 s10, s9, 43691")
    R("s_lshr_b32 s10, s10, 17")
    R("s_mul_i32 s11, s10, 3")
    R("s_sub_u32 s11, s9, s11")
    R("s_lshr_b32 s12, s10, 4")
    R("s_and_b32 s13, s10, 15")
    R("v_and_b32 v2, 7, v0")
    R("v_bfe_u32 v3, v0, 3, 1")
    R("v_bfe_u32 v4, v0, 4, 1")
    R("v_lshrrev_b32 v5, 5, v0")
    R("v_lshl_add_u32 v2, v1, 3, v2")
    R("v_lshlrev_b32 v6, 11, v5")
    R("v_lshl_add_u32 v6, v3, 10, v6")
    R("v_lshl_add_u32 v6, v4, 9, v6")
    R("v_lshl_add_u32 v6, v2, 4, v6")
    R("s_lshl_b32 s14, s11, 15")
    R("s_lshl_b32 s15, s8, 12")
    R("s_add_u32 s14, s14, s15")
    R("s_lshl_b32 s15, s12, 2")
    R("s_lshl_b32 s16, s13, 3")
    R("s_add_u32 s15, s15, s16")
    R("s_mul_i32 s15, s15, 98304")
    R("s_add_u32 s14, s14, s15")
    R("s_waitcnt lgkmcnt(0)")
    R("s_mov_b32 s20, s6")
    R("s_and_b32 s21, s7, 0xffff")
    R(f"s_mov_b32 s22, {256*98304}")
    R("s_mov_b32 s23, 0x20000")
    R("s_mov_b32 s24, s4")
    R("s_and_b32 s25, s5, 0xffff")
    R(f"s_mov_b32 s26, {16*96*1024*2}")
    R("s_mov_b32 s27, 0x20000")
    for hg in range(8):
        d = ((hg // 2) + 128*(hg % 2)) * 98304
        R(f"s_add_u32 s17, s14, {d}")
        R(f"buffer_load_dwordx4 v[{8+4*hg}:{11+4*hg}], v6, s[20:23], s17 offen{P.RDPOL}")
    R("v_lshlrev_b32 v7, 11, v2")
    R("v_lshl_add_u32 v7, v5, 6, v7")
    R("v_lshl_add_u32 v7, v4, 5, v7")
    R("v_lshl_add_u32 v7, v3, 4, v7")
    R("s_mul_i32 s15, s13, 96")
    R("s_lshl_b32 s16, s11, 5")
    R("s_add_u32 s15, s15, s16")
    R("s_lshl_b32 s15, s15, 11")
    R("s_lshl_b32 s16, s12, 10")
    R("s_add_u32 s15, s15, s16")
    R("s_lshl_b32 s16, s8, 7")
    R("s_add_u32 s15, s15, s16")
    for hg in range(8):
        R(f"s_waitcnt vmcnt({7-hg})")
        for k in range(4):
            src = 8 + 4*hg + k
            if hg == 0:
                R(f"v_lshlrev_b32 v{40+2*k}, 16, v{src}")
                R(f"v_and_b32 v{41+2*k}, 0xffff0000, v{src}")
            else:
                R(f"v_lshlrev_b32 v48, 16, v{src}")
                R(f"v_and_b32 v49, 0xffff0000, v{src}")
                R(f"v_add_f32 v{40+2*k}, v{40+2*k}, v48")
                R(f"v_add_f32 v{41+2*k}, v{41+2*k}, v49")
    for k in range(4):
        R(f"v_cvt_pk_bf16_f32 v{52+k}, v{40+2*k}, v{41+2*k}")
    R("buffer_store_dwordx4 v[52:55], v7, s[24:27], s15 offen")
    if P.DBG:
        R("s_and_b32 s44, s2, 31")
        R("s_cmp_lg_u32 s44, 31")
        R("s_cbranch_scc1 L_rend")
        R("v_readfirstlane_b32 s44, v1")
        R("s_cmp_lg_u32 s44, 0")
        R("s_cbranch_scc1 L_rend")
        R("s_waitcnt vmcnt(0)")
        R("s_memrealtime s[42:43]")
        R("s_sub_u32 s36, s32, 512")
        R("s_subb_u32 s37, s33, 0")
        R("s_and_b32 s37, s37, 0xffff")
        R("s_mov_b32 s38, 256")
        R("s_mov_b32 s39, 0x20000")
        R("s_and_b32 s33, s33, 0xffff")
        R("s_mov_b32 s34, 256")
        R("s_mov_b32 s35, 0x20000")
        R("v_lshlrev_b32 v0, 2, v0")
        R("buffer_load_dword v1, v0, s[36:39], 0 offen")
        R("s_waitcnt vmcnt(0) lgkmcnt(0)")
        R("s_not_b32 s40, s40")
        R("v_writelane_b32 v1, s40, 10")
        R("v_writelane_b32 v1, s42, 11")
        R("v_cmp_gt_u32 vcc, 48, v0")
        R("s_and_saveexec_b64 s[44:45], vcc")
        R("buffer_atomic_umax v1, v0, s[32:35], 0 offen")
        R("s_waitcnt vmcnt(0)")
    em.label("L_rend")
    R("s_endpgm")

def build():
    ref = open(f"cdna_kernels/{NAME}.s.ref").read().splitlines()
    head = [l for l in ref if l.startswith(";") and "@launch" not in l]
    em = Em()
    gen_main(em)
    gen_reduce(em)
    out = []
    out += head
    out.append(f"; @launch kernel={NAME}_kernel grid=(256,1,1) block=(256,1,1) lds={LDS_BYTES}")
    out.append(f"; @launch kernel=reduce_kernel grid=(768,1,1) block=(256,1,1) lds=0")
    out.append('.amdgcn_target "amdgcn-amd-amdhsa--gfx950"')
    out.append(".text")
    out.append(f".globl {NAME}_kernel")
    out.append(".p2align 8")
    out.append(f".type {NAME}_kernel,@function")
    out.append(em.text())
    out.append('.section .rodata,"a"')
    for (k, nv, ao) in ((f"{NAME}_kernel", 512, 256), ("reduce_kernel", 64, 64)):
        out.append(".p2align 6")
        out.append(f".amdhsa_kernel {k}")
        out.append(f"  .amdhsa_next_free_vgpr {nv}")
        out.append("  .amdhsa_next_free_sgpr 102")
        out.append(f"  .amdhsa_accum_offset {ao}")
        out.append("  .amdhsa_group_segment_fixed_size 0")
        out.append("  .amdhsa_kernarg_size 104")
        out.append("  .amdhsa_user_sgpr_count 2")
        out.append("  .amdhsa_user_sgpr_kernarg_segment_ptr 1")
        out.append("  .amdhsa_system_sgpr_workgroup_id_x 1")
        out.append(".end_amdhsa_kernel")
    return "\n".join(out) + "\n"

if __name__ == "__main__":
    dst = sys.argv[1] if len(sys.argv) > 1 else f"cdna_kernels/{NAME}.s"
    for a in sys.argv[2:]:
        k, v = a.split("=")
        cur = getattr(P, k)
        setattr(P, k, type(cur)(v) if not isinstance(cur, str) else (" " + v if v else ""))
    open(dst, "w").write(build())
```

```python
from em import *
import math

class Frag:
    def __init__(self, reads, gate=None):
        self.reads = reads
        self.gate = gate
class MItem:
    def __init__(self, kind, D=None, B=None, acc=True, frag=None, texts=None, rd=(), wr=(), drain=False, A=None, C=None):
        self.kind = kind
        self.D = D; self.B = B; self.acc = acc; self.frag = frag; self.A = A; self.C = C
        self.texts = texts or []
        self.rd = list(rd); self.wr = list(wr)
        self.drain = drain
        self.hoist = 0
        if kind == 'mfma':
            self.rd = list(B) + (list(D) if acc else []) + (list(A) if A else []) + (list(C) if C else [])
            self.wr = list(D)

def cost(op):
    return {'trans': 2, 'dma': 3}.get(op.kind, 1) * op.cost

def schedule(em, seq, frags, stage_base, NS, LA, budget=6.0, raw_delay=2, frag0=0, verbose=False, pair=True):
    M = [x for x in seq if isinstance(x, MItem)]
    VL = [x for x in seq if not isinstance(x, MItem)]
    mi = 0; vi = 0
    lastw_m = {}; lastr_m = {}; lastw_v = {}; lastr_v = {}
    depM = [(-1, -1)] * len(VL)
    depV = [-1] * len(M)
    for x in seq:
        if isinstance(x, MItem):
            d = -1
            for r in x.rd:
                d = max(d, lastw_v.get(r, -1))
            for w in x.wr:
                d = max(d, lastw_v.get(w, -1), lastr_v.get(w, -1))
            depV[mi] = d
            for r in x.rd: lastr_m[r] = mi
            for w in x.wr: lastw_m[w] = mi
            mi += 1
        else:
            raw = -1; anyd = -1
            for r in x.rd:
                j = lastw_m.get(r, -1)
                if j >= 0 and M[j].kind == 'mfma': raw = max(raw, j)
                anyd = max(anyd, j)
            for w in x.wr:
                j = lastw_m.get(w, -1)
                if j >= 0 and M[j].kind == 'mfma': raw = max(raw, j)
                anyd = max(anyd, j, lastr_m.get(w, -1))
            depM[vi] = (raw, anyd)
            for r in x.rd: lastr_v[r] = vi
            for w in x.wr: lastw_v[w] = vi
            vi += 1
    for i in range(1, len(M)):
        depV[i] = max(depV[i], depV[i-1])
    dl = [len(M)] * len(VL)
    j = 0
    for i in range(len(M)):
        while j <= depV[i]:
            dl[j] = i; j += 1
    cum = [0.0]
    for v in VL: cum.append(cum[-1] + cost(v))
    first_use = {}; last_use = {}
    for i, m in enumerate(M):
        if m.kind == 'mfma' and m.frag is not None:
            first_use.setdefault(m.frag, i); last_use[m.frag] = i
    forder = sorted(first_use, key=lambda f: first_use[f])
    fidx = {f: k for k, f in enumerate(forder)}
    gates_done = set()
    nf = 0
    def stage(f):
        b = stage_base + 4 * ((fidx[f] + frag0) % NS)
        return V(b, 4)
    def emit_reads(cur, la=None):
        nonlocal nf
        n = 0
        while nf < len(forder):
            f = forder[nf]
            if first_use[f] - cur > (LA if la is None else la): break
            k = fidx[f]
            if k >= NS and last_use[forder[k - NS]] >= cur: break
            g = frags[f].gate
            if g is not None and g not in gates_done: break
            st = stage(f)
            for (kind, addr, off, sub) in frags[f].reads:
                if kind == 'b128':
                    em.emit(dsr128(st, addr, off))
                else:
                    em.emit(dstr(st[sub:sub+2], addr, off))
                n += 1
            nf += 1
        return n
    vi = 0
    for i, m in enumerate(M):
        while vi <= depV[i]:
            em.emit(VL[vi]); vi += 1
        if m.kind == 'bar':
            if m.hoist:
                emit_reads(i + 1, la=m.hoist - 1)
                for k in range(i + 1, i + 1 + m.hoist):
                    assert M[k].frag is None or fidx[M[k].frag] < nf, "hoist: frag not read"
                em.wait_ds(0)
            if m.drain: em.wait_ds(0)
            for t in m.texts: em.raw(t)
            for w in m.wr: gates_done.add(w)
            emit_reads(i + 1)
            continue
        if m.frag is not None:
            while nf <= fidx[m.frag]:
                before = nf
                emit_reads(i)
                assert nf > before, ("frag reads blocked", i, m.frag, frags[m.frag].gate)
            A = stage(m.frag)
        else:
            A = m.A
        if pair and m.frag is not None and any(set(A) & d for d in em.ds):
            k = fidx[m.frag] + 1
            if k < nf:
                em.wait_regs(list(A) + stage(forder[k]))
        C = m.C if m.C is not None else (m.D if m.acc else None)
        em.emit(mfma(m.D, A, m.B, C))
        used = emit_reads(i + 1)
        need = 0.0
        seen = set()
        for k in range(vi, len(VL)):
            d = dl[k]
            if d in seen: pass
            gaps = max(1, d - i)
            if k + 1 == len(VL) or dl[k+1] != d:
                need = max(need, (cum[k+1] - cum[vi]) / gaps)
        q = max(need, 0.0)
        q = min(max(q, budget - used), max(need, budget))
        spent = 0.0
        while vi < len(VL) and spent + cost(VL[vi]) <= q + 0.5:
            raw, anyd = depM[vi]
            if anyd > i: break
            if raw >= 0 and raw > i - raw_delay: break
            em.emit(VL[vi]); spent += cost(VL[vi]); vi += 1
    while vi < len(VL):
        em.emit(VL[vi]); vi += 1
    return (len(forder) + frag0) % NS
```

```python
import sys, struct
from em import *
from sched import *

NAME = "concat_heads__gqa_block_cached__gqa_block_cached__near_ridge"
SL = 16640
K0, V0, WO0, WQ0, QB = 0, 2*SL, 4*SL, 6*SL, 8*SL
LDS_BYTES = 163840
M0_NULL = 0x30000
WLOC = [3*SL, 4*SL, QB, 3*SL, 4*SL, 2*SL, 5*SL, QB]
C_SCALE = 1.4426950408889634 / (128 ** 0.5)
def f32bits(x): return struct.unpack("<I", struct.pack("<f", x))[0]

sK, sV, sWQ, sWO, sX, sWS = 8, 12, 16, 20, 24, 28
sWAVE, sC, sTHR, sCNT = 32, 33, 34, 35
sM0W, sM0K, sM0V, sM0N = 36, 37, 38, 39
sT, sKOFF, sVOFF, sWOOFF, sWQCOL, sTMP = 40, 41, 42, 43, 44, 45
sROT, sSW, sWQLIN = 72, 73, 74
def srd(b): return f"s[{b}:{b+3}]"

aK, aV, aWO, aQB, vKV = 1, 2, 3, 4, 5
LA_, LB_, ALPHA, DELTA = 7, 8, 9, 10
T0, T1, T2, T3 = 11, 12, 13, 14
AUX = 15
STG = 16; NS = 8
OACC, QR, OP = 48, 112, 144
SR = [176, 208]
NEGM = 240
w_vlin, w_vwq, w_aWQ, w_aQB, w_aX = 2, 3, 4, 1, 7
W_STG = 16; W_NS = 4
W_ACC = 32
def XF3(mt, ks):
    if mt < 2: return AG(mt * 128 + ks * 4, 4)
    return V(128 + ks * 4, 4)
def XFA(ks):
    return V(48 + ks * 4, 4) if ks < 16 else V(144 + (ks - 16) * 4, 4)

class P:
    LA = 5
    BUDGET = 6.0
    W_LA = 6
    W_BUDGET = 6.0
    W_SPLIT = 30
    KVPOL = " nt"
    WPOL = ""
    XPOL = ""
    STPOL = " nt"
    RDPOL = " nt"
    THR = 8.0
    STAMP = 0
    CYC = 0
    PAIR = 1
    NODMA = 0
    ROT = 1
    W4_1 = 10
    W4_2 = 30
    W_SPLITZ = 14
    DMAFIRST = 0
    DEVERY = 3
    PLAN = 0
    W_PRE = 8
    HOIST = 3
    VMA = 8
    DBG = 0

gate_ctr = [1000]
def newgate():
    gate_ctr[0] += 1
    return gate_ctr[0]

STV = 6
def stamp_txt():
    if not P.STAMP: return []
    return [("s_memtime s[96:97]" if P.CYC else "s_memrealtime s[96:97]"), "s_min_u32 m0, s98, 63", "s_waitcnt lgkmcnt(0)",
            f"v_writelane_b32 v{STV}, s96, m0", "s_add_u32 s98, s98, 1"]
def stamp(em):
    if P.STAMP:
        em.wait_ds(0)
        for t in stamp_txt(): em.raw(t)
def stamp_store(em):
    if not P.STAMP: return
    R = em.raw
    R("s_lshl_b32 s3, s2, 2")
    R(f"s_add_u32 s3, s3, s{sWAVE}")
    R("s_lshl_b32 s3, s3, 8")
    R("s_add_u32 s92, s70, 0x2000000")
    R("s_addc_u32 s93, s71, 0")
    R("s_and_b32 s93, s93, 0xffff")
    R("s_mov_b32 s94, 0x40000")
    R("s_mov_b32 s95, 0x20000")
    R("v_lshlrev_b32 v0, 2, v0")
    R(f"buffer_store_dword v{STV}, v0, s[92:95], s3 offen")
def bar(gate, pre=(), rd=(), drain=False, st=0):
    s1 = stamp_txt() if (st and P.STAMP >= st) else []
    s2 = stamp_txt() if (st and P.STAMP >= 2) else []
    return MItem('bar', texts=s2 + list(pre) + ["s_barrier"] + s1, rd=rd, wr=[gate], drain=drain or bool(s1))

def v3(op, d, a, b, c):
    return valu(f"{op} v{d}, v{a}, v{b}, v{c}", [a, b, c], [d])
def salu(text, rd=(), wr=()):
    return Op('salu', text, rd=rd, wr=wr, cost=text.count("\n") + 1)

def interleave(main, extra, start=0, every=3):
    out = []; e = list(extra)
    for i, o in enumerate(main):
        out.append(o)
        if e and i >= start and (i - start) % every == every - 1:
            out.append(e.pop(0))
    return out + e

def maxtree_ops(S):
    ops = []
    T = [T0, T1, T2, T3]
    for k in range(4): ops.append(v3("v_max3_f32", T[k], S+8*k, S+8*k+1, S+8*k+2))
    for k in range(4): ops.append(v3("v_max3_f32", T[k], T[k], S+8*k+3, S+8*k+4))
    for k in range(4): ops.append(v3("v_max3_f32", T[k], T[k], S+8*k+5, S+8*k+6))
    ops.append(v3("v_max3_f32", T0, T0, S+7, T1))
    ops.append(v3("v_max3_f32", T2, T2, S+23, T3))
    ops.append(v3("v_max3_f32", T0, T0, S+15, S+31))
    ops.append(valu(f"v_max_f32 v{T0}, v{T0}, v{T2}", [T0, T2], [T0]))
    ops.append(valu(f"v_mov_b32 v{T1}, v{T0}", [T0], [T1]))
    ops.append(valu(f"v_permlane32_swap_b32 v{T0}, v{T1}", [T0, T1], [T0, T1], kind='perm'))
    ops.append(valu(f"v_max_f32 v{DELTA}, v{T0}, v{T1}", [T0, T1], [DELTA]))
    return ops

def first_tile_ops(S):
    ops = []
    for i in range(16):
        ops.append(valu(f"v_sub_f32 v{NEGM+i}, 0, v{DELTA}", [DELTA], [NEGM+i]))
    for i in range(32):
        ops.append(valu(f"v_sub_f32 v{S+i}, v{S+i}, v{DELTA}", [S+i, DELTA], [S+i]))
    return ops

rare_blocks = []
def check_op(S, tag):
    regs = V(S, 32) + V(NEGM, 16) + V(OACC, 64) + [LA_, LB_, DELTA, ALPHA]
    rare_blocks.append((S, tag))
    t = f"v_cmp_lt_f32 vcc, s{sTHR}, v{DELTA}\n    s_cbranch_vccnz L_rare_{tag}\nL_back_{tag}:"
    op = Op('raw', t, rd=regs, wr=regs, cost=2)
    op.noraw = True
    return op
def emit_rare(em):
    R = em.raw
    for (S, tag) in rare_blocks:
        em.label(f"L_rare_{tag}")
        R("s_nop 15")
        R(f"v_max_f32 v{DELTA}, 0, v{DELTA}")
        R(f"v_sub_f32 v{ALPHA}, 0, v{DELTA}")
        R(f"v_exp_f32 v{ALPHA}, v{ALPHA}")
        for i in range(32): R(f"v_sub_f32 v{S+i}, v{S+i}, v{DELTA}")
        for i in range(16): R(f"v_sub_f32 v{NEGM+i}, v{NEGM+i}, v{DELTA}")
        for i in range(64): R(f"v_mul_f32 v{OACC+i}, v{ALPHA}, v{OACC+i}")
        R(f"v_mul_f32 v{LA_}, v{ALPHA}, v{LA_}")
        R(f"v_mul_f32 v{LB_}, v{ALPHA}, v{LB_}")
        R("s_nop 3")
        R(f"s_branch L_back_{tag}")

def exp_ops(S, first):
    def ex(i): return valu(f"v_exp_f32 v{S+i}, v{S+i}", [S+i], [S+i], kind='trans')
    def add(i):
        l = LA_ if i % 2 == 0 else LB_
        if i < 2 and first: return valu(f"v_mov_b32 v{l}, v{S+i}", [S+i], [l])
        return valu(f"v_add_f32 v{l}, v{l}, v{S+i}", [l, S+i], [l])
    def cvt(k): return valu(f"v_cvt_pk_bf16_f32 v{S+k}, v{S+2*k}, v{S+2*k+1}", [S+2*k, S+2*k+1], [S+k])
    out = []
    for k in range(17):
        if k < 16: out.append(ex(2*k))
        if k > 0: out.append(add(2*k-2))
        if k < 16: out.append(ex(2*k+1))
        if k > 0:
            out.append(add(2*k-1)); out.append(cvt(k-1))
    return out

def finalize_ops():
    ops = []
    ops.append(valu(f"v_add_f32 v{T2}, v{LA_}, v{LB_}", [LA_, LB_], [T2]))
    ops.append(valu(f"v_mov_b32 v{T3}, v{T2}", [T2], [T3]))
    ops.append(valu(f"v_permlane32_swap_b32 v{T2}, v{T3}", [T2, T3], [T2, T3], kind='perm'))
    ops.append(valu(f"v_add_f32 v{T2}, v{T2}, v{T3}", [T2, T3], [T2]))
    ops.append(valu(f"v_rcp_f32 v{AUX}, v{T2}", [T2], [AUX], kind='trans'))
    for k in range(33):
        if k < 32:
            a, b = OACC + 2*k, OACC + 2*k + 1
            ops.append(valu(f"v_mul_f32 v{a}, v{AUX}, v{a}", [AUX, a], [a]))
            ops.append(valu(f"v_mul_f32 v{b}, v{AUX}, v{b}", [AUX, b], [b]))
        if k > 0:
            kk = k - 1
            ops.append(valu(f"v_cvt_pk_bf16_f32 v{OP+kk}, v{OACC+2*kk}, v{OACC+2*kk+1}", [OACC+2*kk, OACC+2*kk+1], [OP+kk]))
    return ops

def qk_items(frags, Sdst, kslot, gate, negm):
    it = []
    for sub in range(2):
        for ks in range(8):
            frags.append(Frag([('b128', aK, K0 + kslot*SL + sub*512 + ks*32, 0)], gate))
            it.append(MItem('mfma', D=V(Sdst + 16*sub, 16), B=V(QR + 4*ks, 4), acc=(ks != 0), frag=len(frags)-1,
                            C=(V(NEGM, 16) if (ks == 0 and negm) else None)))
    return it
def opj_item(frags, ks, nt, woff, gate, addr):
    frags.append(Frag([('tr', addr, woff + t*2080 + nt*64, 2*t) for t in range(2)], gate))
    return MItem('mfma', D=AG(16*nt, 16), B=V(OP + 4*ks, 4), acc=True, frag=len(frags)-1)
def opj_items(frags, ks, woff, gate, addr=aWO):
    return [opj_item(frags, ks, nt, woff, gate, addr) for nt in range(16)]
def pv_items(frags, S, vslot, gate, first):
    it = []
    for s in range(4):
        for dt in range(4):
            frags.append(Frag([('tr', aV, vslot*SL + t*2080 + s*256 + dt*64, 2*t) for t in range(2)], gate))
            it.append(MItem('mfma', D=V(OACC + 16*dt, 16), B=V(S + 4*s, 4), acc=not (first and s == 0), frag=len(frags)-1))
    return it

def dma_pair(m0txt, voff, srdb, soff, off, pol, rd=(), wr=()):
    a = Op('m0', m0txt, rd=rd)
    b = Op('dma', f"buffer_load_dwordx4 v{voff}, {srd(srdb)}, {soff} offen" + (f" offset:{off}" if off else "") + f"{pol} lds", wr=wr)
    return [a, b]

def kvq_ops(slotbase, srdb, offreg, m0reg, lim, gate, done):
    if P.NODMA in (1, 3): lim = -100
    ops = [salu(f"s_cmp_le_i32 s{sT}, {lim}\n    s_cselect_b32 s{srdb+2}, 0x80000, 0\n    s_cselect_b32 s{m0reg}, s{sM0W}, s{sM0N}", rd=[gate])]
    for i in range(4):
        ops += dma_pair(f"s_add_u32 m0, s{m0reg}, {slotbase + 16*i}", vKV, srdb, f"s{offreg}", 1024*i, P.KVPOL)
    ops.append(salu(f"s_add_u32 s{offreg}, s{offreg}, 16384\n    s_and_b32 s{offreg}, s{offreg}, 0x7ffff", wr=[done]))
    return ops

def insert_hoisted(seq, b, H):
    if H == 0:
        seq.append(b); return
    n = 0; i = len(seq)
    while n < H:
        i -= 1
        if isinstance(seq[i], MItem):
            assert seq[i].kind == 'mfma'
            n += 1
    b.hoist = H
    seq.insert(i, b)

def attention_head(em):
    seq = []; frags = []
    dA_prev = None
    Z3 = P.PLAN in (2, 4)
    KVA = P.PLAN == 4
    for j in range(8):
        p = j % 2
        gA = newgate(); gB = newgate(); dB = newgate(); dA = newgate(); gZ = newgate()
        b = bar(gB, pre=["s_waitcnt vmcnt(8)"], rd=[dA_prev] if dA_prev else [], st=2)
        insert_hoisted(seq, b, P.HOIST if j > 0 else 0)
        if not KVA:
            kq = kvq_ops(K0 + p*SL, sK, sKOFF, sM0K, 28, gB, dB)
            kq.append(salu(f"s_add_u32 s{sT}, s{sT}, 1"))
        else:
            kq = [salu(f"s_add_u32 s{sT}, s{sT}, 1", rd=[gB], wr=[dB])]
        mt = maxtree_ops(SR[p])
        if j == 0: mt += first_tile_ops(SR[p])
        seq += interleave(mt, kq, every=2)
        seq += pv_items(frags, SR[1-p], 1-p, gB, j == 1)
        insert_hoisted(seq, bar(gA, pre=[] if Z3 else ["s_waitcnt vmcnt(8)"], rd=[dB], st=1), P.HOIST)
        vq = kvq_ops(V0 + (1-p)*SL, sV, sVOFF, sM0V, 30, gA, dA)
        if KVA:
            vq = kvq_ops(K0 + p*SL, sK, sKOFF, sM0K, 29, gA, newgate()) + vq
        pre = finalize_ops() if j == 0 else [check_op(SR[p], f"{j}")]
        qrd = []
        if j == 7:
            for ks in range(8):
                op = dsr128(V(QR + 4*ks, 4), aQB, ks*1024)
                op.rd.append(gZ if KVA else gA)
                qrd.append(op)
            if not KVA:
                pre += qrd; qrd = []
        if P.DMAFIRST:
            seq += interleave(vq, pre, every=2) if j == 0 else (vq + pre)
            ex = exp_ops(SR[p], j == 0)
        else:
            seq += pre
            ex = interleave(exp_ops(SR[p], j == 0), vq, every=P.DEVERY)
        if Z3:
            ms = opj_items(frags, j, p*SL, gA)
            insert_hoisted(ms, bar(gZ, pre=["s_waitcnt vmcnt(12)"], rd=[dA]), P.HOIST + (2 if qrd else 0))
            h = len(ex) if not qrd else max(len(ex) * 2 // 5, 1 + max(k for k, o in enumerate(ex) if dA in o.wr) if not P.DMAFIRST else 0)
            seq += ex[:h] + ms + qrd + ex[h:]
            seq += qk_items(frags, SR[1-p], 1-p, gZ, j != 7)
        else:
            if j == 0:
                ms = qk_items(frags, SR[1-p], 1-p, gA, True) + opj_items(frags, j, p*SL, gA)
            else:
                ms = opj_items(frags, j, p*SL, gA) + qk_items(frags, SR[1-p], 1-p, gA, j != 7)
            seq += ex + ms
        dA_prev = dA
    schedule(em, seq, frags, STG, NS, P.LA, budget=P.BUDGET, pair=P.PAIR)

def perm16(j): return 4*(j % 4) + j // 4

def dma_kv_full(slotbase, srdb, soff):
    ops = []
    for j in range(16):
        ops += dma_pair(f"s_mov_b32 m0, {slotbase + 1040*j - perm16(j)*256}", vKV, srdb, soff, perm16(j)*256, P.KVPOL)
    return ops
def dma_wo(slotbase, soffreg):
    ops = []
    for jj in range(4):
        for jh in range(4):
            j = jh*4 + jj
            pr = dma_pair(f"s_mov_b32 m0, {slotbase + 1040*j - jh*1024}", w_vlin, sWO, f"s{sTMP}", jh*1024, P.WPOL)
            if jh == 0: pr.insert(1, salu(f"s_add_u32 s{sTMP}, s{soffreg}, {jj*4096}"))
            ops += pr
    return ops
def dma_wq(slotbase, colreg, const):
    ops = []
    for j in range(16):
        pr = dma_pair(f"s_mov_b32 m0, {slotbase + 1040*j}", w_vwq, sWQ, f"s{sTMP+1}", 0, P.WPOL)
        pr.insert(1, salu(f"s_add_u32 s{sTMP+1}, s{colreg}, {const + perm16(j)*8192}"))
        ops += pr
    return ops

def qproj_items(frags, addr, base, gate, kq, acc_regs, xfrag, nmt):
    it = []
    for dt2 in range(2):
        for ks in range(8):
            frags.append(Frag([('tr', addr, base + t*1040 + ks*128 + dt2*64, 2*t) for t in range(2)], gate))
            for mt in range(nmt):
                it.append(MItem('mfma', D=acc_regs(dt2, mt), B=xfrag(mt, kq*8 + ks), acc=not (kq == 0 and ks == 0), frag=len(frags)-1))
    return it

def scale_cvt(a, dst):
    ops = []
    for k in range(9):
        if k < 8:
            ops.append(valu(f"v_mul_f32 v{a+2*k}, s{sC}, v{a+2*k}", [a+2*k], [a+2*k]))
            ops.append(valu(f"v_mul_f32 v{a+2*k+1}, s{sC}, v{a+2*k+1}", [a+2*k+1], [a+2*k+1]))
        if k > 0:
            kk = k - 1
            ops.append(valu(f"v_cvt_pk_bf16_f32 v{dst+kk}, v{a+2*kk}, v{a+2*kk+1}", [a+2*kk, a+2*kk+1], [dst+kk]))
    return ops

def w3_acc(dt2, mt): return V(W_ACC + (dt2*3 + mt)*16, 16)
def w3_cv(dt2):
    ops = []
    for mt in range(3):
        a = w3_acc(dt2, mt)[0]
        ops += scale_cvt(a, a)
        for s2 in range(2):
            ops.append(dsw128(w_aQB, V(a + 4*s2, 4), mt*8192 + (dt2*2 + s2)*1024))
    return ops

def wave3_body(em):
    seq = []; frags = []
    lastB = None
    for kq in (1, 2, 3, 0):
        par = kq % 2
        gA = newgate(); gB = newgate(); dA = newgate(); dB = newgate(); gW = newgate(); dW = newgate()
        rdA = [lastB] if lastB else []
        wq = [salu(f"s_cmp_le_i32 s{sT}, {-100 if P.NODMA in (1, 2) else 20}\n    s_cselect_b32 s{sWQ+2}, s{sTMP+2}, 0")]
        if kq == 3:
            wq.append(salu(f"s_add_u32 s{sWQLIN}, s{sWQLIN}, 128\n    s_and_b32 s{sWQLIN}, s{sWQLIN}, 1023\n    s_xor_b32 s{sWQCOL}, s{sWQLIN}, s{sSW}"))
        wq += dma_wq(WQ0 + (1-par)*SL, sWQCOL, ((kq+1) % 4) * 128 * 8192)
        wo = [salu(f"s_cmp_ge_i32 s{sT}, {100 if P.NODMA in (1, 2) else 6}\n    s_cselect_b32 s{sWO+2}, 0x80000, 0")]
        wo += dma_wo(WO0 + par*SL, sWOOFF)
        wo.append(salu(f"s_add_u32 s{sWOOFF}, s{sWOOFF}, 16384\n    s_and_b32 s{sWOOFF}, s{sWOOFF}, 0x7ffff\n    s_add_u32 s{sT}, s{sT}, 1", wr=[dB]))
        vq = kvq_ops(V0 + (1-par)*SL, sV, sVOFF, sM0V, 30, gA, dA)
        if P.PLAN == 0:
            A = wq + vq; A[0].rd.append(gA)
            B = kvq_ops(K0 + (1-par)*SL, sK, sKOFF, sM0K, 28, gB, newgate()) + wo
            wA, wB, nA = 40, 40, P.W_PRE
            wW = 24 + nA
        elif P.PLAN == 2:
            gZ = newgate(); dZ = newgate()
            A = wq + vq; A[0].rd.append(gA)
            Z = wo[:-1] + [salu(f"s_add_u32 s{sWOOFF}, s{sWOOFF}, 16384\n    s_and_b32 s{sWOOFF}, s{sWOOFF}, 0x7ffff", wr=[dZ])]; Z[0].rd.append(gZ)
            B = kvq_ops(K0 + (1-par)*SL, sK, sKOFF, sM0K, 28, gB, newgate()) + [salu(f"s_add_u32 s{sT}, s{sT}, 1", wr=[dB])]
            wA, wZ, wB, nA = 44, 60, 56, P.W_PRE
            wW = 24 + nA
        else:
            A = kvq_ops(K0 + par*SL, sK, sKOFF, sM0K, 29, gA, newgate()) + vq
            B = wq + wo; B[0].rd.append(gB)
            wA, wB, nA = 36, 40, 8
            wW = 24
            if P.PLAN == 3:
                gZ = newgate(); dZ = dA; Z = []
                wA, wZ = 40, 44
        seq.append(bar(gA, pre=stamp_txt() + [f"s_waitcnt vmcnt({wA})"], rd=rdA, drain=bool(P.STAMP)))
        items = qproj_items(frags, w_aWQ, par*SL, gW, kq, w3_acc, XF3, 3)
        cut = 0; cnt = 0
        while cnt < nA:
            if A[cut].kind == 'dma': cnt += 1
            cut += 1
        A1 = A[:cut] + [salu("s_nop 0", wr=[dW])]; A2 = A[cut:]
        if kq == 0:
            c = w3_cv(1) + [valu(f"v_xor_b32 v{w_aQB}, 0x1000, v{w_aQB}", [w_aQB], [w_aQB])]
            A2 = interleave(c, A2, every=1)
        seq += A1
        seq.append(MItem('bar', texts=[f"s_waitcnt vmcnt({wW})"], rd=[dW], wr=[gW]))
        seq += A2
        if P.PLAN in (2, 3):
            seq += items[:P.W_SPLITZ]
            seq.append(bar(gZ, pre=[f"s_waitcnt vmcnt({wZ})"], rd=[dA]))
            seq += Z
            seq += items[P.W_SPLITZ:P.W_SPLIT]
            seq.append(bar(gB, pre=[f"s_waitcnt vmcnt({wB})"], rd=[dZ]))
        else:
            seq += items[:P.W_SPLIT]
            seq.append(bar(gB, pre=[f"s_waitcnt vmcnt({wB})"], rd=[dA]))
        if kq == 3:
            B = interleave(B, w3_cv(0), every=1)
        seq += B
        seq += items[P.W_SPLIT:]
        lastB = dB
    schedule(em, seq, frags, W_STG, W_NS, P.W_LA, budget=P.W_BUDGET, pair=False)

def wave3_body4(em):
    seq = []; frags = []
    lastA = None
    for kq in (1, 2, 3, 0):
        par = kq % 2
        gA = newgate(); gB = newgate(); gZ = newgate(); dA = newgate(); dB = newgate(); gW = newgate(); dW = newgate()
        wq = [salu(f"s_cmp_le_i32 s{sT}, {-100 if P.NODMA in (1, 2) else 20}\n    s_cselect_b32 s{sWQ+2}, s{sTMP+2}, 0", rd=[gB])]
        if kq == 3:
            wq.append(salu(f"s_add_u32 s{sWQLIN}, s{sWQLIN}, 128\n    s_and_b32 s{sWQLIN}, s{sWQLIN}, 1023\n    s_xor_b32 s{sWQCOL}, s{sWQLIN}, s{sSW}"))
        wq += dma_wq(WQ0 + (1-par)*SL, sWQCOL, ((kq+1) % 4) * 128 * 8192)
        wo = [salu(f"s_cmp_ge_i32 s{sT}, {100 if P.NODMA in (1, 2) else 6}\n    s_cselect_b32 s{sWO+2}, 0x80000, 0")]
        wo += dma_wo(WO0 + par*SL, sWOOFF)
        wo.append(salu(f"s_add_u32 s{sWOOFF}, s{sWOOFF}, 16384\n    s_and_b32 s{sWOOFF}, s{sWOOFF}, 0x7ffff\n    s_add_u32 s{sT}, s{sT}, 1", wr=[dB]))
        B = wq + wo
        A = kvq_ops(K0 + (1-par)*SL, sK, sKOFF, sM0K, 29, gA, newgate()) + kvq_ops(V0 + par*SL, sV, sVOFF, sM0V, 30, gA, dA)
        items = qproj_items(frags, w_aWQ, par*SL, gW, kq, w3_acc, XF3, 3)
        seq.append(bar(gB, pre=["s_waitcnt vmcnt(40)"], rd=[lastA] if lastA else []))
        seq.append(MItem('bar', texts=["s_waitcnt vmcnt(24)"], wr=[gW]))
        seq += B
        seq += items[:P.W4_1]
        seq.append(bar(gA, pre=stamp_txt() + ["s_waitcnt vmcnt(40)"], rd=[dB], drain=bool(P.STAMP)))
        if kq == 0:
            c = w3_cv(1) + [valu(f"v_xor_b32 v{w_aQB}, 0x1000, v{w_aQB}", [w_aQB], [w_aQB], ), salu("s_nop 0", wr=[dW])]
            A = A + c
        seq += A
        seq += items[P.W4_1:P.W4_2]
        seq.append(bar(gZ, pre=["s_waitcnt vmcnt(44)"], rd=[dA] + ([dW] if kq == 0 else []), drain=(kq == 0)))
        if kq == 3:
            seq += w3_cv(0)
        seq += items[P.W4_2:]
        lastA = dA
    schedule(em, seq, frags, W_STG, W_NS, P.W_LA, budget=P.W_BUDGET, pair=False)

class VM:
    def __init__(self, em, init): self.em = em; self.q = list(init)
    def issue(self, tag, ops):
        n = 0
        for o in ops:
            self.em.emit(o)
            if o.kind == 'dma': n += 1
        self.q.append((tag, n))
    def need(self, *tags):
        last = -1
        for i, (t, n) in enumerate(self.q):
            if t in tags: last = i
        if last >= 0:
            n = sum(c for (_, c) in self.q[last+1:])
            self.em.raw(f"s_waitcnt vmcnt({min(n, 63)})")
            self.q = self.q[last+1:]

def gen_main(em):
    R = em.raw
    em.label(f"{NAME}_kernel")
    R("s_cmp_ge_u32 s2, 256")
    R("s_cbranch_scc1 L_end")
    R("s_load_dwordx8 s[48:55], s[0:1], 0")
    R("s_load_dwordx2 s[56:57], s[0:1], 32")
    R("s_load_dwordx8 s[60:67], s[0:1], 40")
    R("s_load_dwordx2 s[68:69], s[0:1], 72")
    R("s_load_dwordx2 s[70:71], s[0:1], 96")
    R("v_lshrrev_b32 v1, 6, v0")
    R("v_and_b32 v0, 63, v0")
    R(f"v_readfirstlane_b32 s{sWAVE}, v1")
    R("s_and_b32 s3, s2, 7")
    R("s_lshr_b32 s4, s2, 3")
    R("s_lshr_b32 s5, s3, 2")
    R("s_and_b32 s3, s3, 3")
    R("s_lshl_b32 s3, s3, 1")
    R("s_lshr_b32 s6, s4, 4")
    R("s_add_u32 s3, s3, s6")
    R("s_and_b32 s4, s4, 15")
    R(f"s_mov_b32 s{sC}, {f32bits(C_SCALE):#x}")
    R(f"s_mov_b32 s{sTHR}, {f32bits(P.THR):#x}")
    R(f"s_mul_i32 s{sM0W}, s{sWAVE}, 4160")
    R(f"s_mov_b32 s{sM0N}, {M0_NULL:#x}")
    R("s_waitcnt lgkmcnt(0)")
    R("s_cmp_eq_u32 s5, 0")
    for i in range(5):
        R(f"s_cselect_b64 s[{48+2*i}:{49+2*i}], s[{48+2*i}:{49+2*i}], s[{60+2*i}:{61+2*i}]")
    R("s_lshl_b32 s6, s4, 22")
    R("s_lshl_b32 s7, s3, 19")
    R("s_add_u32 s6, s6, s7")
    for (d, p) in ((sK, 50), (sV, 52)):
        R(f"s_add_u32 s{d}, s{p}, s6")
        R(f"s_addc_u32 s{d+1}, s{p+1}, 0")
        R(f"s_and_b32 s{d+1}, s{d+1}, 0xffff")
        R(f"s_mov_b32 s{d+2}, 0x80000")
        R(f"s_mov_b32 s{d+3}, 0x20000")
    R("s_lshl_b32 s6, s3, 10")
    R(f"s_add_u32 s{sWQ}, s54, s6")
    R(f"s_addc_u32 s{sWQ+1}, s55, 0")
    R(f"s_and_b32 s{sWQ+1}, s{sWQ+1}, 0xffff")
    R(f"s_sub_u32 s{sWQ+2}, 0x400000, s6")
    R(f"s_mov_b32 s{sTMP+2}, s{sWQ+2}")
    R(f"s_mov_b32 s{sWQ+3}, 0x20000")
    R(f"s_add_u32 s{sWO}, s56, s7")
    R(f"s_addc_u32 s{sWO+1}, s57, 0")
    R(f"s_and_b32 s{sWO+1}, s{sWO+1}, 0xffff")
    R(f"s_mov_b32 s{sWO+2}, 0x80000")
    R(f"s_mov_b32 s{sWO+3}, 0x20000")
    R("s_mul_i32 s6, s4, 98304")
    R(f"s_add_u32 s{sX}, s48, s6")
    R(f"s_addc_u32 s{sX+1}, s49, 0")
    R(f"s_and_b32 s{sX+1}, s{sX+1}, 0xffff")
    R(f"s_mov_b32 s{sX+2}, 98304")
    R(f"s_mov_b32 s{sX+3}, 0x20000")
    R("s_mul_i32 s6, s2, 98304")
    R(f"s_add_u32 s{sWS}, s70, s6")
    R(f"s_addc_u32 s{sWS+1}, s71, 0")
    R(f"s_and_b32 s{sWS+1}, s{sWS+1}, 0xffff")
    R(f"s_mov_b32 s{sWS+2}, 98304")
    R(f"s_mov_b32 s{sWS+3}, 0x20000")
    R("v_bfe_u32 v20, v0, 2, 2")
    R("v_lshrrev_b32 v21, 5, v0")
    R("v_bfe_u32 v22, v0, 4, 1")
    R("v_and_b32 v23, 1, v0")
    R("v_bfe_u32 v24, v0, 1, 1")
    R("v_lshlrev_b32 v25, 2, v20")
    R("v_lshl_add_u32 v26, v21, 1, v25")
    R("v_mul_u32_u24 v26, 1040, v26")
    R("v_lshl_add_u32 v26, v22, 5, v26")
    R("v_lshl_add_u32 v26, v23, 4, v26")
    R("v_lshl_add_u32 v26, v24, 3, v26")
    R("v_and_b32 v27, 15, v0")
    R("v_mul_u32_u24 v27, 1040, v27")
    R("v_lshl_add_u32 v27, v22, 9, v27")
    R("v_lshl_add_u32 v27, v21, 4, v27")
    R("v_lshrrev_b32 v28, 4, v0")
    R("v_and_b32 v29, 15, v0")
    R("v_lshlrev_b32 v29, 4, v29")
    R(f"v_lshl_add_u32 v{vKV}, v28, 12, v29")
    if P.ROT:
        R(f"s_and_b32 s{sROT}, s4, 3")
        R(f"s_lshl_b32 s{sROT}, s{sROT}, 17")
        R(f"s_bfe_u32 s{sSW}, s4, 0x10002")
        R(f"s_lshl_b32 s{sSW}, s{sSW}, 7")
    else:
        R(f"s_mov_b32 s{sROT}, 0")
        R(f"s_mov_b32 s{sSW}, 0")
    R(f"s_lshl_b32 s{sVOFF}, s{sWAVE}, 8")
    R(f"s_add_u32 s{sVOFF}, s{sVOFF}, s{sROT}")
    R(f"s_add_u32 s{sKOFF}, s{sVOFF}, {(1 if P.PLAN in (1, 3, 4) else 2)*16384}")
    R(f"s_mov_b32 s{sT}, -1")
    if P.STAMP:
        R("s_mov_b32 s98, 0")
        R(f"v_mov_b32 v{STV}, 0")
    stamp(em)
    R(f"s_cmp_eq_u32 s{sWAVE}, 3")
    R("s_cbranch_scc1 L_wave3")

    R("v_and_b32 v28, 3, v0")
    R("v_lshl_add_u32 v28, v28, 2, v20")
    R("v_mul_u32_u24 v28, 1040, v28")
    R("v_lshl_add_u32 v28, v22, 8, v28")
    R(f"v_lshl_add_u32 v{aK}, v21, 4, v28")
    R("v_add_u32 v28, v25, v21")
    R("v_mul_u32_u24 v28, 1040, v28")
    R("v_and_b32 v29, 3, v0")
    R("v_lshl_add_u32 v29, v29, 3, v28")
    R("v_lshl_add_u32 v29, v22, 5, v29")
    R(f"v_add_u32 v{aV}, {V0}, v29")
    R("v_lshl_add_u32 v29, v23, 5, v28")
    R("v_lshl_add_u32 v29, v22, 4, v29")
    R("v_lshl_add_u32 v29, v24, 3, v29")
    R(f"v_add_u32 v{aWO}, {WO0}, v29")
    R(f"s_lshl_b32 s3, s{sWAVE}, 13")
    R(f"s_add_u32 s3, s3, {QB}")
    R(f"v_lshlrev_b32 v{aQB}, 4, v0")
    R(f"v_add_u32 v{aQB}, s3, v{aQB}")
    R(f"v_mov_b32 v{AUX}, v26")
    R(f"s_mul_i32 s3, s{sWAVE}, {SL}")
    R(f"v_add_u32 v{T2}, s3, v27")
    R(f"v_add_u32 v{T3}, {5*SL}, v{T2}")
    for i in range(8): R(f"v_mov_b32 v{16+i}, 0")
    R("s_nop 1")
    for nt in range(16):
        R(f"v_mfma_f32_32x32x16_bf16 a[{16*nt}:{16*nt+15}], v[16:19], v[20:23], 0")
    QA = SR[1]
    seq = []; frags = []
    tmpaddr = [T0, T1]
    for ti in range(8):
        if ti in (0, 2, 3, 6):
            g = newgate()
            xr = []
            if ti in (2, 3):
                for ks in range(16): xr += XFA(ks + 16*(ti-2))
            seq.append(bar(g, st=1, drain=True, rd=xr))
            if ti in (0, 2):
                for ks in range(16):
                    op = dsr128(XFA(ks + 8*ti), T2 if ti == 0 else T3, ks*32)
                    op.rd.append(g)
                    seq.append(op)
        ta = tmpaddr[ti % 2]
        ga = newgate()
        seq.append(valu(f"v_add_u32 v{ta}, {WLOC[ti]}, v{AUX}", [AUX], [ta]))
        seq.append(MItem('bar', texts=[], rd=[ta], wr=[ga]))
        its = qproj_items(frags, ta, 0, ga, ti % 4, lambda dt2, mt: V(QA + 16*dt2, 16), lambda mt, ks: XFA(ks), 1)
        for it in its: it.rd.append(ta)
        seq += its[:8]
        if ti % 4 == 3: seq += scale_cvt(QA, QR + 16*(ti//4))
        seq += its[8:]
        if ti % 4 == 3: seq += scale_cvt(QA + 16, QR + 16*(ti//4) + 8)
    for i in range(64):
        seq.append(valu(f"v_mov_b32 v{OACC+i}, 0", [], [OACC+i]))
    for i in range(16):
        seq.append(valu(f"v_mov_b32 v{SR[1]+i}, 0", [], [SR[1]+i]))
    seq.append(valu(f"v_mov_b32 v{LA_}, 1.0", [], [LA_]))
    seq.append(valu(f"v_mov_b32 v{LB_}, 0", [], [LB_]))
    gA = newgate()
    seq.append(bar(gA, st=1))
    if P.PLAN in (1, 3, 4): seq += kvq_ops(K0+SL, sK, sKOFF, sM0K, 29, gA, newgate())
    dz = newgate()
    seq += kvq_ops(V0, sV, sVOFF, sM0V, 30, gA, dz)
    if P.PLAN in (2, 3, 4): seq.append(bar(newgate(), rd=[dz]))
    seq += qk_items(frags, SR[0], 0, gA, False)
    schedule(em, seq, frags, STG, NS, P.LA, budget=P.BUDGET)
    R(f"s_mov_b32 s{sCNT}, 4")
    em.fence()
    em.label("L_att_loop")
    n0 = em.ninstr; nn0 = em.nops; w0 = em.waits
    attention_head(em)
    print(f"attention head body: {em.ninstr-n0} instrs, {em.nops-nn0} nop states, {em.waits-w0} waits", file=sys.stderr)
    R(f"s_sub_u32 s{sCNT}, s{sCNT}, 1")
    R(f"s_cmp_lg_u32 s{sCNT}, 0")
    em.fence()
    R("s_cbranch_scc1 L_att_loop")
    seq = []; frags = []
    gB = newgate(); g1 = newgate()
    seq.append(bar(gB, pre=["s_waitcnt vmcnt(0)"], st=2))
    seq.append(valu(f"v_subrev_u32 v{T0}, {WO0}, v{aWO}", [aWO], [T0]))
    seq.append(valu(f"v_add_u32 v{DELTA}, {QB-WO0}, v{aWO}", [aWO], [DELTA]))
    seq.append(valu(f"v_lshlrev_b32 v{T1}, 4, v0", [], [T1]))
    seq.append(salu(f"s_lshl_b32 s3, s{sWAVE}, 15"))
    seq += pv_items(frags, SR[1], 1, gB, False)
    insert_hoisted(seq, bar(g1, st=1, rd=[T0, DELTA]), P.HOIST)
    seq += finalize_ops()
    for nt in range(16):
        for ks in range(8):
            if ks < 4: seq.append(opj_item(frags, ks, nt, ks*SL, g1, aWO))
            elif ks < 7: seq.append(opj_item(frags, ks, nt, (ks-4)*SL, g1, T0))
            else: seq.append(opj_item(frags, ks, nt, 0, g1, DELTA))
        b = 176 + (nt % 4) * 16
        for r in range(16):
            seq.append(valu(f"v_accvgpr_read_b32 v{b+r}, a{16*nt+r}", AG(16*nt+r), [b+r]))
        for k in range(8):
            seq.append(valu(f"v_cvt_pk_bf16_f32 v{b+k}, v{b+2*k}, v{b+2*k+1}", [b+2*k, b+2*k+1], [b+k]))
        for q in range(2):
            off = (nt*2 + q) * 1024
            if off % 4096 == 0:
                seq.append(salu(f"s_add_u32 s4, s3, {off}"))
            seq.append(Op('vmem', f"buffer_store_dwordx4 v[{b+4*q}:{b+4*q+3}], v{T1}, {srd(sWS)}, s4 offen offset:{off % 4096}{P.STPOL}", rd=V(b+4*q, 4) + [T1], tag='store'))
    schedule(em, seq, frags, STG, NS, P.LA, budget=P.BUDGET)
    stamp(em)
    if P.STAMP: R("s_waitcnt vmcnt(0)")
    stamp(em)
    stamp_store(em)
    if P.DBG:
        R(f"s_cmp_lg_u32 s{sWAVE}, 0")
        R("s_cbranch_scc1 L_dbgskip")
        R("s_load_dwordx2 s[72:73], s[0:1], 88")
        R(f"v_readlane_b32 s76, v{STV}, 0")
        idx = [1, 5, 6, 14, 22, 30, 38, 40]
        for i, l in enumerate(idx): R(f"v_readlane_b32 s{80+i}, v{STV}, {l}")
        R("s_waitcnt lgkmcnt(0)")
        R("s_and_b32 s73, s73, 0xffff")
        R("s_mov_b32 s74, 256")
        R("s_mov_b32 s75, 0x20000")
        R("v_mov_b32 v1, 0")
        R("v_mov_b32 v2, 0")
        R("s_not_b32 s77, s76")
        R("v_writelane_b32 v2, s77, 8")
        R("v_writelane_b32 v2, s87, 9")
        for i in range(8):
            R(f"s_sub_u32 s{80+i}, s{80+i}, s76")
            R(f"v_writelane_b32 v1, s{80+i}, {i}")
        R("v_cmp_gt_u32 vcc, 40, v0")
        R("s_and_saveexec_b64 s[78:79], vcc")
        R("buffer_atomic_add v1, v0, s[72:75], 0 offen")
        R("buffer_atomic_umax v2, v0, s[72:75], 0 offen")
        R("s_waitcnt vmcnt(0)")
        em.label("L_dbgskip")
    R("s_endpgm")
    emit_rare(em)

    em.label("L_wave3")
    em.reset()
    R(f"v_lshlrev_b32 v{w_vlin}, 4, v0")
    R("v_lshrrev_b32 v28, 3, v0")
    R("v_and_b32 v29, 7, v0")
    R("v_lshlrev_b32 v29, 4, v29")
    R(f"v_lshl_add_u32 v{w_vwq}, v28, 17, v29")
    R(f"v_add_u32 v{w_aWQ}, {WQ0}, v26")
    R(f"v_add_u32 v{w_aQB}, {QB}, v{w_vlin}")
    R(f"v_mov_b32 v{w_aX}, v27")
    R(f"v_add_u32 v8, {5*SL}, v27")
    R("v_and_b32 v29, 31, v0")
    R("v_lshlrev_b32 v29, 4, v29")
    R("v_lshl_add_u32 v9, v21, 14, v29")
    R(f"s_lshr_b32 s{sWQCOL}, s{sROT}, 9")
    R(f"s_lshl_b32 s3, s{sSW}, 5")
    R(f"v_add_u32 v{w_aQB}, s3, v{w_aQB}")
    vm = VM(em, [])
    def xt(mt, kh, loc):
        ops = []
        for j in range(16):
            pr = dma_pair(f"s_mov_b32 m0, {loc + 1040*j - (j % 4)*1024}", 9, sX, f"s{sTMP}", (j % 4)*1024, P.XPOL)
            if j % 4 == 0: pr.insert(1, salu(f"s_mov_b32 s{sTMP}, {mt*32768 + kh*512 + j*1024}"))
            ops += pr
        return ops
    def w0(ti): return dma_wq(WLOC[ti], sWQCOL, (ti % 4)*128*8192 + (ti // 4)*128)
    for mt in range(3): vm.issue("X0", xt(mt, 0, mt*SL))
    vm.issue("W0", w0(0)); vm.issue("W1", w0(1))
    for mt in range(3): vm.issue("X1", xt(mt, 1, (5+mt)*SL))
    vm.issue("W2", w0(2))
    vm.need("W1")
    R("s_barrier")
    for mt in range(3):
        for ks in range(16):
            em.emit(dsr128(XF3(mt, ks), w_aX, mt*SL + ks*32))
    em.wait_ds(0)
    vm.need("W2")
    R("s_barrier")
    vm.issue("W3", w0(3)); vm.issue("W4", w0(4)); vm.issue("W5", w0(5))
    vm.issue("K0", dma_kv_full(K0, sK, f"s{sROT}"))
    if P.PLAN in (0, 2):
        R(f"s_add_u32 s3, s{sROT}, 16384")
        vm.issue("K1", dma_kv_full(K0+SL, sK, "s3"))
    for mt in range(3):
        for ks in range(16):
            em.emit(dsr128(XF3(mt, 16+ks), 8, mt*SL + ks*32))
    em.wait_ds(0)
    vm.need("W5")
    R("s_barrier")
    vm.issue("W6", w0(6)); vm.issue("W7", w0(7))
    R(f"s_add_u32 s{sWQLIN}, s{sWQCOL}, 256")
    R(f"s_and_b32 s{sWQLIN}, s{sWQLIN}, 1023")
    R(f"s_xor_b32 s{sWQCOL}, s{sWQLIN}, s{sSW}")
    vm.issue("U0", dma_wq(WQ0, sWQCOL, 0))
    vm.issue("U1", dma_wq(WQ0+SL, sWQCOL, 128*8192))
    vm.need("W7")
    R("s_barrier")
    vm.need("U0")
    frags = []
    seq = qproj_items(frags, w_aWQ, 0, None, 0, w3_acc, XF3, 3)
    schedule(em, seq, frags, W_STG, W_NS, P.W_LA, budget=P.W_BUDGET, pair=False)
    R(f"s_add_u32 s{sWOOFF}, s{sROT}, {(-7*16384) & 0x7ffff:#x}")
    R(f"s_and_b32 s{sWOOFF}, s{sWOOFF}, 0x7ffff")
    R(f"s_mov_b32 s{sCNT}, 6")
    R("s_waitcnt vmcnt(0)")
    if P.PLAN == 4:
        stamp(em)
        R("s_barrier")
        for o in kvq_ops(K0+SL, sK, sKOFF, sM0K, 29, 0, 0) + kvq_ops(V0, sV, sVOFF, sM0V, 30, 0, 0): em.emit(o)
        R("s_barrier")
    em.fence(2)
    em.label("L_w3_loop")
    n0 = em.ninstr; nn0 = em.nops; w0 = em.waits
    if P.PLAN == 4: wave3_body4(em)
    else: wave3_body(em)
    print(f"wave3 body: {em.ninstr-n0} instrs, {em.nops-nn0} nop states, {em.waits-w0} waits", file=sys.stderr)
    R(f"s_sub_u32 s{sCNT}, s{sCNT}, 1")
    R(f"s_cmp_lg_u32 s{sCNT}, 0")
    em.fence(2)
    R("s_cbranch_scc1 L_w3_loop")
    if P.PLAN == 4:
        vm = VM(em, [("V23", 4), ("WQ", 16), ("WO24", 16), ("K25", 4), ("V24", 4)])
        R(f"s_add_u32 s3, s{sWOOFF}, {(26-17)*16384}\n    s_and_b32 s3, s3, 0x7ffff")
        for t in range(23, 32):
            if t > 23:
                stamp(em)
                vm.need(f"WO{t}")
                R("s_barrier")
                if t <= 29: vm.issue(f"K{t+2}", kvq_ops(K0 + (t % 2)*SL, sK, sKOFF, sM0K, 29, 0, 0))
                if t <= 30: vm.issue(f"V{t+1}", kvq_ops(V0 + ((t+1) % 2)*SL, sV, sVOFF, sM0V, 30, 0, 0))
                if t == 31:
                    vm.issue("TT", dma_wo(V0, 3))
                vm.need(f"K{t+1}")
                R("s_barrier")
            vm.need(f"V{t}")
            R("s_barrier")
            ops = dma_wo(WO0 + (t % 2)*SL, sWOOFF)
            ops.append(salu(f"s_add_u32 s{sWOOFF}, s{sWOOFF}, 16384\n    s_and_b32 s{sWOOFF}, s{sWOOFF}, 0x7ffff\n    s_add_u32 s{sT}, s{sT}, 1"))
            vm.issue(f"WO{t+2}", ops)
            if t in (23, 24):
                vm.issue("TT", dma_wo(WQ0 + (t-23)*SL, 3))
                R("s_add_u32 s3, s3, 16384")
            if t == 25:
                R(f"s_add_u32 s4, s3, {3*16384}")
                vm.issue("TT", dma_wo(QB, 4))
            if t in (29, 30):
                vm.issue("TT", dma_wo(K0 + (t-29)*SL, 3))
                R("s_add_u32 s3, s3, 16384")
        stamp(em)
        R("s_waitcnt vmcnt(0)")
        R("s_barrier")
        stamp(em)
        stamp_store(em)
        em.label("L_end")
        R("s_endpgm")
        return
    if P.PLAN == 0: vm = VM(em, [("K24", 4), ("WO23", 16), ("WQ", 16), ("V23", 4), ("K25", 4), ("WO24", 16)])
    elif P.PLAN == 2: vm = VM(em, [("WO23", 16), ("K24", 4), ("WQ", 16), ("V23", 4), ("WO24", 16), ("K25", 4)])
    else: vm = VM(em, [("WQ", 16), ("WO23", 16), ("K24", 4), ("V23", 4), ("WQ", 16), ("WO24", 16)])
    R(f"s_add_u32 s3, s{sWOOFF}, {(26-17)*16384}\n    s_and_b32 s3, s3, 0x7ffff")
    for t in range(23, 32):
        stamp(em)
        if P.PLAN in (2, 3): vm.need(f"WO{t}")
        else: vm.need(f"K{t+1}", f"WO{t}")
        R("s_barrier")
        if P.PLAN in (1, 3) and t <= 29:
            vm.issue(f"K{t+2}", kvq_ops(K0 + (t % 2)*SL, sK, sKOFF, sM0K, 29, 0, 0))
        if t <= 30:
            vm.issue(f"V{t+1}", kvq_ops(V0 + ((t+1) % 2)*SL, sV, sVOFF, sM0V, 30, 0, 0))
        if t == 31:
            vm.issue("TT32", dma_wo(V0, 3))
            R("s_add_u32 s3, s3, 16384")
        ops = dma_wo(WO0 + (t % 2)*SL, sWOOFF)
        ops.append(salu(f"s_add_u32 s{sWOOFF}, s{sWOOFF}, 16384\n    s_and_b32 s{sWOOFF}, s{sWOOFF}, 0x7ffff"))
        if P.PLAN in (2, 3):
            vm.need(f"K{t+1}")
            R("s_barrier")
            if P.PLAN == 2: vm.issue(f"WO{t+2}", ops)
        vm.need(f"V{t}")
        R("s_barrier")
        if P.PLAN in (0, 2) and t <= 28:
            vm.issue(f"K{t+3}", kvq_ops(K0 + ((t+1) % 2)*SL, sK, sKOFF, sM0K, 28, 0, 0))
        if P.PLAN != 2: vm.issue(f"WO{t+2}", ops)
        R(f"s_add_u32 s{sT}, s{sT}, 1")
        if t == 23:
            vm.issue("TT32", dma_wo(WQ0, 3))
            R("s_add_u32 s3, s3, 16384")
        if t == 24:
            vm.issue("TT32", dma_wo(WQ0+SL, 3))
            R("s_add_u32 s3, s3, 16384")
        if t == 25:
            R(f"s_add_u32 s4, s3, {3*16384}")
            vm.issue("TT32", dma_wo(QB, 4))
        if t in (29, 30):
            vm.issue("TT32", dma_wo(K0 + (t-29)*SL, 3))
            R("s_add_u32 s3, s3, 16384")
    stamp(em)
    R("s_waitcnt vmcnt(0)")
    R("s_barrier")
    stamp(em)
    stamp_store(em)
    em.label("L_end")
    R("s_endpgm")

def gen_reduce(em):
    R = em.raw
    em.lines.append(".p2align 8")
    em.lines.append(".globl reduce_kernel")
    em.lines.append(".type reduce_kernel,@function")
    em.label("reduce_kernel")
    R("s_cmp_ge_u32 s2, 768")
    R("s_cbranch_scc1 L_rend")
    R("s_load_dwordx2 s[4:5], s[0:1], 80")
    R("s_load_dwordx2 s[6:7], s[0:1], 96")
    if P.DBG:
        R("s_memrealtime s[40:41]")
        R("s_load_dwordx2 s[32:33], s[0:1], 88")
    R("v_lshrrev_b32 v1, 6, v0")
    R("v_and_b32 v0, 63, v0")
    R("s_and_b32 s8, s2, 7")
    R("s_lshr_b32 s9, s2, 3")
    R("s_mul_i32 s10, s9, 43691")
    R("s_lshr_b32 s10, s10, 17")
    R("s_mul_i32 s11, s10, 3")
    R("s_sub_u32 s11, s9, s11")
    R("s_lshr_b32 s12, s10, 4")
    R("s_and_b32 s13, s10, 15")
    R("v_and_b32 v2, 7, v0")
    R("v_bfe_u32 v3, v0, 3, 1")
    R("v_bfe_u32 v4, v0, 4, 1")
    R("v_lshrrev_b32 v5, 5, v0")
    R("v_lshl_add_u32 v2, v1, 3, v2")
    R("v_lshlrev_b32 v6, 11, v5")
    R("v_lshl_add_u32 v6, v3, 10, v6")
    R("v_lshl_add_u32 v6, v4, 9, v6")
    R("v_lshl_add_u32 v6, v2, 4, v6")
    R("s_lshl_b32 s14, s11, 15")
    R("s_lshl_b32 s15, s8, 12")
    R("s_add_u32 s14, s14, s15")
    R("s_lshl_b32 s15, s12, 2")
    R("s_lshl_b32 s16, s13, 3")
    R("s_add_u32 s15, s15, s16")
    R("s_mul_i32 s15, s15, 98304")
    R("s_add_u32 s14, s14, s15")
    R("s_waitcnt lgkmcnt(0)")
    R("s_mov_b32 s20, s6")
    R("s_and_b32 s21, s7, 0xffff")
    R(f"s_mov_b32 s22, {256*98304}")
    R("s_mov_b32 s23, 0x20000")
    R("s_mov_b32 s24, s4")
    R("s_and_b32 s25, s5, 0xffff")
    R(f"s_mov_b32 s26, {16*96*1024*2}")
    R("s_mov_b32 s27, 0x20000")
    for hg in range(8):
        d = ((hg // 2) + 128*(hg % 2)) * 98304
        R(f"s_add_u32 s17, s14, {d}")
        R(f"buffer_load_dwordx4 v[{8+4*hg}:{11+4*hg}], v6, s[20:23], s17 offen{P.RDPOL}")
    R("v_lshlrev_b32 v7, 11, v2")
    R("v_lshl_add_u32 v7, v5, 6, v7")
    R("v_lshl_add_u32 v7, v4, 5, v7")
    R("v_lshl_add_u32 v7, v3, 4, v7")
    R("s_mul_i32 s15, s13, 96")
    R("s_lshl_b32 s16, s11, 5")
    R("s_add_u32 s15, s15, s16")
    R("s_lshl_b32 s15, s15, 11")
    R("s_lshl_b32 s16, s12, 10")
    R("s_add_u32 s15, s15, s16")
    R("s_lshl_b32 s16, s8, 7")
    R("s_add_u32 s15, s15, s16")
    for hg in range(8):
        R(f"s_waitcnt vmcnt({7-hg})")
        for k in range(4):
            src = 8 + 4*hg + k
            if hg == 0:
                R(f"v_lshlrev_b32 v{40+2*k}, 16, v{src}")
                R(f"v_and_b32 v{41+2*k}, 0xffff0000, v{src}")
            else:
                R(f"v_lshlrev_b32 v48, 16, v{src}")
                R(f"v_and_b32 v49, 0xffff0000, v{src}")
                R(f"v_add_f32 v{40+2*k}, v{40+2*k}, v48")
                R(f"v_add_f32 v{41+2*k}, v{41+2*k}, v49")
    for k in range(4):
        R(f"v_cvt_pk_bf16_f32 v{52+k}, v{40+2*k}, v{41+2*k}")
    R("buffer_store_dwordx4 v[52:55], v7, s[24:27], s15 offen")
    if P.DBG:
        R("s_and_b32 s44, s2, 31")
        R("s_cmp_lg_u32 s44, 31")
        R("s_cbranch_scc1 L_rend")
        R("v_readfirstlane_b32 s44, v1")
        R("s_cmp_lg_u32 s44, 0")
        R("s_cbranch_scc1 L_rend")
        R("s_waitcnt vmcnt(0)")
        R("s_memrealtime s[42:43]")
        R("s_sub_u32 s36, s32, 512")
        R("s_subb_u32 s37, s33, 0")
        R("s_and_b32 s37, s37, 0xffff")
        R("s_mov_b32 s38, 256")
        R("s_mov_b32 s39, 0x20000")
        R("s_and_b32 s33, s33, 0xffff")
        R("s_mov_b32 s34, 256")
        R("s_mov_b32 s35, 0x20000")
        R("v_lshlrev_b32 v0, 2, v0")
        R("buffer_load_dword v1, v0, s[36:39], 0 offen")
        R("s_waitcnt vmcnt(0) lgkmcnt(0)")
        R("s_not_b32 s40, s40")
        R("v_writelane_b32 v1, s40, 10")
        R("v_writelane_b32 v1, s42, 11")
        R("v_cmp_gt_u32 vcc, 48, v0")
        R("s_and_saveexec_b64 s[44:45], vcc")
        R("buffer_atomic_umax v1, v0, s[32:35], 0 offen")
        R("s_waitcnt vmcnt(0)")
    em.label("L_rend")
    R("s_endpgm")

def build():
    ref = open(f"cdna_kernels/{NAME}.s.ref").read().splitlines()
    head = [l for l in ref if l.startswith(";") and "@launch" not in l]
    em = Em()
    gen_main(em)
    gen_reduce(em)
    out = []
    out += head
    out.append(f"; @launch kernel={NAME}_kernel grid=(256,1,1) block=(256,1,1) lds={LDS_BYTES}")
    out.append(f"; @launch kernel=reduce_kernel grid=(768,1,1) block=(256,1,1) lds=0")
    out.append('.amdgcn_target "amdgcn-amd-amdhsa--gfx950"')
    out.append(".text")
    out.append(f".globl {NAME}_kernel")
    out.append(".p2align 8")
    out.append(f".type {NAME}_kernel,@function")
    out.append(em.text())
    out.append('.section .rodata,"a"')
    for (k, nv, ao) in ((f"{NAME}_kernel", 512, 256), ("reduce_kernel", 64, 64)):
        out.append(".p2align 6")
        out.append(f".amdhsa_kernel {k}")
        out.append(f"  .amdhsa_next_free_vgpr {nv}")
        out.append("  .amdhsa_next_free_sgpr 102")
        out.append(f"  .amdhsa_accum_offset {ao}")
        out.append("  .amdhsa_group_segment_fixed_size 0")
        out.append("  .amdhsa_kernarg_size 104")
        out.append("  .amdhsa_user_sgpr_count 2")
        out.append("  .amdhsa_user_sgpr_kernarg_segment_ptr 1")
        out.append("  .amdhsa_system_sgpr_workgroup_id_x 1")
        out.append(".end_amdhsa_kernel")
    return "\n".join(out) + "\n"

if __name__ == "__main__":
    dst = sys.argv[1] if len(sys.argv) > 1 else f"cdna_kernels/{NAME}.s"
    for a in sys.argv[2:]:
        k, v = a.split("=")
        cur = getattr(P, k)
        setattr(P, k, type(cur)(v) if not isinstance(cur, str) else (" " + v.replace("+", " ") if v else ""))
    open(dst, "w").write(build())
```

```python
import sys, struct
from em import *
from sched import *

NAME = "concat_heads__gqa_block_cached__gqa_block_cached__near_ridge"
SL = 16640
K0, V0, WO0, WQ0, QB = 0, 2*SL, 4*SL, 6*SL, 8*SL
LDS_BYTES = 163840
M0_NULL = 0x30000
WLOC = [3*SL, 4*SL, QB, 3*SL, 4*SL, 2*SL, 5*SL, QB]
C_SCALE = 1.4426950408889634 / (128 ** 0.5)
def f32bits(x): return struct.unpack("<I", struct.pack("<f", x))[0]

sK, sV, sWQ, sWO, sX, sWS = 8, 12, 16, 20, 24, 28
sWAVE, sC, sTHR, sCNT = 32, 33, 34, 35
sM0W, sM0K, sM0V, sM0N = 36, 37, 38, 39
sT, sKOFF, sVOFF, sWOOFF, sWQCOL, sTMP = 40, 41, 42, 43, 44, 45
sPF, sWOCUR = 75, 76
sROT, sSW, sWQLIN = 72, 73, 74
def srd(b): return f"s[{b}:{b+3}]"

aK, aV, aWO, aQB, vKV = 1, 2, 3, 4, 5
LA_, LB_, ALPHA, DELTA = 7, 8, 9, 10
T0, T1, T2, T3 = 11, 12, 13, 14
AUX = 15
STG = 16; NS = 8
OACC, QR, OP = 48, 112, 144
SR = [176, 208]
NEGM = 240
w_vlin, w_vwq, w_aWQ, w_aQB, w_aX = 2, 3, 4, 1, 7
W_STG = 16; W_NS = 4
W_ACC = 32
def XF3(mt, ks):
    if mt < 2: return AG(mt * 128 + ks * 4, 4)
    return V(128 + ks * 4, 4)
def XFA(ks):
    return V(48 + ks * 4, 4) if ks < 16 else V(144 + (ks - 16) * 4, 4)

class P:
    LA = 5
    BUDGET = 6.0
    W_LA = 6
    W_BUDGET = 6.0
    W_SPLIT = 30
    KVPOL = " nt"
    WPOL = ""
    XPOL = ""
    STPOL = " nt"
    RDPOL = " nt"
    THR = 8.0
    STAMP = 0
    CYC = 0
    PAIR = 1
    NODMA = 0
    CPF = 1
    WOPF = 0
    PFT = 0
    ROT = 1
    W4_1 = 10
    W4_2 = 30
    W_SPLITZ = 14
    DMAFIRST = 0
    DEVERY = 3
    PLAN = 0
    W_PRE = 8
    HOIST = 3
    VMA = 8
    DBG = 0

gate_ctr = [1000]
def newgate():
    gate_ctr[0] += 1
    return gate_ctr[0]

STV = 6
def stamp_txt():
    if not P.STAMP: return []
    return [("s_memtime s[96:97]" if P.CYC else "s_memrealtime s[96:97]"), "s_min_u32 m0, s98, 63", "s_waitcnt lgkmcnt(0)",
            f"v_writelane_b32 v{STV}, s96, m0", "s_add_u32 s98, s98, 1"]
def stamp(em):
    if P.STAMP:
        em.wait_ds(0)
        for t in stamp_txt(): em.raw(t)
def stamp_store(em):
    if not P.STAMP: return
    R = em.raw
    R("s_lshl_b32 s3, s2, 2")
    R(f"s_add_u32 s3, s3, s{sWAVE}")
    R("s_lshl_b32 s3, s3, 8")
    R("s_add_u32 s92, s70, 0x2000000")
    R("s_addc_u32 s93, s71, 0")
    R("s_and_b32 s93, s93, 0xffff")
    R("s_mov_b32 s94, 0x40000")
    R("s_mov_b32 s95, 0x20000")
    R("v_lshlrev_b32 v0, 2, v0")
    R(f"buffer_store_dword v{STV}, v0, s[92:95], s3 offen")
def bar(gate, pre=(), rd=(), drain=False, st=0):
    s1 = stamp_txt() if (st and P.STAMP >= st) else []
    s2 = stamp_txt() if (st and P.STAMP >= 2) else []
    return MItem('bar', texts=s2 + list(pre) + ["s_barrier"] + s1, rd=rd, wr=[gate], drain=drain or bool(s1))

def v3(op, d, a, b, c):
    return valu(f"{op} v{d}, v{a}, v{b}, v{c}", [a, b, c], [d])
def salu(text, rd=(), wr=()):
    return Op('salu', text, rd=rd, wr=wr, cost=text.count("\n") + 1)

def interleave(main, extra, start=0, every=3):
    out = []; e = list(extra)
    for i, o in enumerate(main):
        out.append(o)
        if e and i >= start and (i - start) % every == every - 1:
            out.append(e.pop(0))
    return out + e

def maxtree_ops(S):
    ops = []
    T = [T0, T1, T2, T3]
    for k in range(4): ops.append(v3("v_max3_f32", T[k], S+8*k, S+8*k+1, S+8*k+2))
    for k in range(4): ops.append(v3("v_max3_f32", T[k], T[k], S+8*k+3, S+8*k+4))
    for k in range(4): ops.append(v3("v_max3_f32", T[k], T[k], S+8*k+5, S+8*k+6))
    ops.append(v3("v_max3_f32", T0, T0, S+7, T1))
    ops.append(v3("v_max3_f32", T2, T2, S+23, T3))
    ops.append(v3("v_max3_f32", T0, T0, S+15, S+31))
    ops.append(valu(f"v_max_f32 v{T0}, v{T0}, v{T2}", [T0, T2], [T0]))
    ops.append(valu(f"v_mov_b32 v{T1}, v{T0}", [T0], [T1]))
    ops.append(valu(f"v_permlane32_swap_b32 v{T0}, v{T1}", [T0, T1], [T0, T1], kind='perm'))
    ops.append(valu(f"v_max_f32 v{DELTA}, v{T0}, v{T1}", [T0, T1], [DELTA]))
    return ops

def first_tile_ops(S):
    ops = []
    for i in range(16):
        ops.append(valu(f"v_sub_f32 v{NEGM+i}, 0, v{DELTA}", [DELTA], [NEGM+i]))
    for i in range(32):
        ops.append(valu(f"v_sub_f32 v{S+i}, v{S+i}, v{DELTA}", [S+i, DELTA], [S+i]))
    return ops

rare_blocks = []
def check_op(S, tag):
    regs = V(S, 32) + V(NEGM, 16) + V(OACC, 64) + [LA_, LB_, DELTA, ALPHA]
    rare_blocks.append((S, tag))
    t = f"v_cmp_lt_f32 vcc, s{sTHR}, v{DELTA}\n    s_cbranch_vccnz L_rare_{tag}\nL_back_{tag}:"
    op = Op('raw', t, rd=regs, wr=regs, cost=2)
    op.noraw = True
    return op
def emit_rare(em):
    R = em.raw
    for (S, tag) in rare_blocks:
        em.label(f"L_rare_{tag}")
        R("s_nop 15")
        R(f"v_max_f32 v{DELTA}, 0, v{DELTA}")
        R(f"v_sub_f32 v{ALPHA}, 0, v{DELTA}")
        R(f"v_exp_f32 v{ALPHA}, v{ALPHA}")
        for i in range(32): R(f"v_sub_f32 v{S+i}, v{S+i}, v{DELTA}")
        for i in range(16): R(f"v_sub_f32 v{NEGM+i}, v{NEGM+i}, v{DELTA}")
        for i in range(64): R(f"v_mul_f32 v{OACC+i}, v{ALPHA}, v{OACC+i}")
        R(f"v_mul_f32 v{LA_}, v{ALPHA}, v{LA_}")
        R(f"v_mul_f32 v{LB_}, v{ALPHA}, v{LB_}")
        R("s_nop 3")
        R(f"s_branch L_back_{tag}")

def exp_ops(S, first):
    def ex(i): return valu(f"v_exp_f32 v{S+i}, v{S+i}", [S+i], [S+i], kind='trans')
    def add(i):
        l = LA_ if i % 2 == 0 else LB_
        if i < 2 and first: return valu(f"v_mov_b32 v{l}, v{S+i}", [S+i], [l])
        return valu(f"v_add_f32 v{l}, v{l}, v{S+i}", [l, S+i], [l])
    def cvt(k): return valu(f"v_cvt_pk_bf16_f32 v{S+k}, v{S+2*k}, v{S+2*k+1}", [S+2*k, S+2*k+1], [S+k])
    out = []
    for k in range(17):
        if k < 16: out.append(ex(2*k))
        if k > 0: out.append(add(2*k-2))
        if k < 16: out.append(ex(2*k+1))
        if k > 0:
            out.append(add(2*k-1)); out.append(cvt(k-1))
    return out

def finalize_ops():
    ops = []
    ops.append(valu(f"v_add_f32 v{T2}, v{LA_}, v{LB_}", [LA_, LB_], [T2]))
    ops.append(valu(f"v_mov_b32 v{T3}, v{T2}", [T2], [T3]))
    ops.append(valu(f"v_permlane32_swap_b32 v{T2}, v{T3}", [T2, T3], [T2, T3], kind='perm'))
    ops.append(valu(f"v_add_f32 v{T2}, v{T2}, v{T3}", [T2, T3], [T2]))
    ops.append(valu(f"v_rcp_f32 v{AUX}, v{T2}", [T2], [AUX], kind='trans'))
    for k in range(33):
        if k < 32:
            a, b = OACC + 2*k, OACC + 2*k + 1
            ops.append(valu(f"v_mul_f32 v{a}, v{AUX}, v{a}", [AUX, a], [a]))
            ops.append(valu(f"v_mul_f32 v{b}, v{AUX}, v{b}", [AUX, b], [b]))
        if k > 0:
            kk = k - 1
            ops.append(valu(f"v_cvt_pk_bf16_f32 v{OP+kk}, v{OACC+2*kk}, v{OACC+2*kk+1}", [OACC+2*kk, OACC+2*kk+1], [OP+kk]))
    return ops

def qk_items(frags, Sdst, kslot, gate, negm):
    it = []
    for sub in range(2):
        for ks in range(8):
            frags.append(Frag([('b128', aK, K0 + kslot*SL + sub*512 + ks*32, 0)], gate))
            it.append(MItem('mfma', D=V(Sdst + 16*sub, 16), B=V(QR + 4*ks, 4), acc=(ks != 0), frag=len(frags)-1,
                            C=(V(NEGM, 16) if (ks == 0 and negm) else None)))
    return it
def opj_item(frags, ks, nt, woff, gate, addr):
    frags.append(Frag([('tr', addr, woff + t*2080 + nt*64, 2*t) for t in range(2)], gate))
    return MItem('mfma', D=AG(16*nt, 16), B=V(OP + 4*ks, 4), acc=True, frag=len(frags)-1)
def opj_items(frags, ks, woff, gate, addr=aWO):
    return [opj_item(frags, ks, nt, woff, gate, addr) for nt in range(16)]
def pv_items(frags, S, vslot, gate, first):
    it = []
    for s in range(4):
        for dt in range(4):
            frags.append(Frag([('tr', aV, vslot*SL + t*2080 + s*256 + dt*64, 2*t) for t in range(2)], gate))
            it.append(MItem('mfma', D=V(OACC + 16*dt, 16), B=V(S + 4*s, 4), acc=not (first and s == 0), frag=len(frags)-1))
    return it

def dma_pair(m0txt, voff, srdb, soff, off, pol, rd=(), wr=()):
    a = Op('m0', m0txt, rd=rd)
    b = Op('dma', f"buffer_load_dwordx4 v{voff}, {srd(srdb)}, {soff} offen" + (f" offset:{off}" if off else "") + f"{pol} lds", wr=wr)
    return [a, b]

def kvq_ops(slotbase, srdb, offreg, m0reg, lim, gate, done):
    if P.NODMA in (1, 3): lim = -100
    ops = [salu(f"s_cmp_le_i32 s{sT}, {lim}\n    s_cselect_b32 s{srdb+2}, 0x80000, 0\n    s_cselect_b32 s{m0reg}, s{sM0W}, s{sM0N}", rd=[gate])]
    for i in range(4):
        ops += dma_pair(f"s_add_u32 m0, s{m0reg}, {slotbase + 16*i}", vKV, srdb, f"s{offreg}", 1024*i, P.KVPOL)
    ops.append(salu(f"s_add_u32 s{offreg}, s{offreg}, 16384\n    s_and_b32 s{offreg}, s{offreg}, 0x7ffff", wr=[done]))
    return ops

def insert_hoisted(seq, b, H):
    if H == 0:
        seq.append(b); return
    n = 0; i = len(seq)
    while n < H:
        i -= 1
        if isinstance(seq[i], MItem):
            assert seq[i].kind == 'mfma'
            n += 1
    b.hoist = H
    seq.insert(i, b)

def attention_head(em):
    seq = []; frags = []
    dA_prev = None
    Z3 = P.PLAN in (2, 4, 5)
    QZ = P.PLAN in (4, 5)
    KVA = P.PLAN == 4
    for j in range(8):
        p = j % 2
        gA = newgate(); gB = newgate(); dB = newgate(); dA = newgate(); gZ = newgate()
        b = bar(gB, pre=["s_waitcnt vmcnt(8)"], rd=[dA_prev] if dA_prev else [], st=2)
        insert_hoisted(seq, b, P.HOIST if j > 0 else 0)
        if not KVA:
            kq = kvq_ops(K0 + p*SL, sK, sKOFF, sM0K, 28, gB, dB)
            kq.append(salu(f"s_add_u32 s{sT}, s{sT}, 1"))
        else:
            kq = [salu(f"s_add_u32 s{sT}, s{sT}, 1", rd=[gB], wr=[dB])]
        mt = maxtree_ops(SR[p])
        if j == 0: mt += first_tile_ops(SR[p])
        seq += interleave(mt, kq, every=2)
        seq += pv_items(frags, SR[1-p], 1-p, gB, j == 1)
        insert_hoisted(seq, bar(gA, pre=[] if Z3 else ["s_waitcnt vmcnt(8)"], rd=[dB], st=1), P.HOIST)
        vq = kvq_ops(V0 + (1-p)*SL, sV, sVOFF, sM0V, 30, gA, dA)
        if KVA:
            vq = kvq_ops(K0 + p*SL, sK, sKOFF, sM0K, 29, gA, newgate()) + vq
        pre = finalize_ops() if j == 0 else [check_op(SR[p], f"{j}")]
        qrd = []
        if j == 7:
            for ks in range(8):
                op = dsr128(V(QR + 4*ks, 4), aQB, ks*1024)
                op.rd.append(gZ if QZ else gA)
                qrd.append(op)
            if not QZ:
                pre += qrd; qrd = []
        if P.DMAFIRST:
            seq += interleave(vq, pre, every=2) if j == 0 else (vq + pre)
            ex = exp_ops(SR[p], j == 0)
        else:
            seq += pre
            ex = interleave(exp_ops(SR[p], j == 0), vq, every=P.DEVERY)
        if Z3:
            ms = opj_items(frags, j, p*SL, gA)
            insert_hoisted(ms, bar(gZ, pre=["s_waitcnt vmcnt(12)"], rd=[dA]), P.HOIST + (2 if qrd else 0))
            h = len(ex) if not qrd else max(len(ex) * 2 // 5, 1 + max(k for k, o in enumerate(ex) if dA in o.wr) if not P.DMAFIRST else 0)
            seq += ex[:h] + ms + qrd + ex[h:]
            seq += qk_items(frags, SR[1-p], 1-p, gZ, j != 7)
        else:
            if j == 0:
                ms = qk_items(frags, SR[1-p], 1-p, gA, True) + opj_items(frags, j, p*SL, gA)
            else:
                ms = opj_items(frags, j, p*SL, gA) + qk_items(frags, SR[1-p], 1-p, gA, j != 7)
            seq += ex + ms
        dA_prev = dA
    schedule(em, seq, frags, STG, NS, P.LA, budget=P.BUDGET, pair=P.PAIR)

def perm16(j): return 4*(j % 4) + j // 4

def dma_kv_full(slotbase, srdb, soff):
    ops = []
    for j in range(16):
        ops += dma_pair(f"s_mov_b32 m0, {slotbase + 1040*j - perm16(j)*256}", vKV, srdb, soff, perm16(j)*256, P.KVPOL)
    return ops
def dma_wo(slotbase, soffreg):
    ops = []
    for jj in range(4):
        for jh in range(4):
            j = jh*4 + jj
            pr = dma_pair(f"s_mov_b32 m0, {slotbase + 1040*j - jh*1024}", w_vlin, sWO, f"s{sTMP}", jh*1024, P.WPOL)
            if jh == 0: pr.insert(1, salu(f"s_add_u32 s{sTMP}, s{soffreg}, {jj*4096}"))
            ops += pr
    return ops
def dma_wq(slotbase, colreg, const):
    ops = []
    for j in range(16):
        pr = dma_pair(f"s_mov_b32 m0, {slotbase + 1040*j}", w_vwq, sWQ, f"s{sTMP+1}", 0, P.WPOL)
        pr.insert(1, salu(f"s_add_u32 s{sTMP+1}, s{colreg}, {const + perm16(j)*8192}"))
        ops += pr
    return ops

def qproj_items(frags, addr, base, gate, kq, acc_regs, xfrag, nmt):
    it = []
    for dt2 in range(2):
        for ks in range(8):
            frags.append(Frag([('tr', addr, base + t*1040 + ks*128 + dt2*64, 2*t) for t in range(2)], gate))
            for mt in range(nmt):
                it.append(MItem('mfma', D=acc_regs(dt2, mt), B=xfrag(mt, kq*8 + ks), acc=not (kq == 0 and ks == 0), frag=len(frags)-1))
    return it

def scale_cvt(a, dst):
    ops = []
    for k in range(9):
        if k < 8:
            ops.append(valu(f"v_mul_f32 v{a+2*k}, s{sC}, v{a+2*k}", [a+2*k], [a+2*k]))
            ops.append(valu(f"v_mul_f32 v{a+2*k+1}, s{sC}, v{a+2*k+1}", [a+2*k+1], [a+2*k+1]))
        if k > 0:
            kk = k - 1
            ops.append(valu(f"v_cvt_pk_bf16_f32 v{dst+kk}, v{a+2*kk}, v{a+2*kk+1}", [a+2*kk, a+2*kk+1], [dst+kk]))
    return ops

def wo_sel():
    lim = 100 if P.NODMA in (1, 2) else 6
    t = f"s_cmp_ge_i32 s{sT}, {lim}\n    s_cselect_b32 s{sWO+2}, 0x80000, 0\n    s_cselect_b32 s{sWOCUR}, s{sWOOFF}, s{sPF}"
    ops = [salu(t)]
    if P.WOPF and not P.NODMA:
        ops.append(salu(f"s_sub_u32 s{sTMP}, s{sT}, {P.PFT-1}\n    s_cmp_lt_u32 s{sTMP}, 2\n    s_cselect_b32 s{sWO+2}, 0x80000, s{sWO+2}\n    s_cselect_b32 s{sTMP}, 16384, 0\n    s_add_u32 s{sPF}, s{sPF}, s{sTMP}"))
    return ops

def w3_acc(dt2, mt): return V(W_ACC + (dt2*3 + mt)*16, 16)
def w3_cv(dt2):
    ops = []
    for mt in range(3):
        a = w3_acc(dt2, mt)[0]
        ops += scale_cvt(a, a)
        for s2 in range(2):
            ops.append(dsw128(w_aQB, V(a + 4*s2, 4), mt*8192 + (dt2*2 + s2)*1024))
    return ops

def wave3_body(em):
    seq = []; frags = []
    lastB = None
    for kq in (1, 2, 3, 0):
        par = kq % 2
        gA = newgate(); gB = newgate(); dA = newgate(); dB = newgate(); gW = newgate(); dW = newgate()
        rdA = [lastB] if lastB else []
        wq = [salu(f"s_cmp_le_i32 s{sT}, {-100 if P.NODMA in (1, 2) else 20}\n    s_cselect_b32 s{sWQ+2}, s{sTMP+2}, 0")]
        if kq == 3:
            wq.append(salu(f"s_add_u32 s{sWQLIN}, s{sWQLIN}, 128\n    s_and_b32 s{sWQLIN}, s{sWQLIN}, 1023\n    s_xor_b32 s{sWQCOL}, s{sWQLIN}, s{sSW}"))
        wq += dma_wq(WQ0 + (1-par)*SL, sWQCOL, ((kq+1) % 4) * 128 * 8192)
        wo = wo_sel() + dma_wo(WO0 + par*SL, sWOCUR)
        wo.append(salu(f"s_add_u32 s{sWOOFF}, s{sWOOFF}, 16384\n    s_and_b32 s{sWOOFF}, s{sWOOFF}, 0x7ffff\n    s_add_u32 s{sT}, s{sT}, 1", wr=[dB]))
        vq = kvq_ops(V0 + (1-par)*SL, sV, sVOFF, sM0V, 30, gA, dA)
        if P.PLAN == 0:
            A = wq + vq; A[0].rd.append(gA)
            B = kvq_ops(K0 + (1-par)*SL, sK, sKOFF, sM0K, 28, gB, newgate()) + wo
            wA, wB, nA = 40, 40, P.W_PRE
            wW = 24 + nA
        elif P.PLAN == 2:
            gZ = newgate(); dZ = newgate()
            A = wq + vq; A[0].rd.append(gA)
            Z = wo[:-1] + [salu(f"s_add_u32 s{sWOOFF}, s{sWOOFF}, 16384\n    s_and_b32 s{sWOOFF}, s{sWOOFF}, 0x7ffff", wr=[dZ])]; Z[0].rd.append(gZ)
            B = kvq_ops(K0 + (1-par)*SL, sK, sKOFF, sM0K, 28, gB, newgate()) + [salu(f"s_add_u32 s{sT}, s{sT}, 1", wr=[dB])]
            wA, wZ, wB, nA = 44, 60, 56, P.W_PRE
            wW = 24 + nA
        else:
            A = kvq_ops(K0 + par*SL, sK, sKOFF, sM0K, 29, gA, newgate()) + vq
            B = wq + wo; B[0].rd.append(gB)
            wA, wB, nA = 36, 40, 8
            wW = 24
            if P.PLAN == 3:
                gZ = newgate(); dZ = dA; Z = []
                wA, wZ = 40, 44
        seq.append(bar(gA, pre=stamp_txt() + [f"s_waitcnt vmcnt({wA})"], rd=rdA, drain=bool(P.STAMP)))
        items = qproj_items(frags, w_aWQ, par*SL, gW, kq, w3_acc, XF3, 3)
        cut = 0; cnt = 0
        while cnt < nA:
            if A[cut].kind == 'dma': cnt += 1
            cut += 1
        A1 = A[:cut] + [salu("s_nop 0", wr=[dW])]; A2 = A[cut:]
        if kq == 0:
            c = w3_cv(1) + [valu(f"v_xor_b32 v{w_aQB}, 0x1000, v{w_aQB}", [w_aQB], [w_aQB])]
            A2 = interleave(c, A2, every=1)
        seq += A1
        seq.append(MItem('bar', texts=[f"s_waitcnt vmcnt({wW})"], rd=[dW], wr=[gW]))
        seq += A2
        if P.PLAN in (2, 3):
            seq += items[:P.W_SPLITZ]
            seq.append(bar(gZ, pre=[f"s_waitcnt vmcnt({wZ})"], rd=[dA]))
            seq += Z
            seq += items[P.W_SPLITZ:P.W_SPLIT]
            seq.append(bar(gB, pre=[f"s_waitcnt vmcnt({wB})"], rd=[dZ]))
        else:
            seq += items[:P.W_SPLIT]
            seq.append(bar(gB, pre=[f"s_waitcnt vmcnt({wB})"], rd=[dA]))
        if kq == 3:
            B = interleave(B, w3_cv(0), every=1)
        seq += B
        seq += items[P.W_SPLIT:]
        lastB = dB
    schedule(em, seq, frags, W_STG, W_NS, P.W_LA, budget=P.W_BUDGET, pair=False)

def wave3_body4(em):
    seq = []; frags = []
    lastA = None
    for kq in (1, 2, 3, 0):
        par = kq % 2
        gA = newgate(); gB = newgate(); gZ = newgate(); dA = newgate(); dB = newgate(); gW = newgate(); dW = newgate()
        wq = [salu(f"s_cmp_le_i32 s{sT}, {-100 if P.NODMA in (1, 2) else 20}\n    s_cselect_b32 s{sWQ+2}, s{sTMP+2}, 0", rd=[gB])]
        if kq == 3:
            wq.append(salu(f"s_add_u32 s{sWQLIN}, s{sWQLIN}, 128\n    s_and_b32 s{sWQLIN}, s{sWQLIN}, 1023\n    s_xor_b32 s{sWQCOL}, s{sWQLIN}, s{sSW}"))
        wq += dma_wq(WQ0 + (1-par)*SL, sWQCOL, ((kq+1) % 4) * 128 * 8192)
        wo = wo_sel() + dma_wo(WO0 + par*SL, sWOCUR)
        wo.append(salu(f"s_add_u32 s{sWOOFF}, s{sWOOFF}, 16384\n    s_and_b32 s{sWOOFF}, s{sWOOFF}, 0x7ffff\n    s_add_u32 s{sT}, s{sT}, 1", wr=[dB]))
        B = wq + wo
        A = kvq_ops(K0 + (1-par)*SL, sK, sKOFF, sM0K, 29, gA, newgate()) + kvq_ops(V0 + par*SL, sV, sVOFF, sM0V, 30, gA, dA)
        items = qproj_items(frags, w_aWQ, par*SL, gW, kq, w3_acc, XF3, 3)
        seq.append(bar(gB, pre=["s_waitcnt vmcnt(40)"], rd=[lastA] if lastA else []))
        seq.append(MItem('bar', texts=["s_waitcnt vmcnt(24)"], wr=[gW]))
        seq += B
        seq += items[:P.W4_1]
        seq.append(bar(gA, pre=stamp_txt() + ["s_waitcnt vmcnt(40)"], rd=[dB], drain=bool(P.STAMP)))
        if kq == 0:
            c = w3_cv(1) + [valu(f"v_xor_b32 v{w_aQB}, 0x1000, v{w_aQB}", [w_aQB], [w_aQB], ), salu("s_nop 0", wr=[dW])]
            A = A + c
        seq += A
        seq += items[P.W4_1:P.W4_2]
        seq.append(bar(gZ, pre=["s_waitcnt vmcnt(44)"], rd=[dA] + ([dW] if kq == 0 else []), drain=(kq == 0)))
        if kq == 3:
            seq += w3_cv(0)
        seq += items[P.W4_2:]
        lastA = dA
    schedule(em, seq, frags, W_STG, W_NS, P.W_LA, budget=P.W_BUDGET, pair=False)

def wave3_body5(em):
    seq = []; frags = []
    lastB = None
    for kq in range(4):
        par = kq % 2
        gA = newgate(); gB = newgate(); gZ = newgate(); dA = newgate(); dB = newgate(); dZ = newgate(); gW = newgate(); dW = newgate(); dC = newgate()
        wq = [salu(f"s_cmp_le_i32 s{sT}, {-100 if P.NODMA in (1, 2) else 21}\n    s_cselect_b32 s{sWQ+2}, s{sTMP+2}, 0", rd=[gA])]
        if kq == 3:
            wq.append(salu(f"s_add_u32 s{sWQLIN}, s{sWQLIN}, 128\n    s_and_b32 s{sWQLIN}, s{sWQLIN}, 1023\n    s_xor_b32 s{sWQCOL}, s{sWQLIN}, s{sSW}"))
        wq += dma_wq(WQ0 + (1-par)*SL, sWQCOL, ((kq+1) % 4) * 128 * 8192)
        A = wq + kvq_ops(V0 + par*SL, sV, sVOFF, sM0V, 30, gA, dA)
        Z = wo_sel() + dma_wo(WO0 + (1-par)*SL, sWOCUR) + [salu(f"s_add_u32 s{sWOOFF}, s{sWOOFF}, 16384\n    s_and_b32 s{sWOOFF}, s{sWOOFF}, 0x7ffff", wr=[dZ])]
        Z[0].rd.append(gZ)
        B = kvq_ops(K0 + par*SL, sK, sKOFF, sM0K, 28, gB, newgate()) + [salu(f"s_add_u32 s{sT}, s{sT}, 1", wr=[dB])]
        nA = P.W_PRE
        seq.append(bar(gA, pre=stamp_txt() + ["s_waitcnt vmcnt(44)"], rd=[lastB] if lastB else [], drain=bool(P.STAMP)))
        items = qproj_items(frags, w_aWQ, par*SL, gW, kq, w3_acc, XF3, 3)
        cut = 0; cnt = 0
        while cnt < nA:
            if A[cut].kind == 'dma': cnt += 1
            cut += 1
        A1 = A[:cut] + [salu("s_nop 0", wr=[dW])]; A2 = A[cut:]
        if kq == 0:
            c = w3_cv(1) + [valu(f"v_xor_b32 v{w_aQB}, 0x1000, v{w_aQB}", [w_aQB], [w_aQB]), salu("s_nop 0", wr=[dC])]
            A2 = interleave(c, A2, every=1)
        seq += A1
        seq.append(MItem('bar', texts=[f"s_waitcnt vmcnt({24 + nA})"], rd=[dW], wr=[gW]))
        seq += A2
        seq += items[:P.W_SPLITZ]
        seq.append(bar(gZ, pre=["s_waitcnt vmcnt(60)"], rd=[dA] + ([dC] if kq == 0 else []), drain=(kq == 0)))
        seq += Z
        seq += items[P.W_SPLITZ:P.W_SPLIT]
        seq.append(bar(gB, pre=["s_waitcnt vmcnt(56)"], rd=[dZ]))
        if kq == 3:
            B = interleave(w3_cv(0), B, every=2)
        seq += B
        seq += items[P.W_SPLIT:]
        lastB = dB
    schedule(em, seq, frags, W_STG, W_NS, P.W_LA, budget=P.W_BUDGET, pair=False)

class VM:
    def __init__(self, em, init): self.em = em; self.q = list(init)
    def issue(self, tag, ops):
        n = 0
        for o in ops:
            self.em.emit(o)
            if o.kind == 'dma': n += 1
        self.q.append((tag, n))
    def need(self, *tags):
        last = -1
        for i, (t, n) in enumerate(self.q):
            if t in tags: last = i
        if last >= 0:
            n = sum(c for (_, c) in self.q[last+1:])
            self.em.raw(f"s_waitcnt vmcnt({min(n, 63)})")
            self.q = self.q[last+1:]

def gen_main(em):
    R = em.raw
    em.label(f"{NAME}_kernel")
    R("s_cmp_ge_u32 s2, 256")
    R("s_cbranch_scc1 L_end")
    R("s_load_dwordx8 s[48:55], s[0:1], 0")
    R("s_load_dwordx2 s[56:57], s[0:1], 32")
    R("s_load_dwordx8 s[60:67], s[0:1], 40")
    R("s_load_dwordx2 s[68:69], s[0:1], 72")
    R("s_load_dwordx2 s[70:71], s[0:1], 96")
    R("v_lshrrev_b32 v1, 6, v0")
    R("v_and_b32 v0, 63, v0")
    R(f"v_readfirstlane_b32 s{sWAVE}, v1")
    R("s_and_b32 s3, s2, 7")
    R("s_lshr_b32 s4, s2, 3")
    R("s_lshr_b32 s5, s3, 2")
    R("s_and_b32 s3, s3, 3")
    R("s_lshl_b32 s3, s3, 1")
    R("s_lshr_b32 s6, s4, 4")
    R("s_add_u32 s3, s3, s6")
    R("s_and_b32 s4, s4, 15")
    R(f"s_mov_b32 s{sC}, {f32bits(C_SCALE):#x}")
    R(f"s_mov_b32 s{sTHR}, {f32bits(P.THR):#x}")
    R(f"s_mul_i32 s{sM0W}, s{sWAVE}, 4160")
    R(f"s_mov_b32 s{sM0N}, {M0_NULL:#x}")
    R("s_waitcnt lgkmcnt(0)")
    R("s_cmp_eq_u32 s5, 0")
    for i in range(5):
        R(f"s_cselect_b64 s[{48+2*i}:{49+2*i}], s[{48+2*i}:{49+2*i}], s[{60+2*i}:{61+2*i}]")
    R("s_lshl_b32 s6, s4, 22")
    R("s_lshl_b32 s7, s3, 19")
    R("s_add_u32 s6, s6, s7")
    for (d, p) in ((sK, 50), (sV, 52)):
        R(f"s_add_u32 s{d}, s{p}, s6")
        R(f"s_addc_u32 s{d+1}, s{p+1}, 0")
        R(f"s_and_b32 s{d+1}, s{d+1}, 0xffff")
        R(f"s_mov_b32 s{d+2}, 0x80000")
        R(f"s_mov_b32 s{d+3}, 0x20000")
    R("s_lshl_b32 s6, s3, 10")
    R(f"s_add_u32 s{sWQ}, s54, s6")
    R(f"s_addc_u32 s{sWQ+1}, s55, 0")
    R(f"s_and_b32 s{sWQ+1}, s{sWQ+1}, 0xffff")
    R(f"s_sub_u32 s{sWQ+2}, 0x400000, s6")
    R(f"s_mov_b32 s{sTMP+2}, s{sWQ+2}")
    R(f"s_mov_b32 s{sWQ+3}, 0x20000")
    R(f"s_add_u32 s{sWO}, s56, s7")
    R(f"s_addc_u32 s{sWO+1}, s57, 0")
    R(f"s_and_b32 s{sWO+1}, s{sWO+1}, 0xffff")
    R(f"s_mov_b32 s{sWO+2}, 0x80000")
    R(f"s_mov_b32 s{sWO+3}, 0x20000")
    R("s_mul_i32 s6, s4, 98304")
    R(f"s_add_u32 s{sX}, s48, s6")
    R(f"s_addc_u32 s{sX+1}, s49, 0")
    R(f"s_and_b32 s{sX+1}, s{sX+1}, 0xffff")
    R(f"s_mov_b32 s{sX+2}, 98304")
    R(f"s_mov_b32 s{sX+3}, 0x20000")
    R("s_mul_i32 s6, s2, 98304")
    R(f"s_add_u32 s{sWS}, s70, s6")
    R(f"s_addc_u32 s{sWS+1}, s71, 0")
    R(f"s_and_b32 s{sWS+1}, s{sWS+1}, 0xffff")
    R(f"s_mov_b32 s{sWS+2}, 98304")
    R(f"s_mov_b32 s{sWS+3}, 0x20000")
    R("v_bfe_u32 v20, v0, 2, 2")
    R("v_lshrrev_b32 v21, 5, v0")
    R("v_bfe_u32 v22, v0, 4, 1")
    R("v_and_b32 v23, 1, v0")
    R("v_bfe_u32 v24, v0, 1, 1")
    R("v_lshlrev_b32 v25, 2, v20")
    R("v_lshl_add_u32 v26, v21, 1, v25")
    R("v_mul_u32_u24 v26, 1040, v26")
    R("v_lshl_add_u32 v26, v22, 5, v26")
    R("v_lshl_add_u32 v26, v23, 4, v26")
    R("v_lshl_add_u32 v26, v24, 3, v26")
    R("v_and_b32 v27, 15, v0")
    R("v_mul_u32_u24 v27, 1040, v27")
    R("v_lshl_add_u32 v27, v22, 9, v27")
    R("v_lshl_add_u32 v27, v21, 4, v27")
    R("v_lshrrev_b32 v28, 4, v0")
    R("v_and_b32 v29, 15, v0")
    R("v_lshlrev_b32 v29, 4, v29")
    R(f"v_lshl_add_u32 v{vKV}, v28, 12, v29")
    if P.ROT:
        R(f"s_and_b32 s{sROT}, s4, 3")
        R(f"s_lshl_b32 s{sROT}, s{sROT}, 17")
        R(f"s_bfe_u32 s{sSW}, s4, 0x10002")
        R(f"s_lshl_b32 s{sSW}, s{sSW}, 7")
    else:
        R(f"s_mov_b32 s{sROT}, 0")
        R(f"s_mov_b32 s{sSW}, 0")
    R(f"s_lshl_b32 s{sPF}, s4, 15")
    R(f"s_lshl_b32 s{sVOFF}, s{sWAVE}, 8")
    R(f"s_add_u32 s{sVOFF}, s{sVOFF}, s{sROT}")
    R(f"s_add_u32 s{sKOFF}, s{sVOFF}, {(1 if P.PLAN in (1, 3, 4) else 2)*16384}")
    R(f"s_mov_b32 s{sT}, -1")
    if P.STAMP:
        R("s_mov_b32 s98, 0")
        R(f"v_mov_b32 v{STV}, 0")
    stamp(em)
    R(f"s_cmp_eq_u32 s{sWAVE}, 3")
    R("s_cbranch_scc1 L_wave3")

    if P.CPF:
        R("s_getpc_b64 s[78:79]")
        em.label("L_pc")
        R(f"s_sub_u32 s78, s78, L_pc-{NAME}_kernel")
        R("s_subb_u32 s79, s79, 0")
        R("s_lshr_b32 s3, s2, 3")
        R("s_mul_i32 s3, s3, 3")
        R(f"s_add_u32 s3, s3, s{sWAVE}")
        R("s_and_b32 s3, s3, 7")
        R("s_lshl_b32 s3, s3, 13")
        R("v_lshlrev_b32 v28, 7, v0")
        R("v_add_u32 v28, s3, v28")
        R(f"v_min_u32 v28, L_code_end-{NAME}_kernel-4, v28")
        R("global_load_dword v255, v28, s[78:79]")
    R("v_and_b32 v28, 3, v0")
    R("v_lshl_add_u32 v28, v28, 2, v20")
    R("v_mul_u32_u24 v28, 1040, v28")
    R("v_lshl_add_u32 v28, v22, 8, v28")
    R(f"v_lshl_add_u32 v{aK}, v21, 4, v28")
    R("v_add_u32 v28, v25, v21")
    R("v_mul_u32_u24 v28, 1040, v28")
    R("v_and_b32 v29, 3, v0")
    R("v_lshl_add_u32 v29, v29, 3, v28")
    R("v_lshl_add_u32 v29, v22, 5, v29")
    R(f"v_add_u32 v{aV}, {V0}, v29")
    R("v_lshl_add_u32 v29, v23, 5, v28")
    R("v_lshl_add_u32 v29, v22, 4, v29")
    R("v_lshl_add_u32 v29, v24, 3, v29")
    R(f"v_add_u32 v{aWO}, {WO0}, v29")
    R(f"s_lshl_b32 s3, s{sWAVE}, 13")
    R(f"s_add_u32 s3, s3, {QB}")
    R(f"v_lshlrev_b32 v{aQB}, 4, v0")
    R(f"v_add_u32 v{aQB}, s3, v{aQB}")
    R(f"v_mov_b32 v{AUX}, v26")
    R(f"s_mul_i32 s3, s{sWAVE}, {SL}")
    R(f"v_add_u32 v{T2}, s3, v27")
    R(f"v_add_u32 v{T3}, {5*SL}, v{T2}")
    for i in range(8): R(f"v_mov_b32 v{16+i}, 0")
    R("s_nop 1")
    for nt in range(16):
        R(f"v_mfma_f32_32x32x16_bf16 a[{16*nt}:{16*nt+15}], v[16:19], v[20:23], 0")
    QA = SR[1]
    seq = []; frags = []
    tmpaddr = [T0, T1]
    for ti in range(8):
        if ti in (0, 2, 3, 6):
            g = newgate()
            xr = []
            if ti in (2, 3):
                for ks in range(16): xr += XFA(ks + 16*(ti-2))
            seq.append(bar(g, st=1, drain=True, rd=xr, pre=(["s_waitcnt vmcnt(0)"] if ti == 6 else [])))
            if ti in (0, 2):
                for ks in range(16):
                    op = dsr128(XFA(ks + 8*ti), T2 if ti == 0 else T3, ks*32)
                    op.rd.append(g)
                    seq.append(op)
        ta = tmpaddr[ti % 2]
        ga = newgate()
        seq.append(valu(f"v_add_u32 v{ta}, {WLOC[ti]}, v{AUX}", [AUX], [ta]))
        seq.append(MItem('bar', texts=[], rd=[ta], wr=[ga]))
        its = qproj_items(frags, ta, 0, ga, ti % 4, lambda dt2, mt: V(QA + 16*dt2, 16), lambda mt, ks: XFA(ks), 1)
        for it in its: it.rd.append(ta)
        seq += its[:8]
        if ti % 4 == 3: seq += scale_cvt(QA, QR + 16*(ti//4))
        seq += its[8:]
        if ti % 4 == 3: seq += scale_cvt(QA + 16, QR + 16*(ti//4) + 8)
    for i in range(64):
        seq.append(valu(f"v_mov_b32 v{OACC+i}, 0", [], [OACC+i]))
    for i in range(16):
        seq.append(valu(f"v_mov_b32 v{SR[1]+i}, 0", [], [SR[1]+i]))
    seq.append(valu(f"v_mov_b32 v{LA_}, 1.0", [], [LA_]))
    seq.append(valu(f"v_mov_b32 v{LB_}, 0", [], [LB_]))
    gA = newgate()
    seq.append(bar(gA, st=1))
    if P.PLAN in (1, 3, 4): seq += kvq_ops(K0+SL, sK, sKOFF, sM0K, 29, gA, newgate())
    dz = newgate()
    seq += kvq_ops(V0, sV, sVOFF, sM0V, 30, gA, dz)
    if P.PLAN in (2, 3, 4, 5): seq.append(bar(newgate(), rd=[dz]))
    seq += qk_items(frags, SR[0], 0, gA, False)
    schedule(em, seq, frags, STG, NS, P.LA, budget=P.BUDGET)
    R(f"s_mov_b32 s{sCNT}, 4")
    em.fence()
    em.label("L_att_loop")
    n0 = em.ninstr; nn0 = em.nops; w0 = em.waits
    attention_head(em)
    print(f"attention head body: {em.ninstr-n0} instrs, {em.nops-nn0} nop states, {em.waits-w0} waits", file=sys.stderr)
    R(f"s_sub_u32 s{sCNT}, s{sCNT}, 1")
    R(f"s_cmp_lg_u32 s{sCNT}, 0")
    em.fence()
    R("s_cbranch_scc1 L_att_loop")
    seq = []; frags = []
    gB = newgate(); g1 = newgate()
    seq.append(bar(gB, pre=["s_waitcnt vmcnt(0)"], st=2))
    seq.append(valu(f"v_subrev_u32 v{T0}, {WO0}, v{aWO}", [aWO], [T0]))
    seq.append(valu(f"v_add_u32 v{DELTA}, {QB-WO0}, v{aWO}", [aWO], [DELTA]))
    seq.append(valu(f"v_lshlrev_b32 v{T1}, 4, v0", [], [T1]))
    seq.append(salu(f"s_lshl_b32 s3, s{sWAVE}, 15"))
    seq += pv_items(frags, SR[1], 1, gB, False)
    insert_hoisted(seq, bar(g1, st=1, rd=[T0, DELTA]), P.HOIST)
    seq += finalize_ops()
    for nt in range(16):
        for ks in range(8):
            if ks < 4: seq.append(opj_item(frags, ks, nt, ks*SL, g1, aWO))
            elif ks < 7: seq.append(opj_item(frags, ks, nt, (ks-4)*SL, g1, T0))
            else: seq.append(opj_item(frags, ks, nt, 0, g1, DELTA))
        b = 176 + (nt % 4) * 16
        for r in range(16):
            seq.append(valu(f"v_accvgpr_read_b32 v{b+r}, a{16*nt+r}", AG(16*nt+r), [b+r]))
        for k in range(8):
            seq.append(valu(f"v_cvt_pk_bf16_f32 v{b+k}, v{b+2*k}, v{b+2*k+1}", [b+2*k, b+2*k+1], [b+k]))
        for q in range(2):
            off = (nt*2 + q) * 1024
            if off % 4096 == 0:
                seq.append(salu(f"s_add_u32 s4, s3, {off}"))
            seq.append(Op('vmem', f"buffer_store_dwordx4 v[{b+4*q}:{b+4*q+3}], v{T1}, {srd(sWS)}, s4 offen offset:{off % 4096}{P.STPOL}", rd=V(b+4*q, 4) + [T1], tag='store'))
    schedule(em, seq, frags, STG, NS, P.LA, budget=P.BUDGET)
    stamp(em)
    if P.STAMP: R("s_waitcnt vmcnt(0)")
    stamp(em)
    stamp_store(em)
    if P.DBG:
        R(f"s_cmp_lg_u32 s{sWAVE}, 0")
        R("s_cbranch_scc1 L_dbgskip")
        R("s_load_dwordx2 s[72:73], s[0:1], 88")
        R(f"v_readlane_b32 s76, v{STV}, 0")
        idx = [1, 5, 6, 14, 22, 30, 38, 40]
        for i, l in enumerate(idx): R(f"v_readlane_b32 s{80+i}, v{STV}, {l}")
        R("s_waitcnt lgkmcnt(0)")
        R("s_and_b32 s73, s73, 0xffff")
        R("s_mov_b32 s74, 256")
        R("s_mov_b32 s75, 0x20000")
        R("v_mov_b32 v1, 0")
        R("v_mov_b32 v2, 0")
        R("s_not_b32 s77, s76")
        R("v_writelane_b32 v2, s77, 8")
        R("v_writelane_b32 v2, s87, 9")
        for i in range(8):
            R(f"s_sub_u32 s{80+i}, s{80+i}, s76")
            R(f"v_writelane_b32 v1, s{80+i}, {i}")
        R("v_cmp_gt_u32 vcc, 40, v0")
        R("s_and_saveexec_b64 s[78:79], vcc")
        R("buffer_atomic_add v1, v0, s[72:75], 0 offen")
        R("buffer_atomic_umax v2, v0, s[72:75], 0 offen")
        R("s_waitcnt vmcnt(0)")
        em.label("L_dbgskip")
    R("s_endpgm")
    emit_rare(em)

    em.label("L_wave3")
    em.reset()
    R(f"v_lshlrev_b32 v{w_vlin}, 4, v0")
    R("v_lshrrev_b32 v28, 3, v0")
    R("v_and_b32 v29, 7, v0")
    R("v_lshlrev_b32 v29, 4, v29")
    R(f"v_lshl_add_u32 v{w_vwq}, v28, 17, v29")
    R(f"v_add_u32 v{w_aWQ}, {WQ0}, v26")
    R(f"v_add_u32 v{w_aQB}, {QB}, v{w_vlin}")
    R(f"v_mov_b32 v{w_aX}, v27")
    R(f"v_add_u32 v8, {5*SL}, v27")
    R("v_and_b32 v29, 31, v0")
    R("v_lshlrev_b32 v29, 4, v29")
    R("v_lshl_add_u32 v9, v21, 14, v29")
    R(f"s_lshr_b32 s{sWQCOL}, s{sROT}, 9")
    R(f"s_lshl_b32 s3, s{sSW}, 5")
    R(f"v_add_u32 v{w_aQB}, s3, v{w_aQB}")
    vm = VM(em, [])
    def xt(mt, kh, loc):
        ops = []
        for j in range(16):
            pr = dma_pair(f"s_mov_b32 m0, {loc + 1040*j - (j % 4)*1024}", 9, sX, f"s{sTMP}", (j % 4)*1024, P.XPOL)
            if j % 4 == 0: pr.insert(1, salu(f"s_mov_b32 s{sTMP}, {mt*32768 + kh*512 + j*1024}"))
            ops += pr
        return ops
    def w0(ti): return dma_wq(WLOC[ti], sWQCOL, (ti % 4)*128*8192 + (ti // 4)*128)
    for mt in range(3): vm.issue("X0", xt(mt, 0, mt*SL))
    vm.issue("W0", w0(0)); vm.issue("W1", w0(1))
    for mt in range(3): vm.issue("X1", xt(mt, 1, (5+mt)*SL))
    vm.issue("W2", w0(2))
    vm.need("W1")
    R("s_barrier")
    for mt in range(3):
        for ks in range(16):
            em.emit(dsr128(XF3(mt, ks), w_aX, mt*SL + ks*32))
    em.wait_ds(0)
    vm.need("W2")
    R("s_barrier")
    vm.issue("W3", w0(3)); vm.issue("W4", w0(4)); vm.issue("W5", w0(5))
    vm.issue("K0", dma_kv_full(K0, sK, f"s{sROT}"))
    if P.PLAN in (0, 2):
        R(f"s_add_u32 s3, s{sROT}, 16384")
        vm.issue("K1", dma_kv_full(K0+SL, sK, "s3"))
    for mt in range(3):
        for ks in range(16):
            em.emit(dsr128(XF3(mt, 16+ks), 8, mt*SL + ks*32))
    em.wait_ds(0)
    vm.need("W5")
    R("s_barrier")
    vm.issue("W6", w0(6)); vm.issue("W7", w0(7))
    R(f"s_add_u32 s{sWQLIN}, s{sWQCOL}, 256")
    R(f"s_and_b32 s{sWQLIN}, s{sWQLIN}, 1023")
    R(f"s_xor_b32 s{sWQCOL}, s{sWQLIN}, s{sSW}")
    vm.issue("U0", dma_wq(WQ0, sWQCOL, 0))
    if P.PLAN == 5:
        R(f"s_add_u32 s3, s{sROT}, 16384")
        vm.issue("K1", dma_kv_full(K0+SL, sK, "s3"))
        R(f"v_xor_b32 v{w_aQB}, 0x1000, v{w_aQB}")
    else:
        vm.issue("U1", dma_wq(WQ0+SL, sWQCOL, 128*8192))
    vm.need("W7")
    R("s_barrier")
    if P.PLAN != 5:
        vm.need("U0")
        frags = []
        seq = qproj_items(frags, w_aWQ, 0, None, 0, w3_acc, XF3, 3)
        schedule(em, seq, frags, W_STG, W_NS, P.W_LA, budget=P.W_BUDGET, pair=False)
    R(f"s_add_u32 s{sWOOFF}, s{sROT}, {(-7*16384) & 0x7ffff:#x}")
    R(f"s_and_b32 s{sWOOFF}, s{sWOOFF}, 0x7ffff")
    R(f"s_mov_b32 s{sCNT}, 6")
    R("s_waitcnt vmcnt(16)" if P.PLAN == 5 else "s_waitcnt vmcnt(0)")
    if P.PLAN == 4:
        stamp(em)
        R("s_barrier")
        for o in kvq_ops(K0+SL, sK, sKOFF, sM0K, 29, 0, 0) + kvq_ops(V0, sV, sVOFF, sM0V, 30, 0, 0): em.emit(o)
        R("s_barrier")
    em.fence(2)
    em.label("L_w3_loop")
    n0 = em.ninstr; nn0 = em.nops; w0 = em.waits
    if P.PLAN == 4: wave3_body4(em)
    elif P.PLAN == 5: wave3_body5(em)
    else: wave3_body(em)
    print(f"wave3 body: {em.ninstr-n0} instrs, {em.nops-nn0} nop states, {em.waits-w0} waits", file=sys.stderr)
    R(f"s_sub_u32 s{sCNT}, s{sCNT}, 1")
    R(f"s_cmp_lg_u32 s{sCNT}, 0")
    em.fence(2)
    R("s_cbranch_scc1 L_w3_loop")
    if P.PLAN == 4:
        vm = VM(em, [("V23", 4), ("WQ", 16), ("WO24", 16), ("K25", 4), ("V24", 4)])
        R(f"s_add_u32 s3, s{sWOOFF}, {(26-17)*16384}\n    s_and_b32 s3, s3, 0x7ffff")
        for t in range(23, 32):
            if t > 23:
                stamp(em)
                vm.need(f"WO{t}")
                R("s_barrier")
                if t <= 29: vm.issue(f"K{t+2}", kvq_ops(K0 + (t % 2)*SL, sK, sKOFF, sM0K, 29, 0, 0))
                if t <= 30: vm.issue(f"V{t+1}", kvq_ops(V0 + ((t+1) % 2)*SL, sV, sVOFF, sM0V, 30, 0, 0))
                if t == 31:
                    vm.issue("TT", dma_wo(V0, 3))
                vm.need(f"K{t+1}")
                R("s_barrier")
            vm.need(f"V{t}")
            R("s_barrier")
            ops = dma_wo(WO0 + (t % 2)*SL, sWOOFF)
            ops.append(salu(f"s_add_u32 s{sWOOFF}, s{sWOOFF}, 16384\n    s_and_b32 s{sWOOFF}, s{sWOOFF}, 0x7ffff\n    s_add_u32 s{sT}, s{sT}, 1"))
            vm.issue(f"WO{t+2}", ops)
            if t in (23, 24):
                vm.issue("TT", dma_wo(WQ0 + (t-23)*SL, 3))
                R("s_add_u32 s3, s3, 16384")
            if t == 25:
                R(f"s_add_u32 s4, s3, {3*16384}")
                vm.issue("TT", dma_wo(QB, 4))
            if t in (29, 30):
                vm.issue("TT", dma_wo(K0 + (t-29)*SL, 3))
                R("s_add_u32 s3, s3, 16384")
        stamp(em)
        R("s_waitcnt vmcnt(0)")
        R("s_barrier")
        stamp(em)
        stamp_store(em)
        em.label("L_end")
        R("s_endpgm")
        return
    if P.PLAN == 0: vm = VM(em, [("K24", 4), ("WO23", 16), ("WQ", 16), ("V23", 4), ("K25", 4), ("WO24", 16)])
    elif P.PLAN in (2, 5): vm = VM(em, [("WO23", 16), ("K24", 4), ("WQ", 16), ("V23", 4), ("WO24", 16), ("K25", 4)])
    else: vm = VM(em, [("WQ", 16), ("WO23", 16), ("K24", 4), ("V23", 4), ("WQ", 16), ("WO24", 16)])
    R(f"s_add_u32 s3, s{sWOOFF}, {(26-17)*16384}\n    s_and_b32 s3, s3, 0x7ffff")
    for t in range(23, 32):
        stamp(em)
        if P.PLAN in (2, 3, 5): vm.need(f"WO{t}")
        else: vm.need(f"K{t+1}", f"WO{t}")
        R("s_barrier")
        if P.PLAN in (1, 3) and t <= 29:
            vm.issue(f"K{t+2}", kvq_ops(K0 + (t % 2)*SL, sK, sKOFF, sM0K, 29, 0, 0))
        if t <= 30:
            vm.issue(f"V{t+1}", kvq_ops(V0 + ((t+1) % 2)*SL, sV, sVOFF, sM0V, 30, 0, 0))
        if t == 31:
            vm.issue("TT32", dma_wo(V0, 3))
            R("s_add_u32 s3, s3, 16384")
        ops = dma_wo(WO0 + (t % 2)*SL, sWOOFF)
        ops.append(salu(f"s_add_u32 s{sWOOFF}, s{sWOOFF}, 16384\n    s_and_b32 s{sWOOFF}, s{sWOOFF}, 0x7ffff"))
        if P.PLAN in (2, 3, 5):
            if P.PLAN == 5 and t == 23:
                em.nop(12)
                for o in w3_cv(1): em.emit(o)
                em.wait_ds(0)
            vm.need(f"K{t+1}")
            R("s_barrier")
            if P.PLAN in (2, 5): vm.issue(f"WO{t+2}", ops)
        vm.need(f"V{t}")
        R("s_barrier")
        if P.PLAN in (0, 2, 5) and t <= 28:
            vm.issue(f"K{t+3}", kvq_ops(K0 + ((t+1) % 2)*SL, sK, sKOFF, sM0K, 28, 0, 0))
        if P.PLAN not in (2, 5): vm.issue(f"WO{t+2}", ops)
        R(f"s_add_u32 s{sT}, s{sT}, 1")
        if t == 23:
            vm.issue("TT32", dma_wo(WQ0, 3))
            R("s_add_u32 s3, s3, 16384")
        if t == 24:
            vm.issue("TT32", dma_wo(WQ0+SL, 3))
            R("s_add_u32 s3, s3, 16384")
        if t == 25:
            R(f"s_add_u32 s4, s3, {3*16384}")
            vm.issue("TT32", dma_wo(QB, 4))
        if t in (29, 30):
            vm.issue("TT32", dma_wo(K0 + (t-29)*SL, 3))
            R("s_add_u32 s3, s3, 16384")
    stamp(em)
    R("s_waitcnt vmcnt(0)")
    R("s_barrier")
    stamp(em)
    stamp_store(em)
    em.label("L_end")
    R("s_endpgm")

def gen_reduce(em):
    R = em.raw
    em.lines.append(".p2align 8")
    em.lines.append(".globl reduce_kernel")
    em.lines.append(".type reduce_kernel,@function")
    em.label("reduce_kernel")
    R("s_cmp_ge_u32 s2, 768")
    R("s_cbranch_scc1 L_rend")
    R("s_load_dwordx2 s[4:5], s[0:1], 80")
    R("s_load_dwordx2 s[6:7], s[0:1], 96")
    if P.DBG:
        R("s_memrealtime s[40:41]")
        R("s_load_dwordx2 s[32:33], s[0:1], 88")
    R("v_lshrrev_b32 v1, 6, v0")
    R("v_and_b32 v0, 63, v0")
    R("s_and_b32 s8, s2, 7")
    R("s_lshr_b32 s9, s2, 3")
    R("s_mul_i32 s10, s9, 43691")
    R("s_lshr_b32 s10, s10, 17")
    R("s_mul_i32 s11, s10, 3")
    R("s_sub_u32 s11, s9, s11")
    R("s_lshr_b32 s12, s10, 4")
    R("s_and_b32 s13, s10, 15")
    R("v_and_b32 v2, 7, v0")
    R("v_bfe_u32 v3, v0, 3, 1")
    R("v_bfe_u32 v4, v0, 4, 1")
    R("v_lshrrev_b32 v5, 5, v0")
    R("v_lshl_add_u32 v2, v1, 3, v2")
    R("v_lshlrev_b32 v6, 11, v5")
    R("v_lshl_add_u32 v6, v3, 10, v6")
    R("v_lshl_add_u32 v6, v4, 9, v6")
    R("v_lshl_add_u32 v6, v2, 4, v6")
    R("s_lshl_b32 s14, s11, 15")
    R("s_lshl_b32 s15, s8, 12")
    R("s_add_u32 s14, s14, s15")
    R("s_lshl_b32 s15, s12, 2")
    R("s_lshl_b32 s16, s13, 3")
    R("s_add_u32 s15, s15, s16")
    R("s_mul_i32 s15, s15, 98304")
    R("s_add_u32 s14, s14, s15")
    R("s_waitcnt lgkmcnt(0)")
    R("s_mov_b32 s20, s6")
    R("s_and_b32 s21, s7, 0xffff")
    R(f"s_mov_b32 s22, {256*98304}")
    R("s_mov_b32 s23, 0x20000")
    R("s_mov_b32 s24, s4")
    R("s_and_b32 s25, s5, 0xffff")
    R(f"s_mov_b32 s26, {16*96*1024*2}")
    R("s_mov_b32 s27, 0x20000")
    for hg in range(8):
        d = ((hg // 2) + 128*(hg % 2)) * 98304
        R(f"s_add_u32 s17, s14, {d}")
        R(f"buffer_load_dwordx4 v[{8+4*hg}:{11+4*hg}], v6, s[20:23], s17 offen{P.RDPOL}")
    R("v_lshlrev_b32 v7, 11, v2")
    R("v_lshl_add_u32 v7, v5, 6, v7")
    R("v_lshl_add_u32 v7, v4, 5, v7")
    R("v_lshl_add_u32 v7, v3, 4, v7")
    R("s_mul_i32 s15, s13, 96")
    R("s_lshl_b32 s16, s11, 5")
    R("s_add_u32 s15, s15, s16")
    R("s_lshl_b32 s15, s15, 11")
    R("s_lshl_b32 s16, s12, 10")
    R("s_add_u32 s15, s15, s16")
    R("s_lshl_b32 s16, s8, 7")
    R("s_add_u32 s15, s15, s16")
    for hg in range(8):
        R(f"s_waitcnt vmcnt({7-hg})")
        for k in range(4):
            src = 8 + 4*hg + k
            if hg == 0:
                R(f"v_lshlrev_b32 v{40+2*k}, 16, v{src}")
                R(f"v_and_b32 v{41+2*k}, 0xffff0000, v{src}")
            else:
                R(f"v_lshlrev_b32 v48, 16, v{src}")
                R(f"v_and_b32 v49, 0xffff0000, v{src}")
                R(f"v_add_f32 v{40+2*k}, v{40+2*k}, v48")
                R(f"v_add_f32 v{41+2*k}, v{41+2*k}, v49")
    for k in range(4):
        R(f"v_cvt_pk_bf16_f32 v{52+k}, v{40+2*k}, v{41+2*k}")
    R("buffer_store_dwordx4 v[52:55], v7, s[24:27], s15 offen")
    if P.DBG:
        R("s_and_b32 s44, s2, 31")
        R("s_cmp_lg_u32 s44, 31")
        R("s_cbranch_scc1 L_rend")
        R("v_readfirstlane_b32 s44, v1")
        R("s_cmp_lg_u32 s44, 0")
        R("s_cbranch_scc1 L_rend")
        R("s_waitcnt vmcnt(0)")
        R("s_memrealtime s[42:43]")
        R("s_sub_u32 s36, s32, 512")
        R("s_subb_u32 s37, s33, 0")
        R("s_and_b32 s37, s37, 0xffff")
        R("s_mov_b32 s38, 256")
        R("s_mov_b32 s39, 0x20000")
        R("s_and_b32 s33, s33, 0xffff")
        R("s_mov_b32 s34, 256")
        R("s_mov_b32 s35, 0x20000")
        R("v_lshlrev_b32 v0, 2, v0")
        R("buffer_load_dword v1, v0, s[36:39], 0 offen")
        R("s_waitcnt vmcnt(0) lgkmcnt(0)")
        R("s_not_b32 s40, s40")
        R("v_writelane_b32 v1, s40, 10")
        R("v_writelane_b32 v1, s42, 11")
        R("v_cmp_gt_u32 vcc, 48, v0")
        R("s_and_saveexec_b64 s[44:45], vcc")
        R("buffer_atomic_umax v1, v0, s[32:35], 0 offen")
        R("s_waitcnt vmcnt(0)")
    em.label("L_rend")
    R("s_endpgm")
    em.label("L_code_end")

def build():
    ref = open(f"cdna_kernels/{NAME}.s.ref").read().splitlines()
    head = [l for l in ref if l.startswith(";") and "@launch" not in l]
    em = Em()
    gen_main(em)
    gen_reduce(em)
    out = []
    out += head
    out.append(f"; @launch kernel={NAME}_kernel grid=(256,1,1) block=(256,1,1) lds={LDS_BYTES}")
    out.append(f"; @launch kernel=reduce_kernel grid=(768,1,1) block=(256,1,1) lds=0")
    out.append('.amdgcn_target "amdgcn-amd-amdhsa--gfx950"')
    out.append(".text")
    out.append(f".globl {NAME}_kernel")
    out.append(".p2align 8")
    out.append(f".type {NAME}_kernel,@function")
    out.append(em.text())
    out.append('.section .rodata,"a"')
    for (k, nv, ao) in ((f"{NAME}_kernel", 512, 256), ("reduce_kernel", 64, 64)):
        out.append(".p2align 6")
        out.append(f".amdhsa_kernel {k}")
        out.append(f"  .amdhsa_next_free_vgpr {nv}")
        out.append("  .amdhsa_next_free_sgpr 102")
        out.append(f"  .amdhsa_accum_offset {ao}")
        out.append("  .amdhsa_group_segment_fixed_size 0")
        out.append("  .amdhsa_kernarg_size 104")
        out.append("  .amdhsa_user_sgpr_count 2")
        out.append("  .amdhsa_user_sgpr_kernarg_segment_ptr 1")
        out.append("  .amdhsa_system_sgpr_workgroup_id_x 1")
        out.append(".end_amdhsa_kernel")
    return "\n".join(out) + "\n"

if __name__ == "__main__":
    dst = sys.argv[1] if len(sys.argv) > 1 else f"cdna_kernels/{NAME}.s"
    for a in sys.argv[2:]:
        k, v = a.split("=")
        cur = getattr(P, k)
        setattr(P, k, type(cur)(v) if not isinstance(cur, str) else (" " + v.replace("+", " ") if v else ""))
    open(dst, "w").write(build())
```

```python
import sys, struct
from em import *
from sched import *

NAME = "concat_heads__gqa_block_cached__gqa_block_cached__near_ridge"
SL = 16640
K0, V0, WO0, WQ0, QB = 0, 2*SL, 4*SL, 6*SL, 8*SL
LDS_BYTES = 163840
M0_NULL = 0x30000
WLOC = [3*SL, 4*SL, QB, 3*SL, 4*SL, 2*SL, 5*SL, QB]
C_SCALE = 1.4426950408889634 / (128 ** 0.5)
def f32bits(x): return struct.unpack("<I", struct.pack("<f", x))[0]

sK, sV, sWQ, sWO, sX, sWS = 8, 12, 16, 20, 24, 28
sWAVE, sC, sTHR, sCNT = 32, 33, 34, 35
sM0W, sM0K, sM0V, sM0N = 36, 37, 38, 39
sT, sKOFF, sVOFF, sWOOFF, sWQCOL, sTMP = 40, 41, 42, 43, 44, 45
sPF, sWOCUR = 75, 76
sROT, sSW, sWQLIN = 72, 73, 74
def srd(b): return f"s[{b}:{b+3}]"

aK, aV, aWO, aQB, vKV = 1, 2, 3, 4, 5
LA_, LB_, ALPHA, DELTA = 7, 8, 9, 10
T0, T1, T2, T3 = 11, 12, 13, 14
AUX = 15
STG = 16; NS = 8
OACC, QR, OP = 48, 112, 144
SR = [176, 208]
NEGM = 240
w_vlin, w_vwq, w_aWQ, w_aQB, w_aX = 2, 3, 4, 1, 7
W_STG = 16; W_NS = 4
W_ACC = 32
def XF3(mt, ks):
    if mt < 2: return AG(mt * 128 + ks * 4, 4)
    return V(128 + ks * 4, 4)
def XFA(ks):
    return V(48 + ks * 4, 4) if ks < 16 else V(144 + (ks - 16) * 4, 4)

class P:
    LA = 5
    BUDGET = 6.0
    W_LA = 6
    W_BUDGET = 6.0
    W_SPLIT = 30
    KVPOL = " nt"
    WPOL = ""
    XPOL = ""
    STPOL = " nt"
    RDPOL = " nt"
    THR = 8.0
    STAMP = 0
    CYC = 0
    PAIR = 1
    NODMA = 0
    FUSE = 0
    SPIN = 200000
    PSLEEP = 4
    OUTPOL = ""
    CPF = 1
    WOPF = 0
    PFT = 0
    ROT = 1
    W4_1 = 10
    W4_2 = 30
    W_SPLITZ = 14
    DMAFIRST = 0
    DEVERY = 3
    PLAN = 0
    W_PRE = 8
    HOIST = 3
    VMA = 8
    DBG = 0

gate_ctr = [1000]
def newgate():
    gate_ctr[0] += 1
    return gate_ctr[0]

STV = 6
def stamp_txt():
    if not P.STAMP: return []
    return [("s_memtime s[96:97]" if P.CYC else "s_memrealtime s[96:97]"), "s_min_u32 m0, s98, 63", "s_waitcnt lgkmcnt(0)",
            f"v_writelane_b32 v{STV}, s96, m0", "s_add_u32 s98, s98, 1"]
def stamp(em):
    if P.STAMP:
        em.wait_ds(0)
        for t in stamp_txt(): em.raw(t)
def stamp_store(em):
    if not P.STAMP: return
    R = em.raw
    R("s_lshl_b32 s3, s2, 2")
    R(f"s_add_u32 s3, s3, s{sWAVE}")
    R("s_lshl_b32 s3, s3, 8")
    R("s_add_u32 s92, s70, 0x2000000")
    R("s_addc_u32 s93, s71, 0")
    R("s_and_b32 s93, s93, 0xffff")
    R("s_mov_b32 s94, 0x40000")
    R("s_mov_b32 s95, 0x20000")
    R("v_lshlrev_b32 v0, 2, v0")
    R(f"buffer_store_dword v{STV}, v0, s[92:95], s3 offen")
def bar(gate, pre=(), rd=(), drain=False, st=0):
    s1 = stamp_txt() if (st and P.STAMP >= st) else []
    s2 = stamp_txt() if (st and P.STAMP >= 2) else []
    return MItem('bar', texts=s2 + list(pre) + ["s_barrier"] + s1, rd=rd, wr=[gate], drain=drain or bool(s1))

def v3(op, d, a, b, c):
    return valu(f"{op} v{d}, v{a}, v{b}, v{c}", [a, b, c], [d])
def salu(text, rd=(), wr=()):
    return Op('salu', text, rd=rd, wr=wr, cost=text.count("\n") + 1)

def interleave(main, extra, start=0, every=3):
    out = []; e = list(extra)
    for i, o in enumerate(main):
        out.append(o)
        if e and i >= start and (i - start) % every == every - 1:
            out.append(e.pop(0))
    return out + e

def maxtree_ops(S):
    ops = []
    T = [T0, T1, T2, T3]
    for k in range(4): ops.append(v3("v_max3_f32", T[k], S+8*k, S+8*k+1, S+8*k+2))
    for k in range(4): ops.append(v3("v_max3_f32", T[k], T[k], S+8*k+3, S+8*k+4))
    for k in range(4): ops.append(v3("v_max3_f32", T[k], T[k], S+8*k+5, S+8*k+6))
    ops.append(v3("v_max3_f32", T0, T0, S+7, T1))
    ops.append(v3("v_max3_f32", T2, T2, S+23, T3))
    ops.append(v3("v_max3_f32", T0, T0, S+15, S+31))
    ops.append(valu(f"v_max_f32 v{T0}, v{T0}, v{T2}", [T0, T2], [T0]))
    ops.append(valu(f"v_mov_b32 v{T1}, v{T0}", [T0], [T1]))
    ops.append(valu(f"v_permlane32_swap_b32 v{T0}, v{T1}", [T0, T1], [T0, T1], kind='perm'))
    ops.append(valu(f"v_max_f32 v{DELTA}, v{T0}, v{T1}", [T0, T1], [DELTA]))
    return ops

def first_tile_ops(S):
    ops = []
    for i in range(16):
        ops.append(valu(f"v_sub_f32 v{NEGM+i}, 0, v{DELTA}", [DELTA], [NEGM+i]))
    for i in range(32):
        ops.append(valu(f"v_sub_f32 v{S+i}, v{S+i}, v{DELTA}", [S+i, DELTA], [S+i]))
    return ops

rare_blocks = []
def check_op(S, tag):
    regs = V(S, 32) + V(NEGM, 16) + V(OACC, 64) + [LA_, LB_, DELTA, ALPHA]
    rare_blocks.append((S, tag))
    t = f"v_cmp_lt_f32 vcc, s{sTHR}, v{DELTA}\n    s_cbranch_vccnz L_rare_{tag}\nL_back_{tag}:"
    op = Op('raw', t, rd=regs, wr=regs, cost=2)
    op.noraw = True
    return op
def emit_rare(em):
    R = em.raw
    for (S, tag) in rare_blocks:
        em.label(f"L_rare_{tag}")
        R("s_nop 15")
        R(f"v_max_f32 v{DELTA}, 0, v{DELTA}")
        R(f"v_sub_f32 v{ALPHA}, 0, v{DELTA}")
        R(f"v_exp_f32 v{ALPHA}, v{ALPHA}")
        for i in range(32): R(f"v_sub_f32 v{S+i}, v{S+i}, v{DELTA}")
        for i in range(16): R(f"v_sub_f32 v{NEGM+i}, v{NEGM+i}, v{DELTA}")
        for i in range(64): R(f"v_mul_f32 v{OACC+i}, v{ALPHA}, v{OACC+i}")
        R(f"v_mul_f32 v{LA_}, v{ALPHA}, v{LA_}")
        R(f"v_mul_f32 v{LB_}, v{ALPHA}, v{LB_}")
        R("s_nop 3")
        R(f"s_branch L_back_{tag}")

def exp_ops(S, first):
    def ex(i): return valu(f"v_exp_f32 v{S+i}, v{S+i}", [S+i], [S+i], kind='trans')
    def add(i):
        l = LA_ if i % 2 == 0 else LB_
        if i < 2 and first: return valu(f"v_mov_b32 v{l}, v{S+i}", [S+i], [l])
        return valu(f"v_add_f32 v{l}, v{l}, v{S+i}", [l, S+i], [l])
    def cvt(k): return valu(f"v_cvt_pk_bf16_f32 v{S+k}, v{S+2*k}, v{S+2*k+1}", [S+2*k, S+2*k+1], [S+k])
    out = []
    for k in range(17):
        if k < 16: out.append(ex(2*k))
        if k > 0: out.append(add(2*k-2))
        if k < 16: out.append(ex(2*k+1))
        if k > 0:
            out.append(add(2*k-1)); out.append(cvt(k-1))
    return out

def finalize_ops():
    ops = []
    ops.append(valu(f"v_add_f32 v{T2}, v{LA_}, v{LB_}", [LA_, LB_], [T2]))
    ops.append(valu(f"v_mov_b32 v{T3}, v{T2}", [T2], [T3]))
    ops.append(valu(f"v_permlane32_swap_b32 v{T2}, v{T3}", [T2, T3], [T2, T3], kind='perm'))
    ops.append(valu(f"v_add_f32 v{T2}, v{T2}, v{T3}", [T2, T3], [T2]))
    ops.append(valu(f"v_rcp_f32 v{AUX}, v{T2}", [T2], [AUX], kind='trans'))
    for k in range(33):
        if k < 32:
            a, b = OACC + 2*k, OACC + 2*k + 1
            ops.append(valu(f"v_mul_f32 v{a}, v{AUX}, v{a}", [AUX, a], [a]))
            ops.append(valu(f"v_mul_f32 v{b}, v{AUX}, v{b}", [AUX, b], [b]))
        if k > 0:
            kk = k - 1
            ops.append(valu(f"v_cvt_pk_bf16_f32 v{OP+kk}, v{OACC+2*kk}, v{OACC+2*kk+1}", [OACC+2*kk, OACC+2*kk+1], [OP+kk]))
    return ops

def qk_items(frags, Sdst, kslot, gate, negm):
    it = []
    for sub in range(2):
        for ks in range(8):
            frags.append(Frag([('b128', aK, K0 + kslot*SL + sub*512 + ks*32, 0)], gate))
            it.append(MItem('mfma', D=V(Sdst + 16*sub, 16), B=V(QR + 4*ks, 4), acc=(ks != 0), frag=len(frags)-1,
                            C=(V(NEGM, 16) if (ks == 0 and negm) else None)))
    return it
def opj_item(frags, ks, nt, woff, gate, addr):
    frags.append(Frag([('tr', addr, woff + t*2080 + nt*64, 2*t) for t in range(2)], gate))
    return MItem('mfma', D=AG(16*nt, 16), B=V(OP + 4*ks, 4), acc=True, frag=len(frags)-1)
def opj_items(frags, ks, woff, gate, addr=aWO):
    return [opj_item(frags, ks, nt, woff, gate, addr) for nt in range(16)]
def pv_items(frags, S, vslot, gate, first):
    it = []
    for s in range(4):
        for dt in range(4):
            frags.append(Frag([('tr', aV, vslot*SL + t*2080 + s*256 + dt*64, 2*t) for t in range(2)], gate))
            it.append(MItem('mfma', D=V(OACC + 16*dt, 16), B=V(S + 4*s, 4), acc=not (first and s == 0), frag=len(frags)-1))
    return it

def dma_pair(m0txt, voff, srdb, soff, off, pol, rd=(), wr=()):
    a = Op('m0', m0txt, rd=rd)
    b = Op('dma', f"buffer_load_dwordx4 v{voff}, {srd(srdb)}, {soff} offen" + (f" offset:{off}" if off else "") + f"{pol} lds", wr=wr)
    return [a, b]

def kvq_ops(slotbase, srdb, offreg, m0reg, lim, gate, done):
    if P.NODMA in (1, 3): lim = -100
    ops = [salu(f"s_cmp_le_i32 s{sT}, {lim}\n    s_cselect_b32 s{srdb+2}, 0x80000, 0\n    s_cselect_b32 s{m0reg}, s{sM0W}, s{sM0N}", rd=[gate])]
    for i in range(4):
        ops += dma_pair(f"s_add_u32 m0, s{m0reg}, {slotbase + 16*i}", vKV, srdb, f"s{offreg}", 1024*i, P.KVPOL)
    ops.append(salu(f"s_add_u32 s{offreg}, s{offreg}, 16384\n    s_and_b32 s{offreg}, s{offreg}, 0x7ffff", wr=[done]))
    return ops

def insert_hoisted(seq, b, H):
    if H == 0:
        seq.append(b); return
    n = 0; i = len(seq)
    while n < H:
        i -= 1
        if isinstance(seq[i], MItem):
            assert seq[i].kind == 'mfma'
            n += 1
    b.hoist = H
    seq.insert(i, b)

def attention_head(em):
    seq = []; frags = []
    dA_prev = None
    Z3 = P.PLAN in (2, 4, 5)
    QZ = P.PLAN in (4, 5)
    KVA = P.PLAN == 4
    for j in range(8):
        p = j % 2
        gA = newgate(); gB = newgate(); dB = newgate(); dA = newgate(); gZ = newgate()
        b = bar(gB, pre=["s_waitcnt vmcnt(8)"], rd=[dA_prev] if dA_prev else [], st=2)
        insert_hoisted(seq, b, P.HOIST if j > 0 else 0)
        if not KVA:
            kq = kvq_ops(K0 + p*SL, sK, sKOFF, sM0K, 28, gB, dB)
            kq.append(salu(f"s_add_u32 s{sT}, s{sT}, 1"))
        else:
            kq = [salu(f"s_add_u32 s{sT}, s{sT}, 1", rd=[gB], wr=[dB])]
        mt = maxtree_ops(SR[p])
        if j == 0: mt += first_tile_ops(SR[p])
        seq += interleave(mt, kq, every=2)
        seq += pv_items(frags, SR[1-p], 1-p, gB, j == 1)
        insert_hoisted(seq, bar(gA, pre=[] if Z3 else ["s_waitcnt vmcnt(8)"], rd=[dB], st=1), P.HOIST)
        vq = kvq_ops(V0 + (1-p)*SL, sV, sVOFF, sM0V, 30, gA, dA)
        if KVA:
            vq = kvq_ops(K0 + p*SL, sK, sKOFF, sM0K, 29, gA, newgate()) + vq
        pre = finalize_ops() if j == 0 else [check_op(SR[p], f"{j}")]
        qrd = []
        if j == 7:
            for ks in range(8):
                op = dsr128(V(QR + 4*ks, 4), aQB, ks*1024)
                op.rd.append(gZ if QZ else gA)
                qrd.append(op)
            if not QZ:
                pre += qrd; qrd = []
        if P.DMAFIRST:
            seq += interleave(vq, pre, every=2) if j == 0 else (vq + pre)
            ex = exp_ops(SR[p], j == 0)
        else:
            seq += pre
            ex = interleave(exp_ops(SR[p], j == 0), vq, every=P.DEVERY)
        if Z3:
            ms = opj_items(frags, j, p*SL, gA)
            insert_hoisted(ms, bar(gZ, pre=["s_waitcnt vmcnt(12)"], rd=[dA]), P.HOIST + (2 if qrd else 0))
            h = len(ex) if not qrd else max(len(ex) * 2 // 5, 1 + max(k for k, o in enumerate(ex) if dA in o.wr) if not P.DMAFIRST else 0)
            seq += ex[:h] + ms + qrd + ex[h:]
            seq += qk_items(frags, SR[1-p], 1-p, gZ, j != 7)
        else:
            if j == 0:
                ms = qk_items(frags, SR[1-p], 1-p, gA, True) + opj_items(frags, j, p*SL, gA)
            else:
                ms = opj_items(frags, j, p*SL, gA) + qk_items(frags, SR[1-p], 1-p, gA, j != 7)
            seq += ex + ms
        dA_prev = dA
    schedule(em, seq, frags, STG, NS, P.LA, budget=P.BUDGET, pair=P.PAIR)

def perm16(j): return 4*(j % 4) + j // 4

def dma_kv_full(slotbase, srdb, soff):
    ops = []
    for j in range(16):
        ops += dma_pair(f"s_mov_b32 m0, {slotbase + 1040*j - perm16(j)*256}", vKV, srdb, soff, perm16(j)*256, P.KVPOL)
    return ops
def dma_wo(slotbase, soffreg):
    ops = []
    for jj in range(4):
        for jh in range(4):
            j = jh*4 + jj
            pr = dma_pair(f"s_mov_b32 m0, {slotbase + 1040*j - jh*1024}", w_vlin, sWO, f"s{sTMP}", jh*1024, P.WPOL)
            if jh == 0: pr.insert(1, salu(f"s_add_u32 s{sTMP}, s{soffreg}, {jj*4096}"))
            ops += pr
    return ops
def dma_wq(slotbase, colreg, const):
    ops = []
    for j in range(16):
        pr = dma_pair(f"s_mov_b32 m0, {slotbase + 1040*j}", w_vwq, sWQ, f"s{sTMP+1}", 0, P.WPOL)
        pr.insert(1, salu(f"s_add_u32 s{sTMP+1}, s{colreg}, {const + perm16(j)*8192}"))
        ops += pr
    return ops

def qproj_items(frags, addr, base, gate, kq, acc_regs, xfrag, nmt):
    it = []
    for dt2 in range(2):
        for ks in range(8):
            frags.append(Frag([('tr', addr, base + t*1040 + ks*128 + dt2*64, 2*t) for t in range(2)], gate))
            for mt in range(nmt):
                it.append(MItem('mfma', D=acc_regs(dt2, mt), B=xfrag(mt, kq*8 + ks), acc=not (kq == 0 and ks == 0), frag=len(frags)-1))
    return it

def scale_cvt(a, dst):
    ops = []
    for k in range(9):
        if k < 8:
            ops.append(valu(f"v_mul_f32 v{a+2*k}, s{sC}, v{a+2*k}", [a+2*k], [a+2*k]))
            ops.append(valu(f"v_mul_f32 v{a+2*k+1}, s{sC}, v{a+2*k+1}", [a+2*k+1], [a+2*k+1]))
        if k > 0:
            kk = k - 1
            ops.append(valu(f"v_cvt_pk_bf16_f32 v{dst+kk}, v{a+2*kk}, v{a+2*kk+1}", [a+2*kk, a+2*kk+1], [dst+kk]))
    return ops

nonce_ctr = [0]
def nonce_op():
    nonce_ctr[0] += 1
    L = f"L_nn{nonce_ctr[0]}"
    t = (f"s_cmp_lg_u32 s{sT}, s94\n    s_cbranch_scc1 {L}\n    s_mov_b64 exec, 1\n"
         f"    buffer_atomic_cmpswap v[12:13], v14, s[84:87], 0 offen sc0 sc1\n    s_mov_b64 exec, -1\n{L}:")
    return [salu(t)] if P.FUSE else []

def wo_sel():
    lim = 100 if P.NODMA in (1, 2) else 6
    t = f"s_cmp_ge_i32 s{sT}, {lim}\n    s_cselect_b32 s{sWO+2}, 0x80000, 0\n    s_cselect_b32 s{sWOCUR}, s{sWOOFF}, s{sPF}"
    ops = nonce_op() + [salu(t)]
    if P.WOPF and not P.NODMA:
        ops.append(salu(f"s_sub_u32 s{sTMP}, s{sT}, {P.PFT-1}\n    s_cmp_lt_u32 s{sTMP}, 2\n    s_cselect_b32 s{sWO+2}, 0x80000, s{sWO+2}\n    s_cselect_b32 s{sTMP}, 16384, 0\n    s_add_u32 s{sPF}, s{sPF}, s{sTMP}"))
    return ops

def w3_acc(dt2, mt): return V(W_ACC + (dt2*3 + mt)*16, 16)
def w3_cv(dt2):
    ops = []
    for mt in range(3):
        a = w3_acc(dt2, mt)[0]
        ops += scale_cvt(a, a)
        for s2 in range(2):
            ops.append(dsw128(w_aQB, V(a + 4*s2, 4), mt*8192 + (dt2*2 + s2)*1024))
    return ops

def wave3_body(em):
    seq = []; frags = []
    lastB = None
    for kq in (1, 2, 3, 0):
        par = kq % 2
        gA = newgate(); gB = newgate(); dA = newgate(); dB = newgate(); gW = newgate(); dW = newgate()
        rdA = [lastB] if lastB else []
        wq = [salu(f"s_cmp_le_i32 s{sT}, {-100 if P.NODMA in (1, 2) else 20}\n    s_cselect_b32 s{sWQ+2}, s{sTMP+2}, 0")]
        if kq == 3:
            wq.append(salu(f"s_add_u32 s{sWQLIN}, s{sWQLIN}, 128\n    s_and_b32 s{sWQLIN}, s{sWQLIN}, 1023\n    s_xor_b32 s{sWQCOL}, s{sWQLIN}, s{sSW}"))
        wq += dma_wq(WQ0 + (1-par)*SL, sWQCOL, ((kq+1) % 4) * 128 * 8192)
        wo = wo_sel() + dma_wo(WO0 + par*SL, sWOCUR)
        wo.append(salu(f"s_add_u32 s{sWOOFF}, s{sWOOFF}, 16384\n    s_and_b32 s{sWOOFF}, s{sWOOFF}, 0x7ffff\n    s_add_u32 s{sT}, s{sT}, 1", wr=[dB]))
        vq = kvq_ops(V0 + (1-par)*SL, sV, sVOFF, sM0V, 30, gA, dA)
        if P.PLAN == 0:
            A = wq + vq; A[0].rd.append(gA)
            B = kvq_ops(K0 + (1-par)*SL, sK, sKOFF, sM0K, 28, gB, newgate()) + wo
            wA, wB, nA = 40, 40, P.W_PRE
            wW = 24 + nA
        elif P.PLAN == 2:
            gZ = newgate(); dZ = newgate()
            A = wq + vq; A[0].rd.append(gA)
            Z = wo[:-1] + [salu(f"s_add_u32 s{sWOOFF}, s{sWOOFF}, 16384\n    s_and_b32 s{sWOOFF}, s{sWOOFF}, 0x7ffff", wr=[dZ])]; Z[0].rd.append(gZ)
            B = kvq_ops(K0 + (1-par)*SL, sK, sKOFF, sM0K, 28, gB, newgate()) + [salu(f"s_add_u32 s{sT}, s{sT}, 1", wr=[dB])]
            wA, wZ, wB, nA = 44, 60, 56, P.W_PRE
            wW = 24 + nA
        else:
            A = kvq_ops(K0 + par*SL, sK, sKOFF, sM0K, 29, gA, newgate()) + vq
            B = wq + wo; B[0].rd.append(gB)
            wA, wB, nA = 36, 40, 8
            wW = 24
            if P.PLAN == 3:
                gZ = newgate(); dZ = dA; Z = []
                wA, wZ = 40, 44
        seq.append(bar(gA, pre=stamp_txt() + [f"s_waitcnt vmcnt({wA})"], rd=rdA, drain=bool(P.STAMP)))
        items = qproj_items(frags, w_aWQ, par*SL, gW, kq, w3_acc, XF3, 3)
        cut = 0; cnt = 0
        while cnt < nA:
            if A[cut].kind == 'dma': cnt += 1
            cut += 1
        A1 = A[:cut] + [salu("s_nop 0", wr=[dW])]; A2 = A[cut:]
        if kq == 0:
            c = w3_cv(1) + [valu(f"v_xor_b32 v{w_aQB}, 0x1000, v{w_aQB}", [w_aQB], [w_aQB])]
            A2 = interleave(c, A2, every=1)
        seq += A1
        seq.append(MItem('bar', texts=[f"s_waitcnt vmcnt({wW})"], rd=[dW], wr=[gW]))
        seq += A2
        if P.PLAN in (2, 3):
            seq += items[:P.W_SPLITZ]
            seq.append(bar(gZ, pre=[f"s_waitcnt vmcnt({wZ})"], rd=[dA]))
            seq += Z
            seq += items[P.W_SPLITZ:P.W_SPLIT]
            seq.append(bar(gB, pre=[f"s_waitcnt vmcnt({wB})"], rd=[dZ]))
        else:
            seq += items[:P.W_SPLIT]
            seq.append(bar(gB, pre=[f"s_waitcnt vmcnt({wB})"], rd=[dA]))
        if kq == 3:
            B = interleave(B, w3_cv(0), every=1)
        seq += B
        seq += items[P.W_SPLIT:]
        lastB = dB
    schedule(em, seq, frags, W_STG, W_NS, P.W_LA, budget=P.W_BUDGET, pair=False)

def wave3_body4(em):
    seq = []; frags = []
    lastA = None
    for kq in (1, 2, 3, 0):
        par = kq % 2
        gA = newgate(); gB = newgate(); gZ = newgate(); dA = newgate(); dB = newgate(); gW = newgate(); dW = newgate()
        wq = [salu(f"s_cmp_le_i32 s{sT}, {-100 if P.NODMA in (1, 2) else 20}\n    s_cselect_b32 s{sWQ+2}, s{sTMP+2}, 0", rd=[gB])]
        if kq == 3:
            wq.append(salu(f"s_add_u32 s{sWQLIN}, s{sWQLIN}, 128\n    s_and_b32 s{sWQLIN}, s{sWQLIN}, 1023\n    s_xor_b32 s{sWQCOL}, s{sWQLIN}, s{sSW}"))
        wq += dma_wq(WQ0 + (1-par)*SL, sWQCOL, ((kq+1) % 4) * 128 * 8192)
        wo = wo_sel() + dma_wo(WO0 + par*SL, sWOCUR)
        wo.append(salu(f"s_add_u32 s{sWOOFF}, s{sWOOFF}, 16384\n    s_and_b32 s{sWOOFF}, s{sWOOFF}, 0x7ffff\n    s_add_u32 s{sT}, s{sT}, 1", wr=[dB]))
        B = wq + wo
        A = kvq_ops(K0 + (1-par)*SL, sK, sKOFF, sM0K, 29, gA, newgate()) + kvq_ops(V0 + par*SL, sV, sVOFF, sM0V, 30, gA, dA)
        items = qproj_items(frags, w_aWQ, par*SL, gW, kq, w3_acc, XF3, 3)
        seq.append(bar(gB, pre=["s_waitcnt vmcnt(40)"], rd=[lastA] if lastA else []))
        seq.append(MItem('bar', texts=["s_waitcnt vmcnt(24)"], wr=[gW]))
        seq += B
        seq += items[:P.W4_1]
        seq.append(bar(gA, pre=stamp_txt() + ["s_waitcnt vmcnt(40)"], rd=[dB], drain=bool(P.STAMP)))
        if kq == 0:
            c = w3_cv(1) + [valu(f"v_xor_b32 v{w_aQB}, 0x1000, v{w_aQB}", [w_aQB], [w_aQB], ), salu("s_nop 0", wr=[dW])]
            A = A + c
        seq += A
        seq += items[P.W4_1:P.W4_2]
        seq.append(bar(gZ, pre=["s_waitcnt vmcnt(44)"], rd=[dA] + ([dW] if kq == 0 else []), drain=(kq == 0)))
        if kq == 3:
            seq += w3_cv(0)
        seq += items[P.W4_2:]
        lastA = dA
    schedule(em, seq, frags, W_STG, W_NS, P.W_LA, budget=P.W_BUDGET, pair=False)

def wave3_body5(em):
    seq = []; frags = []
    lastB = None
    for kq in range(4):
        par = kq % 2
        gA = newgate(); gB = newgate(); gZ = newgate(); dA = newgate(); dB = newgate(); dZ = newgate(); gW = newgate(); dW = newgate(); dC = newgate()
        wq = [salu(f"s_cmp_le_i32 s{sT}, {-100 if P.NODMA in (1, 2) else 21}\n    s_cselect_b32 s{sWQ+2}, s{sTMP+2}, 0", rd=[gA])]
        if kq == 3:
            wq.append(salu(f"s_add_u32 s{sWQLIN}, s{sWQLIN}, 128\n    s_and_b32 s{sWQLIN}, s{sWQLIN}, 1023\n    s_xor_b32 s{sWQCOL}, s{sWQLIN}, s{sSW}"))
        wq += dma_wq(WQ0 + (1-par)*SL, sWQCOL, ((kq+1) % 4) * 128 * 8192)
        A = wq + kvq_ops(V0 + par*SL, sV, sVOFF, sM0V, 30, gA, dA)
        Z = wo_sel() + dma_wo(WO0 + (1-par)*SL, sWOCUR) + [salu(f"s_add_u32 s{sWOOFF}, s{sWOOFF}, 16384\n    s_and_b32 s{sWOOFF}, s{sWOOFF}, 0x7ffff", wr=[dZ])]
        Z[0].rd.append(gZ)
        B = kvq_ops(K0 + par*SL, sK, sKOFF, sM0K, 28, gB, newgate()) + [salu(f"s_add_u32 s{sT}, s{sT}, 1", wr=[dB])]
        nA = P.W_PRE
        seq.append(bar(gA, pre=stamp_txt() + ["s_waitcnt vmcnt(44)"], rd=[lastB] if lastB else [], drain=bool(P.STAMP)))
        items = qproj_items(frags, w_aWQ, par*SL, gW, kq, w3_acc, XF3, 3)
        cut = 0; cnt = 0
        while cnt < nA:
            if A[cut].kind == 'dma': cnt += 1
            cut += 1
        A1 = A[:cut] + [salu("s_nop 0", wr=[dW])]; A2 = A[cut:]
        if kq == 0:
            c = w3_cv(1) + [valu(f"v_xor_b32 v{w_aQB}, 0x1000, v{w_aQB}", [w_aQB], [w_aQB]), salu("s_nop 0", wr=[dC])]
            A2 = interleave(c, A2, every=1)
        seq += A1
        seq.append(MItem('bar', texts=[f"s_waitcnt vmcnt({24 + nA})"], rd=[dW], wr=[gW]))
        seq += A2
        seq += items[:P.W_SPLITZ]
        seq.append(bar(gZ, pre=["s_waitcnt vmcnt(60)"], rd=[dA] + ([dC] if kq == 0 else []), drain=(kq == 0)))
        seq += Z
        seq += items[P.W_SPLITZ:P.W_SPLIT]
        seq.append(bar(gB, pre=["s_waitcnt vmcnt(56)"], rd=[dZ]))
        if kq == 3:
            B = interleave(w3_cv(0), B, every=2)
        seq += B
        seq += items[P.W_SPLIT:]
        lastB = dB
    schedule(em, seq, frags, W_STG, W_NS, P.W_LA, budget=P.W_BUDGET, pair=False)

class VM:
    def __init__(self, em, init): self.em = em; self.q = list(init)
    def issue(self, tag, ops):
        n = 0
        for o in ops:
            self.em.emit(o)
            if o.kind == 'dma': n += 1
        self.q.append((tag, n))
    def need(self, *tags):
        last = -1
        for i, (t, n) in enumerate(self.q):
            if t in tags: last = i
        if last >= 0:
            n = sum(c for (_, c) in self.q[last+1:])
            self.em.raw(f"s_waitcnt vmcnt({min(n, 63)})")
            self.q = self.q[last+1:]

def gen_main(em):
    R = em.raw
    em.label(f"{NAME}_kernel")
    R("s_cmp_ge_u32 s2, 256")
    R("s_cbranch_scc1 L_end")
    R("s_load_dwordx8 s[48:55], s[0:1], 0")
    R("s_load_dwordx2 s[56:57], s[0:1], 32")
    R("s_load_dwordx8 s[60:67], s[0:1], 40")
    R("s_load_dwordx2 s[68:69], s[0:1], 72")
    R("s_load_dwordx2 s[70:71], s[0:1], 96")
    R("v_lshrrev_b32 v1, 6, v0")
    R("v_and_b32 v0, 63, v0")
    R(f"v_readfirstlane_b32 s{sWAVE}, v1")
    R("s_and_b32 s3, s2, 7")
    R("s_lshr_b32 s4, s2, 3")
    R("s_lshr_b32 s5, s3, 2")
    R("s_and_b32 s3, s3, 3")
    R("s_lshl_b32 s3, s3, 1")
    R("s_lshr_b32 s6, s4, 4")
    R("s_add_u32 s3, s3, s6")
    R("s_and_b32 s4, s4, 15")
    R(f"s_mov_b32 s{sC}, {f32bits(C_SCALE):#x}")
    R(f"s_mov_b32 s{sTHR}, {f32bits(P.THR):#x}")
    R(f"s_mul_i32 s{sM0W}, s{sWAVE}, 4160")
    R(f"s_mov_b32 s{sM0N}, {M0_NULL:#x}")
    R("s_waitcnt lgkmcnt(0)")
    R("s_cmp_eq_u32 s5, 0")
    for i in range(5):
        R(f"s_cselect_b64 s[{48+2*i}:{49+2*i}], s[{48+2*i}:{49+2*i}], s[{60+2*i}:{61+2*i}]")
    R("s_lshl_b32 s6, s4, 22")
    R("s_lshl_b32 s7, s3, 19")
    R("s_add_u32 s6, s6, s7")
    for (d, p) in ((sK, 50), (sV, 52)):
        R(f"s_add_u32 s{d}, s{p}, s6")
        R(f"s_addc_u32 s{d+1}, s{p+1}, 0")
        R(f"s_and_b32 s{d+1}, s{d+1}, 0xffff")
        R(f"s_mov_b32 s{d+2}, 0x80000")
        R(f"s_mov_b32 s{d+3}, 0x20000")
    R("s_lshl_b32 s6, s3, 10")
    R(f"s_add_u32 s{sWQ}, s54, s6")
    R(f"s_addc_u32 s{sWQ+1}, s55, 0")
    R(f"s_and_b32 s{sWQ+1}, s{sWQ+1}, 0xffff")
    R(f"s_sub_u32 s{sWQ+2}, 0x400000, s6")
    R(f"s_mov_b32 s{sTMP+2}, s{sWQ+2}")
    R(f"s_mov_b32 s{sWQ+3}, 0x20000")
    R(f"s_add_u32 s{sWO}, s56, s7")
    R(f"s_addc_u32 s{sWO+1}, s57, 0")
    R(f"s_and_b32 s{sWO+1}, s{sWO+1}, 0xffff")
    R(f"s_mov_b32 s{sWO+2}, 0x80000")
    R(f"s_mov_b32 s{sWO+3}, 0x20000")
    R("s_mul_i32 s6, s4, 98304")
    R(f"s_add_u32 s{sX}, s48, s6")
    R(f"s_addc_u32 s{sX+1}, s49, 0")
    R(f"s_and_b32 s{sX+1}, s{sX+1}, 0xffff")
    R(f"s_mov_b32 s{sX+2}, 98304")
    R(f"s_mov_b32 s{sX+3}, 0x20000")
    R("s_mul_i32 s6, s2, 98304")
    R(f"s_add_u32 s{sWS}, s70, s6")
    R(f"s_addc_u32 s{sWS+1}, s71, 0")
    R(f"s_and_b32 s{sWS+1}, s{sWS+1}, 0xffff")
    R(f"s_mov_b32 s{sWS+2}, 98304")
    R(f"s_mov_b32 s{sWS+3}, 0x20000")
    R("v_bfe_u32 v20, v0, 2, 2")
    R("v_lshrrev_b32 v21, 5, v0")
    R("v_bfe_u32 v22, v0, 4, 1")
    R("v_and_b32 v23, 1, v0")
    R("v_bfe_u32 v24, v0, 1, 1")
    R("v_lshlrev_b32 v25, 2, v20")
    R("v_lshl_add_u32 v26, v21, 1, v25")
    R("v_mul_u32_u24 v26, 1040, v26")
    R("v_lshl_add_u32 v26, v22, 5, v26")
    R("v_lshl_add_u32 v26, v23, 4, v26")
    R("v_lshl_add_u32 v26, v24, 3, v26")
    R("v_and_b32 v27, 15, v0")
    R("v_mul_u32_u24 v27, 1040, v27")
    R("v_lshl_add_u32 v27, v22, 9, v27")
    R("v_lshl_add_u32 v27, v21, 4, v27")
    R("v_lshrrev_b32 v28, 4, v0")
    R("v_and_b32 v29, 15, v0")
    R("v_lshlrev_b32 v29, 4, v29")
    R(f"v_lshl_add_u32 v{vKV}, v28, 12, v29")
    if P.ROT:
        R(f"s_and_b32 s{sROT}, s4, 3")
        R(f"s_lshl_b32 s{sROT}, s{sROT}, 17")
        R(f"s_bfe_u32 s{sSW}, s4, 0x10002")
        R(f"s_lshl_b32 s{sSW}, s{sSW}, 7")
    else:
        R(f"s_mov_b32 s{sROT}, 0")
        R(f"s_mov_b32 s{sSW}, 0")
    R(f"s_lshl_b32 s{sPF}, s4, 15")
    R(f"s_lshl_b32 s{sVOFF}, s{sWAVE}, 8")
    R(f"s_add_u32 s{sVOFF}, s{sVOFF}, s{sROT}")
    R(f"s_add_u32 s{sKOFF}, s{sVOFF}, {(1 if P.PLAN in (1, 3, 4) else 2)*16384}")
    R(f"s_mov_b32 s{sT}, -1")
    if P.STAMP:
        R("s_mov_b32 s98, 0")
        R(f"v_mov_b32 v{STV}, 0")
    stamp(em)
    R(f"s_cmp_eq_u32 s{sWAVE}, 3")
    R("s_cbranch_scc1 L_wave3")

    if P.CPF:
        R("s_getpc_b64 s[78:79]")
        em.label("L_pc")
        R(f"s_sub_u32 s78, s78, L_pc-{NAME}_kernel")
        R("s_subb_u32 s79, s79, 0")
        R("s_lshr_b32 s3, s2, 3")
        R("s_mul_i32 s3, s3, 3")
        R(f"s_add_u32 s3, s3, s{sWAVE}")
        R("s_and_b32 s3, s3, 7")
        R("s_lshl_b32 s3, s3, 13")
        R("v_lshlrev_b32 v28, 7, v0")
        R("v_add_u32 v28, s3, v28")
        R(f"v_min_u32 v28, L_code_end-{NAME}_kernel-4, v28")
        R("global_load_dword v255, v28, s[78:79]")
    R("v_and_b32 v28, 3, v0")
    R("v_lshl_add_u32 v28, v28, 2, v20")
    R("v_mul_u32_u24 v28, 1040, v28")
    R("v_lshl_add_u32 v28, v22, 8, v28")
    R(f"v_lshl_add_u32 v{aK}, v21, 4, v28")
    R("v_add_u32 v28, v25, v21")
    R("v_mul_u32_u24 v28, 1040, v28")
    R("v_and_b32 v29, 3, v0")
    R("v_lshl_add_u32 v29, v29, 3, v28")
    R("v_lshl_add_u32 v29, v22, 5, v29")
    R(f"v_add_u32 v{aV}, {V0}, v29")
    R("v_lshl_add_u32 v29, v23, 5, v28")
    R("v_lshl_add_u32 v29, v22, 4, v29")
    R("v_lshl_add_u32 v29, v24, 3, v29")
    R(f"v_add_u32 v{aWO}, {WO0}, v29")
    R(f"s_lshl_b32 s3, s{sWAVE}, 13")
    R(f"s_add_u32 s3, s3, {QB}")
    R(f"v_lshlrev_b32 v{aQB}, 4, v0")
    R(f"v_add_u32 v{aQB}, s3, v{aQB}")
    R(f"v_mov_b32 v{AUX}, v26")
    R(f"s_mul_i32 s3, s{sWAVE}, {SL}")
    R(f"v_add_u32 v{T2}, s3, v27")
    R(f"v_add_u32 v{T3}, {5*SL}, v{T2}")
    for i in range(8): R(f"v_mov_b32 v{16+i}, 0")
    R("s_nop 1")
    for nt in range(16):
        R(f"v_mfma_f32_32x32x16_bf16 a[{16*nt}:{16*nt+15}], v[16:19], v[20:23], 0")
    QA = SR[1]
    seq = []; frags = []
    tmpaddr = [T0, T1]
    for ti in range(8):
        if ti in (0, 2, 3, 6):
            g = newgate()
            xr = []
            if ti in (2, 3):
                for ks in range(16): xr += XFA(ks + 16*(ti-2))
            seq.append(bar(g, st=1, drain=True, rd=xr, pre=(["s_waitcnt vmcnt(0)"] if ti == 6 else [])))
            if ti in (0, 2):
                for ks in range(16):
                    op = dsr128(XFA(ks + 8*ti), T2 if ti == 0 else T3, ks*32)
                    op.rd.append(g)
                    seq.append(op)
        ta = tmpaddr[ti % 2]
        ga = newgate()
        seq.append(valu(f"v_add_u32 v{ta}, {WLOC[ti]}, v{AUX}", [AUX], [ta]))
        seq.append(MItem('bar', texts=[], rd=[ta], wr=[ga]))
        its = qproj_items(frags, ta, 0, ga, ti % 4, lambda dt2, mt: V(QA + 16*dt2, 16), lambda mt, ks: XFA(ks), 1)
        for it in its: it.rd.append(ta)
        seq += its[:8]
        if ti % 4 == 3: seq += scale_cvt(QA, QR + 16*(ti//4))
        seq += its[8:]
        if ti % 4 == 3: seq += scale_cvt(QA + 16, QR + 16*(ti//4) + 8)
    for i in range(64):
        seq.append(valu(f"v_mov_b32 v{OACC+i}, 0", [], [OACC+i]))
    for i in range(16):
        seq.append(valu(f"v_mov_b32 v{SR[1]+i}, 0", [], [SR[1]+i]))
    seq.append(valu(f"v_mov_b32 v{LA_}, 1.0", [], [LA_]))
    seq.append(valu(f"v_mov_b32 v{LB_}, 0", [], [LB_]))
    gA = newgate()
    seq.append(bar(gA, st=1))
    if P.PLAN in (1, 3, 4): seq += kvq_ops(K0+SL, sK, sKOFF, sM0K, 29, gA, newgate())
    dz = newgate()
    seq += kvq_ops(V0, sV, sVOFF, sM0V, 30, gA, dz)
    if P.PLAN in (2, 3, 4, 5): seq.append(bar(newgate(), rd=[dz]))
    seq += qk_items(frags, SR[0], 0, gA, False)
    schedule(em, seq, frags, STG, NS, P.LA, budget=P.BUDGET)
    R(f"s_mov_b32 s{sCNT}, 4")
    em.fence()
    em.label("L_att_loop")
    n0 = em.ninstr; nn0 = em.nops; w0 = em.waits
    attention_head(em)
    print(f"attention head body: {em.ninstr-n0} instrs, {em.nops-nn0} nop states, {em.waits-w0} waits", file=sys.stderr)
    R(f"s_sub_u32 s{sCNT}, s{sCNT}, 1")
    R(f"s_cmp_lg_u32 s{sCNT}, 0")
    em.fence()
    R("s_cbranch_scc1 L_att_loop")
    seq = []; frags = []
    gB = newgate(); g1 = newgate()
    seq.append(bar(gB, pre=["s_waitcnt vmcnt(0)"], st=2))
    seq.append(valu(f"v_subrev_u32 v{T0}, {WO0}, v{aWO}", [aWO], [T0]))
    seq.append(valu(f"v_add_u32 v{DELTA}, {QB-WO0}, v{aWO}", [aWO], [DELTA]))
    seq.append(valu(f"v_lshlrev_b32 v{T1}, 4, v0", [], [T1]))
    seq.append(salu(f"s_lshl_b32 s3, s{sWAVE}, 15"))
    seq += pv_items(frags, SR[1], 1, gB, False)
    insert_hoisted(seq, bar(g1, st=1, rd=[T0, DELTA]), P.HOIST)
    seq += finalize_ops()
    for nt in range(16):
        for ks in range(8):
            if ks < 4: seq.append(opj_item(frags, ks, nt, ks*SL, g1, aWO))
            elif ks < 7: seq.append(opj_item(frags, ks, nt, (ks-4)*SL, g1, T0))
            else: seq.append(opj_item(frags, ks, nt, 0, g1, DELTA))
        b = 176 + (nt % 4) * 16
        for r in range(16):
            seq.append(valu(f"v_accvgpr_read_b32 v{b+r}, a{16*nt+r}", AG(16*nt+r), [b+r]))
        for k in range(8):
            seq.append(valu(f"v_cvt_pk_bf16_f32 v{b+k}, v{b+2*k}, v{b+2*k+1}", [b+2*k, b+2*k+1], [b+k]))
        for q in range(2):
            off = (nt*2 + q) * 1024
            if off % 4096 == 0:
                seq.append(salu(f"s_add_u32 s4, s3, {off}"))
            seq.append(Op('vmem', f"buffer_store_dwordx4 v[{b+4*q}:{b+4*q+3}], v{T1}, {srd(sWS)}, s4 offen offset:{off % 4096}{P.STPOL}", rd=V(b+4*q, 4) + [T1], tag='store'))
    schedule(em, seq, frags, STG, NS, P.LA, budget=P.BUDGET)
    if P.FUSE:
        stamp(em)
        R("s_waitcnt vmcnt(0)")
        stamp(em)
        R("s_barrier")
        R("s_branch L_red")
        emit_rare(em)
        rare_blocks.clear()
    stamp(em)
    if P.STAMP: R("s_waitcnt vmcnt(0)")
    stamp(em)
    stamp_store(em)
    if P.DBG:
        R(f"s_cmp_lg_u32 s{sWAVE}, 0")
        R("s_cbranch_scc1 L_dbgskip")
        R("s_load_dwordx2 s[72:73], s[0:1], 88")
        R(f"v_readlane_b32 s76, v{STV}, 0")
        idx = [1, 5, 6, 14, 22, 30, 38, 40]
        for i, l in enumerate(idx): R(f"v_readlane_b32 s{80+i}, v{STV}, {l}")
        R("s_waitcnt lgkmcnt(0)")
        R("s_and_b32 s73, s73, 0xffff")
        R("s_mov_b32 s74, 256")
        R("s_mov_b32 s75, 0x20000")
        R("v_mov_b32 v1, 0")
        R("v_mov_b32 v2, 0")
        R("s_not_b32 s77, s76")
        R("v_writelane_b32 v2, s77, 8")
        R("v_writelane_b32 v2, s87, 9")
        for i in range(8):
            R(f"s_sub_u32 s{80+i}, s{80+i}, s76")
            R(f"v_writelane_b32 v1, s{80+i}, {i}")
        R("v_cmp_gt_u32 vcc, 40, v0")
        R("s_and_saveexec_b64 s[78:79], vcc")
        R("buffer_atomic_add v1, v0, s[72:75], 0 offen")
        R("buffer_atomic_umax v2, v0, s[72:75], 0 offen")
        R("s_waitcnt vmcnt(0)")
        em.label("L_dbgskip")
    R("s_endpgm")
    emit_rare(em)

    em.label("L_wave3")
    em.reset()
    R(f"v_lshlrev_b32 v{w_vlin}, 4, v0")
    R("v_lshrrev_b32 v28, 3, v0")
    R("v_and_b32 v29, 7, v0")
    R("v_lshlrev_b32 v29, 4, v29")
    R(f"v_lshl_add_u32 v{w_vwq}, v28, 17, v29")
    R(f"v_add_u32 v{w_aWQ}, {WQ0}, v26")
    R(f"v_add_u32 v{w_aQB}, {QB}, v{w_vlin}")
    R(f"v_mov_b32 v{w_aX}, v27")
    R(f"v_add_u32 v8, {5*SL}, v27")
    R("v_and_b32 v29, 31, v0")
    R("v_lshlrev_b32 v29, 4, v29")
    R("v_lshl_add_u32 v9, v21, 14, v29")
    R(f"s_lshr_b32 s{sWQCOL}, s{sROT}, 9")
    R(f"s_lshl_b32 s3, s{sSW}, 5")
    R(f"v_add_u32 v{w_aQB}, s3, v{w_aQB}")
    vm = VM(em, [])
    def xt(mt, kh, loc):
        ops = []
        for j in range(16):
            pr = dma_pair(f"s_mov_b32 m0, {loc + 1040*j - (j % 4)*1024}", 9, sX, f"s{sTMP}", (j % 4)*1024, P.XPOL)
            if j % 4 == 0: pr.insert(1, salu(f"s_mov_b32 s{sTMP}, {mt*32768 + kh*512 + j*1024}"))
            ops += pr
        return ops
    def w0(ti): return dma_wq(WLOC[ti], sWQCOL, (ti % 4)*128*8192 + (ti // 4)*128)
    for mt in range(3): vm.issue("X0", xt(mt, 0, mt*SL))
    vm.issue("W0", w0(0)); vm.issue("W1", w0(1))
    for mt in range(3): vm.issue("X1", xt(mt, 1, (5+mt)*SL))
    vm.issue("W2", w0(2))
    vm.need("W1")
    R("s_barrier")
    for mt in range(3):
        for ks in range(16):
            em.emit(dsr128(XF3(mt, ks), w_aX, mt*SL + ks*32))
    em.wait_ds(0)
    vm.need("W2")
    R("s_barrier")
    vm.issue("W3", w0(3)); vm.issue("W4", w0(4)); vm.issue("W5", w0(5))
    vm.issue("K0", dma_kv_full(K0, sK, f"s{sROT}"))
    if P.PLAN in (0, 2):
        R(f"s_add_u32 s3, s{sROT}, 16384")
        vm.issue("K1", dma_kv_full(K0+SL, sK, "s3"))
    for mt in range(3):
        for ks in range(16):
            em.emit(dsr128(XF3(mt, 16+ks), 8, mt*SL + ks*32))
    em.wait_ds(0)
    vm.need("W5")
    R("s_barrier")
    if P.FUSE:
        R("s_load_dwordx2 s[84:85], s[0:1], 88")
        R("s_memrealtime s[90:91]")
        R("v_mov_b32 v13, 0")
        R("v_mov_b32 v14, 252")
        R("s_bfe_u32 s94, s2, 0x40003")
        R("s_add_u32 s94, s94, 2")
        R("s_waitcnt lgkmcnt(0)")
        R("s_and_b32 s85, s85, 0xffff")
        R("s_mov_b32 s86, 256")
        R("s_mov_b32 s87, 0x20000")
        R("s_or_b32 s90, s90, 1")
        R("v_mov_b32 v12, s90")
        R("v_mov_b32 v15, s90")
    vm.issue("W6", w0(6)); vm.issue("W7", w0(7))
    R(f"s_add_u32 s{sWQLIN}, s{sWQCOL}, 256")
    R(f"s_and_b32 s{sWQLIN}, s{sWQLIN}, 1023")
    R(f"s_xor_b32 s{sWQCOL}, s{sWQLIN}, s{sSW}")
    vm.issue("U0", dma_wq(WQ0, sWQCOL, 0))
    if P.PLAN == 5:
        R(f"s_add_u32 s3, s{sROT}, 16384")
        vm.issue("K1", dma_kv_full(K0+SL, sK, "s3"))
        R(f"v_xor_b32 v{w_aQB}, 0x1000, v{w_aQB}")
    else:
        vm.issue("U1", dma_wq(WQ0+SL, sWQCOL, 128*8192))
    vm.need("W7")
    R("s_barrier")
    if P.PLAN != 5:
        vm.need("U0")
        frags = []
        seq = qproj_items(frags, w_aWQ, 0, None, 0, w3_acc, XF3, 3)
        schedule(em, seq, frags, W_STG, W_NS, P.W_LA, budget=P.W_BUDGET, pair=False)
    R(f"s_add_u32 s{sWOOFF}, s{sROT}, {(-7*16384) & 0x7ffff:#x}")
    R(f"s_and_b32 s{sWOOFF}, s{sWOOFF}, 0x7ffff")
    R(f"s_mov_b32 s{sCNT}, 6")
    R("s_waitcnt vmcnt(16)" if P.PLAN == 5 else "s_waitcnt vmcnt(0)")
    if P.PLAN == 4:
        stamp(em)
        R("s_barrier")
        for o in kvq_ops(K0+SL, sK, sKOFF, sM0K, 29, 0, 0) + kvq_ops(V0, sV, sVOFF, sM0V, 30, 0, 0): em.emit(o)
        R("s_barrier")
    em.fence(2)
    em.label("L_w3_loop")
    n0 = em.ninstr; nn0 = em.nops; w0 = em.waits
    if P.PLAN == 4: wave3_body4(em)
    elif P.PLAN == 5: wave3_body5(em)
    else: wave3_body(em)
    print(f"wave3 body: {em.ninstr-n0} instrs, {em.nops-nn0} nop states, {em.waits-w0} waits", file=sys.stderr)
    R(f"s_sub_u32 s{sCNT}, s{sCNT}, 1")
    R(f"s_cmp_lg_u32 s{sCNT}, 0")
    em.fence(2)
    R("s_cbranch_scc1 L_w3_loop")
    if P.PLAN == 4:
        vm = VM(em, [("V23", 4), ("WQ", 16), ("WO24", 16), ("K25", 4), ("V24", 4)])
        R(f"s_add_u32 s3, s{sWOOFF}, {(26-17)*16384}\n    s_and_b32 s3, s3, 0x7ffff")
        for t in range(23, 32):
            if t > 23:
                stamp(em)
                vm.need(f"WO{t}")
                R("s_barrier")
                if t <= 29: vm.issue(f"K{t+2}", kvq_ops(K0 + (t % 2)*SL, sK, sKOFF, sM0K, 29, 0, 0))
                if t <= 30: vm.issue(f"V{t+1}", kvq_ops(V0 + ((t+1) % 2)*SL, sV, sVOFF, sM0V, 30, 0, 0))
                if t == 31:
                    vm.issue("TT", dma_wo(V0, 3))
                vm.need(f"K{t+1}")
                R("s_barrier")
            vm.need(f"V{t}")
            R("s_barrier")
            ops = dma_wo(WO0 + (t % 2)*SL, sWOOFF)
            ops.append(salu(f"s_add_u32 s{sWOOFF}, s{sWOOFF}, 16384\n    s_and_b32 s{sWOOFF}, s{sWOOFF}, 0x7ffff\n    s_add_u32 s{sT}, s{sT}, 1"))
            vm.issue(f"WO{t+2}", ops)
            if t in (23, 24):
                vm.issue("TT", dma_wo(WQ0 + (t-23)*SL, 3))
                R("s_add_u32 s3, s3, 16384")
            if t == 25:
                R(f"s_add_u32 s4, s3, {3*16384}")
                vm.issue("TT", dma_wo(QB, 4))
            if t in (29, 30):
                vm.issue("TT", dma_wo(K0 + (t-29)*SL, 3))
                R("s_add_u32 s3, s3, 16384")
        stamp(em)
        R("s_waitcnt vmcnt(0)")
        R("s_barrier")
        stamp(em)
        stamp_store(em)
        em.label("L_end")
        R("s_endpgm")
        return
    if P.PLAN == 0: vm = VM(em, [("K24", 4), ("WO23", 16), ("WQ", 16), ("V23", 4), ("K25", 4), ("WO24", 16)])
    elif P.PLAN in (2, 5): vm = VM(em, [("WO23", 16), ("K24", 4), ("WQ", 16), ("V23", 4), ("WO24", 16), ("K25", 4)])
    else: vm = VM(em, [("WQ", 16), ("WO23", 16), ("K24", 4), ("V23", 4), ("WQ", 16), ("WO24", 16)])
    R(f"s_add_u32 s3, s{sWOOFF}, {(26-17)*16384}\n    s_and_b32 s3, s3, 0x7ffff")
    for t in range(23, 32):
        stamp(em)
        if P.PLAN in (2, 3, 5): vm.need(f"WO{t}")
        else: vm.need(f"K{t+1}", f"WO{t}")
        R("s_barrier")
        if P.PLAN in (1, 3) and t <= 29:
            vm.issue(f"K{t+2}", kvq_ops(K0 + (t % 2)*SL, sK, sKOFF, sM0K, 29, 0, 0))
        if t <= 30:
            vm.issue(f"V{t+1}", kvq_ops(V0 + ((t+1) % 2)*SL, sV, sVOFF, sM0V, 30, 0, 0))
        if t == 31:
            vm.issue("TT32", dma_wo(V0, 3))
            R("s_add_u32 s3, s3, 16384")
        ops = dma_wo(WO0 + (t % 2)*SL, sWOOFF)
        ops.append(salu(f"s_add_u32 s{sWOOFF}, s{sWOOFF}, 16384\n    s_and_b32 s{sWOOFF}, s{sWOOFF}, 0x7ffff"))
        if P.PLAN in (2, 3, 5):
            if P.PLAN == 5 and t == 23:
                em.nop(12)
                for o in w3_cv(1): em.emit(o)
                em.wait_ds(0)
            vm.need(f"K{t+1}")
            R("s_barrier")
            if P.PLAN in (2, 5): vm.issue(f"WO{t+2}", ops)
        vm.need(f"V{t}")
        R("s_barrier")
        if P.PLAN in (0, 2, 5) and t <= 28:
            vm.issue(f"K{t+3}", kvq_ops(K0 + ((t+1) % 2)*SL, sK, sKOFF, sM0K, 28, 0, 0))
        if P.PLAN not in (2, 5): vm.issue(f"WO{t+2}", ops)
        R(f"s_add_u32 s{sT}, s{sT}, 1")
        if t == 23:
            vm.issue("TT32", dma_wo(WQ0, 3))
            R("s_add_u32 s3, s3, 16384")
        if t == 24:
            vm.issue("TT32", dma_wo(WQ0+SL, 3))
            R("s_add_u32 s3, s3, 16384")
        if t == 25:
            R(f"s_add_u32 s4, s3, {3*16384}")
            vm.issue("TT32", dma_wo(QB, 4))
        if t in (29, 30):
            vm.issue("TT32", dma_wo(K0 + (t-29)*SL, 3))
            R("s_add_u32 s3, s3, 16384")
    stamp(em)
    R("s_waitcnt vmcnt(0)")
    R("s_barrier")
    if P.FUSE:
        fused_reduce(em)
        return
    stamp(em)
    stamp_store(em)
    em.label("L_end")
    R("s_endpgm")

def fused_reduce(em):
    R = em.raw
    R("s_and_b32 s3, s2, 7")
    R("s_lshr_b32 s4, s2, 3")
    R("s_lshr_b32 s5, s3, 2")
    R("s_and_b32 s3, s3, 3")
    R("s_lshl_b32 s3, s3, 1")
    R("s_lshr_b32 s6, s4, 4")
    R("s_add_u32 s3, s3, s6")
    R("s_and_b32 s4, s4, 15")
    R("s_lshl_b32 s6, s5, 4")
    R("s_add_u32 s6, s6, s4")
    R("s_lshl_b32 s6, s6, 2")
    R("v_mov_b32 v14, 0")
    R("s_lshl_b32 s7, 1, s3")
    R("s_lshl_b32 s6, s5, 2")
    R("s_lshl_b32 s92, s4, 3")
    R("s_add_u32 s6, s6, s92")
    R("v_lshrrev_b32 v15, 1, v0")
    R("v_and_b32 v13, 1, v0")
    R("v_lshl_add_u32 v15, v13, 7, v15")
    R("v_add_u32 v15, s6, v15")
    R("v_lshlrev_b32 v15, 7, v15")
    R("s_lshl_b32 s6, s2, 7")
    R("v_mov_b32 v13, s6")
    R("s_add_u32 s80, s70, 0x1800000")
    R("s_addc_u32 s81, s71, 0")
    R("s_and_b32 s81, s81, 0xffff")
    R("s_mov_b32 s82, 0x10000")
    R("s_mov_b32 s83, 0x20000")
    R("v_readfirstlane_b32 s95, v12")
    R("s_cmp_eq_u32 s95, 0")
    R("s_cselect_b32 s95, s90, s95")
    R("v_mov_b32 v12, s95")
    R("s_mov_b64 s[88:89], exec")
    R(f"s_mov_b32 s91, {P.SPIN}")
    R("s_mov_b32 s90, 0")
    R("s_barrier")
    R("s_mov_b64 exec, 1")
    R("buffer_store_dword v12, v13, s[80:83], 0 offen sc0 sc1")
    R("s_mov_b64 exec, 0xff")
    em.label("L_poll")
    R("buffer_load_dwordx2 v[10:11], v15, s[80:83], 0 offen sc0 sc1")
    R("s_waitcnt vmcnt(0)")
    R("v_cmp_eq_u32 vcc, s95, v10")
    R("s_nop 3")
    R("s_cmp_eq_u32 vcc_lo, 0xff")
    R("s_cbranch_scc1 L_go")
    R("s_cmp_lg_u32 s90, 0")
    R("s_cbranch_scc1 L_quit")
    R(f"s_sleep {P.PSLEEP}")
    R("s_sub_u32 s91, s91, 1")
    R("s_cmp_lg_u32 s91, 0")
    R("s_cbranch_scc1 L_poll")
    R("s_mov_b32 s90, 1")
    R("s_mov_b64 exec, 1")
    R("buffer_store_dword v12, v13, s[80:83], 0 offen offset:4 sc0 sc1")
    R("s_waitcnt vmcnt(0)")
    R("s_mov_b64 exec, 0xff")
    R("s_branch L_poll")
    em.label("L_quit")
    R("s_mov_b32 s93, 0")
    R("s_branch L_pub")
    em.label("L_go")
    R("v_cmp_eq_u32 vcc, s95, v11")
    R("s_nop 3")
    R("s_or_b32 s93, s7, vcc_lo")
    R("s_and_b32 s93, s93, 0xff")
    em.label("L_pub")
    R("s_mov_b64 exec, 1")
    R("v_mov_b32 v9, s93")
    R("ds_write_b32 v14, v9")
    R("s_mov_b64 exec, s[88:89]")
    R("s_waitcnt lgkmcnt(0)")
    em.label("L_red")
    R("s_load_dwordx2 s[8:9], s[0:1], 80")
    R("s_and_b32 s3, s2, 7")
    R("s_lshr_b32 s4, s2, 3")
    R("s_lshr_b32 s5, s3, 2")
    R("s_and_b32 s4, s4, 15")
    R("v_and_b32 v2, 7, v0")
    R("v_bfe_u32 v3, v0, 3, 1")
    R("v_bfe_u32 v4, v0, 4, 1")
    R("v_lshrrev_b32 v5, 5, v0")
    R(f"s_lshl_b32 s6, s{sWAVE}, 3")
    R("v_add_u32 v2, s6, v2")
    R("v_lshlrev_b32 v7, 11, v5")
    R("v_lshl_add_u32 v7, v3, 10, v7")
    R("v_lshl_add_u32 v7, v4, 9, v7")
    R("v_lshl_add_u32 v7, v2, 4, v7")
    R("v_lshlrev_b32 v8, 11, v2")
    R("v_lshl_add_u32 v8, v5, 6, v8")
    R("v_lshl_add_u32 v8, v4, 5, v8")
    R("v_lshl_add_u32 v8, v3, 4, v8")
    R("v_mov_b32 v14, 0")
    R("s_lshl_b32 s14, s5, 2")
    R("s_lshl_b32 s15, s4, 3")
    R("s_add_u32 s14, s14, s15")
    R("s_mul_i32 s14, s14, 98304")
    R("s_mul_i32 s15, s4, 96")
    R("s_lshl_b32 s15, s15, 11")
    R("s_lshl_b32 s16, s5, 10")
    R("s_add_u32 s15, s15, s16")
    R("s_mov_b32 s20, s70")
    R("s_and_b32 s21, s71, 0xffff")
    R(f"s_mov_b32 s22, {256*98304}")
    R("s_mov_b32 s23, 0x20000")
    R("s_waitcnt lgkmcnt(0)")
    R("s_mov_b32 s24, s8")
    R("s_and_b32 s25, s9, 0xffff")
    R(f"s_mov_b32 s26, {16*96*1024*2}")
    R("s_mov_b32 s27, 0x20000")
    em.label("L_round")
    R("s_barrier")
    R("ds_read_b32 v9, v14")
    R("s_waitcnt lgkmcnt(0)")
    R("v_readfirstlane_b32 s93, v9")
    stamp(em)
    em.label("L_slice")
    R("s_and_b32 s92, s93, 0xff")
    R("s_cmp_eq_u32 s92, 0")
    R("s_cbranch_scc1 L_nomore")
    R("s_ff1_i32_b32 s94, s92")
    R("s_bitset0_b32 s93, s94")
    R("s_lshl_b32 s16, s94, 12")
    R("s_add_u32 s16, s16, s14")
    for w in range(3):
        for hg in range(8):
            d = ((hg // 2) + 128*(hg % 2)) * 98304 + w * 32768
            r = 16 + (w*8 + hg)*4
            R(f"s_add_u32 s17, s16, {d}")
            R(f"buffer_load_dwordx4 v[{r}:{r+3}], v7, s[20:23], s17 offen{P.RDPOL}")
    R("s_lshl_b32 s17, s94, 7")
    R("s_add_u32 s17, s17, s15")
    for w in range(3):
        acc = 120 + 8*w
        for hg in range(8):
            R(f"s_waitcnt vmcnt({23 - (w*8+hg) + w})")
            for k in range(4):
                src = 16 + (w*8 + hg)*4 + k
                if hg == 0:
                    R(f"v_lshlrev_b32 v{acc+2*k}, 16, v{src}")
                    R(f"v_and_b32 v{acc+2*k+1}, 0xffff0000, v{src}")
                else:
                    R(f"v_lshlrev_b32 v112, 16, v{src}")
                    R(f"v_and_b32 v113, 0xffff0000, v{src}")
                    R(f"v_add_f32 v{acc+2*k}, v{acc+2*k}, v112")
                    R(f"v_add_f32 v{acc+2*k+1}, v{acc+2*k+1}, v113")
        o = 148 + 4*w
        for k in range(4):
            R(f"v_cvt_pk_bf16_f32 v{o+k}, v{acc+2*k}, v{acc+2*k+1}")
        R(f"s_add_u32 s18, s17, {w*32*2048}")
        R(f"buffer_store_dwordx4 v[{o}:{o+3}], v8, s[24:27], s18 offen{P.OUTPOL}")
    R("s_branch L_slice")
    em.label("L_nomore")
    em.label("L_fin")
    if P.STAMP:
        R("s_waitcnt vmcnt(0)")
    stamp(em)
    stamp_store(em)
    em.label("L_end")
    R("s_endpgm")
    em.label("L_code_end")

def gen_reduce(em):
    R = em.raw
    em.lines.append(".p2align 8")
    em.lines.append(".globl reduce_kernel")
    em.lines.append(".type reduce_kernel,@function")
    em.label("reduce_kernel")
    R("s_cmp_ge_u32 s2, 768")
    R("s_cbranch_scc1 L_rend")
    R("s_load_dwordx2 s[4:5], s[0:1], 80")
    R("s_load_dwordx2 s[6:7], s[0:1], 96")
    if P.DBG:
        R("s_memrealtime s[40:41]")
        R("s_load_dwordx2 s[32:33], s[0:1], 88")
    R("v_lshrrev_b32 v1, 6, v0")
    R("v_and_b32 v0, 63, v0")
    R("s_and_b32 s8, s2, 7")
    R("s_lshr_b32 s9, s2, 3")
    R("s_mul_i32 s10, s9, 43691")
    R("s_lshr_b32 s10, s10, 17")
    R("s_mul_i32 s11, s10, 3")
    R("s_sub_u32 s11, s9, s11")
    R("s_lshr_b32 s12, s10, 4")
    R("s_and_b32 s13, s10, 15")
    R("v_and_b32 v2, 7, v0")
    R("v_bfe_u32 v3, v0, 3, 1")
    R("v_bfe_u32 v4, v0, 4, 1")
    R("v_lshrrev_b32 v5, 5, v0")
    R("v_lshl_add_u32 v2, v1, 3, v2")
    R("v_lshlrev_b32 v6, 11, v5")
    R("v_lshl_add_u32 v6, v3, 10, v6")
    R("v_lshl_add_u32 v6, v4, 9, v6")
    R("v_lshl_add_u32 v6, v2, 4, v6")
    R("s_lshl_b32 s14, s11, 15")
    R("s_lshl_b32 s15, s8, 12")
    R("s_add_u32 s14, s14, s15")
    R("s_lshl_b32 s15, s12, 2")
    R("s_lshl_b32 s16, s13, 3")
    R("s_add_u32 s15, s15, s16")
    R("s_mul_i32 s15, s15, 98304")
    R("s_add_u32 s14, s14, s15")
    R("s_waitcnt lgkmcnt(0)")
    R("s_mov_b32 s20, s6")
    R("s_and_b32 s21, s7, 0xffff")
    R(f"s_mov_b32 s22, {256*98304}")
    R("s_mov_b32 s23, 0x20000")
    R("s_mov_b32 s24, s4")
    R("s_and_b32 s25, s5, 0xffff")
    R(f"s_mov_b32 s26, {16*96*1024*2}")
    R("s_mov_b32 s27, 0x20000")
    for hg in range(8):
        d = ((hg // 2) + 128*(hg % 2)) * 98304
        R(f"s_add_u32 s17, s14, {d}")
        R(f"buffer_load_dwordx4 v[{8+4*hg}:{11+4*hg}], v6, s[20:23], s17 offen{P.RDPOL}")
    R("v_lshlrev_b32 v7, 11, v2")
    R("v_lshl_add_u32 v7, v5, 6, v7")
    R("v_lshl_add_u32 v7, v4, 5, v7")
    R("v_lshl_add_u32 v7, v3, 4, v7")
    R("s_mul_i32 s15, s13, 96")
    R("s_lshl_b32 s16, s11, 5")
    R("s_add_u32 s15, s15, s16")
    R("s_lshl_b32 s15, s15, 11")
    R("s_lshl_b32 s16, s12, 10")
    R("s_add_u32 s15, s15, s16")
    R("s_lshl_b32 s16, s8, 7")
    R("s_add_u32 s15, s15, s16")
    for hg in range(8):
        R(f"s_waitcnt vmcnt({7-hg})")
        for k in range(4):
            src = 8 + 4*hg + k
            if hg == 0:
                R(f"v_lshlrev_b32 v{40+2*k}, 16, v{src}")
                R(f"v_and_b32 v{41+2*k}, 0xffff0000, v{src}")
            else:
                R(f"v_lshlrev_b32 v48, 16, v{src}")
                R(f"v_and_b32 v49, 0xffff0000, v{src}")
                R(f"v_add_f32 v{40+2*k}, v{40+2*k}, v48")
                R(f"v_add_f32 v{41+2*k}, v{41+2*k}, v49")
    for k in range(4):
        R(f"v_cvt_pk_bf16_f32 v{52+k}, v{40+2*k}, v{41+2*k}")
    R("buffer_store_dwordx4 v[52:55], v7, s[24:27], s15 offen")
    if P.DBG:
        R("s_and_b32 s44, s2, 31")
        R("s_cmp_lg_u32 s44, 31")
        R("s_cbranch_scc1 L_rend")
        R("v_readfirstlane_b32 s44, v1")
        R("s_cmp_lg_u32 s44, 0")
        R("s_cbranch_scc1 L_rend")
        R("s_waitcnt vmcnt(0)")
        R("s_memrealtime s[42:43]")
        R("s_sub_u32 s36, s32, 512")
        R("s_subb_u32 s37, s33, 0")
        R("s_and_b32 s37, s37, 0xffff")
        R("s_mov_b32 s38, 256")
        R("s_mov_b32 s39, 0x20000")
        R("s_and_b32 s33, s33, 0xffff")
        R("s_mov_b32 s34, 256")
        R("s_mov_b32 s35, 0x20000")
        R("v_lshlrev_b32 v0, 2, v0")
        R("buffer_load_dword v1, v0, s[36:39], 0 offen")
        R("s_waitcnt vmcnt(0) lgkmcnt(0)")
        R("s_not_b32 s40, s40")
        R("v_writelane_b32 v1, s40, 10")
        R("v_writelane_b32 v1, s42, 11")
        R("v_cmp_gt_u32 vcc, 48, v0")
        R("s_and_saveexec_b64 s[44:45], vcc")
        R("buffer_atomic_umax v1, v0, s[32:35], 0 offen")
        R("s_waitcnt vmcnt(0)")
    em.label("L_rend")
    R("s_endpgm")
    em.label("L_code_end")

def build():
    ref = open(f"cdna_kernels/{NAME}.s.ref").read().splitlines()
    head = [l for l in ref if l.startswith(";") and "@launch" not in l]
    em = Em()
    if P.FUSE:
        P.STPOL = " sc1" if P.STPOL == " nt" else P.STPOL
        P.RDPOL = " sc1" if P.RDPOL == " nt" else P.RDPOL
    gen_main(em)
    if not P.FUSE: gen_reduce(em)
    out = []
    out += head
    if P.FUSE:
        out.append(f"; @launch grid=(256,1,1) block=(256,1,1) lds={LDS_BYTES}")
    else:
        out.append(f"; @launch kernel={NAME}_kernel grid=(256,1,1) block=(256,1,1) lds={LDS_BYTES}")
        out.append(f"; @launch kernel=reduce_kernel grid=(768,1,1) block=(256,1,1) lds=0")
    out.append('.amdgcn_target "amdgcn-amd-amdhsa--gfx950"')
    out.append(".text")
    out.append(f".globl {NAME}_kernel")
    out.append(".p2align 8")
    out.append(f".type {NAME}_kernel,@function")
    out.append(em.text())
    out.append('.section .rodata,"a"')
    for (k, nv, ao) in ((f"{NAME}_kernel", 512, 256), ("reduce_kernel", 64, 64))[:1 if P.FUSE else 2]:
        out.append(".p2align 6")
        out.append(f".amdhsa_kernel {k}")
        out.append(f"  .amdhsa_next_free_vgpr {nv}")
        out.append("  .amdhsa_next_free_sgpr 102")
        out.append(f"  .amdhsa_accum_offset {ao}")
        out.append("  .amdhsa_group_segment_fixed_size 0")
        out.append("  .amdhsa_kernarg_size 104")
        out.append("  .amdhsa_user_sgpr_count 2")
        out.append("  .amdhsa_user_sgpr_kernarg_segment_ptr 1")
        out.append("  .amdhsa_system_sgpr_workgroup_id_x 1")
        out.append(".end_amdhsa_kernel")
    return "\n".join(out) + "\n"

if __name__ == "__main__":
    dst = sys.argv[1] if len(sys.argv) > 1 else f"cdna_kernels/{NAME}.s"
    for a in sys.argv[2:]:
        k, v = a.split("=")
        cur = getattr(P, k)
        setattr(P, k, type(cur)(v) if not isinstance(cur, str) else (" " + v.replace("+", " ") if v else ""))
    open(dst, "w").write(build())
```

```python
from em import *
import math

class Frag:
    def __init__(self, reads, gate=None):
        self.reads = reads
        self.gate = gate
class MItem:
    def __init__(self, kind, D=None, B=None, acc=True, frag=None, texts=None, rd=(), wr=(), drain=False, A=None, C=None):
        self.kind = kind
        self.D = D; self.B = B; self.acc = acc; self.frag = frag; self.A = A; self.C = C
        self.texts = texts or []
        self.rd = list(rd); self.wr = list(wr)
        self.drain = drain
        self.hoist = 0
        if kind == 'mfma':
            self.rd = list(B) + (list(D) if acc else []) + (list(A) if A else []) + (list(C) if C else [])
            self.wr = list(D)

def cost(op):
    return {'trans': 2, 'dma': 3}.get(op.kind, 1) * op.cost

def schedule(em, seq, frags, stage_base, NS, LA, budget=6.0, raw_delay=2, frag0=0, verbose=False, pair=True):
    import os
    if os.environ.get("MEMONLY"):
        pace = int(os.environ["MEMONLY"])
        n = 0
        for x in seq:
            if isinstance(x, MItem):
                if x.kind == 'bar':
                    for t in x.texts: em.raw(t)
                elif pace > 1:
                    n += 1
                    if n % 4 == 0: em.raw(f"s_sleep {pace-1}")
            elif x.kind in ('salu', 'm0', 'dma') or (x.kind == 'raw' and not getattr(x, 'noraw', False)):
                em.emit(x)
            elif x.kind == 'raw':
                em.lines.append(x.text.split("\n")[-1])
        return 0
    M = [x for x in seq if isinstance(x, MItem)]
    VL = [x for x in seq if not isinstance(x, MItem)]
    mi = 0; vi = 0
    lastw_m = {}; lastr_m = {}; lastw_v = {}; lastr_v = {}
    depM = [(-1, -1)] * len(VL)
    depV = [-1] * len(M)
    for x in seq:
        if isinstance(x, MItem):
            d = -1
            for r in x.rd:
                d = max(d, lastw_v.get(r, -1))
            for w in x.wr:
                d = max(d, lastw_v.get(w, -1), lastr_v.get(w, -1))
            depV[mi] = d
            for r in x.rd: lastr_m[r] = mi
            for w in x.wr: lastw_m[w] = mi
            mi += 1
        else:
            raw = -1; anyd = -1
            for r in x.rd:
                j = lastw_m.get(r, -1)
                if j >= 0 and M[j].kind == 'mfma': raw = max(raw, j)
                anyd = max(anyd, j)
            for w in x.wr:
                j = lastw_m.get(w, -1)
                if j >= 0 and M[j].kind == 'mfma': raw = max(raw, j)
                anyd = max(anyd, j, lastr_m.get(w, -1))
            depM[vi] = (raw, anyd)
            for r in x.rd: lastr_v[r] = vi
            for w in x.wr: lastw_v[w] = vi
            vi += 1
    for i in range(1, len(M)):
        depV[i] = max(depV[i], depV[i-1])
    dl = [len(M)] * len(VL)
    j = 0
    for i in range(len(M)):
        while j <= depV[i]:
            dl[j] = i; j += 1
    cum = [0.0]
    for v in VL: cum.append(cum[-1] + cost(v))
    first_use = {}; last_use = {}
    for i, m in enumerate(M):
        if m.kind == 'mfma' and m.frag is not None:
            first_use.setdefault(m.frag, i); last_use[m.frag] = i
    forder = sorted(first_use, key=lambda f: first_use[f])
    fidx = {f: k for k, f in enumerate(forder)}
    gates_done = set()
    nf = 0
    def stage(f):
        b = stage_base + 4 * ((fidx[f] + frag0) % NS)
        return V(b, 4)
    def emit_reads(cur, la=None):
        nonlocal nf
        n = 0
        while nf < len(forder):
            f = forder[nf]
            if first_use[f] - cur > (LA if la is None else la): break
            k = fidx[f]
            if k >= NS and last_use[forder[k - NS]] >= cur: break
            g = frags[f].gate
            if g is not None and g not in gates_done: break
            st = stage(f)
            for (kind, addr, off, sub) in frags[f].reads:
                if kind == 'b128':
                    em.emit(dsr128(st, addr, off))
                else:
                    em.emit(dstr(st[sub:sub+2], addr, off))
                n += 1
            nf += 1
        return n
    vi = 0
    for i, m in enumerate(M):
        while vi <= depV[i]:
            em.emit(VL[vi]); vi += 1
        if m.kind == 'bar':
            if m.hoist:
                emit_reads(i + 1, la=m.hoist - 1)
                for k in range(i + 1, i + 1 + m.hoist):
                    assert M[k].frag is None or fidx[M[k].frag] < nf, "hoist: frag not read"
                em.wait_ds(0)
            if m.drain: em.wait_ds(0)
            for t in m.texts: em.raw(t)
            for w in m.wr: gates_done.add(w)
            emit_reads(i + 1)
            continue
        if m.frag is not None:
            while nf <= fidx[m.frag]:
                before = nf
                emit_reads(i)
                assert nf > before, ("frag reads blocked", i, m.frag, frags[m.frag].gate)
            A = stage(m.frag)
        else:
            A = m.A
        if pair and m.frag is not None and any(set(A) & d for d in em.ds):
            k = fidx[m.frag] + 1
            if k < nf:
                em.wait_regs(list(A) + stage(forder[k]))
        C = m.C if m.C is not None else (m.D if m.acc else None)
        em.emit(mfma(m.D, A, m.B, C))
        used = emit_reads(i + 1)
        need = 0.0
        seen = set()
        for k in range(vi, len(VL)):
            d = dl[k]
            if d in seen: pass
            gaps = max(1, d - i)
            if k + 1 == len(VL) or dl[k+1] != d:
                need = max(need, (cum[k+1] - cum[vi]) / gaps)
        q = max(need, 0.0)
        q = min(max(q, budget - used), max(need, budget))
        spent = 0.0
        while vi < len(VL) and spent + cost(VL[vi]) <= q + 0.5:
            raw, anyd = depM[vi]
            if anyd > i: break
            if raw >= 0 and raw > i - raw_delay: break
            em.emit(VL[vi]); spent += cost(VL[vi]); vi += 1
    while vi < len(VL):
        em.emit(VL[vi]); vi += 1
    return (len(forder) + frag0) % NS
```

```python
import sys, struct
from em import *
from sched import *

NAME = "concat_heads__gqa_block_cached__gqa_block_cached__near_ridge"
SL = 16640
K0, V0, WO0, WQ0, QB = 0, 2*SL, 4*SL, 6*SL, 8*SL
LDS_BYTES = 163840
M0_NULL = 0x30000
WLOC = [3*SL, 4*SL, QB, 3*SL, 4*SL, 2*SL, 5*SL, QB]
C_SCALE = 1.4426950408889634 / (128 ** 0.5)
def f32bits(x): return struct.unpack("<I", struct.pack("<f", x))[0]

sK, sV, sWQ, sWO, sX, sWS = 8, 12, 16, 20, 24, 28
sWAVE, sC, sTHR, sCNT = 32, 33, 34, 35
sM0W, sM0K, sM0V, sM0N = 36, 37, 38, 39
sT, sKOFF, sVOFF, sWOOFF, sWQCOL, sTMP = 40, 41, 42, 43, 44, 45
sPF, sWOCUR = 75, 76
sC2 = 58
sROT, sSW, sWQLIN = 72, 73, 74
def srd(b): return f"s[{b}:{b+3}]"

aK, aV, aWO, aQB, vKV = 1, 2, 3, 4, 5
LA_, LB_, vLIN, DELTA = 7, 8, 9, 10
ALPHA = 11
T0, T1, T2, T3 = 11, 12, 13, 14
AUX = 15
STG = 16; NS = 8
OACC, QR, OP = 48, 112, 144
SR = [176, 208]
NEGM = 240
w_vlin, w_vwq, w_aWQ, w_aQB, w_aX = 2, 3, 4, 1, 7
W_STG = 16; W_NS = 4
W_ACC = 32
def XF3(mt, ks):
    if mt < 2: return AG(mt * 128 + ks * 4, 4)
    return V(128 + ks * 4, 4)
def XFA(ks):
    return V(48 + ks * 4, 4) if ks < 16 else V(144 + (ks - 16) * 4, 4)

class P:
    LA = 5
    BUDGET = 6.0
    W_LA = 6
    W_BUDGET = 6.0
    W_SPLIT = 30
    KVPOL = " nt"
    WPOL = ""
    WOPOL = "same"
    XPOL = ""
    STPOL = " nt"
    RDPOL = " nt"
    THR = 8.0
    STAMP = 0
    CYC = 0
    PAIR = 1
    NODMA = 0
    WOQ = 1
    PKMUL = 0
    W3FIRST = 1
    FUSE = 0
    SPIN = 200000
    PSLEEP = 4
    OUTPOL = ""
    CPF = 1
    WOPF = 0
    PFT = 0
    ROT = 1
    W4_1 = 10
    W4_2 = 30
    W_SPLITZ = 14
    DMAFIRST = 0
    DEVERY = 3
    PLAN = 0
    W_PRE = 8
    HOIST = 3
    VMA = 8
    DBG = 0

def wopol(): return P.WPOL if P.WOPOL == "same" else P.WOPOL
gate_ctr = [1000]
def newgate():
    gate_ctr[0] += 1
    return gate_ctr[0]

STV = 6
def stamp_txt():
    if not P.STAMP: return []
    return [("s_memtime s[96:97]" if P.CYC else "s_memrealtime s[96:97]"), "s_min_u32 m0, s98, 63", "s_waitcnt lgkmcnt(0)",
            f"v_writelane_b32 v{STV}, s96, m0", "s_add_u32 s98, s98, 1"]
def stamp(em):
    if P.STAMP:
        em.wait_ds(0)
        for t in stamp_txt(): em.raw(t)
def stamp_store(em):
    if not P.STAMP: return
    R = em.raw
    R("s_lshl_b32 s3, s2, 2")
    R(f"s_add_u32 s3, s3, s{sWAVE}")
    R("s_lshl_b32 s3, s3, 8")
    R("s_add_u32 s92, s70, 0x2000000")
    R("s_addc_u32 s93, s71, 0")
    R("s_and_b32 s93, s93, 0xffff")
    R("s_mov_b32 s94, 0x40000")
    R("s_mov_b32 s95, 0x20000")
    R("v_lshlrev_b32 v0, 2, v0")
    R(f"buffer_store_dword v{STV}, v0, s[92:95], s3 offen")
def bar(gate, pre=(), rd=(), drain=False, st=0):
    s1 = stamp_txt() if (st and P.STAMP >= st) else []
    s2 = stamp_txt() if (st and P.STAMP >= 2) else []
    return MItem('bar', texts=s2 + list(pre) + ["s_barrier"] + s1, rd=rd, wr=[gate], drain=drain or bool(s1))

def v3(op, d, a, b, c):
    return valu(f"{op} v{d}, v{a}, v{b}, v{c}", [a, b, c], [d])
def salu(text, rd=(), wr=()):
    return Op('salu', text, rd=rd, wr=wr, cost=text.count("\n") + 1)

def interleave(main, extra, start=0, every=3):
    out = []; e = list(extra)
    for i, o in enumerate(main):
        out.append(o)
        if e and i >= start and (i - start) % every == every - 1:
            out.append(e.pop(0))
    return out + e

def maxtree_ops(S):
    ops = []
    T = [T0, T1, T2, T3]
    for k in range(4): ops.append(v3("v_max3_f32", T[k], S+8*k, S+8*k+1, S+8*k+2))
    for k in range(4): ops.append(v3("v_max3_f32", T[k], T[k], S+8*k+3, S+8*k+4))
    for k in range(4): ops.append(v3("v_max3_f32", T[k], T[k], S+8*k+5, S+8*k+6))
    ops.append(v3("v_max3_f32", T0, T0, S+7, T1))
    ops.append(v3("v_max3_f32", T2, T2, S+23, T3))
    ops.append(v3("v_max3_f32", T0, T0, S+15, S+31))
    ops.append(valu(f"v_max_f32 v{T0}, v{T0}, v{T2}", [T0, T2], [T0]))
    ops.append(valu(f"v_mov_b32 v{T1}, v{T0}", [T0], [T1]))
    ops.append(valu(f"v_permlane32_swap_b32 v{T0}, v{T1}", [T0, T1], [T0, T1], kind='perm'))
    ops.append(valu(f"v_max_f32 v{DELTA}, v{T0}, v{T1}", [T0, T1], [DELTA]))
    return ops

def first_tile_ops(S):
    ops = []
    for i in range(16):
        ops.append(valu(f"v_sub_f32 v{NEGM+i}, 0, v{DELTA}", [DELTA], [NEGM+i]))
    for i in range(32):
        ops.append(valu(f"v_sub_f32 v{S+i}, v{S+i}, v{DELTA}", [S+i, DELTA], [S+i]))
    return ops

rare_blocks = []
def check_op(S, tag):
    regs = V(S, 32) + V(NEGM, 16) + V(OACC, 64) + [LA_, LB_, DELTA, ALPHA]
    rare_blocks.append((S, tag))
    t = f"v_cmp_lt_f32 vcc, s{sTHR}, v{DELTA}\n    s_cbranch_vccnz L_rare_{tag}\nL_back_{tag}:"
    op = Op('raw', t, rd=regs, wr=regs, cost=2)
    op.noraw = True
    return op
def emit_rare(em):
    R = em.raw
    for (S, tag) in rare_blocks:
        em.label(f"L_rare_{tag}")
        R("s_nop 15")
        R(f"v_max_f32 v{DELTA}, 0, v{DELTA}")
        R(f"v_sub_f32 v{ALPHA}, 0, v{DELTA}")
        R(f"v_exp_f32 v{ALPHA}, v{ALPHA}")
        for i in range(32): R(f"v_sub_f32 v{S+i}, v{S+i}, v{DELTA}")
        for i in range(16): R(f"v_sub_f32 v{NEGM+i}, v{NEGM+i}, v{DELTA}")
        for i in range(64): R(f"v_mul_f32 v{OACC+i}, v{ALPHA}, v{OACC+i}")
        R(f"v_mul_f32 v{LA_}, v{ALPHA}, v{LA_}")
        R(f"v_mul_f32 v{LB_}, v{ALPHA}, v{LB_}")
        R("s_nop 3")
        R(f"s_branch L_back_{tag}")

def exp_ops(S, first):
    def ex(i): return valu(f"v_exp_f32 v{S+i}, v{S+i}", [S+i], [S+i], kind='trans')
    def add(i):
        l = LA_ if i % 2 == 0 else LB_
        if i < 2 and first: return valu(f"v_mov_b32 v{l}, v{S+i}", [S+i], [l])
        return valu(f"v_add_f32 v{l}, v{l}, v{S+i}", [l, S+i], [l])
    def cvt(k): return valu(f"v_cvt_pk_bf16_f32 v{S+k}, v{S+2*k}, v{S+2*k+1}", [S+2*k, S+2*k+1], [S+k])
    out = []
    for k in range(17):
        if k < 16: out.append(ex(2*k))
        if k > 0: out.append(add(2*k-2))
        if k < 16: out.append(ex(2*k+1))
        if k > 0:
            out.append(add(2*k-1)); out.append(cvt(k-1))
    return out

def finalize_ops():
    ops = []
    ops.append(valu(f"v_add_f32 v{T2}, v{LA_}, v{LB_}", [LA_, LB_], [T2]))
    ops.append(valu(f"v_mov_b32 v{T3}, v{T2}", [T2], [T3]))
    ops.append(valu(f"v_permlane32_swap_b32 v{T2}, v{T3}", [T2, T3], [T2, T3], kind='perm'))
    ops.append(valu(f"v_add_f32 v{T2}, v{T2}, v{T3}", [T2, T3], [T2]))
    ops.append(valu(f"v_rcp_f32 v{AUX}, v{T2}", [T2], [AUX], kind='trans'))
    for k in range(33):
        if k < 32:
            a, b = OACC + 2*k, OACC + 2*k + 1
            ops.append(valu(f"v_mul_f32 v{a}, v{AUX}, v{a}", [AUX, a], [a]))
            ops.append(valu(f"v_mul_f32 v{b}, v{AUX}, v{b}", [AUX, b], [b]))
        if k > 0:
            kk = k - 1
            ops.append(valu(f"v_cvt_pk_bf16_f32 v{OP+kk}, v{OACC+2*kk}, v{OACC+2*kk+1}", [OACC+2*kk, OACC+2*kk+1], [OP+kk]))
    return ops

def qk_items(frags, Sdst, kslot, gate, negm):
    it = []
    for sub in range(2):
        for ks in range(8):
            frags.append(Frag([('b128', aK, K0 + kslot*SL + sub*512 + ks*32, 0)], gate))
            it.append(MItem('mfma', D=V(Sdst + 16*sub, 16), B=V(QR + 4*ks, 4), acc=(ks != 0), frag=len(frags)-1,
                            C=(V(NEGM, 16) if (ks == 0 and negm) else None)))
    return it
def opj_item(frags, ks, nt, woff, gate, addr):
    frags.append(Frag([('tr', addr, woff + t*2080 + nt*64, 2*t) for t in range(2)], gate))
    return MItem('mfma', D=AG(16*nt, 16), B=V(OP + 4*ks, 4), acc=True, frag=len(frags)-1)
def opj_items(frags, ks, woff, gate, addr=aWO):
    return [opj_item(frags, ks, nt, woff, gate, addr) for nt in range(16)]
def pv_items(frags, S, vslot, gate, first):
    it = []
    for s in range(4):
        for dt in range(4):
            frags.append(Frag([('tr', aV, vslot*SL + t*2080 + s*256 + dt*64, 2*t) for t in range(2)], gate))
            it.append(MItem('mfma', D=V(OACC + 16*dt, 16), B=V(S + 4*s, 4), acc=not (first and s == 0), frag=len(frags)-1))
    return it

def dma_pair(m0txt, voff, srdb, soff, off, pol, rd=(), wr=()):
    a = Op('m0', m0txt, rd=rd)
    b = Op('dma', f"buffer_load_dwordx4 v{voff}, {srd(srdb)}, {soff} offen" + (f" offset:{off}" if off else "") + f"{pol} lds", wr=wr)
    return [a, b]

def kvq_ops(slotbase, srdb, offreg, m0reg, lim, gate, done):
    if P.NODMA in (1, 3): lim = -100
    ops = [salu(f"s_cmp_le_i32 s{sT}, {lim}\n    s_cselect_b32 s{srdb+2}, 0x80000, 0\n    s_cselect_b32 s{m0reg}, s{sM0W}, s{sM0N}", rd=[gate])]
    for i in range(4):
        ops += dma_pair(f"s_add_u32 m0, s{m0reg}, {slotbase + 16*i}", vKV, srdb, f"s{offreg}", 1024*i, P.KVPOL)
    ops.append(salu(f"s_add_u32 s{offreg}, s{offreg}, 16384\n    s_and_b32 s{offreg}, s{offreg}, 0x7ffff", wr=[done]))
    return ops

def woq_ops(slotbase, lin):
    lim = 100 if P.NODMA in (1, 2) else 6
    ops = [salu(f"s_cmp_ge_i32 s{sT}, {lim}\n    s_cselect_b32 s{sWO+2}, 0x80000, 0")]
    for i in range(4):
        pr = dma_pair(f"s_add_u32 m0, s{sM0W}, {slotbase + 1040*i}", lin, sWO, f"s{sTMP}", 0, wopol())
        pr.insert(1, salu(f"s_add_u32 s{sTMP}, s{sWOOFF}, {4096*i}"))
        ops += pr
    ops.append(salu(f"s_add_u32 s{sWOOFF}, s{sWOOFF}, 16384\n    s_and_b32 s{sWOOFF}, s{sWOOFF}, 0x7ffff"))
    return ops

def insert_hoisted(seq, b, H):
    if H == 0:
        seq.append(b); return
    n = 0; i = len(seq)
    while n < H:
        i -= 1
        if isinstance(seq[i], MItem):
            assert seq[i].kind == 'mfma'
            n += 1
    b.hoist = H
    seq.insert(i, b)

def attention_head(em):
    seq = []; frags = []
    dA_prev = None
    Z3 = P.PLAN in (2, 4, 5)
    QZ = P.PLAN in (4, 5)
    KVA = P.PLAN == 4
    for j in range(8):
        p = j % 2
        gA = newgate(); gB = newgate(); dB = newgate(); dA = newgate(); gZ = newgate()
        WOQ = P.WOQ and P.PLAN == 0
        VW = "s_waitcnt vmcnt(12)" if WOQ else "s_waitcnt vmcnt(8)"
        b = bar(gB, pre=[VW], rd=[dA_prev] if dA_prev else [], st=2)
        insert_hoisted(seq, b, P.HOIST if j > 0 else 0)
        if not KVA:
            kq = kvq_ops(K0 + p*SL, sK, sKOFF, sM0K, 28, gB, newgate())
            if WOQ: kq += woq_ops(WO0 + (1-p)*SL, vLIN)
            kq.append(salu(f"s_add_u32 s{sT}, s{sT}, 1", wr=[dB]))
        else:
            kq = [salu(f"s_add_u32 s{sT}, s{sT}, 1", rd=[gB], wr=[dB])]
        mt = maxtree_ops(SR[p])
        if j == 0: mt += first_tile_ops(SR[p])
        seq += interleave(mt, kq, every=1 if WOQ else 2)
        seq += pv_items(frags, SR[1-p], 1-p, gB, j == 1)
        insert_hoisted(seq, bar(gA, pre=[] if Z3 else [VW], rd=[dB], st=1), P.HOIST)
        vq = kvq_ops(V0 + (1-p)*SL, sV, sVOFF, sM0V, 30, gA, dA)
        if KVA:
            vq = kvq_ops(K0 + p*SL, sK, sKOFF, sM0K, 29, gA, newgate()) + vq
        pre = finalize_ops() if j == 0 else [check_op(SR[p], f"{j}")]
        qrd = []
        if j == 7:
            for ks in range(8):
                op = dsr128(V(QR + 4*ks, 4), aQB, ks*1024)
                op.rd.append(gZ if QZ else gA)
                qrd.append(op)
            if not QZ:
                pre += qrd; qrd = []
        if P.DMAFIRST:
            seq += interleave(vq, pre, every=2) if j == 0 else (vq + pre)
            ex = exp_ops(SR[p], j == 0)
        else:
            seq += pre
            ex = interleave(exp_ops(SR[p], j == 0), vq, every=P.DEVERY)
        if Z3:
            ms = opj_items(frags, j, p*SL, gA)
            insert_hoisted(ms, bar(gZ, pre=["s_waitcnt vmcnt(12)"], rd=[dA]), P.HOIST + (2 if qrd else 0))
            h = len(ex) if not qrd else max(len(ex) * 2 // 5, 1 + max(k for k, o in enumerate(ex) if dA in o.wr) if not P.DMAFIRST else 0)
            seq += ex[:h] + ms + qrd + ex[h:]
            seq += qk_items(frags, SR[1-p], 1-p, gZ, j != 7)
        else:
            if j == 0:
                ms = qk_items(frags, SR[1-p], 1-p, gA, True) + opj_items(frags, j, p*SL, gA)
            else:
                ms = opj_items(frags, j, p*SL, gA) + qk_items(frags, SR[1-p], 1-p, gA, j != 7)
            seq += ex + ms
        dA_prev = dA
    schedule(em, seq, frags, STG, NS, P.LA, budget=P.BUDGET, pair=P.PAIR)

def perm16(j): return 4*(j % 4) + j // 4

def dma_kv_full(slotbase, srdb, soff):
    ops = []
    for j in range(16):
        ops += dma_pair(f"s_mov_b32 m0, {slotbase + 1040*j - perm16(j)*256}", vKV, srdb, soff, perm16(j)*256, P.KVPOL)
    return ops
def dma_wo(slotbase, soffreg):
    ops = []
    for jj in range(4):
        for jh in range(4):
            j = jh*4 + jj
            pr = dma_pair(f"s_mov_b32 m0, {slotbase + 1040*j - jh*1024}", w_vlin, sWO, f"s{sTMP}", jh*1024, wopol())
            if jh == 0: pr.insert(1, salu(f"s_add_u32 s{sTMP}, s{soffreg}, {jj*4096}"))
            ops += pr
    return ops
def dma_wq(slotbase, colreg, const):
    ops = []
    for j in range(16):
        pr = dma_pair(f"s_mov_b32 m0, {slotbase + 1040*j}", w_vwq, sWQ, f"s{sTMP+1}", 0, P.WPOL)
        pr.insert(1, salu(f"s_add_u32 s{sTMP+1}, s{colreg}, {const + perm16(j)*8192}"))
        ops += pr
    return ops

loop_ctr = [0]
def tile_loop(kind, lds, soff_txt, srdb=None, voff=None, pol=""):
    loop_ctr[0] += 1
    L = f"L_tl{loop_ctr[0]}"
    A, B, C = 99, sTMP, 100
    t = [soff_txt, f"s_mov_b32 s{A}, {lds}", f"s_mov_b32 s{C}, 4", f"{L}:"]
    for i in range(4):
        if kind == 'wo':
            t += [f"s_add_u32 m0, s{A}, {3136*i}", "s_nop 0", f"buffer_load_dwordx4 v{w_vlin}, {srd(sWO)}, s{B} offen offset:{1024*i}{wopol()} lds"]
        elif kind == 'kv':
            t += [f"s_add_u32 m0, s{A}, {16*i}", "s_nop 0", f"buffer_load_dwordx4 v{vKV}, {srd(srdb)}, s{B} offen offset:{1024*i}{P.KVPOL} lds"]
        elif kind == 'x':
            t += [f"s_add_u32 m0, s{A}, {16*i}", "s_nop 0", f"buffer_load_dwordx4 v9, {srd(sX)}, s{B} offen offset:{1024*i}{P.XPOL} lds"]
        elif kind == 'wq':
            t += [f"s_add_u32 m0, s{A}, {1040*i}", f"s_add_u32 s{sTMP+1}, s{B}, {32768*i}", f"buffer_load_dwordx4 v{w_vwq}, {srd(sWQ)}, s{sTMP+1} offen{P.WPOL} lds"]
    da, db = {'wo': (1040, 4096), 'kv': (4160, 256), 'x': (4160, 4096), 'wq': (4160, 8192)}[kind]
    t += [f"s_add_u32 s{A}, s{A}, {da}", f"s_add_u32 s{B}, s{B}, {db}", f"s_sub_u32 s{C}, s{C}, 1", f"s_cmp_lg_u32 s{C}, 0", f"s_cbranch_scc1 {L}"]
    txt = "\n".join((x if x.endswith(":") else "    " + x) for x in t).lstrip()
    op = Op('raw', txt); op.ndma = 16
    return [op]

def qproj_items(frags, addr, base, gate, kq, acc_regs, xfrag, nmt):
    it = []
    for dt2 in range(2):
        for ks in range(8):
            frags.append(Frag([('tr', addr, base + t*1040 + ks*128 + dt2*64, 2*t) for t in range(2)], gate))
            for mt in range(nmt):
                it.append(MItem('mfma', D=acc_regs(dt2, mt), B=xfrag(mt, kq*8 + ks), acc=not (kq == 0 and ks == 0), frag=len(frags)-1))
    return it

def scale_cvt(a, dst):
    ops = []
    for k in range(9):
        if k < 8:
            if P.PKMUL:
                ops.append(valu(f"v_pk_mul_f32 v[{a+2*k}:{a+2*k+1}], v[{a+2*k}:{a+2*k+1}], s[{sC2}:{sC2+1}]", [a+2*k, a+2*k+1], [a+2*k, a+2*k+1]))
            else:
                ops.append(valu(f"v_mul_f32 v{a+2*k}, s{sC}, v{a+2*k}", [a+2*k], [a+2*k]))
                ops.append(valu(f"v_mul_f32 v{a+2*k+1}, s{sC}, v{a+2*k+1}", [a+2*k+1], [a+2*k+1]))
        if k > 0:
            kk = k - 1
            ops.append(valu(f"v_cvt_pk_bf16_f32 v{dst+kk}, v{a+2*kk}, v{a+2*kk+1}", [a+2*kk, a+2*kk+1], [dst+kk]))
    return ops

nonce_ctr = [0]
def nonce_op():
    nonce_ctr[0] += 1
    L = f"L_nn{nonce_ctr[0]}"
    t = (f"s_cmp_lg_u32 s{sT}, s94\n    s_cbranch_scc1 {L}\n    s_mov_b64 exec, 1\n"
         f"    buffer_atomic_cmpswap v[12:13], v14, s[84:87], 0 offen sc0 sc1\n    s_mov_b64 exec, -1\n{L}:")
    return [salu(t)] if P.FUSE else []

def wo_sel():
    lim = 100 if P.NODMA in (1, 2) else 6
    t = f"s_cmp_ge_i32 s{sT}, {lim}\n    s_cselect_b32 s{sWO+2}, 0x80000, 0\n    s_cselect_b32 s{sWOCUR}, s{sWOOFF}, s{sPF}"
    ops = nonce_op() + [salu(t)]
    if P.WOPF and not P.NODMA:
        ops.append(salu(f"s_sub_u32 s{sTMP}, s{sT}, {P.PFT-1}\n    s_cmp_lt_u32 s{sTMP}, 2\n    s_cselect_b32 s{sWO+2}, 0x80000, s{sWO+2}\n    s_cselect_b32 s{sTMP}, 16384, 0\n    s_add_u32 s{sPF}, s{sPF}, s{sTMP}"))
    return ops

def w3_acc(dt2, mt): return V(W_ACC + (dt2*3 + mt)*16, 16)
def w3_cv(dt2):
    ops = []
    for mt in range(3):
        a = w3_acc(dt2, mt)[0]
        ops += scale_cvt(a, a)
        for s2 in range(2):
            ops.append(dsw128(w_aQB, V(a + 4*s2, 4), mt*8192 + (dt2*2 + s2)*1024))
    return ops

def wave3_body(em):
    seq = []; frags = []
    lastB = None
    for kq in (1, 2, 3, 0):
        par = kq % 2
        gA = newgate(); gB = newgate(); dA = newgate(); dB = newgate(); gW = newgate(); dW = newgate()
        rdA = [lastB] if lastB else []
        wq = [salu(f"s_cmp_le_i32 s{sT}, {-100 if P.NODMA in (1, 2) else 20}\n    s_cselect_b32 s{sWQ+2}, s{sTMP+2}, 0")]
        if kq == 3:
            wq.append(salu(f"s_add_u32 s{sWQLIN}, s{sWQLIN}, 128\n    s_and_b32 s{sWQLIN}, s{sWQLIN}, 1023\n    s_xor_b32 s{sWQCOL}, s{sWQLIN}, s{sSW}"))
        wq += dma_wq(WQ0 + (1-par)*SL, sWQCOL, ((kq+1) % 4) * 128 * 8192)
        wo = wo_sel() + dma_wo(WO0 + par*SL, sWOCUR)
        wo.append(salu(f"s_add_u32 s{sWOOFF}, s{sWOOFF}, 16384\n    s_and_b32 s{sWOOFF}, s{sWOOFF}, 0x7ffff\n    s_add_u32 s{sT}, s{sT}, 1", wr=[dB]))
        vq = kvq_ops(V0 + (1-par)*SL, sV, sVOFF, sM0V, 30, gA, dA)
        if P.PLAN == 0:
            A = wq + vq; A[0].rd.append(gA)
            if P.WOQ:
                wo = nonce_op() + woq_ops(WO0 + par*SL, w_vlin) + [salu(f"s_add_u32 s{sT}, s{sT}, 1", wr=[dB])]
            B = kvq_ops(K0 + (1-par)*SL, sK, sKOFF, sM0K, 28, gB, newgate()) + wo
            wA, wB, nA = (28, 28, P.W_PRE) if P.WOQ else (40, 40, P.W_PRE)
            wW = (12 if P.WOQ else 24) + nA
        elif P.PLAN == 2:
            gZ = newgate(); dZ = newgate()
            A = wq + vq; A[0].rd.append(gA)
            Z = wo[:-1] + [salu(f"s_add_u32 s{sWOOFF}, s{sWOOFF}, 16384\n    s_and_b32 s{sWOOFF}, s{sWOOFF}, 0x7ffff", wr=[dZ])]; Z[0].rd.append(gZ)
            B = kvq_ops(K0 + (1-par)*SL, sK, sKOFF, sM0K, 28, gB, newgate()) + [salu(f"s_add_u32 s{sT}, s{sT}, 1", wr=[dB])]
            wA, wZ, wB, nA = 44, 60, 56, P.W_PRE
            wW = 24 + nA
        else:
            A = kvq_ops(K0 + par*SL, sK, sKOFF, sM0K, 29, gA, newgate()) + vq
            B = wq + wo; B[0].rd.append(gB)
            wA, wB, nA = 36, 40, 8
            wW = 24
            if P.PLAN == 3:
                gZ = newgate(); dZ = dA; Z = []
                wA, wZ = 40, 44
        seq.append(bar(gA, pre=stamp_txt() + [f"s_waitcnt vmcnt({wA})"], rd=rdA, drain=bool(P.STAMP)))
        items = qproj_items(frags, w_aWQ, par*SL, gW, kq, w3_acc, XF3, 3)
        cut = 0; cnt = 0
        while cnt < nA:
            if A[cut].kind == 'dma': cnt += 1
            cut += 1
        A1 = A[:cut] + [salu("s_nop 0", wr=[dW])]; A2 = A[cut:]
        if kq == 0:
            c = w3_cv(1) + [valu(f"v_xor_b32 v{w_aQB}, 0x1000, v{w_aQB}", [w_aQB], [w_aQB])]
            A2 = interleave(c, A2, every=1)
        seq += A1
        seq.append(MItem('bar', texts=[f"s_waitcnt vmcnt({wW})"], rd=[dW], wr=[gW]))
        seq += A2
        if P.PLAN in (2, 3):
            seq += items[:P.W_SPLITZ]
            seq.append(bar(gZ, pre=[f"s_waitcnt vmcnt({wZ})"], rd=[dA]))
            seq += Z
            seq += items[P.W_SPLITZ:P.W_SPLIT]
            seq.append(bar(gB, pre=[f"s_waitcnt vmcnt({wB})"], rd=[dZ]))
        else:
            seq += items[:P.W_SPLIT]
            seq.append(bar(gB, pre=[f"s_waitcnt vmcnt({wB})"], rd=[dA]))
        if kq == 3:
            B = interleave(B, w3_cv(0), every=1)
        seq += B
        seq += items[P.W_SPLIT:]
        lastB = dB
    schedule(em, seq, frags, W_STG, W_NS, P.W_LA, budget=P.W_BUDGET, pair=False)

def wave3_body4(em):
    seq = []; frags = []
    lastA = None
    for kq in (1, 2, 3, 0):
        par = kq % 2
        gA = newgate(); gB = newgate(); gZ = newgate(); dA = newgate(); dB = newgate(); gW = newgate(); dW = newgate()
        wq = [salu(f"s_cmp_le_i32 s{sT}, {-100 if P.NODMA in (1, 2) else 20}\n    s_cselect_b32 s{sWQ+2}, s{sTMP+2}, 0", rd=[gB])]
        if kq == 3:
            wq.append(salu(f"s_add_u32 s{sWQLIN}, s{sWQLIN}, 128\n    s_and_b32 s{sWQLIN}, s{sWQLIN}, 1023\n    s_xor_b32 s{sWQCOL}, s{sWQLIN}, s{sSW}"))
        wq += dma_wq(WQ0 + (1-par)*SL, sWQCOL, ((kq+1) % 4) * 128 * 8192)
        wo = wo_sel() + dma_wo(WO0 + par*SL, sWOCUR)
        wo.append(salu(f"s_add_u32 s{sWOOFF}, s{sWOOFF}, 16384\n    s_and_b32 s{sWOOFF}, s{sWOOFF}, 0x7ffff\n    s_add_u32 s{sT}, s{sT}, 1", wr=[dB]))
        B = wq + wo
        A = kvq_ops(K0 + (1-par)*SL, sK, sKOFF, sM0K, 29, gA, newgate()) + kvq_ops(V0 + par*SL, sV, sVOFF, sM0V, 30, gA, dA)
        items = qproj_items(frags, w_aWQ, par*SL, gW, kq, w3_acc, XF3, 3)
        seq.append(bar(gB, pre=["s_waitcnt vmcnt(40)"], rd=[lastA] if lastA else []))
        seq.append(MItem('bar', texts=["s_waitcnt vmcnt(24)"], wr=[gW]))
        seq += B
        seq += items[:P.W4_1]
        seq.append(bar(gA, pre=stamp_txt() + ["s_waitcnt vmcnt(40)"], rd=[dB], drain=bool(P.STAMP)))
        if kq == 0:
            c = w3_cv(1) + [valu(f"v_xor_b32 v{w_aQB}, 0x1000, v{w_aQB}", [w_aQB], [w_aQB], ), salu("s_nop 0", wr=[dW])]
            A = A + c
        seq += A
        seq += items[P.W4_1:P.W4_2]
        seq.append(bar(gZ, pre=["s_waitcnt vmcnt(44)"], rd=[dA] + ([dW] if kq == 0 else []), drain=(kq == 0)))
        if kq == 3:
            seq += w3_cv(0)
        seq += items[P.W4_2:]
        lastA = dA
    schedule(em, seq, frags, W_STG, W_NS, P.W_LA, budget=P.W_BUDGET, pair=False)

def wave3_body5(em):
    seq = []; frags = []
    lastB = None
    for kq in range(4):
        par = kq % 2
        gA = newgate(); gB = newgate(); gZ = newgate(); dA = newgate(); dB = newgate(); dZ = newgate(); gW = newgate(); dW = newgate(); dC = newgate()
        wq = [salu(f"s_cmp_le_i32 s{sT}, {-100 if P.NODMA in (1, 2) else 21}\n    s_cselect_b32 s{sWQ+2}, s{sTMP+2}, 0", rd=[gA])]
        if kq == 3:
            wq.append(salu(f"s_add_u32 s{sWQLIN}, s{sWQLIN}, 128\n    s_and_b32 s{sWQLIN}, s{sWQLIN}, 1023\n    s_xor_b32 s{sWQCOL}, s{sWQLIN}, s{sSW}"))
        wq += dma_wq(WQ0 + (1-par)*SL, sWQCOL, ((kq+1) % 4) * 128 * 8192)
        A = wq + kvq_ops(V0 + par*SL, sV, sVOFF, sM0V, 30, gA, dA)
        Z = wo_sel() + dma_wo(WO0 + (1-par)*SL, sWOCUR) + [salu(f"s_add_u32 s{sWOOFF}, s{sWOOFF}, 16384\n    s_and_b32 s{sWOOFF}, s{sWOOFF}, 0x7ffff", wr=[dZ])]
        Z[0].rd.append(gZ)
        B = kvq_ops(K0 + par*SL, sK, sKOFF, sM0K, 28, gB, newgate()) + [salu(f"s_add_u32 s{sT}, s{sT}, 1", wr=[dB])]
        nA = P.W_PRE
        seq.append(bar(gA, pre=stamp_txt() + ["s_waitcnt vmcnt(44)"], rd=[lastB] if lastB else [], drain=bool(P.STAMP)))
        items = qproj_items(frags, w_aWQ, par*SL, gW, kq, w3_acc, XF3, 3)
        cut = 0; cnt = 0
        while cnt < nA:
            if A[cut].kind == 'dma': cnt += 1
            cut += 1
        A1 = A[:cut] + [salu("s_nop 0", wr=[dW])]; A2 = A[cut:]
        if kq == 0:
            c = w3_cv(1) + [valu(f"v_xor_b32 v{w_aQB}, 0x1000, v{w_aQB}", [w_aQB], [w_aQB]), salu("s_nop 0", wr=[dC])]
            A2 = interleave(c, A2, every=1)
        seq += A1
        seq.append(MItem('bar', texts=[f"s_waitcnt vmcnt({24 + nA})"], rd=[dW], wr=[gW]))
        seq += A2
        seq += items[:P.W_SPLITZ]
        seq.append(bar(gZ, pre=["s_waitcnt vmcnt(60)"], rd=[dA] + ([dC] if kq == 0 else []), drain=(kq == 0)))
        seq += Z
        seq += items[P.W_SPLITZ:P.W_SPLIT]
        seq.append(bar(gB, pre=["s_waitcnt vmcnt(56)"], rd=[dZ]))
        if kq == 3:
            B = interleave(w3_cv(0), B, every=2)
        seq += B
        seq += items[P.W_SPLIT:]
        lastB = dB
    schedule(em, seq, frags, W_STG, W_NS, P.W_LA, budget=P.W_BUDGET, pair=False)

class VM:
    def __init__(self, em, init): self.em = em; self.q = list(init)
    def issue(self, tag, ops):
        n = 0
        for o in ops:
            self.em.emit(o)
            if o.kind == 'dma': n += 1
            n += getattr(o, 'ndma', 0)
        self.q.append((tag, n))
    def need(self, *tags):
        last = -1
        for i, (t, n) in enumerate(self.q):
            if t in tags: last = i
        if last >= 0:
            n = sum(c for (_, c) in self.q[last+1:])
            self.em.raw(f"s_waitcnt vmcnt({min(n, 63)})")
            self.q = self.q[last+1:]

def gen_main(em):
    R = em.raw
    em.label(f"{NAME}_kernel")
    R("s_cmp_ge_u32 s2, 256")
    R("s_cbranch_scc1 L_end")
    R("s_load_dwordx8 s[48:55], s[0:1], 0")
    R("s_load_dwordx2 s[56:57], s[0:1], 32")
    R("s_load_dwordx8 s[60:67], s[0:1], 40")
    R("s_load_dwordx2 s[68:69], s[0:1], 72")
    R("s_load_dwordx2 s[70:71], s[0:1], 96")
    if P.CPF:
        R("s_getpc_b64 s[78:79]")
        em.label("L_pc")
        R(f"s_sub_u32 s78, s78, L_pc-{NAME}_kernel")
        R("s_subb_u32 s79, s79, 0")
        R("s_lshr_b32 s3, s2, 3")
        R("s_lshl_b32 s3, s3, 11")
        R("v_lshlrev_b32 v28, 7, v0")
        R("v_add_u32 v28, s3, v28")
        R(f"v_min_u32 v28, L_code_end-{NAME}_kernel-4, v28")
        R("v_cmp_gt_u32 vcc, 16, v0")
        R("s_and_saveexec_b64 s[80:81], vcc")
        R("s_cbranch_execz L_nocpf")
        R("global_load_dword v10, v28, s[78:79]")
        em.label("L_nocpf")
        R("s_mov_b64 exec, s[80:81]")
    R("v_lshrrev_b32 v1, 6, v0")
    R("v_and_b32 v0, 63, v0")
    R(f"v_readfirstlane_b32 s{sWAVE}, v1")
    R("s_and_b32 s3, s2, 7")
    R("s_lshr_b32 s4, s2, 3")
    R("s_lshr_b32 s5, s3, 2")
    R("s_and_b32 s3, s3, 3")
    R("s_lshl_b32 s3, s3, 1")
    R("s_lshr_b32 s6, s4, 4")
    R("s_add_u32 s3, s3, s6")
    R("s_and_b32 s4, s4, 15")
    R(f"s_mov_b32 s{sC}, {f32bits(C_SCALE):#x}")
    R(f"s_mov_b32 s{sC2}, {f32bits(C_SCALE):#x}")
    R(f"s_mov_b32 s{sC2+1}, {f32bits(C_SCALE):#x}")
    R(f"s_mov_b32 s{sTHR}, {f32bits(P.THR):#x}")
    R(f"s_mul_i32 s{sM0W}, s{sWAVE}, 4160")
    R(f"s_mov_b32 s{sM0N}, {M0_NULL:#x}")
    R("s_waitcnt lgkmcnt(0)")
    R("s_cmp_eq_u32 s5, 0")
    for i in range(5):
        R(f"s_cselect_b64 s[{48+2*i}:{49+2*i}], s[{48+2*i}:{49+2*i}], s[{60+2*i}:{61+2*i}]")
    R("s_lshl_b32 s6, s4, 22")
    R("s_lshl_b32 s7, s3, 19")
    R("s_add_u32 s6, s6, s7")
    for (d, p) in ((sK, 50), (sV, 52)):
        R(f"s_add_u32 s{d}, s{p}, s6")
        R(f"s_addc_u32 s{d+1}, s{p+1}, 0")
        R(f"s_and_b32 s{d+1}, s{d+1}, 0xffff")
        R(f"s_mov_b32 s{d+2}, 0x80000")
        R(f"s_mov_b32 s{d+3}, 0x20000")
    R("s_lshl_b32 s6, s3, 10")
    R(f"s_add_u32 s{sWQ}, s54, s6")
    R(f"s_addc_u32 s{sWQ+1}, s55, 0")
    R(f"s_and_b32 s{sWQ+1}, s{sWQ+1}, 0xffff")
    R(f"s_sub_u32 s{sWQ+2}, 0x400000, s6")
    R(f"s_mov_b32 s{sTMP+2}, s{sWQ+2}")
    R(f"s_mov_b32 s{sWQ+3}, 0x20000")
    R(f"s_add_u32 s{sWO}, s56, s7")
    R(f"s_addc_u32 s{sWO+1}, s57, 0")
    R(f"s_and_b32 s{sWO+1}, s{sWO+1}, 0xffff")
    R(f"s_mov_b32 s{sWO+2}, 0x80000")
    R(f"s_mov_b32 s{sWO+3}, 0x20000")
    R("s_mul_i32 s6, s4, 98304")
    R(f"s_add_u32 s{sX}, s48, s6")
    R(f"s_addc_u32 s{sX+1}, s49, 0")
    R(f"s_and_b32 s{sX+1}, s{sX+1}, 0xffff")
    R(f"s_mov_b32 s{sX+2}, 98304")
    R(f"s_mov_b32 s{sX+3}, 0x20000")
    R("s_mul_i32 s6, s2, 98304")
    R(f"s_add_u32 s{sWS}, s70, s6")
    R(f"s_addc_u32 s{sWS+1}, s71, 0")
    R(f"s_and_b32 s{sWS+1}, s{sWS+1}, 0xffff")
    R(f"s_mov_b32 s{sWS+2}, 98304")
    R(f"s_mov_b32 s{sWS+3}, 0x20000")
    R("v_bfe_u32 v20, v0, 2, 2")
    R("v_lshrrev_b32 v21, 5, v0")
    R("v_bfe_u32 v22, v0, 4, 1")
    R("v_and_b32 v23, 1, v0")
    R("v_bfe_u32 v24, v0, 1, 1")
    R("v_lshlrev_b32 v25, 2, v20")
    R("v_lshl_add_u32 v26, v21, 1, v25")
    R("v_mul_u32_u24 v26, 1040, v26")
    R("v_lshl_add_u32 v26, v22, 5, v26")
    R("v_lshl_add_u32 v26, v23, 4, v26")
    R("v_lshl_add_u32 v26, v24, 3, v26")
    R("v_and_b32 v27, 15, v0")
    R("v_mul_u32_u24 v27, 1040, v27")
    R("v_lshl_add_u32 v27, v22, 9, v27")
    R("v_lshl_add_u32 v27, v21, 4, v27")
    R("v_lshrrev_b32 v28, 4, v0")
    R("v_and_b32 v29, 15, v0")
    R("v_lshlrev_b32 v29, 4, v29")
    R(f"v_lshl_add_u32 v{vKV}, v28, 12, v29")
    if P.ROT:
        R(f"s_and_b32 s{sROT}, s4, 3")
        R(f"s_lshl_b32 s{sROT}, s{sROT}, 17")
        R(f"s_bfe_u32 s{sSW}, s4, 0x10002")
        R(f"s_lshl_b32 s{sSW}, s{sSW}, 7")
    else:
        R(f"s_mov_b32 s{sROT}, 0")
        R(f"s_mov_b32 s{sSW}, 0")
    R(f"s_lshl_b32 s{sPF}, s4, 15")
    R(f"s_lshl_b32 s{sVOFF}, s{sWAVE}, 8")
    R(f"s_add_u32 s{sVOFF}, s{sVOFF}, s{sROT}")
    R(f"s_add_u32 s{sKOFF}, s{sVOFF}, {(1 if P.PLAN in (1, 3, 4) else 2)*16384}")
    R(f"s_mov_b32 s{sT}, -1")
    if P.WOQ and P.PLAN == 0:
        R(f"s_lshl_b32 s{sWOOFF}, s{sWAVE}, 10")
        R(f"s_add_u32 s{sWOOFF}, s{sWOOFF}, s{sROT}")
        R(f"s_add_u32 s{sWOOFF}, s{sWOOFF}, {(-7*16384) & 0x7ffff:#x}")
        R(f"s_and_b32 s{sWOOFF}, s{sWOOFF}, 0x7ffff")
    if P.STAMP:
        R("s_mov_b32 s98, 0")
        R(f"v_mov_b32 v{STV}, 0")
    stamp(em)
    R(f"s_cmp_eq_u32 s{sWAVE}, 3")
    R("s_cbranch_scc0 L_att" if P.W3FIRST else "s_cbranch_scc1 L_wave3")
    em.mark_att = len(em.lines)
    em.label("L_att")

    R("v_and_b32 v28, 3, v0")
    R("v_lshl_add_u32 v28, v28, 2, v20")
    R("v_mul_u32_u24 v28, 1040, v28")
    R("v_lshl_add_u32 v28, v22, 8, v28")
    R(f"v_lshl_add_u32 v{aK}, v21, 4, v28")
    R("v_add_u32 v28, v25, v21")
    R("v_mul_u32_u24 v28, 1040, v28")
    R("v_and_b32 v29, 3, v0")
    R("v_lshl_add_u32 v29, v29, 3, v28")
    R("v_lshl_add_u32 v29, v22, 5, v29")
    R(f"v_add_u32 v{aV}, {V0}, v29")
    R("v_lshl_add_u32 v29, v23, 5, v28")
    R("v_lshl_add_u32 v29, v22, 4, v29")
    R("v_lshl_add_u32 v29, v24, 3, v29")
    R(f"v_add_u32 v{aWO}, {WO0}, v29")
    R(f"s_lshl_b32 s3, s{sWAVE}, 13")
    R(f"s_add_u32 s3, s3, {QB}")
    R(f"v_lshlrev_b32 v{aQB}, 4, v0")
    R(f"v_add_u32 v{aQB}, s3, v{aQB}")
    R(f"v_mov_b32 v{AUX}, v26")
    R(f"v_lshlrev_b32 v{vLIN}, 4, v0")
    R(f"s_mul_i32 s3, s{sWAVE}, {SL}")
    R(f"v_add_u32 v{T2}, s3, v27")
    R(f"v_add_u32 v{T3}, {5*SL}, v{T2}")
    for i in range(8): R(f"v_mov_b32 v{16+i}, 0")
    R("s_nop 1")
    for nt in range(16):
        R(f"v_mfma_f32_32x32x16_bf16 a[{16*nt}:{16*nt+15}], v[16:19], v[20:23], 0")
    QA = SR[1]
    seq = []; frags = []
    tmpaddr = [T0, T1]
    for ti in range(8):
        if ti in (0, 2, 3, 6):
            g = newgate()
            xr = []
            if ti in (2, 3):
                for ks in range(16): xr += XFA(ks + 16*(ti-2))
            seq.append(bar(g, st=1, drain=True, rd=xr, pre=(["s_waitcnt vmcnt(0)"] if ti == 6 else [])))
            if ti in (0, 2):
                for ks in range(16):
                    op = dsr128(XFA(ks + 8*ti), T2 if ti == 0 else T3, ks*32)
                    op.rd.append(g)
                    seq.append(op)
        ta = tmpaddr[ti % 2]
        ga = newgate()
        seq.append(valu(f"v_add_u32 v{ta}, {WLOC[ti]}, v{AUX}", [AUX], [ta]))
        seq.append(MItem('bar', texts=[], rd=[ta], wr=[ga]))
        its = qproj_items(frags, ta, 0, ga, ti % 4, lambda dt2, mt: V(QA + 16*dt2, 16), lambda mt, ks: XFA(ks), 1)
        for it in its: it.rd.append(ta)
        seq += its[:8]
        if ti % 4 == 3: seq += scale_cvt(QA, QR + 16*(ti//4))
        seq += its[8:]
        if ti % 4 == 3: seq += scale_cvt(QA + 16, QR + 16*(ti//4) + 8)
    for i in range(64):
        seq.append(valu(f"v_mov_b32 v{OACC+i}, 0", [], [OACC+i]))
    for i in range(16):
        seq.append(valu(f"v_mov_b32 v{SR[1]+i}, 0", [], [SR[1]+i]))
    seq.append(valu(f"v_mov_b32 v{LA_}, 1.0", [], [LA_]))
    seq.append(valu(f"v_mov_b32 v{LB_}, 0", [], [LB_]))
    gA = newgate()
    seq.append(bar(gA, st=1))
    if P.PLAN in (1, 3, 4): seq += kvq_ops(K0+SL, sK, sKOFF, sM0K, 29, gA, newgate())
    dz = newgate()
    seq += kvq_ops(V0, sV, sVOFF, sM0V, 30, gA, dz)
    if P.PLAN in (2, 3, 4, 5): seq.append(bar(newgate(), rd=[dz]))
    seq += qk_items(frags, SR[0], 0, gA, False)
    schedule(em, seq, frags, STG, NS, P.LA, budget=P.BUDGET)
    R(f"s_mov_b32 s{sCNT}, 4")
    em.fence()
    em.label("L_att_loop")
    n0 = em.ninstr; nn0 = em.nops; w0 = em.waits
    attention_head(em)
    print(f"attention head body: {em.ninstr-n0} instrs, {em.nops-nn0} nop states, {em.waits-w0} waits", file=sys.stderr)
    R(f"s_sub_u32 s{sCNT}, s{sCNT}, 1")
    R(f"s_cmp_lg_u32 s{sCNT}, 0")
    em.fence()
    R("s_cbranch_scc1 L_att_loop")
    seq = []; frags = []
    gB = newgate(); g1 = newgate()
    WOQ = P.WOQ and P.PLAN == 0
    seq.append(bar(gB, pre=["s_waitcnt vmcnt(12)" if WOQ else "s_waitcnt vmcnt(0)"], st=2))
    dT = newgate()
    if WOQ:
        w = woq_ops(WO0 + SL, vLIN); w[0].rd.append(gB); w[-1].wr.append(dT)
        seq += w
    seq.append(valu(f"v_subrev_u32 v{T0}, {WO0}, v{aWO}", [aWO], [T0]))
    seq.append(valu(f"v_add_u32 v{DELTA}, {QB-WO0}, v{aWO}", [aWO], [DELTA]))
    seq.append(valu(f"v_lshlrev_b32 v{T1}, 4, v0", [], [T1]))
    seq.append(salu(f"s_lshl_b32 s3, s{sWAVE}, 15"))
    seq += pv_items(frags, SR[1], 1, gB, False)
    insert_hoisted(seq, bar(g1, st=1, rd=[T0, DELTA, dT], pre=(["s_waitcnt vmcnt(0)"] if WOQ else [])), P.HOIST)
    seq += finalize_ops()
    for nt in range(16):
        for ks in range(8):
            if ks < 4: seq.append(opj_item(frags, ks, nt, ks*SL, g1, aWO))
            elif ks < 7: seq.append(opj_item(frags, ks, nt, (ks-4)*SL, g1, T0))
            else: seq.append(opj_item(frags, ks, nt, 0, g1, DELTA))
        b = 176 + (nt % 4) * 16
        for r in range(16):
            seq.append(valu(f"v_accvgpr_read_b32 v{b+r}, a{16*nt+r}", AG(16*nt+r), [b+r]))
        for k in range(8):
            seq.append(valu(f"v_cvt_pk_bf16_f32 v{b+k}, v{b+2*k}, v{b+2*k+1}", [b+2*k, b+2*k+1], [b+k]))
        for q in range(2):
            off = (nt*2 + q) * 1024
            if off % 4096 == 0:
                seq.append(salu(f"s_add_u32 s4, s3, {off}"))
            seq.append(Op('vmem', f"buffer_store_dwordx4 v[{b+4*q}:{b+4*q+3}], v{T1}, {srd(sWS)}, s4 offen offset:{off % 4096}{P.STPOL}", rd=V(b+4*q, 4) + [T1], tag='store'))
    schedule(em, seq, frags, STG, NS, P.LA, budget=P.BUDGET)
    if P.FUSE:
        stamp(em)
        R("s_waitcnt vmcnt(0)")
        stamp(em)
        R("s_barrier")
        R("s_branch L_red")
        emit_rare(em)
        rare_blocks.clear()
    stamp(em)
    if P.STAMP: R("s_waitcnt vmcnt(0)")
    stamp(em)
    stamp_store(em)
    if P.DBG:
        R(f"s_cmp_lg_u32 s{sWAVE}, 0")
        R("s_cbranch_scc1 L_dbgskip")
        R("s_load_dwordx2 s[72:73], s[0:1], 88")
        R(f"v_readlane_b32 s76, v{STV}, 0")
        idx = [1, 5, 6, 14, 22, 30, 38, 40]
        for i, l in enumerate(idx): R(f"v_readlane_b32 s{80+i}, v{STV}, {l}")
        R("s_waitcnt lgkmcnt(0)")
        R("s_and_b32 s73, s73, 0xffff")
        R("s_mov_b32 s74, 256")
        R("s_mov_b32 s75, 0x20000")
        R("v_mov_b32 v1, 0")
        R("v_mov_b32 v2, 0")
        R("s_not_b32 s77, s76")
        R("v_writelane_b32 v2, s77, 8")
        R("v_writelane_b32 v2, s87, 9")
        for i in range(8):
            R(f"s_sub_u32 s{80+i}, s{80+i}, s76")
            R(f"v_writelane_b32 v1, s{80+i}, {i}")
        R("v_cmp_gt_u32 vcc, 40, v0")
        R("s_and_saveexec_b64 s[78:79], vcc")
        R("buffer_atomic_add v1, v0, s[72:75], 0 offen")
        R("buffer_atomic_umax v2, v0, s[72:75], 0 offen")
        R("s_waitcnt vmcnt(0)")
        em.label("L_dbgskip")
    R("s_endpgm")
    emit_rare(em)

    em.mark_w3 = len(em.lines)
    em.label("L_wave3")
    em.reset()
    R(f"v_lshlrev_b32 v{w_vlin}, 4, v0")
    R("v_lshrrev_b32 v28, 3, v0")
    R("v_and_b32 v29, 7, v0")
    R("v_lshlrev_b32 v29, 4, v29")
    R(f"v_lshl_add_u32 v{w_vwq}, v28, 17, v29")
    R(f"v_add_u32 v{w_aWQ}, {WQ0}, v26")
    R(f"v_add_u32 v{w_aQB}, {QB}, v{w_vlin}")
    R(f"v_mov_b32 v{w_aX}, v27")
    R(f"v_add_u32 v8, {5*SL}, v27")
    R("v_and_b32 v29, 31, v0")
    R("v_lshlrev_b32 v29, 4, v29")
    R("v_lshl_add_u32 v9, v21, 14, v29")
    R(f"s_lshr_b32 s{sWQCOL}, s{sROT}, 9")
    R(f"s_lshl_b32 s3, s{sSW}, 5")
    R(f"v_add_u32 v{w_aQB}, s3, v{w_aQB}")
    vm = VM(em, [])
    def xt(mt, kh, loc): return tile_loop('x', loc, f"s_mov_b32 s{sTMP}, {mt*32768 + kh*512}")
    def w0(ti): return tile_loop('wq', WLOC[ti], f"s_add_u32 s{sTMP}, s{sWQCOL}, {(ti % 4)*128*8192 + (ti // 4)*128}")
    for mt in range(3): vm.issue("X0", xt(mt, 0, mt*SL))
    vm.issue("W0", w0(0)); vm.issue("W1", w0(1))
    for mt in range(3): vm.issue("X1", xt(mt, 1, (5+mt)*SL))
    vm.issue("W2", w0(2))
    vm.need("W1")
    R("s_barrier")
    for mt in range(3):
        for ks in range(16):
            em.emit(dsr128(XF3(mt, ks), w_aX, mt*SL + ks*32))
    em.wait_ds(0)
    vm.need("W2")
    R("s_barrier")
    vm.issue("W3", w0(3)); vm.issue("W4", w0(4)); vm.issue("W5", w0(5))
    vm.issue("K0", tile_loop('kv', K0, f"s_mov_b32 s{sTMP}, s{sROT}", sK))
    if P.PLAN in (0, 2):
        vm.issue("K1", tile_loop('kv', K0+SL, f"s_add_u32 s{sTMP}, s{sROT}, 16384", sK))
    for mt in range(3):
        for ks in range(16):
            em.emit(dsr128(XF3(mt, 16+ks), 8, mt*SL + ks*32))
    em.wait_ds(0)
    vm.need("W5")
    R("s_barrier")
    if P.FUSE:
        R("s_load_dwordx2 s[84:85], s[0:1], 88")
        R("s_memrealtime s[90:91]")
        R("v_mov_b32 v13, 0")
        R("v_mov_b32 v14, 252")
        R("s_bfe_u32 s94, s2, 0x40003")
        R("s_add_u32 s94, s94, 2")
        R("s_waitcnt lgkmcnt(0)")
        R("s_and_b32 s85, s85, 0xffff")
        R("s_mov_b32 s86, 256")
        R("s_mov_b32 s87, 0x20000")
        R("s_or_b32 s90, s90, 1")
        R("v_mov_b32 v12, s90")
        R("v_mov_b32 v15, s90")
    vm.issue("W6", w0(6)); vm.issue("W7", w0(7))
    R(f"s_add_u32 s{sWQLIN}, s{sWQCOL}, 256")
    R(f"s_and_b32 s{sWQLIN}, s{sWQLIN}, 1023")
    R(f"s_xor_b32 s{sWQCOL}, s{sWQLIN}, s{sSW}")
    vm.issue("U0", tile_loop('wq', WQ0, f"s_mov_b32 s{sTMP}, s{sWQCOL}"))
    if P.PLAN == 5:
        vm.issue("K1", tile_loop('kv', K0+SL, f"s_add_u32 s{sTMP}, s{sROT}, 16384", sK))
        R(f"v_xor_b32 v{w_aQB}, 0x1000, v{w_aQB}")
    else:
        vm.issue("U1", tile_loop('wq', WQ0+SL, f"s_add_u32 s{sTMP}, s{sWQCOL}, {128*8192}"))
    vm.need("W7")
    R("s_barrier")
    if P.PLAN != 5:
        vm.need("U0")
        frags = []
        seq = qproj_items(frags, w_aWQ, 0, None, 0, w3_acc, XF3, 3)
        schedule(em, seq, frags, W_STG, W_NS, P.W_LA, budget=P.W_BUDGET, pair=False)
    if not (P.WOQ and P.PLAN == 0):
        R(f"s_add_u32 s{sWOOFF}, s{sROT}, {(-7*16384) & 0x7ffff:#x}")
        R(f"s_and_b32 s{sWOOFF}, s{sWOOFF}, 0x7ffff")
    R(f"s_mov_b32 s{sCNT}, 6")
    R("s_waitcnt vmcnt(16)" if P.PLAN == 5 else "s_waitcnt vmcnt(0)")
    if P.PLAN == 4:
        stamp(em)
        R("s_barrier")
        for o in kvq_ops(K0+SL, sK, sKOFF, sM0K, 29, 0, 0) + kvq_ops(V0, sV, sVOFF, sM0V, 30, 0, 0): em.emit(o)
        R("s_barrier")
    em.fence(2)
    em.label("L_w3_loop")
    n0 = em.ninstr; nn0 = em.nops; w0 = em.waits
    if P.PLAN == 4: wave3_body4(em)
    elif P.PLAN == 5: wave3_body5(em)
    else: wave3_body(em)
    print(f"wave3 body: {em.ninstr-n0} instrs, {em.nops-nn0} nop states, {em.waits-w0} waits", file=sys.stderr)
    R(f"s_sub_u32 s{sCNT}, s{sCNT}, 1")
    R(f"s_cmp_lg_u32 s{sCNT}, 0")
    em.fence(2)
    R("s_cbranch_scc1 L_w3_loop")
    if P.PLAN == 4:
        vm = VM(em, [("V23", 4), ("WQ", 16), ("WO24", 16), ("K25", 4), ("V24", 4)])
        R(f"s_add_u32 s3, s{sWOOFF}, {(26-17)*16384}\n    s_and_b32 s3, s3, 0x7ffff")
        for t in range(23, 32):
            if t > 23:
                stamp(em)
                vm.need(f"WO{t}")
                R("s_barrier")
                if t <= 29: vm.issue(f"K{t+2}", kvq_ops(K0 + (t % 2)*SL, sK, sKOFF, sM0K, 29, 0, 0))
                if t <= 30: vm.issue(f"V{t+1}", kvq_ops(V0 + ((t+1) % 2)*SL, sV, sVOFF, sM0V, 30, 0, 0))
                if t == 31:
                    vm.issue("TT", dma_wo(V0, 3))
                vm.need(f"K{t+1}")
                R("s_barrier")
            vm.need(f"V{t}")
            R("s_barrier")
            ops = dma_wo(WO0 + (t % 2)*SL, sWOOFF)
            ops.append(salu(f"s_add_u32 s{sWOOFF}, s{sWOOFF}, 16384\n    s_and_b32 s{sWOOFF}, s{sWOOFF}, 0x7ffff\n    s_add_u32 s{sT}, s{sT}, 1"))
            vm.issue(f"WO{t+2}", ops)
            if t in (23, 24):
                vm.issue("TT", dma_wo(WQ0 + (t-23)*SL, 3))
                R("s_add_u32 s3, s3, 16384")
            if t == 25:
                R(f"s_add_u32 s4, s3, {3*16384}")
                vm.issue("TT", dma_wo(QB, 4))
            if t in (29, 30):
                vm.issue("TT", dma_wo(K0 + (t-29)*SL, 3))
                R("s_add_u32 s3, s3, 16384")
        stamp(em)
        R("s_waitcnt vmcnt(0)")
        R("s_barrier")
        stamp(em)
        stamp_store(em)
        em.label("L_end")
        R("s_endpgm")
        return
    if P.PLAN == 0 and P.WOQ:
        vm = VM(em, [("K24", 4), ("WO23", 4), ("WQ", 16), ("V23", 4), ("K25", 4), ("WO24", 4)])
        R(f"s_add_u32 s3, s{sWOOFF}, {(26-17)*16384 - 3072}\n    s_and_b32 s3, s3, 0x7ffff")
        def tt(loc, k): return tile_loop('wo', loc, f"s_add_u32 s{sTMP}, s3, {k*16384}")
        for t in range(23, 32):
            stamp(em)
            vm.need(f"K{t+1}", f"WO{t}")
            R("s_barrier")
            if t <= 30:
                vm.issue(f"V{t+1}", kvq_ops(V0 + ((t+1) % 2)*SL, sV, sVOFF, sM0V, 30, 0, 0))
            ttl = {23: [(WQ0, 0)], 24: [(WQ0+SL, 1)], 25: [(QB, 5)], 30: [(K0, 2)], 31: [(K0+SL, 3), (V0, 4)]}.get(t, [])
            for (loc, k) in ttl: vm.issue("TT", tt(loc, k))
            vm.need(f"V{t}")
            R("s_barrier")
            if t <= 28:
                vm.issue(f"K{t+3}", kvq_ops(K0 + ((t+1) % 2)*SL, sK, sKOFF, sM0K, 28, 0, 0))
            vm.issue(f"WO{t+2}", woq_ops(WO0 + (t % 2)*SL, w_vlin))
            R(f"s_add_u32 s{sT}, s{sT}, 1")
    else:
        if P.PLAN == 0: vm = VM(em, [("K24", 4), ("WO23", 16), ("WQ", 16), ("V23", 4), ("K25", 4), ("WO24", 16)])
        elif P.PLAN in (2, 5): vm = VM(em, [("WO23", 16), ("K24", 4), ("WQ", 16), ("V23", 4), ("WO24", 16), ("K25", 4)])
        else: vm = VM(em, [("WQ", 16), ("WO23", 16), ("K24", 4), ("V23", 4), ("WQ", 16), ("WO24", 16)])
        R(f"s_add_u32 s3, s{sWOOFF}, {(26-17)*16384}\n    s_and_b32 s3, s3, 0x7ffff")
        for t in range(23, 32):
            stamp(em)
            if P.PLAN in (2, 3, 5): vm.need(f"WO{t}")
            else: vm.need(f"K{t+1}", f"WO{t}")
            R("s_barrier")
            if P.PLAN in (1, 3) and t <= 29:
                vm.issue(f"K{t+2}", kvq_ops(K0 + (t % 2)*SL, sK, sKOFF, sM0K, 29, 0, 0))
            if t <= 30:
                vm.issue(f"V{t+1}", kvq_ops(V0 + ((t+1) % 2)*SL, sV, sVOFF, sM0V, 30, 0, 0))
            if t == 31:
                vm.issue("TT32", tile_loop('wo', V0, f"s_mov_b32 s{sTMP}, s{3}"))
                R("s_add_u32 s3, s3, 16384")
            ops = tile_loop('wo', WO0 + (t % 2)*SL, f"s_mov_b32 s{sTMP}, s{sWOOFF}")
            ops.append(salu(f"s_add_u32 s{sWOOFF}, s{sWOOFF}, 16384\n    s_and_b32 s{sWOOFF}, s{sWOOFF}, 0x7ffff"))
            if P.PLAN in (2, 3, 5):
                if P.PLAN == 5 and t == 23:
                    em.nop(12)
                    for o in w3_cv(1): em.emit(o)
                    em.wait_ds(0)
                vm.need(f"K{t+1}")
                R("s_barrier")
                if P.PLAN in (2, 5): vm.issue(f"WO{t+2}", ops)
            vm.need(f"V{t}")
            R("s_barrier")
            if P.PLAN in (0, 2, 5) and t <= 28:
                vm.issue(f"K{t+3}", kvq_ops(K0 + ((t+1) % 2)*SL, sK, sKOFF, sM0K, 28, 0, 0))
            if P.PLAN not in (2, 5): vm.issue(f"WO{t+2}", ops)
            R(f"s_add_u32 s{sT}, s{sT}, 1")
            if t == 23:
                vm.issue("TT32", tile_loop('wo', WQ0, f"s_mov_b32 s{sTMP}, s{3}"))
                R("s_add_u32 s3, s3, 16384")
            if t == 24:
                vm.issue("TT32", tile_loop('wo', WQ0+SL, f"s_mov_b32 s{sTMP}, s{3}"))
                R("s_add_u32 s3, s3, 16384")
            if t == 25:
                R(f"s_add_u32 s4, s3, {3*16384}")
                vm.issue("TT32", tile_loop('wo', QB, f"s_mov_b32 s{sTMP}, s{4}"))
            if t in (29, 30):
                vm.issue("TT32", tile_loop('wo', K0 + (t-29)*SL, f"s_mov_b32 s{sTMP}, s{3}"))
                R("s_add_u32 s3, s3, 16384")
    stamp(em)
    R("s_waitcnt vmcnt(0)")
    R("s_barrier")
    if P.FUSE:
        fused_reduce(em)
        return
    stamp(em)
    stamp_store(em)
    em.label("L_end")
    R("s_endpgm")

def fused_reduce(em):
    R = em.raw
    R("s_and_b32 s3, s2, 7")
    R("s_lshr_b32 s4, s2, 3")
    R("s_lshr_b32 s5, s3, 2")
    R("s_and_b32 s3, s3, 3")
    R("s_lshl_b32 s3, s3, 1")
    R("s_lshr_b32 s6, s4, 4")
    R("s_add_u32 s3, s3, s6")
    R("s_and_b32 s4, s4, 15")
    R("s_lshl_b32 s6, s5, 4")
    R("s_add_u32 s6, s6, s4")
    R("s_lshl_b32 s6, s6, 2")
    R("v_mov_b32 v14, 0")
    R("s_lshl_b32 s7, 1, s3")
    R("s_lshl_b32 s6, s5, 2")
    R("s_lshl_b32 s92, s4, 3")
    R("s_add_u32 s6, s6, s92")
    R("v_lshrrev_b32 v15, 1, v0")
    R("v_and_b32 v13, 1, v0")
    R("v_lshl_add_u32 v15, v13, 7, v15")
    R("v_add_u32 v15, s6, v15")
    R("v_lshlrev_b32 v15, 7, v15")
    R("s_lshl_b32 s6, s2, 7")
    R("v_mov_b32 v13, s6")
    R("s_add_u32 s80, s70, 0x1800000")
    R("s_addc_u32 s81, s71, 0")
    R("s_and_b32 s81, s81, 0xffff")
    R("s_mov_b32 s82, 0x10000")
    R("s_mov_b32 s83, 0x20000")
    R("v_readfirstlane_b32 s95, v12")
    R("s_cmp_eq_u32 s95, 0")
    R("s_cselect_b32 s95, s90, s95")
    R("v_mov_b32 v12, s95")
    R("s_mov_b64 s[88:89], exec")
    R(f"s_mov_b32 s91, {P.SPIN}")
    R("s_mov_b32 s90, 0")
    R("s_barrier")
    R("s_mov_b64 exec, 1")
    R("buffer_store_dword v12, v13, s[80:83], 0 offen sc0 sc1")
    R("s_mov_b64 exec, 0xff")
    em.label("L_poll")
    R("buffer_load_dwordx2 v[10:11], v15, s[80:83], 0 offen sc0 sc1")
    R("s_waitcnt vmcnt(0)")
    R("v_cmp_eq_u32 vcc, s95, v10")
    R("s_nop 3")
    R("s_cmp_eq_u32 vcc_lo, 0xff")
    R("s_cbranch_scc1 L_go")
    R("s_cmp_lg_u32 s90, 0")
    R("s_cbranch_scc1 L_quit")
    R(f"s_sleep {P.PSLEEP}")
    R("s_sub_u32 s91, s91, 1")
    R("s_cmp_lg_u32 s91, 0")
    R("s_cbranch_scc1 L_poll")
    R("s_mov_b32 s90, 1")
    R("s_mov_b64 exec, 1")
    R("buffer_store_dword v12, v13, s[80:83], 0 offen offset:4 sc0 sc1")
    R("s_waitcnt vmcnt(0)")
    R("s_mov_b64 exec, 0xff")
    R("s_branch L_poll")
    em.label("L_quit")
    R("s_mov_b32 s93, 0")
    R("s_branch L_pub")
    em.label("L_go")
    R("v_cmp_eq_u32 vcc, s95, v11")
    R("s_nop 3")
    R("s_or_b32 s93, s7, vcc_lo")
    R("s_and_b32 s93, s93, 0xff")
    em.label("L_pub")
    R("s_mov_b64 exec, 1")
    R("v_mov_b32 v9, s93")
    R("ds_write_b32 v14, v9")
    R("s_mov_b64 exec, s[88:89]")
    R("s_waitcnt lgkmcnt(0)")
    em.label("L_red")
    R("s_load_dwordx2 s[8:9], s[0:1], 80")
    R("s_and_b32 s3, s2, 7")
    R("s_lshr_b32 s4, s2, 3")
    R("s_lshr_b32 s5, s3, 2")
    R("s_and_b32 s4, s4, 15")
    R("v_and_b32 v2, 7, v0")
    R("v_bfe_u32 v3, v0, 3, 1")
    R("v_bfe_u32 v4, v0, 4, 1")
    R("v_lshrrev_b32 v5, 5, v0")
    R(f"s_lshl_b32 s6, s{sWAVE}, 3")
    R("v_add_u32 v2, s6, v2")
    R("v_lshlrev_b32 v7, 11, v5")
    R("v_lshl_add_u32 v7, v3, 10, v7")
    R("v_lshl_add_u32 v7, v4, 9, v7")
    R("v_lshl_add_u32 v7, v2, 4, v7")
    R("v_lshlrev_b32 v8, 11, v2")
    R("v_lshl_add_u32 v8, v5, 6, v8")
    R("v_lshl_add_u32 v8, v4, 5, v8")
    R("v_lshl_add_u32 v8, v3, 4, v8")
    R("v_mov_b32 v14, 0")
    R("s_lshl_b32 s14, s5, 2")
    R("s_lshl_b32 s15, s4, 3")
    R("s_add_u32 s14, s14, s15")
    R("s_mul_i32 s14, s14, 98304")
    R("s_mul_i32 s15, s4, 96")
    R("s_lshl_b32 s15, s15, 11")
    R("s_lshl_b32 s16, s5, 10")
    R("s_add_u32 s15, s15, s16")
    R("s_mov_b32 s20, s70")
    R("s_and_b32 s21, s71, 0xffff")
    R(f"s_mov_b32 s22, {256*98304}")
    R("s_mov_b32 s23, 0x20000")
    R("s_waitcnt lgkmcnt(0)")
    R("s_mov_b32 s24, s8")
    R("s_and_b32 s25, s9, 0xffff")
    R(f"s_mov_b32 s26, {16*96*1024*2}")
    R("s_mov_b32 s27, 0x20000")
    em.label("L_round")
    R("s_barrier")
    R("ds_read_b32 v9, v14")
    R("s_waitcnt lgkmcnt(0)")
    R("v_readfirstlane_b32 s93, v9")
    stamp(em)
    em.label("L_slice")
    R("s_and_b32 s92, s93, 0xff")
    R("s_cmp_eq_u32 s92, 0")
    R("s_cbranch_scc1 L_nomore")
    R("s_ff1_i32_b32 s94, s92")
    R("s_bitset0_b32 s93, s94")
    R("s_lshl_b32 s16, s94, 12")
    R("s_add_u32 s16, s16, s14")
    for w in range(3):
        for hg in range(8):
            d = ((hg // 2) + 128*(hg % 2)) * 98304 + w * 32768
            r = 16 + (w*8 + hg)*4
            R(f"s_add_u32 s17, s16, {d}")
            R(f"buffer_load_dwordx4 v[{r}:{r+3}], v7, s[20:23], s17 offen{P.RDPOL}")
    R("s_lshl_b32 s17, s94, 7")
    R("s_add_u32 s17, s17, s15")
    for w in range(3):
        acc = 120 + 8*w
        for hg in range(8):
            R(f"s_waitcnt vmcnt({23 - (w*8+hg) + w})")
            for k in range(4):
                src = 16 + (w*8 + hg)*4 + k
                if hg == 0:
                    R(f"v_lshlrev_b32 v{acc+2*k}, 16, v{src}")
                    R(f"v_and_b32 v{acc+2*k+1}, 0xffff0000, v{src}")
                else:
                    R(f"v_lshlrev_b32 v112, 16, v{src}")
                    R(f"v_and_b32 v113, 0xffff0000, v{src}")
                    R(f"v_add_f32 v{acc+2*k}, v{acc+2*k}, v112")
                    R(f"v_add_f32 v{acc+2*k+1}, v{acc+2*k+1}, v113")
        o = 148 + 4*w
        for k in range(4):
            R(f"v_cvt_pk_bf16_f32 v{o+k}, v{acc+2*k}, v{acc+2*k+1}")
        R(f"s_add_u32 s18, s17, {w*32*2048}")
        R(f"buffer_store_dwordx4 v[{o}:{o+3}], v8, s[24:27], s18 offen{P.OUTPOL}")
    R("s_branch L_slice")
    em.label("L_nomore")
    em.label("L_fin")
    if P.STAMP:
        R("s_waitcnt vmcnt(0)")
    stamp(em)
    stamp_store(em)
    em.label("L_end")
    R("s_endpgm")
    em.label("L_code_end")

def gen_reduce(em):
    R = em.raw
    em.lines.append(".p2align 8")
    em.lines.append(".globl reduce_kernel")
    em.lines.append(".type reduce_kernel,@function")
    em.label("reduce_kernel")
    R("s_cmp_ge_u32 s2, 768")
    R("s_cbranch_scc1 L_rend")
    R("s_load_dwordx2 s[4:5], s[0:1], 80")
    R("s_load_dwordx2 s[6:7], s[0:1], 96")
    if P.DBG:
        R("s_memrealtime s[40:41]")
        R("s_load_dwordx2 s[32:33], s[0:1], 88")
    R("v_lshrrev_b32 v1, 6, v0")
    R("v_and_b32 v0, 63, v0")
    R("s_and_b32 s8, s2, 7")
    R("s_lshr_b32 s9, s2, 3")
    R("s_mul_i32 s10, s9, 43691")
    R("s_lshr_b32 s10, s10, 17")
    R("s_mul_i32 s11, s10, 3")
    R("s_sub_u32 s11, s9, s11")
    R("s_lshr_b32 s12, s10, 4")
    R("s_and_b32 s13, s10, 15")
    R("v_and_b32 v2, 7, v0")
    R("v_bfe_u32 v3, v0, 3, 1")
    R("v_bfe_u32 v4, v0, 4, 1")
    R("v_lshrrev_b32 v5, 5, v0")
    R("v_lshl_add_u32 v2, v1, 3, v2")
    R("v_lshlrev_b32 v6, 11, v5")
    R("v_lshl_add_u32 v6, v3, 10, v6")
    R("v_lshl_add_u32 v6, v4, 9, v6")
    R("v_lshl_add_u32 v6, v2, 4, v6")
    R("s_lshl_b32 s14, s11, 15")
    R("s_lshl_b32 s15, s8, 12")
    R("s_add_u32 s14, s14, s15")
    R("s_lshl_b32 s15, s12, 2")
    R("s_lshl_b32 s16, s13, 3")
    R("s_add_u32 s15, s15, s16")
    R("s_mul_i32 s15, s15, 98304")
    R("s_add_u32 s14, s14, s15")
    R("s_waitcnt lgkmcnt(0)")
    R("s_mov_b32 s20, s6")
    R("s_and_b32 s21, s7, 0xffff")
    R(f"s_mov_b32 s22, {256*98304}")
    R("s_mov_b32 s23, 0x20000")
    R("s_mov_b32 s24, s4")
    R("s_and_b32 s25, s5, 0xffff")
    R(f"s_mov_b32 s26, {16*96*1024*2}")
    R("s_mov_b32 s27, 0x20000")
    for hg in range(8):
        d = ((hg // 2) + 128*(hg % 2)) * 98304
        R(f"s_add_u32 s17, s14, {d}")
        R(f"buffer_load_dwordx4 v[{8+4*hg}:{11+4*hg}], v6, s[20:23], s17 offen{P.RDPOL}")
    R("v_lshlrev_b32 v7, 11, v2")
    R("v_lshl_add_u32 v7, v5, 6, v7")
    R("v_lshl_add_u32 v7, v4, 5, v7")
    R("v_lshl_add_u32 v7, v3, 4, v7")
    R("s_mul_i32 s15, s13, 96")
    R("s_lshl_b32 s16, s11, 5")
    R("s_add_u32 s15, s15, s16")
    R("s_lshl_b32 s15, s15, 11")
    R("s_lshl_b32 s16, s12, 10")
    R("s_add_u32 s15, s15, s16")
    R("s_lshl_b32 s16, s8, 7")
    R("s_add_u32 s15, s15, s16")
    for hg in range(8):
        R(f"s_waitcnt vmcnt({7-hg})")
        for k in range(4):
            src = 8 + 4*hg + k
            if hg == 0:
                R(f"v_lshlrev_b32 v{40+2*k}, 16, v{src}")
                R(f"v_and_b32 v{41+2*k}, 0xffff0000, v{src}")
            else:
                R(f"v_lshlrev_b32 v48, 16, v{src}")
                R(f"v_and_b32 v49, 0xffff0000, v{src}")
                R(f"v_add_f32 v{40+2*k}, v{40+2*k}, v48")
                R(f"v_add_f32 v{41+2*k}, v{41+2*k}, v49")
    for k in range(4):
        R(f"v_cvt_pk_bf16_f32 v{52+k}, v{40+2*k}, v{41+2*k}")
    R("buffer_store_dwordx4 v[52:55], v7, s[24:27], s15 offen")
    if P.DBG:
        R("s_and_b32 s44, s2, 31")
        R("s_cmp_lg_u32 s44, 31")
        R("s_cbranch_scc1 L_rend")
        R("v_readfirstlane_b32 s44, v1")
        R("s_cmp_lg_u32 s44, 0")
        R("s_cbranch_scc1 L_rend")
        R("s_waitcnt vmcnt(0)")
        R("s_memrealtime s[42:43]")
        R("s_sub_u32 s36, s32, 512")
        R("s_subb_u32 s37, s33, 0")
        R("s_and_b32 s37, s37, 0xffff")
        R("s_mov_b32 s38, 256")
        R("s_mov_b32 s39, 0x20000")
        R("s_and_b32 s33, s33, 0xffff")
        R("s_mov_b32 s34, 256")
        R("s_mov_b32 s35, 0x20000")
        R("v_lshlrev_b32 v0, 2, v0")
        R("buffer_load_dword v1, v0, s[36:39], 0 offen")
        R("s_waitcnt vmcnt(0) lgkmcnt(0)")
        R("s_not_b32 s40, s40")
        R("v_writelane_b32 v1, s40, 10")
        R("v_writelane_b32 v1, s42, 11")
        R("v_cmp_gt_u32 vcc, 48, v0")
        R("s_and_saveexec_b64 s[44:45], vcc")
        R("buffer_atomic_umax v1, v0, s[32:35], 0 offen")
        R("s_waitcnt vmcnt(0)")
    em.label("L_rend")
    R("s_endpgm")
    em.label("L_code_end")

def build():
    ref = open(f"cdna_kernels/{NAME}.s.ref").read().splitlines()
    head = [l for l in ref if l.startswith(";") and "@launch" not in l]
    em = Em()
    if P.FUSE:
        P.STPOL = " sc1" if P.STPOL == " nt" else P.STPOL
        P.RDPOL = " sc1" if P.RDPOL == " nt" else P.RDPOL
    gen_main(em)
    if P.W3FIRST:
        L = em.lines
        tail = [x for x in L[em.mark_w3:] if x != "L_code_end:"]
        em.lines = L[:em.mark_att] + tail + L[em.mark_att:em.mark_w3]
        if P.FUSE: em.label("L_code_end")
    if not P.FUSE: gen_reduce(em)
    out = []
    out += head
    if P.FUSE:
        out.append(f"; @launch grid=(256,1,1) block=(256,1,1) lds={LDS_BYTES}")
    else:
        out.append(f"; @launch kernel={NAME}_kernel grid=(256,1,1) block=(256,1,1) lds={LDS_BYTES}")
        out.append(f"; @launch kernel=reduce_kernel grid=(768,1,1) block=(256,1,1) lds=0")
    out.append('.amdgcn_target "amdgcn-amd-amdhsa--gfx950"')
    out.append(".text")
    out.append(f".globl {NAME}_kernel")
    out.append(".p2align 8")
    out.append(f".type {NAME}_kernel,@function")
    out.append(em.text())
    out.append('.section .rodata,"a"')
    for (k, nv, ao) in ((f"{NAME}_kernel", 512, 256), ("reduce_kernel", 64, 64))[:1 if P.FUSE else 2]:
        out.append(".p2align 6")
        out.append(f".amdhsa_kernel {k}")
        out.append(f"  .amdhsa_next_free_vgpr {nv}")
        out.append("  .amdhsa_next_free_sgpr 102")
        out.append(f"  .amdhsa_accum_offset {ao}")
        out.append("  .amdhsa_group_segment_fixed_size 0")
        out.append("  .amdhsa_kernarg_size 104")
        out.append("  .amdhsa_user_sgpr_count 2")
        out.append("  .amdhsa_user_sgpr_kernarg_segment_ptr 1")
        out.append("  .amdhsa_system_sgpr_workgroup_id_x 1")
        out.append(".end_amdhsa_kernel")
    return "\n".join(out) + "\n"

if __name__ == "__main__":
    dst = sys.argv[1] if len(sys.argv) > 1 else f"cdna_kernels/{NAME}.s"
    for a in sys.argv[2:]:
        k, v = a.split("=")
        cur = getattr(P, k)
        setattr(P, k, type(cur)(v) if not isinstance(cur, str) else (" " + v.replace("+", " ") if v else ""))
    open(dst, "w").write(build())
```

```python
import sys, struct
from em import *
from sched import *

NAME = "concat_heads__gqa_block_cached__gqa_block_cached__near_ridge"
SL = 16640
K0, V0, WO0, WQ0, QB = 0, 2*SL, 4*SL, 6*SL, 8*SL
LDS_BYTES = 163840
M0_NULL = 0x30000
WLOC = [3*SL, 4*SL, QB, 3*SL, 4*SL, 2*SL, 5*SL, QB]
C_SCALE = 1.4426950408889634 / (128 ** 0.5)
def f32bits(x): return struct.unpack("<I", struct.pack("<f", x))[0]

sK, sV, sWQ, sWO, sX, sWS = 8, 12, 16, 20, 24, 28
sWAVE, sC, sTHR, sCNT = 32, 33, 34, 35
sM0W, sM0K, sM0V, sM0N = 36, 37, 38, 39
sT, sKOFF, sVOFF, sWOOFF, sWQCOL, sTMP = 40, 41, 42, 43, 44, 45
sPF, sWOCUR = 75, 76
sXR, sKVT = 77, 101
sC2 = 58
sROT, sSW, sWQLIN = 72, 73, 74
def srd(b): return f"s[{b}:{b+3}]"

aK, aV, aWO, aQB, vKV = 1, 2, 3, 4, 5
LA_, LB_, vLIN, DELTA = 7, 8, 9, 10
ALPHA = 11
T0, T1, T2, T3 = 11, 12, 13, 14
AUX = 15
STG = 16; NS = 8
OACC, QR, OP = 48, 112, 144
SR = [176, 208]
NEGM = 240
w_vlin, w_vwq, w_aWQ, w_aQB, w_aX = 2, 3, 4, 1, 7
W_STG = 16; W_NS = 4
W_ACC = 32
def XF3(mt, ks):
    if mt < 2: return AG(mt * 128 + ks * 4, 4)
    return V(128 + ks * 4, 4)
def XFA(ks):
    return V(48 + ks * 4, 4) if ks < 16 else V(144 + (ks - 16) * 4, 4)

class P:
    LA = 5
    BUDGET = 6.0
    W_LA = 6
    W_BUDGET = 6.0
    W_SPLIT = 30
    KVPOL = " nt"
    WPOL = ""
    WOPOL = "same"
    XPOL = " nt"
    STPOL = " nt"
    RDPOL = " nt"
    THR = 8.0
    STAMP = 0
    CYC = 0
    PAIR = 1
    NODMA = 0
    TXOR = 0
    WOQ = 0
    PKMUL = 0
    W3FIRST = 1
    FUSE = 1
    SPIN = 200000
    PSLEEP = 4
    OUTPOL = ""
    CPF = 1
    WOPF = 0
    PFT = 0
    ROT = 1
    W4_1 = 10
    W4_2 = 30
    W_SPLITZ = 14
    DMAFIRST = 0
    DEVERY = 3
    PLAN = 0
    W_PRE = 8
    HOIST = 3
    VMA = 8
    DBG = 0

def wopol(): return P.WPOL if P.WOPOL == "same" else P.WOPOL
gate_ctr = [1000]
def newgate():
    gate_ctr[0] += 1
    return gate_ctr[0]

STV = 6
def stamp_txt():
    if not P.STAMP: return []
    return [("s_memtime s[96:97]" if P.CYC else "s_memrealtime s[96:97]"), "s_min_u32 m0, s98, 63", "s_waitcnt lgkmcnt(0)",
            f"v_writelane_b32 v{STV}, s96, m0", "s_add_u32 s98, s98, 1"]
def stamp(em):
    if P.STAMP:
        em.wait_ds(0)
        for t in stamp_txt(): em.raw(t)
def stamp_store(em):
    if not P.STAMP: return
    R = em.raw
    R("s_lshl_b32 s3, s2, 2")
    R(f"s_add_u32 s3, s3, s{sWAVE}")
    R("s_lshl_b32 s3, s3, 8")
    R("s_add_u32 s92, s70, 0x2000000")
    R("s_addc_u32 s93, s71, 0")
    R("s_and_b32 s93, s93, 0xffff")
    R("s_mov_b32 s94, 0x40000")
    R("s_mov_b32 s95, 0x20000")
    R("v_lshlrev_b32 v0, 2, v0")
    R(f"buffer_store_dword v{STV}, v0, s[92:95], s3 offen")
def bar(gate, pre=(), rd=(), drain=False, st=0):
    s1 = stamp_txt() if (st and P.STAMP >= st) else []
    s2 = stamp_txt() if (st and P.STAMP >= 2) else []
    return MItem('bar', texts=s2 + list(pre) + ["s_barrier"] + s1, rd=rd, wr=[gate], drain=drain or bool(s1))

def v3(op, d, a, b, c):
    return valu(f"{op} v{d}, v{a}, v{b}, v{c}", [a, b, c], [d])
def salu(text, rd=(), wr=()):
    return Op('salu', text, rd=rd, wr=wr, cost=text.count("\n") + 1)

def interleave(main, extra, start=0, every=3):
    out = []; e = list(extra)
    for i, o in enumerate(main):
        out.append(o)
        if e and i >= start and (i - start) % every == every - 1:
            out.append(e.pop(0))
    return out + e

def maxtree_ops(S):
    ops = []
    T = [T0, T1, T2, T3]
    for k in range(4): ops.append(v3("v_max3_f32", T[k], S+8*k, S+8*k+1, S+8*k+2))
    for k in range(4): ops.append(v3("v_max3_f32", T[k], T[k], S+8*k+3, S+8*k+4))
    for k in range(4): ops.append(v3("v_max3_f32", T[k], T[k], S+8*k+5, S+8*k+6))
    ops.append(v3("v_max3_f32", T0, T0, S+7, T1))
    ops.append(v3("v_max3_f32", T2, T2, S+23, T3))
    ops.append(v3("v_max3_f32", T0, T0, S+15, S+31))
    ops.append(valu(f"v_max_f32 v{T0}, v{T0}, v{T2}", [T0, T2], [T0]))
    ops.append(valu(f"v_mov_b32 v{T1}, v{T0}", [T0], [T1]))
    ops.append(valu(f"v_permlane32_swap_b32 v{T0}, v{T1}", [T0, T1], [T0, T1], kind='perm'))
    ops.append(valu(f"v_max_f32 v{DELTA}, v{T0}, v{T1}", [T0, T1], [DELTA]))
    return ops

def first_tile_ops(S):
    ops = []
    for i in range(16):
        ops.append(valu(f"v_sub_f32 v{NEGM+i}, 0, v{DELTA}", [DELTA], [NEGM+i]))
    for i in range(32):
        ops.append(valu(f"v_sub_f32 v{S+i}, v{S+i}, v{DELTA}", [S+i, DELTA], [S+i]))
    return ops

rare_blocks = []
def check_op(S, tag):
    regs = V(S, 32) + V(NEGM, 16) + V(OACC, 64) + [LA_, LB_, DELTA, ALPHA]
    rare_blocks.append((S, tag))
    t = f"v_cmp_lt_f32 vcc, s{sTHR}, v{DELTA}\n    s_cbranch_vccnz L_rare_{tag}\nL_back_{tag}:"
    op = Op('raw', t, rd=regs, wr=regs, cost=2)
    op.noraw = True
    return op
def emit_rare(em):
    R = em.raw
    for (S, tag) in rare_blocks:
        em.label(f"L_rare_{tag}")
        R("s_nop 15")
        R(f"v_max_f32 v{DELTA}, 0, v{DELTA}")
        R(f"v_sub_f32 v{ALPHA}, 0, v{DELTA}")
        R(f"v_exp_f32 v{ALPHA}, v{ALPHA}")
        for i in range(32): R(f"v_sub_f32 v{S+i}, v{S+i}, v{DELTA}")
        for i in range(16): R(f"v_sub_f32 v{NEGM+i}, v{NEGM+i}, v{DELTA}")
        for i in range(64): R(f"v_mul_f32 v{OACC+i}, v{ALPHA}, v{OACC+i}")
        R(f"v_mul_f32 v{LA_}, v{ALPHA}, v{LA_}")
        R(f"v_mul_f32 v{LB_}, v{ALPHA}, v{LB_}")
        R("s_nop 3")
        R(f"s_branch L_back_{tag}")

def exp_ops(S, first):
    def ex(i): return valu(f"v_exp_f32 v{S+i}, v{S+i}", [S+i], [S+i], kind='trans')
    def add(i):
        l = LA_ if i % 2 == 0 else LB_
        if i < 2 and first: return valu(f"v_mov_b32 v{l}, v{S+i}", [S+i], [l])
        return valu(f"v_add_f32 v{l}, v{l}, v{S+i}", [l, S+i], [l])
    def cvt(k): return valu(f"v_cvt_pk_bf16_f32 v{S+k}, v{S+2*k}, v{S+2*k+1}", [S+2*k, S+2*k+1], [S+k])
    out = []
    for k in range(17):
        if k < 16: out.append(ex(2*k))
        if k > 0: out.append(add(2*k-2))
        if k < 16: out.append(ex(2*k+1))
        if k > 0:
            out.append(add(2*k-1)); out.append(cvt(k-1))
    return out

def finalize_ops():
    ops = []
    ops.append(valu(f"v_add_f32 v{T2}, v{LA_}, v{LB_}", [LA_, LB_], [T2]))
    ops.append(valu(f"v_mov_b32 v{T3}, v{T2}", [T2], [T3]))
    ops.append(valu(f"v_permlane32_swap_b32 v{T2}, v{T3}", [T2, T3], [T2, T3], kind='perm'))
    ops.append(valu(f"v_add_f32 v{T2}, v{T2}, v{T3}", [T2, T3], [T2]))
    ops.append(valu(f"v_rcp_f32 v{AUX}, v{T2}", [T2], [AUX], kind='trans'))
    for k in range(33):
        if k < 32:
            a, b = OACC + 2*k, OACC + 2*k + 1
            ops.append(valu(f"v_mul_f32 v{a}, v{AUX}, v{a}", [AUX, a], [a]))
            ops.append(valu(f"v_mul_f32 v{b}, v{AUX}, v{b}", [AUX, b], [b]))
        if k > 0:
            kk = k - 1
            ops.append(valu(f"v_cvt_pk_bf16_f32 v{OP+kk}, v{OACC+2*kk}, v{OACC+2*kk+1}", [OACC+2*kk, OACC+2*kk+1], [OP+kk]))
    return ops

def qk_items(frags, Sdst, kslot, gate, negm):
    it = []
    for sub in range(2):
        for ks in range(8):
            frags.append(Frag([('b128', aK, K0 + kslot*SL + sub*512 + ks*32, 0)], gate))
            it.append(MItem('mfma', D=V(Sdst + 16*sub, 16), B=V(QR + 4*ks, 4), acc=(ks != 0), frag=len(frags)-1,
                            C=(V(NEGM, 16) if (ks == 0 and negm) else None)))
    return it
def opj_item(frags, ks, nt, woff, gate, addr):
    frags.append(Frag([('tr', addr, woff + t*2080 + nt*64, 2*t) for t in range(2)], gate))
    return MItem('mfma', D=AG(16*nt, 16), B=V(OP + 4*ks, 4), acc=True, frag=len(frags)-1)
def opj_items(frags, ks, woff, gate, addr=aWO):
    return [opj_item(frags, ks, nt, woff, gate, addr) for nt in range(16)]
def pv_items(frags, S, vslot, gate, first):
    it = []
    for s in range(4):
        for dt in range(4):
            frags.append(Frag([('tr', aV, vslot*SL + t*2080 + s*256 + dt*64, 2*t) for t in range(2)], gate))
            it.append(MItem('mfma', D=V(OACC + 16*dt, 16), B=V(S + 4*s, 4), acc=not (first and s == 0), frag=len(frags)-1))
    return it

def dma_pair(m0txt, voff, srdb, soff, off, pol, rd=(), wr=()):
    a = Op('m0', m0txt, rd=rd)
    b = Op('dma', f"buffer_load_dwordx4 v{voff}, {srd(srdb)}, {soff} offen" + (f" offset:{off}" if off else "") + f"{pol} lds", wr=wr)
    return [a, b]

def kvq_ops(slotbase, srdb, offreg, m0reg, lim, gate, done):
    if P.NODMA in (1, 3): lim = -100
    ops = [salu(f"s_cmp_le_i32 s{sT}, {lim}\n    s_cselect_b32 s{srdb+2}, 0x80000, 0\n    s_cselect_b32 s{m0reg}, s{sM0W}, s{sM0N}" + (f"\n    s_xor_b32 s{sKVT}, s{offreg}, s{sXR}" if P.TXOR else ""), rd=[gate])]
    for i in range(4):
        ops += dma_pair(f"s_add_u32 m0, s{m0reg}, {slotbase + 16*i}", vKV, srdb, f"s{sKVT if P.TXOR else offreg}", 1024*i, P.KVPOL)
    ops.append(salu(f"s_add_u32 s{offreg}, s{offreg}, 16384\n    s_and_b32 s{offreg}, s{offreg}, 0x7ffff", wr=[done]))
    return ops

def woq_ops(slotbase, lin):
    lim = 100 if P.NODMA in (1, 2) else 6
    ops = [salu(f"s_cmp_ge_i32 s{sT}, {lim}\n    s_cselect_b32 s{sWO+2}, 0x80000, 0")]
    for i in range(4):
        pr = dma_pair(f"s_add_u32 m0, s{sM0W}, {slotbase + 1040*i}", lin, sWO, f"s{sTMP}", 0, wopol())
        pr.insert(1, salu(f"s_add_u32 s{sTMP}, s{sWOOFF}, {4096*i}"))
        ops += pr
    ops.append(salu(f"s_add_u32 s{sWOOFF}, s{sWOOFF}, 16384\n    s_and_b32 s{sWOOFF}, s{sWOOFF}, 0x7ffff"))
    return ops

def insert_hoisted(seq, b, H):
    if H == 0:
        seq.append(b); return
    n = 0; i = len(seq)
    while n < H:
        i -= 1
        if isinstance(seq[i], MItem):
            assert seq[i].kind == 'mfma'
            n += 1
    b.hoist = H
    seq.insert(i, b)

def attention_head(em):
    seq = []; frags = []
    dA_prev = None
    Z3 = P.PLAN in (2, 4, 5)
    QZ = P.PLAN in (4, 5)
    KVA = P.PLAN == 4
    for j in range(8):
        p = j % 2
        gA = newgate(); gB = newgate(); dB = newgate(); dA = newgate(); gZ = newgate()
        WOQ = P.WOQ and P.PLAN == 0
        VW = "s_waitcnt vmcnt(12)" if WOQ else "s_waitcnt vmcnt(8)"
        b = bar(gB, pre=[VW], rd=[dA_prev] if dA_prev else [], st=2)
        insert_hoisted(seq, b, P.HOIST if j > 0 else 0)
        if not KVA:
            kq = kvq_ops(K0 + p*SL, sK, sKOFF, sM0K, 28, gB, newgate())
            if WOQ: kq += woq_ops(WO0 + (1-p)*SL, vLIN)
            kq.append(salu(f"s_add_u32 s{sT}, s{sT}, 1", wr=[dB]))
        else:
            kq = [salu(f"s_add_u32 s{sT}, s{sT}, 1", rd=[gB], wr=[dB])]
        mt = maxtree_ops(SR[p])
        if j == 0: mt += first_tile_ops(SR[p])
        seq += interleave(mt, kq, every=1 if WOQ else 2)
        seq += pv_items(frags, SR[1-p], 1-p, gB, j == 1)
        insert_hoisted(seq, bar(gA, pre=[] if Z3 else [VW], rd=[dB], st=1), P.HOIST)
        vq = kvq_ops(V0 + (1-p)*SL, sV, sVOFF, sM0V, 30, gA, dA)
        if KVA:
            vq = kvq_ops(K0 + p*SL, sK, sKOFF, sM0K, 29, gA, newgate()) + vq
        pre = finalize_ops() if j == 0 else [check_op(SR[p], f"{j}")]
        qrd = []
        if j == 7:
            for ks in range(8):
                op = dsr128(V(QR + 4*ks, 4), aQB, ks*1024)
                op.rd.append(gZ if QZ else gA)
                qrd.append(op)
            if not QZ:
                pre += qrd; qrd = []
        if P.DMAFIRST:
            seq += interleave(vq, pre, every=2) if j == 0 else (vq + pre)
            ex = exp_ops(SR[p], j == 0)
        else:
            seq += pre
            ex = interleave(exp_ops(SR[p], j == 0), vq, every=P.DEVERY)
        if Z3:
            ms = opj_items(frags, j, p*SL, gA)
            insert_hoisted(ms, bar(gZ, pre=["s_waitcnt vmcnt(12)"], rd=[dA]), P.HOIST + (2 if qrd else 0))
            h = len(ex) if not qrd else max(len(ex) * 2 // 5, 1 + max(k for k, o in enumerate(ex) if dA in o.wr) if not P.DMAFIRST else 0)
            seq += ex[:h] + ms + qrd + ex[h:]
            seq += qk_items(frags, SR[1-p], 1-p, gZ, j != 7)
        else:
            if j == 0:
                ms = qk_items(frags, SR[1-p], 1-p, gA, True) + opj_items(frags, j, p*SL, gA)
            else:
                ms = opj_items(frags, j, p*SL, gA) + qk_items(frags, SR[1-p], 1-p, gA, j != 7)
            seq += ex + ms
        dA_prev = dA
    schedule(em, seq, frags, STG, NS, P.LA, budget=P.BUDGET, pair=P.PAIR)

def perm16(j): return 4*(j % 4) + j // 4

def dma_kv_full(slotbase, srdb, soff):
    ops = []
    for j in range(16):
        ops += dma_pair(f"s_mov_b32 m0, {slotbase + 1040*j - perm16(j)*256}", vKV, srdb, soff, perm16(j)*256, P.KVPOL)
    return ops
def dma_wo(slotbase, soffreg):
    ops = []
    for jj in range(4):
        for jh in range(4):
            j = jh*4 + jj
            pr = dma_pair(f"s_mov_b32 m0, {slotbase + 1040*j - jh*1024}", w_vlin, sWO, f"s{sTMP}", jh*1024, wopol())
            if jh == 0: pr.insert(1, salu(f"s_add_u32 s{sTMP}, s{soffreg}, {jj*4096}"))
            ops += pr
    return ops
def dma_wq(slotbase, colreg, const):
    ops = []
    for j in range(16):
        pr = dma_pair(f"s_mov_b32 m0, {slotbase + 1040*j}", w_vwq, sWQ, f"s{sTMP+1}", 0, P.WPOL)
        pr.insert(1, salu(f"s_add_u32 s{sTMP+1}, s{colreg}, {const + perm16(j)*8192}"))
        ops += pr
    return ops

loop_ctr = [0]
def tile_loop(kind, lds, soff_txt, srdb=None, voff=None, pol=""):
    loop_ctr[0] += 1
    L = f"L_tl{loop_ctr[0]}"
    A, B, C = 99, sTMP, 100
    t = [soff_txt, f"s_mov_b32 s{A}, {lds}", f"s_mov_b32 s{C}, 4", f"{L}:"]
    for i in range(4):
        if kind == 'wo':
            t += [f"s_add_u32 m0, s{A}, {3136*i}", "s_nop 0", f"buffer_load_dwordx4 v{w_vlin}, {srd(sWO)}, s{B} offen offset:{1024*i}{wopol()} lds"]
        elif kind == 'kv':
            t += [f"s_add_u32 m0, s{A}, {16*i}", "s_nop 0", f"buffer_load_dwordx4 v{vKV}, {srd(srdb)}, s{B} offen offset:{1024*i}{P.KVPOL} lds"]
        elif kind == 'x':
            t += [f"s_add_u32 m0, s{A}, {16*i}", "s_nop 0", f"buffer_load_dwordx4 v9, {srd(sX)}, s{B} offen offset:{1024*i}{P.XPOL} lds"]
        elif kind == 'wq':
            t += [f"s_add_u32 m0, s{A}, {1040*i}", f"s_add_u32 s{sTMP+1}, s{B}, {32768*i}", f"buffer_load_dwordx4 v{w_vwq}, {srd(sWQ)}, s{sTMP+1} offen{P.WPOL} lds"]
    da, db = {'wo': (1040, 4096), 'kv': (4160, 256), 'x': (4160, 4096), 'wq': (4160, 8192)}[kind]
    t += [f"s_add_u32 s{A}, s{A}, {da}", f"s_add_u32 s{B}, s{B}, {db}", f"s_sub_u32 s{C}, s{C}, 1", f"s_cmp_lg_u32 s{C}, 0", f"s_cbranch_scc1 {L}"]
    txt = "\n".join((x if x.endswith(":") else "    " + x) for x in t).lstrip()
    op = Op('raw', txt); op.ndma = 16
    return [op]

def qproj_items(frags, addr, base, gate, kq, acc_regs, xfrag, nmt):
    it = []
    for dt2 in range(2):
        for ks in range(8):
            frags.append(Frag([('tr', addr, base + t*1040 + ks*128 + dt2*64, 2*t) for t in range(2)], gate))
            for mt in range(nmt):
                it.append(MItem('mfma', D=acc_regs(dt2, mt), B=xfrag(mt, kq*8 + ks), acc=not (kq == 0 and ks == 0), frag=len(frags)-1))
    return it

def scale_cvt(a, dst):
    ops = []
    for k in range(9):
        if k < 8:
            if P.PKMUL:
                ops.append(valu(f"v_pk_mul_f32 v[{a+2*k}:{a+2*k+1}], v[{a+2*k}:{a+2*k+1}], s[{sC2}:{sC2+1}]", [a+2*k, a+2*k+1], [a+2*k, a+2*k+1]))
            else:
                ops.append(valu(f"v_mul_f32 v{a+2*k}, s{sC}, v{a+2*k}", [a+2*k], [a+2*k]))
                ops.append(valu(f"v_mul_f32 v{a+2*k+1}, s{sC}, v{a+2*k+1}", [a+2*k+1], [a+2*k+1]))
        if k > 0:
            kk = k - 1
            ops.append(valu(f"v_cvt_pk_bf16_f32 v{dst+kk}, v{a+2*kk}, v{a+2*kk+1}", [a+2*kk, a+2*kk+1], [dst+kk]))
    return ops

nonce_ctr = [0]
def nonce_op():
    nonce_ctr[0] += 1
    L = f"L_nn{nonce_ctr[0]}"
    t = (f"s_cmp_lg_u32 s{sT}, s94\n    s_cbranch_scc1 {L}\n    s_mov_b64 exec, 1\n"
         f"    buffer_atomic_cmpswap v[12:13], v14, s[84:87], 0 offen sc0 sc1\n    s_mov_b64 exec, -1\n{L}:")
    return [salu(t)] if P.FUSE else []

def wo_sel():
    lim = 100 if P.NODMA in (1, 2) else 6
    t = f"s_cmp_ge_i32 s{sT}, {lim}\n    s_cselect_b32 s{sWO+2}, 0x80000, 0\n    s_cselect_b32 s{sWOCUR}, s{sWOOFF}, s{sPF}"
    ops = nonce_op() + [salu(t)]
    if P.WOPF and not P.NODMA:
        ops.append(salu(f"s_sub_u32 s{sTMP}, s{sT}, {P.PFT-1}\n    s_cmp_lt_u32 s{sTMP}, 2\n    s_cselect_b32 s{sWO+2}, 0x80000, s{sWO+2}\n    s_cselect_b32 s{sTMP}, 16384, 0\n    s_add_u32 s{sPF}, s{sPF}, s{sTMP}"))
    return ops

def w3_acc(dt2, mt): return V(W_ACC + (dt2*3 + mt)*16, 16)
def w3_cv(dt2):
    ops = []
    for mt in range(3):
        a = w3_acc(dt2, mt)[0]
        ops += scale_cvt(a, a)
        for s2 in range(2):
            ops.append(dsw128(w_aQB, V(a + 4*s2, 4), mt*8192 + (dt2*2 + s2)*1024))
    return ops

def wave3_body(em):
    seq = []; frags = []
    lastB = None
    for kq in (1, 2, 3, 0):
        par = kq % 2
        gA = newgate(); gB = newgate(); dA = newgate(); dB = newgate(); gW = newgate(); dW = newgate()
        rdA = [lastB] if lastB else []
        wq = [salu(f"s_cmp_le_i32 s{sT}, {-100 if P.NODMA in (1, 2) else 20}\n    s_cselect_b32 s{sWQ+2}, s{sTMP+2}, 0")]
        if kq == 3:
            wq.append(salu(f"s_add_u32 s{sWQLIN}, s{sWQLIN}, 128\n    s_and_b32 s{sWQLIN}, s{sWQLIN}, 1023\n    s_xor_b32 s{sWQCOL}, s{sWQLIN}, s{sSW}"))
        wq += dma_wq(WQ0 + (1-par)*SL, sWQCOL, ((kq+1) % 4) * 128 * 8192)
        wo = wo_sel() + dma_wo(WO0 + par*SL, sWOCUR)
        wo.append(salu(f"s_add_u32 s{sWOOFF}, s{sWOOFF}, 16384\n    s_and_b32 s{sWOOFF}, s{sWOOFF}, 0x7ffff\n    s_add_u32 s{sT}, s{sT}, 1", wr=[dB]))
        vq = kvq_ops(V0 + (1-par)*SL, sV, sVOFF, sM0V, 30, gA, dA)
        if P.PLAN == 0:
            A = wq + vq; A[0].rd.append(gA)
            if P.WOQ:
                wo = nonce_op() + woq_ops(WO0 + par*SL, w_vlin) + [salu(f"s_add_u32 s{sT}, s{sT}, 1", wr=[dB])]
            B = kvq_ops(K0 + (1-par)*SL, sK, sKOFF, sM0K, 28, gB, newgate()) + wo
            wA, wB, nA = (28, 28, P.W_PRE) if P.WOQ else (40, 40, P.W_PRE)
            wW = (12 if P.WOQ else 24) + nA
        elif P.PLAN == 2:
            gZ = newgate(); dZ = newgate()
            A = wq + vq; A[0].rd.append(gA)
            Z = wo[:-1] + [salu(f"s_add_u32 s{sWOOFF}, s{sWOOFF}, 16384\n    s_and_b32 s{sWOOFF}, s{sWOOFF}, 0x7ffff", wr=[dZ])]; Z[0].rd.append(gZ)
            B = kvq_ops(K0 + (1-par)*SL, sK, sKOFF, sM0K, 28, gB, newgate()) + [salu(f"s_add_u32 s{sT}, s{sT}, 1", wr=[dB])]
            wA, wZ, wB, nA = 44, 60, 56, P.W_PRE
            wW = 24 + nA
        else:
            A = kvq_ops(K0 + par*SL, sK, sKOFF, sM0K, 29, gA, newgate()) + vq
            B = wq + wo; B[0].rd.append(gB)
            wA, wB, nA = 36, 40, 8
            wW = 24
            if P.PLAN == 3:
                gZ = newgate(); dZ = dA; Z = []
                wA, wZ = 40, 44
        seq.append(bar(gA, pre=stamp_txt() + [f"s_waitcnt vmcnt({wA})"], rd=rdA, drain=bool(P.STAMP)))
        items = qproj_items(frags, w_aWQ, par*SL, gW, kq, w3_acc, XF3, 3)
        cut = 0; cnt = 0
        while cnt < nA:
            if A[cut].kind == 'dma': cnt += 1
            cut += 1
        A1 = A[:cut] + [salu("s_nop 0", wr=[dW])]; A2 = A[cut:]
        if kq == 0:
            c = w3_cv(1) + [valu(f"v_xor_b32 v{w_aQB}, 0x1000, v{w_aQB}", [w_aQB], [w_aQB])]
            A2 = interleave(c, A2, every=1)
        seq += A1
        seq.append(MItem('bar', texts=[f"s_waitcnt vmcnt({wW})"], rd=[dW], wr=[gW]))
        seq += A2
        if P.PLAN in (2, 3):
            seq += items[:P.W_SPLITZ]
            seq.append(bar(gZ, pre=[f"s_waitcnt vmcnt({wZ})"], rd=[dA]))
            seq += Z
            seq += items[P.W_SPLITZ:P.W_SPLIT]
            seq.append(bar(gB, pre=[f"s_waitcnt vmcnt({wB})"], rd=[dZ]))
        else:
            seq += items[:P.W_SPLIT]
            seq.append(bar(gB, pre=[f"s_waitcnt vmcnt({wB})"], rd=[dA]))
        if kq == 3:
            B = interleave(B, w3_cv(0), every=1)
        seq += B
        seq += items[P.W_SPLIT:]
        lastB = dB
    schedule(em, seq, frags, W_STG, W_NS, P.W_LA, budget=P.W_BUDGET, pair=False)

def wave3_body4(em):
    seq = []; frags = []
    lastA = None
    for kq in (1, 2, 3, 0):
        par = kq % 2
        gA = newgate(); gB = newgate(); gZ = newgate(); dA = newgate(); dB = newgate(); gW = newgate(); dW = newgate()
        wq = [salu(f"s_cmp_le_i32 s{sT}, {-100 if P.NODMA in (1, 2) else 20}\n    s_cselect_b32 s{sWQ+2}, s{sTMP+2}, 0", rd=[gB])]
        if kq == 3:
            wq.append(salu(f"s_add_u32 s{sWQLIN}, s{sWQLIN}, 128\n    s_and_b32 s{sWQLIN}, s{sWQLIN}, 1023\n    s_xor_b32 s{sWQCOL}, s{sWQLIN}, s{sSW}"))
        wq += dma_wq(WQ0 + (1-par)*SL, sWQCOL, ((kq+1) % 4) * 128 * 8192)
        wo = wo_sel() + dma_wo(WO0 + par*SL, sWOCUR)
        wo.append(salu(f"s_add_u32 s{sWOOFF}, s{sWOOFF}, 16384\n    s_and_b32 s{sWOOFF}, s{sWOOFF}, 0x7ffff\n    s_add_u32 s{sT}, s{sT}, 1", wr=[dB]))
        B = wq + wo
        A = kvq_ops(K0 + (1-par)*SL, sK, sKOFF, sM0K, 29, gA, newgate()) + kvq_ops(V0 + par*SL, sV, sVOFF, sM0V, 30, gA, dA)
        items = qproj_items(frags, w_aWQ, par*SL, gW, kq, w3_acc, XF3, 3)
        seq.append(bar(gB, pre=["s_waitcnt vmcnt(40)"], rd=[lastA] if lastA else []))
        seq.append(MItem('bar', texts=["s_waitcnt vmcnt(24)"], wr=[gW]))
        seq += B
        seq += items[:P.W4_1]
        seq.append(bar(gA, pre=stamp_txt() + ["s_waitcnt vmcnt(40)"], rd=[dB], drain=bool(P.STAMP)))
        if kq == 0:
            c = w3_cv(1) + [valu(f"v_xor_b32 v{w_aQB}, 0x1000, v{w_aQB}", [w_aQB], [w_aQB], ), salu("s_nop 0", wr=[dW])]
            A = A + c
        seq += A
        seq += items[P.W4_1:P.W4_2]
        seq.append(bar(gZ, pre=["s_waitcnt vmcnt(44)"], rd=[dA] + ([dW] if kq == 0 else []), drain=(kq == 0)))
        if kq == 3:
            seq += w3_cv(0)
        seq += items[P.W4_2:]
        lastA = dA
    schedule(em, seq, frags, W_STG, W_NS, P.W_LA, budget=P.W_BUDGET, pair=False)

def wave3_body5(em):
    seq = []; frags = []
    lastB = None
    for kq in range(4):
        par = kq % 2
        gA = newgate(); gB = newgate(); gZ = newgate(); dA = newgate(); dB = newgate(); dZ = newgate(); gW = newgate(); dW = newgate(); dC = newgate()
        wq = [salu(f"s_cmp_le_i32 s{sT}, {-100 if P.NODMA in (1, 2) else 21}\n    s_cselect_b32 s{sWQ+2}, s{sTMP+2}, 0", rd=[gA])]
        if kq == 3:
            wq.append(salu(f"s_add_u32 s{sWQLIN}, s{sWQLIN}, 128\n    s_and_b32 s{sWQLIN}, s{sWQLIN}, 1023\n    s_xor_b32 s{sWQCOL}, s{sWQLIN}, s{sSW}"))
        wq += dma_wq(WQ0 + (1-par)*SL, sWQCOL, ((kq+1) % 4) * 128 * 8192)
        A = wq + kvq_ops(V0 + par*SL, sV, sVOFF, sM0V, 30, gA, dA)
        Z = wo_sel() + dma_wo(WO0 + (1-par)*SL, sWOCUR) + [salu(f"s_add_u32 s{sWOOFF}, s{sWOOFF}, 16384\n    s_and_b32 s{sWOOFF}, s{sWOOFF}, 0x7ffff", wr=[dZ])]
        Z[0].rd.append(gZ)
        B = kvq_ops(K0 + par*SL, sK, sKOFF, sM0K, 28, gB, newgate()) + [salu(f"s_add_u32 s{sT}, s{sT}, 1", wr=[dB])]
        nA = P.W_PRE
        seq.append(bar(gA, pre=stamp_txt() + ["s_waitcnt vmcnt(44)"], rd=[lastB] if lastB else [], drain=bool(P.STAMP)))
        items = qproj_items(frags, w_aWQ, par*SL, gW, kq, w3_acc, XF3, 3)
        cut = 0; cnt = 0
        while cnt < nA:
            if A[cut].kind == 'dma': cnt += 1
            cut += 1
        A1 = A[:cut] + [salu("s_nop 0", wr=[dW])]; A2 = A[cut:]
        if kq == 0:
            c = w3_cv(1) + [valu(f"v_xor_b32 v{w_aQB}, 0x1000, v{w_aQB}", [w_aQB], [w_aQB]), salu("s_nop 0", wr=[dC])]
            A2 = interleave(c, A2, every=1)
        seq += A1
        seq.append(MItem('bar', texts=[f"s_waitcnt vmcnt({24 + nA})"], rd=[dW], wr=[gW]))
        seq += A2
        seq += items[:P.W_SPLITZ]
        seq.append(bar(gZ, pre=["s_waitcnt vmcnt(60)"], rd=[dA] + ([dC] if kq == 0 else []), drain=(kq == 0)))
        seq += Z
        seq += items[P.W_SPLITZ:P.W_SPLIT]
        seq.append(bar(gB, pre=["s_waitcnt vmcnt(56)"], rd=[dZ]))
        if kq == 3:
            B = interleave(w3_cv(0), B, every=2)
        seq += B
        seq += items[P.W_SPLIT:]
        lastB = dB
    schedule(em, seq, frags, W_STG, W_NS, P.W_LA, budget=P.W_BUDGET, pair=False)

class VM:
    def __init__(self, em, init): self.em = em; self.q = list(init)
    def issue(self, tag, ops):
        n = 0
        for o in ops:
            self.em.emit(o)
            if o.kind == 'dma': n += 1
            n += getattr(o, 'ndma', 0)
        self.q.append((tag, n))
    def need(self, *tags):
        last = -1
        for i, (t, n) in enumerate(self.q):
            if t in tags: last = i
        if last >= 0:
            n = sum(c for (_, c) in self.q[last+1:])
            self.em.raw(f"s_waitcnt vmcnt({min(n, 63)})")
            self.q = self.q[last+1:]

def gen_main(em):
    R = em.raw
    em.label(f"{NAME}_kernel")
    R("s_cmp_ge_u32 s2, 256")
    R("s_cbranch_scc1 L_end")
    R("s_load_dwordx8 s[48:55], s[0:1], 0")
    R("s_load_dwordx2 s[56:57], s[0:1], 32")
    R("s_load_dwordx8 s[60:67], s[0:1], 40")
    R("s_load_dwordx2 s[68:69], s[0:1], 72")
    R("s_load_dwordx2 s[70:71], s[0:1], 96")
    if P.CPF:
        R("s_getpc_b64 s[78:79]")
        em.label("L_pc")
        R(f"s_sub_u32 s78, s78, L_pc-{NAME}_kernel")
        R("s_subb_u32 s79, s79, 0")
        R("s_lshr_b32 s3, s2, 3")
        R("s_lshl_b32 s3, s3, 11")
        R("v_lshlrev_b32 v28, 7, v0")
        R("v_add_u32 v28, s3, v28")
        R(f"v_min_u32 v28, L_code_end-{NAME}_kernel-4, v28")
        R("v_cmp_gt_u32 vcc, 16, v0")
        R("s_and_saveexec_b64 s[80:81], vcc")
        R("s_cbranch_execz L_nocpf")
        R("global_load_dword v10, v28, s[78:79]")
        em.label("L_nocpf")
        R("s_mov_b64 exec, s[80:81]")
    R("v_lshrrev_b32 v1, 6, v0")
    R("v_and_b32 v0, 63, v0")
    R(f"v_readfirstlane_b32 s{sWAVE}, v1")
    R("s_and_b32 s3, s2, 7")
    R("s_lshr_b32 s4, s2, 3")
    R("s_lshr_b32 s5, s3, 2")
    R("s_and_b32 s3, s3, 3")
    R("s_lshl_b32 s3, s3, 1")
    R("s_lshr_b32 s6, s4, 4")
    R("s_add_u32 s3, s3, s6")
    R("s_and_b32 s4, s4, 15")
    R(f"s_mov_b32 s{sC}, {f32bits(C_SCALE):#x}")
    R(f"s_mov_b32 s{sC2}, {f32bits(C_SCALE):#x}")
    R(f"s_mov_b32 s{sC2+1}, {f32bits(C_SCALE):#x}")
    R(f"s_mov_b32 s{sTHR}, {f32bits(P.THR):#x}")
    R(f"s_mul_i32 s{sM0W}, s{sWAVE}, 4160")
    R(f"s_mov_b32 s{sM0N}, {M0_NULL:#x}")
    R("s_waitcnt lgkmcnt(0)")
    R("s_cmp_eq_u32 s5, 0")
    for i in range(5):
        R(f"s_cselect_b64 s[{48+2*i}:{49+2*i}], s[{48+2*i}:{49+2*i}], s[{60+2*i}:{61+2*i}]")
    R("s_lshl_b32 s6, s4, 22")
    R("s_lshl_b32 s7, s3, 19")
    R("s_add_u32 s6, s6, s7")
    for (d, p) in ((sK, 50), (sV, 52)):
        R(f"s_add_u32 s{d}, s{p}, s6")
        R(f"s_addc_u32 s{d+1}, s{p+1}, 0")
        R(f"s_and_b32 s{d+1}, s{d+1}, 0xffff")
        R(f"s_mov_b32 s{d+2}, 0x80000")
        R(f"s_mov_b32 s{d+3}, 0x20000")
    R("s_lshl_b32 s6, s3, 10")
    R(f"s_add_u32 s{sWQ}, s54, s6")
    R(f"s_addc_u32 s{sWQ+1}, s55, 0")
    R(f"s_and_b32 s{sWQ+1}, s{sWQ+1}, 0xffff")
    R(f"s_sub_u32 s{sWQ+2}, 0x400000, s6")
    R(f"s_mov_b32 s{sTMP+2}, s{sWQ+2}")
    R(f"s_mov_b32 s{sWQ+3}, 0x20000")
    R(f"s_add_u32 s{sWO}, s56, s7")
    R(f"s_addc_u32 s{sWO+1}, s57, 0")
    R(f"s_and_b32 s{sWO+1}, s{sWO+1}, 0xffff")
    R(f"s_mov_b32 s{sWO+2}, 0x80000")
    R(f"s_mov_b32 s{sWO+3}, 0x20000")
    R("s_mul_i32 s6, s4, 98304")
    R(f"s_add_u32 s{sX}, s48, s6")
    R(f"s_addc_u32 s{sX+1}, s49, 0")
    R(f"s_and_b32 s{sX+1}, s{sX+1}, 0xffff")
    R(f"s_mov_b32 s{sX+2}, 98304")
    R(f"s_mov_b32 s{sX+3}, 0x20000")
    R("s_mul_i32 s6, s2, 98304")
    R(f"s_add_u32 s{sWS}, s70, s6")
    R(f"s_addc_u32 s{sWS+1}, s71, 0")
    R(f"s_and_b32 s{sWS+1}, s{sWS+1}, 0xffff")
    R(f"s_mov_b32 s{sWS+2}, 98304")
    R(f"s_mov_b32 s{sWS+3}, 0x20000")
    R("v_bfe_u32 v20, v0, 2, 2")
    R("v_lshrrev_b32 v21, 5, v0")
    R("v_bfe_u32 v22, v0, 4, 1")
    R("v_and_b32 v23, 1, v0")
    R("v_bfe_u32 v24, v0, 1, 1")
    R("v_lshlrev_b32 v25, 2, v20")
    R("v_lshl_add_u32 v26, v21, 1, v25")
    R("v_mul_u32_u24 v26, 1040, v26")
    R("v_lshl_add_u32 v26, v22, 5, v26")
    R("v_lshl_add_u32 v26, v23, 4, v26")
    R("v_lshl_add_u32 v26, v24, 3, v26")
    R("v_and_b32 v27, 15, v0")
    R("v_mul_u32_u24 v27, 1040, v27")
    R("v_lshl_add_u32 v27, v22, 9, v27")
    R("v_lshl_add_u32 v27, v21, 4, v27")
    R("v_lshrrev_b32 v28, 4, v0")
    R("v_and_b32 v29, 15, v0")
    R("v_lshlrev_b32 v29, 4, v29")
    R(f"v_lshl_add_u32 v{vKV}, v28, 12, v29")
    if P.ROT:
        R(f"s_and_b32 s{sROT}, s4, 3")
        R(f"s_lshl_b32 s{sROT}, s{sROT}, 17")
        R(f"s_bfe_u32 s{sSW}, s4, 0x10002")
        R(f"s_lshl_b32 s{sSW}, s{sSW}, 7")
    else:
        R(f"s_mov_b32 s{sROT}, 0")
        R(f"s_mov_b32 s{sSW}, 0")
    R(f"s_lshl_b32 s{sPF}, s4, 15")
    if P.TXOR:
        R(f"s_lshr_b32 s{sXR}, s4, 2")
        R(f"s_lshl_b32 s6, s3, 2")
        R(f"s_or_b32 s{sXR}, s{sXR}, s6")
        R(f"s_and_b32 s{sXR}, s{sXR}, 7")
        R(f"s_lshl_b32 s{sXR}, s{sXR}, 14")
    else:
        R(f"s_mov_b32 s{sXR}, 0")
    R(f"s_lshl_b32 s{sVOFF}, s{sWAVE}, 8")
    R(f"s_add_u32 s{sVOFF}, s{sVOFF}, s{sROT}")
    R(f"s_add_u32 s{sKOFF}, s{sVOFF}, {(1 if P.PLAN in (1, 3, 4) else 2)*16384}")
    R(f"s_mov_b32 s{sT}, -1")
    if P.WOQ and P.PLAN == 0:
        R(f"s_lshl_b32 s{sWOOFF}, s{sWAVE}, 10")
        R(f"s_add_u32 s{sWOOFF}, s{sWOOFF}, s{sROT}")
        R(f"s_add_u32 s{sWOOFF}, s{sWOOFF}, {(-7*16384) & 0x7ffff:#x}")
        R(f"s_and_b32 s{sWOOFF}, s{sWOOFF}, 0x7ffff")
    if P.STAMP:
        R("s_mov_b32 s98, 0")
        R(f"v_mov_b32 v{STV}, 0")
    stamp(em)
    R(f"s_cmp_eq_u32 s{sWAVE}, 3")
    R("s_cbranch_scc0 L_att" if P.W3FIRST else "s_cbranch_scc1 L_wave3")
    em.mark_att = len(em.lines)
    em.label("L_att")

    R("v_and_b32 v28, 3, v0")
    R("v_lshl_add_u32 v28, v28, 2, v20")
    R("v_mul_u32_u24 v28, 1040, v28")
    R("v_lshl_add_u32 v28, v22, 8, v28")
    R(f"v_lshl_add_u32 v{aK}, v21, 4, v28")
    R("v_add_u32 v28, v25, v21")
    R("v_mul_u32_u24 v28, 1040, v28")
    R("v_and_b32 v29, 3, v0")
    R("v_lshl_add_u32 v29, v29, 3, v28")
    R("v_lshl_add_u32 v29, v22, 5, v29")
    R(f"v_add_u32 v{aV}, {V0}, v29")
    R("v_lshl_add_u32 v29, v23, 5, v28")
    R("v_lshl_add_u32 v29, v22, 4, v29")
    R("v_lshl_add_u32 v29, v24, 3, v29")
    R(f"v_add_u32 v{aWO}, {WO0}, v29")
    R(f"s_lshl_b32 s3, s{sWAVE}, 13")
    R(f"s_add_u32 s3, s3, {QB}")
    R(f"v_lshlrev_b32 v{aQB}, 4, v0")
    R(f"v_add_u32 v{aQB}, s3, v{aQB}")
    R(f"v_mov_b32 v{AUX}, v26")
    R(f"v_lshlrev_b32 v{vLIN}, 4, v0")
    R(f"s_mul_i32 s3, s{sWAVE}, {SL}")
    R(f"v_add_u32 v{T2}, s3, v27")
    R(f"v_add_u32 v{T3}, {5*SL}, v{T2}")
    for i in range(8): R(f"v_mov_b32 v{16+i}, 0")
    R("s_nop 1")
    for nt in range(16):
        R(f"v_mfma_f32_32x32x16_bf16 a[{16*nt}:{16*nt+15}], v[16:19], v[20:23], 0")
    QA = SR[1]
    seq = []; frags = []
    tmpaddr = [T0, T1]
    for ti in range(8):
        if ti in (0, 2, 3, 6):
            g = newgate()
            xr = []
            if ti in (2, 3):
                for ks in range(16): xr += XFA(ks + 16*(ti-2))
            seq.append(bar(g, st=1, drain=True, rd=xr, pre=(["s_waitcnt vmcnt(0)"] if ti == 6 else [])))
            if ti in (0, 2):
                for ks in range(16):
                    op = dsr128(XFA(ks + 8*ti), T2 if ti == 0 else T3, ks*32)
                    op.rd.append(g)
                    seq.append(op)
        ta = tmpaddr[ti % 2]
        ga = newgate()
        seq.append(valu(f"v_add_u32 v{ta}, {WLOC[ti]}, v{AUX}", [AUX], [ta]))
        seq.append(MItem('bar', texts=[], rd=[ta], wr=[ga]))
        its = qproj_items(frags, ta, 0, ga, ti % 4, lambda dt2, mt: V(QA + 16*dt2, 16), lambda mt, ks: XFA(ks), 1)
        for it in its: it.rd.append(ta)
        seq += its[:8]
        if ti % 4 == 3: seq += scale_cvt(QA, QR + 16*(ti//4))
        seq += its[8:]
        if ti % 4 == 3: seq += scale_cvt(QA + 16, QR + 16*(ti//4) + 8)
    for i in range(64):
        seq.append(valu(f"v_mov_b32 v{OACC+i}, 0", [], [OACC+i]))
    for i in range(16):
        seq.append(valu(f"v_mov_b32 v{SR[1]+i}, 0", [], [SR[1]+i]))
    seq.append(valu(f"v_mov_b32 v{LA_}, 1.0", [], [LA_]))
    seq.append(valu(f"v_mov_b32 v{LB_}, 0", [], [LB_]))
    gA = newgate()
    seq.append(bar(gA, st=1))
    if P.PLAN in (1, 3, 4): seq += kvq_ops(K0+SL, sK, sKOFF, sM0K, 29, gA, newgate())
    dz = newgate()
    seq += kvq_ops(V0, sV, sVOFF, sM0V, 30, gA, dz)
    if P.PLAN in (2, 3, 4, 5): seq.append(bar(newgate(), rd=[dz]))
    seq += qk_items(frags, SR[0], 0, gA, False)
    schedule(em, seq, frags, STG, NS, P.LA, budget=P.BUDGET)
    R(f"s_mov_b32 s{sCNT}, 4")
    em.fence()
    em.label("L_att_loop")
    n0 = em.ninstr; nn0 = em.nops; w0 = em.waits
    attention_head(em)
    print(f"attention head body: {em.ninstr-n0} instrs, {em.nops-nn0} nop states, {em.waits-w0} waits", file=sys.stderr)
    R(f"s_sub_u32 s{sCNT}, s{sCNT}, 1")
    R(f"s_cmp_lg_u32 s{sCNT}, 0")
    em.fence()
    R("s_cbranch_scc1 L_att_loop")
    seq = []; frags = []
    gB = newgate(); g1 = newgate()
    WOQ = P.WOQ and P.PLAN == 0
    seq.append(bar(gB, pre=["s_waitcnt vmcnt(12)" if WOQ else "s_waitcnt vmcnt(0)"], st=2))
    dT = newgate()
    if WOQ:
        w = woq_ops(WO0 + SL, vLIN); w[0].rd.append(gB); w[-1].wr.append(dT)
        seq += w
    seq.append(valu(f"v_subrev_u32 v{T0}, {WO0}, v{aWO}", [aWO], [T0]))
    seq.append(valu(f"v_add_u32 v{DELTA}, {QB-WO0}, v{aWO}", [aWO], [DELTA]))
    seq.append(valu(f"v_lshlrev_b32 v{T1}, 4, v0", [], [T1]))
    seq.append(salu(f"s_lshl_b32 s3, s{sWAVE}, 15"))
    seq += pv_items(frags, SR[1], 1, gB, False)
    insert_hoisted(seq, bar(g1, st=1, rd=[T0, DELTA, dT], pre=(["s_waitcnt vmcnt(0)"] if WOQ else [])), P.HOIST)
    seq += finalize_ops()
    for nt in range(16):
        for ks in range(8):
            if ks < 4: seq.append(opj_item(frags, ks, nt, ks*SL, g1, aWO))
            elif ks < 7: seq.append(opj_item(frags, ks, nt, (ks-4)*SL, g1, T0))
            else: seq.append(opj_item(frags, ks, nt, 0, g1, DELTA))
        b = 176 + (nt % 4) * 16
        for r in range(16):
            seq.append(valu(f"v_accvgpr_read_b32 v{b+r}, a{16*nt+r}", AG(16*nt+r), [b+r]))
        for k in range(8):
            seq.append(valu(f"v_cvt_pk_bf16_f32 v{b+k}, v{b+2*k}, v{b+2*k+1}", [b+2*k, b+2*k+1], [b+k]))
        for q in range(2):
            off = (nt*2 + q) * 1024
            if off % 4096 == 0:
                seq.append(salu(f"s_add_u32 s4, s3, {off}"))
            seq.append(Op('vmem', f"buffer_store_dwordx4 v[{b+4*q}:{b+4*q+3}], v{T1}, {srd(sWS)}, s4 offen offset:{off % 4096}{P.STPOL}", rd=V(b+4*q, 4) + [T1], tag='store'))
    schedule(em, seq, frags, STG, NS, P.LA, budget=P.BUDGET)
    if P.FUSE:
        stamp(em)
        R("s_waitcnt vmcnt(0)")
        stamp(em)
        R("s_barrier")
        R("s_branch L_red")
        emit_rare(em)
        rare_blocks.clear()
    stamp(em)
    if P.STAMP: R("s_waitcnt vmcnt(0)")
    stamp(em)
    stamp_store(em)
    if P.DBG:
        R(f"s_cmp_lg_u32 s{sWAVE}, 0")
        R("s_cbranch_scc1 L_dbgskip")
        R("s_load_dwordx2 s[72:73], s[0:1], 88")
        R(f"v_readlane_b32 s76, v{STV}, 0")
        idx = [1, 5, 6, 14, 22, 30, 38, 40]
        for i, l in enumerate(idx): R(f"v_readlane_b32 s{80+i}, v{STV}, {l}")
        R("s_waitcnt lgkmcnt(0)")
        R("s_and_b32 s73, s73, 0xffff")
        R("s_mov_b32 s74, 256")
        R("s_mov_b32 s75, 0x20000")
        R("v_mov_b32 v1, 0")
        R("v_mov_b32 v2, 0")
        R("s_not_b32 s77, s76")
        R("v_writelane_b32 v2, s77, 8")
        R("v_writelane_b32 v2, s87, 9")
        for i in range(8):
            R(f"s_sub_u32 s{80+i}, s{80+i}, s76")
            R(f"v_writelane_b32 v1, s{80+i}, {i}")
        R("v_cmp_gt_u32 vcc, 40, v0")
        R("s_and_saveexec_b64 s[78:79], vcc")
        R("buffer_atomic_add v1, v0, s[72:75], 0 offen")
        R("buffer_atomic_umax v2, v0, s[72:75], 0 offen")
        R("s_waitcnt vmcnt(0)")
        em.label("L_dbgskip")
    R("s_endpgm")
    emit_rare(em)

    em.mark_w3 = len(em.lines)
    em.label("L_wave3")
    em.reset()
    R(f"v_lshlrev_b32 v{w_vlin}, 4, v0")
    R("v_lshrrev_b32 v28, 3, v0")
    R("v_and_b32 v29, 7, v0")
    R("v_lshlrev_b32 v29, 4, v29")
    R(f"v_lshl_add_u32 v{w_vwq}, v28, 17, v29")
    R(f"v_add_u32 v{w_aWQ}, {WQ0}, v26")
    R(f"v_add_u32 v{w_aQB}, {QB}, v{w_vlin}")
    R(f"v_mov_b32 v{w_aX}, v27")
    R(f"v_add_u32 v8, {5*SL}, v27")
    R("v_and_b32 v29, 31, v0")
    R("v_lshlrev_b32 v29, 4, v29")
    R("v_lshl_add_u32 v9, v21, 14, v29")
    R(f"s_lshr_b32 s{sWQCOL}, s{sROT}, 9")
    R(f"s_lshl_b32 s3, s{sSW}, 5")
    R(f"v_add_u32 v{w_aQB}, s3, v{w_aQB}")
    vm = VM(em, [])
    def xt(mt, kh, loc): return tile_loop('x', loc, f"s_mov_b32 s{sTMP}, {mt*32768 + kh*512}")
    def w0(ti): return tile_loop('wq', WLOC[ti], f"s_add_u32 s{sTMP}, s{sWQCOL}, {(ti % 4)*128*8192 + (ti // 4)*128}")
    for mt in range(3): vm.issue("X0", xt(mt, 0, mt*SL))
    vm.issue("W0", w0(0)); vm.issue("W1", w0(1))
    for mt in range(3): vm.issue("X1", xt(mt, 1, (5+mt)*SL))
    vm.issue("W2", w0(2))
    vm.need("W1")
    R("s_barrier")
    for mt in range(3):
        for ks in range(16):
            em.emit(dsr128(XF3(mt, ks), w_aX, mt*SL + ks*32))
    em.wait_ds(0)
    vm.need("W2")
    R("s_barrier")
    vm.issue("W3", w0(3)); vm.issue("W4", w0(4)); vm.issue("W5", w0(5))
    vm.issue("K0", tile_loop('kv', K0, f"s_xor_b32 s{sTMP}, s{sROT}, s{sXR}", sK))
    if P.PLAN in (0, 2):
        vm.issue("K1", tile_loop('kv', K0+SL, f"s_add_u32 s{sTMP}, s{sROT}, 16384\n    s_xor_b32 s{sTMP}, s{sTMP}, s{sXR}", sK))
    for mt in range(3):
        for ks in range(16):
            em.emit(dsr128(XF3(mt, 16+ks), 8, mt*SL + ks*32))
    em.wait_ds(0)
    vm.need("W5")
    R("s_barrier")
    if P.FUSE:
        R("s_load_dwordx2 s[84:85], s[0:1], 88")
        R("s_memrealtime s[90:91]")
        R("v_mov_b32 v13, 0")
        R("v_mov_b32 v14, 252")
        R("s_bfe_u32 s94, s2, 0x40003")
        R("s_add_u32 s94, s94, 2")
        R("s_waitcnt lgkmcnt(0)")
        R("s_and_b32 s85, s85, 0xffff")
        R("s_mov_b32 s86, 256")
        R("s_mov_b32 s87, 0x20000")
        R("s_or_b32 s90, s90, 1")
        R("v_mov_b32 v12, s90")
        R("v_mov_b32 v15, s90")
    vm.issue("W6", w0(6)); vm.issue("W7", w0(7))
    R(f"s_add_u32 s{sWQLIN}, s{sWQCOL}, 256")
    R(f"s_and_b32 s{sWQLIN}, s{sWQLIN}, 1023")
    R(f"s_xor_b32 s{sWQCOL}, s{sWQLIN}, s{sSW}")
    vm.issue("U0", tile_loop('wq', WQ0, f"s_mov_b32 s{sTMP}, s{sWQCOL}"))
    if P.PLAN == 5:
        vm.issue("K1", tile_loop('kv', K0+SL, f"s_add_u32 s{sTMP}, s{sROT}, 16384\n    s_xor_b32 s{sTMP}, s{sTMP}, s{sXR}", sK))
        R(f"v_xor_b32 v{w_aQB}, 0x1000, v{w_aQB}")
    else:
        vm.issue("U1", tile_loop('wq', WQ0+SL, f"s_add_u32 s{sTMP}, s{sWQCOL}, {128*8192}"))
    vm.need("W7")
    R("s_barrier")
    if P.PLAN != 5:
        vm.need("U0")
        frags = []
        seq = qproj_items(frags, w_aWQ, 0, None, 0, w3_acc, XF3, 3)
        schedule(em, seq, frags, W_STG, W_NS, P.W_LA, budget=P.W_BUDGET, pair=False)
    if not (P.WOQ and P.PLAN == 0):
        R(f"s_add_u32 s{sWOOFF}, s{sROT}, {(-7*16384) & 0x7ffff:#x}")
        R(f"s_and_b32 s{sWOOFF}, s{sWOOFF}, 0x7ffff")
    R(f"s_mov_b32 s{sCNT}, 6")
    R("s_waitcnt vmcnt(16)" if P.PLAN == 5 else "s_waitcnt vmcnt(0)")
    if P.PLAN == 4:
        stamp(em)
        R("s_barrier")
        for o in kvq_ops(K0+SL, sK, sKOFF, sM0K, 29, 0, 0) + kvq_ops(V0, sV, sVOFF, sM0V, 30, 0, 0): em.emit(o)
        R("s_barrier")
    em.fence(2)
    em.label("L_w3_loop")
    n0 = em.ninstr; nn0 = em.nops; w0 = em.waits
    if P.PLAN == 4: wave3_body4(em)
    elif P.PLAN == 5: wave3_body5(em)
    else: wave3_body(em)
    print(f"wave3 body: {em.ninstr-n0} instrs, {em.nops-nn0} nop states, {em.waits-w0} waits", file=sys.stderr)
    R(f"s_sub_u32 s{sCNT}, s{sCNT}, 1")
    R(f"s_cmp_lg_u32 s{sCNT}, 0")
    em.fence(2)
    R("s_cbranch_scc1 L_w3_loop")
    if P.PLAN == 4:
        vm = VM(em, [("V23", 4), ("WQ", 16), ("WO24", 16), ("K25", 4), ("V24", 4)])
        R(f"s_add_u32 s3, s{sWOOFF}, {(26-17)*16384}\n    s_and_b32 s3, s3, 0x7ffff")
        for t in range(23, 32):
            if t > 23:
                stamp(em)
                vm.need(f"WO{t}")
                R("s_barrier")
                if t <= 29: vm.issue(f"K{t+2}", kvq_ops(K0 + (t % 2)*SL, sK, sKOFF, sM0K, 29, 0, 0))
                if t <= 30: vm.issue(f"V{t+1}", kvq_ops(V0 + ((t+1) % 2)*SL, sV, sVOFF, sM0V, 30, 0, 0))
                if t == 31:
                    vm.issue("TT", dma_wo(V0, 3))
                vm.need(f"K{t+1}")
                R("s_barrier")
            vm.need(f"V{t}")
            R("s_barrier")
            ops = dma_wo(WO0 + (t % 2)*SL, sWOOFF)
            ops.append(salu(f"s_add_u32 s{sWOOFF}, s{sWOOFF}, 16384\n    s_and_b32 s{sWOOFF}, s{sWOOFF}, 0x7ffff\n    s_add_u32 s{sT}, s{sT}, 1"))
            vm.issue(f"WO{t+2}", ops)
            if t in (23, 24):
                vm.issue("TT", dma_wo(WQ0 + (t-23)*SL, 3))
                R("s_add_u32 s3, s3, 16384")
            if t == 25:
                R(f"s_add_u32 s4, s3, {3*16384}")
                vm.issue("TT", dma_wo(QB, 4))
            if t in (29, 30):
                vm.issue("TT", dma_wo(K0 + (t-29)*SL, 3))
                R("s_add_u32 s3, s3, 16384")
        stamp(em)
        R("s_waitcnt vmcnt(0)")
        R("s_barrier")
        stamp(em)
        stamp_store(em)
        em.label("L_end")
        R("s_endpgm")
        return
    if P.PLAN == 0 and P.WOQ:
        vm = VM(em, [("K24", 4), ("WO23", 4), ("WQ", 16), ("V23", 4), ("K25", 4), ("WO24", 4)])
        R(f"s_add_u32 s3, s{sWOOFF}, {(26-17)*16384 - 3072}\n    s_and_b32 s3, s3, 0x7ffff")
        def tt(loc, k): return tile_loop('wo', loc, f"s_add_u32 s{sTMP}, s3, {k*16384}")
        for t in range(23, 32):
            stamp(em)
            vm.need(f"K{t+1}", f"WO{t}")
            R("s_barrier")
            if t <= 30:
                vm.issue(f"V{t+1}", kvq_ops(V0 + ((t+1) % 2)*SL, sV, sVOFF, sM0V, 30, 0, 0))
            ttl = {23: [(WQ0, 0)], 24: [(WQ0+SL, 1)], 25: [(QB, 5)], 30: [(K0, 2)], 31: [(K0+SL, 3), (V0, 4)]}.get(t, [])
            for (loc, k) in ttl: vm.issue("TT", tt(loc, k))
            vm.need(f"V{t}")
            R("s_barrier")
            if t <= 28:
                vm.issue(f"K{t+3}", kvq_ops(K0 + ((t+1) % 2)*SL, sK, sKOFF, sM0K, 28, 0, 0))
            vm.issue(f"WO{t+2}", woq_ops(WO0 + (t % 2)*SL, w_vlin))
            R(f"s_add_u32 s{sT}, s{sT}, 1")
    else:
        if P.PLAN == 0: vm = VM(em, [("K24", 4), ("WO23", 16), ("WQ", 16), ("V23", 4), ("K25", 4), ("WO24", 16)])
        elif P.PLAN in (2, 5): vm = VM(em, [("WO23", 16), ("K24", 4), ("WQ", 16), ("V23", 4), ("WO24", 16), ("K25", 4)])
        else: vm = VM(em, [("WQ", 16), ("WO23", 16), ("K24", 4), ("V23", 4), ("WQ", 16), ("WO24", 16)])
        R(f"s_add_u32 s3, s{sWOOFF}, {(26-17)*16384}\n    s_and_b32 s3, s3, 0x7ffff")
        for t in range(23, 32):
            stamp(em)
            if P.PLAN in (2, 3, 5): vm.need(f"WO{t}")
            else: vm.need(f"K{t+1}", f"WO{t}")
            R("s_barrier")
            if P.PLAN in (1, 3) and t <= 29:
                vm.issue(f"K{t+2}", kvq_ops(K0 + (t % 2)*SL, sK, sKOFF, sM0K, 29, 0, 0))
            if t <= 30:
                vm.issue(f"V{t+1}", kvq_ops(V0 + ((t+1) % 2)*SL, sV, sVOFF, sM0V, 30, 0, 0))
            if t == 31:
                vm.issue("TT32", tile_loop('wo', V0, f"s_mov_b32 s{sTMP}, s{3}"))
                R("s_add_u32 s3, s3, 16384")
            ops = tile_loop('wo', WO0 + (t % 2)*SL, f"s_mov_b32 s{sTMP}, s{sWOOFF}")
            ops.append(salu(f"s_add_u32 s{sWOOFF}, s{sWOOFF}, 16384\n    s_and_b32 s{sWOOFF}, s{sWOOFF}, 0x7ffff"))
            if P.PLAN in (2, 3, 5):
                if P.PLAN == 5 and t == 23:
                    em.nop(12)
                    for o in w3_cv(1): em.emit(o)
                    em.wait_ds(0)
                vm.need(f"K{t+1}")
                R("s_barrier")
                if P.PLAN in (2, 5): vm.issue(f"WO{t+2}", ops)
            vm.need(f"V{t}")
            R("s_barrier")
            if P.PLAN in (0, 2, 5) and t <= 28:
                vm.issue(f"K{t+3}", kvq_ops(K0 + ((t+1) % 2)*SL, sK, sKOFF, sM0K, 28, 0, 0))
            if P.PLAN not in (2, 5): vm.issue(f"WO{t+2}", ops)
            R(f"s_add_u32 s{sT}, s{sT}, 1")
            if t == 23:
                vm.issue("TT32", tile_loop('wo', WQ0, f"s_mov_b32 s{sTMP}, s{3}"))
                R("s_add_u32 s3, s3, 16384")
            if t == 24:
                vm.issue("TT32", tile_loop('wo', WQ0+SL, f"s_mov_b32 s{sTMP}, s{3}"))
                R("s_add_u32 s3, s3, 16384")
            if t == 25:
                R(f"s_add_u32 s4, s3, {3*16384}")
                vm.issue("TT32", tile_loop('wo', QB, f"s_mov_b32 s{sTMP}, s{4}"))
            if t in (29, 30):
                vm.issue("TT32", tile_loop('wo', K0 + (t-29)*SL, f"s_mov_b32 s{sTMP}, s{3}"))
                R("s_add_u32 s3, s3, 16384")
    stamp(em)
    R("s_waitcnt vmcnt(0)")
    R("s_barrier")
    if P.FUSE:
        fused_reduce(em)
        return
    stamp(em)
    stamp_store(em)
    em.label("L_end")
    R("s_endpgm")

def fused_reduce(em):
    R = em.raw
    R("s_and_b32 s3, s2, 7")
    R("s_lshr_b32 s4, s2, 3")
    R("s_lshr_b32 s5, s3, 2")
    R("s_and_b32 s3, s3, 3")
    R("s_lshl_b32 s3, s3, 1")
    R("s_lshr_b32 s6, s4, 4")
    R("s_add_u32 s3, s3, s6")
    R("s_and_b32 s4, s4, 15")
    R("s_lshl_b32 s6, s5, 4")
    R("s_add_u32 s6, s6, s4")
    R("s_lshl_b32 s6, s6, 2")
    R("v_mov_b32 v14, 0")
    R("s_lshl_b32 s7, 1, s3")
    R("s_lshl_b32 s6, s5, 2")
    R("s_lshl_b32 s92, s4, 3")
    R("s_add_u32 s6, s6, s92")
    R("v_lshrrev_b32 v15, 1, v0")
    R("v_and_b32 v13, 1, v0")
    R("v_lshl_add_u32 v15, v13, 7, v15")
    R("v_add_u32 v15, s6, v15")
    R("v_lshlrev_b32 v15, 7, v15")
    R("s_lshl_b32 s6, s2, 7")
    R("v_mov_b32 v13, s6")
    R("s_add_u32 s80, s70, 0x1800000")
    R("s_addc_u32 s81, s71, 0")
    R("s_and_b32 s81, s81, 0xffff")
    R("s_mov_b32 s82, 0x10000")
    R("s_mov_b32 s83, 0x20000")
    R("v_readfirstlane_b32 s95, v12")
    R("s_cmp_eq_u32 s95, 0")
    R("s_cselect_b32 s95, s90, s95")
    R("v_mov_b32 v12, s95")
    R("s_mov_b64 s[88:89], exec")
    R(f"s_mov_b32 s91, {P.SPIN}")
    R("s_mov_b32 s90, 0")
    R("s_barrier")
    R("s_mov_b64 exec, 1")
    R("buffer_store_dword v12, v13, s[80:83], 0 offen sc0 sc1")
    R("s_mov_b64 exec, 0xff")
    em.label("L_poll")
    R("buffer_load_dwordx2 v[10:11], v15, s[80:83], 0 offen sc0 sc1")
    R("s_waitcnt vmcnt(0)")
    R("v_cmp_eq_u32 vcc, s95, v10")
    R("s_nop 3")
    R("s_cmp_eq_u32 vcc_lo, 0xff")
    R("s_cbranch_scc1 L_go")
    R("s_cmp_lg_u32 s90, 0")
    R("s_cbranch_scc1 L_quit")
    R(f"s_sleep {P.PSLEEP}")
    R("s_sub_u32 s91, s91, 1")
    R("s_cmp_lg_u32 s91, 0")
    R("s_cbranch_scc1 L_poll")
    R("s_mov_b32 s90, 1")
    R("s_mov_b64 exec, 1")
    R("buffer_store_dword v12, v13, s[80:83], 0 offen offset:4 sc0 sc1")
    R("s_waitcnt vmcnt(0)")
    R("s_mov_b64 exec, 0xff")
    R("s_branch L_poll")
    em.label("L_quit")
    R("s_mov_b32 s93, 0")
    R("s_branch L_pub")
    em.label("L_go")
    R("v_cmp_eq_u32 vcc, s95, v11")
    R("s_nop 3")
    R("s_or_b32 s93, s7, vcc_lo")
    R("s_and_b32 s93, s93, 0xff")
    em.label("L_pub")
    R("s_mov_b64 exec, 1")
    R("v_mov_b32 v9, s93")
    R("ds_write_b32 v14, v9")
    R("s_mov_b64 exec, s[88:89]")
    R("s_waitcnt lgkmcnt(0)")
    em.label("L_red")
    R("s_load_dwordx2 s[8:9], s[0:1], 80")
    R("s_and_b32 s3, s2, 7")
    R("s_lshr_b32 s4, s2, 3")
    R("s_lshr_b32 s5, s3, 2")
    R("s_and_b32 s4, s4, 15")
    R("v_and_b32 v2, 7, v0")
    R("v_bfe_u32 v3, v0, 3, 1")
    R("v_bfe_u32 v4, v0, 4, 1")
    R("v_lshrrev_b32 v5, 5, v0")
    R(f"s_lshl_b32 s6, s{sWAVE}, 3")
    R("v_add_u32 v2, s6, v2")
    R("v_lshlrev_b32 v7, 11, v5")
    R("v_lshl_add_u32 v7, v3, 10, v7")
    R("v_lshl_add_u32 v7, v4, 9, v7")
    R("v_lshl_add_u32 v7, v2, 4, v7")
    R("v_lshlrev_b32 v8, 11, v2")
    R("v_lshl_add_u32 v8, v5, 6, v8")
    R("v_lshl_add_u32 v8, v4, 5, v8")
    R("v_lshl_add_u32 v8, v3, 4, v8")
    R("v_mov_b32 v14, 0")
    R("s_lshl_b32 s14, s5, 2")
    R("s_lshl_b32 s15, s4, 3")
    R("s_add_u32 s14, s14, s15")
    R("s_mul_i32 s14, s14, 98304")
    R("s_mul_i32 s15, s4, 96")
    R("s_lshl_b32 s15, s15, 11")
    R("s_lshl_b32 s16, s5, 10")
    R("s_add_u32 s15, s15, s16")
    R("s_mov_b32 s20, s70")
    R("s_and_b32 s21, s71, 0xffff")
    R(f"s_mov_b32 s22, {256*98304}")
    R("s_mov_b32 s23, 0x20000")
    R("s_waitcnt lgkmcnt(0)")
    R("s_mov_b32 s24, s8")
    R("s_and_b32 s25, s9, 0xffff")
    R(f"s_mov_b32 s26, {16*96*1024*2}")
    R("s_mov_b32 s27, 0x20000")
    em.label("L_round")
    R("s_barrier")
    R("ds_read_b32 v9, v14")
    R("s_waitcnt lgkmcnt(0)")
    R("v_readfirstlane_b32 s93, v9")
    stamp(em)
    em.label("L_slice")
    R("s_and_b32 s92, s93, 0xff")
    R("s_cmp_eq_u32 s92, 0")
    R("s_cbranch_scc1 L_nomore")
    R("s_ff1_i32_b32 s94, s92")
    R("s_bitset0_b32 s93, s94")
    R("s_lshl_b32 s16, s94, 12")
    R("s_add_u32 s16, s16, s14")
    for w in range(3):
        for hg in range(8):
            d = ((hg // 2) + 128*(hg % 2)) * 98304 + w * 32768
            r = 16 + (w*8 + hg)*4
            R(f"s_add_u32 s17, s16, {d}")
            R(f"buffer_load_dwordx4 v[{r}:{r+3}], v7, s[20:23], s17 offen{P.RDPOL}")
    R("s_lshl_b32 s17, s94, 7")
    R("s_add_u32 s17, s17, s15")
    for w in range(3):
        acc = 120 + 8*w
        for hg in range(8):
            R(f"s_waitcnt vmcnt({23 - (w*8+hg) + w})")
            for k in range(4):
                src = 16 + (w*8 + hg)*4 + k
                if hg == 0:
                    R(f"v_lshlrev_b32 v{acc+2*k}, 16, v{src}")
                    R(f"v_and_b32 v{acc+2*k+1}, 0xffff0000, v{src}")
                else:
                    R(f"v_lshlrev_b32 v112, 16, v{src}")
                    R(f"v_and_b32 v113, 0xffff0000, v{src}")
                    R(f"v_add_f32 v{acc+2*k}, v{acc+2*k}, v112")
                    R(f"v_add_f32 v{acc+2*k+1}, v{acc+2*k+1}, v113")
        o = 148 + 4*w
        for k in range(4):
            R(f"v_cvt_pk_bf16_f32 v{o+k}, v{acc+2*k}, v{acc+2*k+1}")
        R(f"s_add_u32 s18, s17, {w*32*2048}")
        R(f"buffer_store_dwordx4 v[{o}:{o+3}], v8, s[24:27], s18 offen{P.OUTPOL}")
    R("s_branch L_slice")
    em.label("L_nomore")
    em.label("L_fin")
    if P.STAMP:
        R("s_waitcnt vmcnt(0)")
    stamp(em)
    stamp_store(em)
    em.label("L_end")
    R("s_endpgm")
    em.label("L_code_end")

def gen_reduce(em):
    R = em.raw
    em.lines.append(".p2align 8")
    em.lines.append(".globl reduce_kernel")
    em.lines.append(".type reduce_kernel,@function")
    em.label("reduce_kernel")
    R("s_cmp_ge_u32 s2, 768")
    R("s_cbranch_scc1 L_rend")
    R("s_load_dwordx2 s[4:5], s[0:1], 80")
    R("s_load_dwordx2 s[6:7], s[0:1], 96")
    if P.DBG:
        R("s_memrealtime s[40:41]")
        R("s_load_dwordx2 s[32:33], s[0:1], 88")
    R("v_lshrrev_b32 v1, 6, v0")
    R("v_and_b32 v0, 63, v0")
    R("s_and_b32 s8, s2, 7")
    R("s_lshr_b32 s9, s2, 3")
    R("s_mul_i32 s10, s9, 43691")
    R("s_lshr_b32 s10, s10, 17")
    R("s_mul_i32 s11, s10, 3")
    R("s_sub_u32 s11, s9, s11")
    R("s_lshr_b32 s12, s10, 4")
    R("s_and_b32 s13, s10, 15")
    R("v_and_b32 v2, 7, v0")
    R("v_bfe_u32 v3, v0, 3, 1")
    R("v_bfe_u32 v4, v0, 4, 1")
    R("v_lshrrev_b32 v5, 5, v0")
    R("v_lshl_add_u32 v2, v1, 3, v2")
    R("v_lshlrev_b32 v6, 11, v5")
    R("v_lshl_add_u32 v6, v3, 10, v6")
    R("v_lshl_add_u32 v6, v4, 9, v6")
    R("v_lshl_add_u32 v6, v2, 4, v6")
    R("s_lshl_b32 s14, s11, 15")
    R("s_lshl_b32 s15, s8, 12")
    R("s_add_u32 s14, s14, s15")
    R("s_lshl_b32 s15, s12, 2")
    R("s_lshl_b32 s16, s13, 3")
    R("s_add_u32 s15, s15, s16")
    R("s_mul_i32 s15, s15, 98304")
    R("s_add_u32 s14, s14, s15")
    R("s_waitcnt lgkmcnt(0)")
    R("s_mov_b32 s20, s6")
    R("s_and_b32 s21, s7, 0xffff")
    R(f"s_mov_b32 s22, {256*98304}")
    R("s_mov_b32 s23, 0x20000")
    R("s_mov_b32 s24, s4")
    R("s_and_b32 s25, s5, 0xffff")
    R(f"s_mov_b32 s26, {16*96*1024*2}")
    R("s_mov_b32 s27, 0x20000")
    for hg in range(8):
        d = ((hg // 2) + 128*(hg % 2)) * 98304
        R(f"s_add_u32 s17, s14, {d}")
        R(f"buffer_load_dwordx4 v[{8+4*hg}:{11+4*hg}], v6, s[20:23], s17 offen{P.RDPOL}")
    R("v_lshlrev_b32 v7, 11, v2")
    R("v_lshl_add_u32 v7, v5, 6, v7")
    R("v_lshl_add_u32 v7, v4, 5, v7")
    R("v_lshl_add_u32 v7, v3, 4, v7")
    R("s_mul_i32 s15, s13, 96")
    R("s_lshl_b32 s16, s11, 5")
    R("s_add_u32 s15, s15, s16")
    R("s_lshl_b32 s15, s15, 11")
    R("s_lshl_b32 s16, s12, 10")
    R("s_add_u32 s15, s15, s16")
    R("s_lshl_b32 s16, s8, 7")
    R("s_add_u32 s15, s15, s16")
    for hg in range(8):
        R(f"s_waitcnt vmcnt({7-hg})")
        for k in range(4):
            src = 8 + 4*hg + k
            if hg == 0:
                R(f"v_lshlrev_b32 v{40+2*k}, 16, v{src}")
                R(f"v_and_b32 v{41+2*k}, 0xffff0000, v{src}")
            else:
                R(f"v_lshlrev_b32 v48, 16, v{src}")
                R(f"v_and_b32 v49, 0xffff0000, v{src}")
                R(f"v_add_f32 v{40+2*k}, v{40+2*k}, v48")
                R(f"v_add_f32 v{41+2*k}, v{41+2*k}, v49")
    for k in range(4):
        R(f"v_cvt_pk_bf16_f32 v{52+k}, v{40+2*k}, v{41+2*k}")
    R("buffer_store_dwordx4 v[52:55], v7, s[24:27], s15 offen")
    if P.DBG:
        R("s_and_b32 s44, s2, 31")
        R("s_cmp_lg_u32 s44, 31")
        R("s_cbranch_scc1 L_rend")
        R("v_readfirstlane_b32 s44, v1")
        R("s_cmp_lg_u32 s44, 0")
        R("s_cbranch_scc1 L_rend")
        R("s_waitcnt vmcnt(0)")
        R("s_memrealtime s[42:43]")
        R("s_sub_u32 s36, s32, 512")
        R("s_subb_u32 s37, s33, 0")
        R("s_and_b32 s37, s37, 0xffff")
        R("s_mov_b32 s38, 256")
        R("s_mov_b32 s39, 0x20000")
        R("s_and_b32 s33, s33, 0xffff")
        R("s_mov_b32 s34, 256")
        R("s_mov_b32 s35, 0x20000")
        R("v_lshlrev_b32 v0, 2, v0")
        R("buffer_load_dword v1, v0, s[36:39], 0 offen")
        R("s_waitcnt vmcnt(0) lgkmcnt(0)")
        R("s_not_b32 s40, s40")
        R("v_writelane_b32 v1, s40, 10")
        R("v_writelane_b32 v1, s42, 11")
        R("v_cmp_gt_u32 vcc, 48, v0")
        R("s_and_saveexec_b64 s[44:45], vcc")
        R("buffer_atomic_umax v1, v0, s[32:35], 0 offen")
        R("s_waitcnt vmcnt(0)")
    em.label("L_rend")
    R("s_endpgm")
    em.label("L_code_end")

def build():
    ref = open(f"cdna_kernels/{NAME}.s.ref").read().splitlines()
    head = [l for l in ref if l.startswith(";") and "@launch" not in l]
    em = Em()
    if P.FUSE:
        P.STPOL = " sc1" if P.STPOL == " nt" else P.STPOL
        P.RDPOL = " sc1" if P.RDPOL == " nt" else P.RDPOL
    gen_main(em)
    if P.W3FIRST:
        L = em.lines
        tail = [x for x in L[em.mark_w3:] if x != "L_code_end:"]
        em.lines = L[:em.mark_att] + tail + L[em.mark_att:em.mark_w3]
        if P.FUSE: em.label("L_code_end")
    if not P.FUSE: gen_reduce(em)
    out = []
    out += head
    if P.FUSE:
        out.append(f"; @launch grid=(256,1,1) block=(256,1,1) lds={LDS_BYTES}")
    else:
        out.append(f"; @launch kernel={NAME}_kernel grid=(256,1,1) block=(256,1,1) lds={LDS_BYTES}")
        out.append(f"; @launch kernel=reduce_kernel grid=(768,1,1) block=(256,1,1) lds=0")
    out.append('.amdgcn_target "amdgcn-amd-amdhsa--gfx950"')
    out.append(".text")
    out.append(f".globl {NAME}_kernel")
    out.append(".p2align 8")
    out.append(f".type {NAME}_kernel,@function")
    out.append(em.text())
    out.append('.section .rodata,"a"')
    for (k, nv, ao) in ((f"{NAME}_kernel", 512, 256), ("reduce_kernel", 64, 64))[:1 if P.FUSE else 2]:
        out.append(".p2align 6")
        out.append(f".amdhsa_kernel {k}")
        out.append(f"  .amdhsa_next_free_vgpr {nv}")
        out.append("  .amdhsa_next_free_sgpr 102")
        out.append(f"  .amdhsa_accum_offset {ao}")
        out.append("  .amdhsa_group_segment_fixed_size 0")
        out.append("  .amdhsa_kernarg_size 104")
        out.append("  .amdhsa_user_sgpr_count 2")
        out.append("  .amdhsa_user_sgpr_kernarg_segment_ptr 1")
        out.append("  .amdhsa_system_sgpr_workgroup_id_x 1")
        out.append(".end_amdhsa_kernel")
    return "\n".join(out) + "\n"

if __name__ == "__main__":
    dst = sys.argv[1] if len(sys.argv) > 1 else f"cdna_kernels/{NAME}.s"
    for a in sys.argv[2:]:
        k, v = a.split("=")
        cur = getattr(P, k)
        setattr(P, k, type(cur)(v) if not isinstance(cur, str) else (" " + v.replace("+", " ") if v else ""))
    open(dst, "w").write(build())
```

```python
import sys, struct
from em import *
from sched import *

NAME = "concat_heads__gqa_block_cached__gqa_block_cached__near_ridge"
SL = 16640
K0, V0, WO0, WQ0, QB = 0, 2*SL, 4*SL, 6*SL, 8*SL
LDS_BYTES = 163840
M0_NULL = 0x30000
WLOC = [3*SL, 4*SL, QB, 3*SL, 4*SL, 2*SL, 5*SL, QB]
C_SCALE = 1.4426950408889634 / (128 ** 0.5)
def f32bits(x): return struct.unpack("<I", struct.pack("<f", x))[0]

sK, sV, sWQ, sWO, sX, sWS = 8, 12, 16, 20, 24, 28
sWAVE, sC, sTHR, sCNT = 32, 33, 34, 35
sM0W, sM0K, sM0V, sM0N = 36, 37, 38, 39
sT, sKOFF, sVOFF, sWOOFF, sWQCOL, sTMP = 40, 41, 42, 43, 44, 45
sPF, sWOCUR = 75, 76
sXR, sKVT = 77, 101
sC2 = 58
sROT, sSW, sWQLIN = 72, 73, 74
def srd(b): return f"s[{b}:{b+3}]"

aK, aV, aWO, aQB, vKV = 1, 2, 3, 4, 5
LA_, LB_, vLIN, DELTA = 7, 8, 9, 10
ALPHA = 11
T0, T1, T2, T3 = 11, 12, 13, 14
AUX = 15
STG = 16; NS = 8
OACC, QR, OP = 48, 112, 144
SR = [176, 208]
NEGM = 240
w_vlin, w_vwq, w_aWQ, w_aQB, w_aX = 2, 3, 4, 1, 7
W_STG = 16; W_NS = 4
W_ACC = 32
def XF3(mt, ks):
    if mt < 2: return AG(mt * 128 + ks * 4, 4)
    return V(128 + ks * 4, 4)
def XFA(ks):
    return V(48 + ks * 4, 4) if ks < 16 else V(144 + (ks - 16) * 4, 4)

class P:
    LA = 5
    BUDGET = 6.0
    W_LA = 6
    W_BUDGET = 6.0
    W_SPLIT = 30
    KVPOL = " nt"
    WPOL = ""
    WOPOL = "same"
    W0POL = "same"
    XPOL = " nt"
    STPOL = " nt"
    RDPOL = " nt"
    THR = 8.0
    STAMP = 0
    CYC = 0
    PAIR = 1
    NODMA = 0
    TOUCH = 0
    MAP = 0
    KVLIN = 0
    WQLIN = 0
    TXOR = 0
    WOQ = 0
    PKMUL = 0
    W3FIRST = 1
    FUSE = 1
    SPIN = 200000
    PSLEEP = 4
    OUTPOL = ""
    CPF = 1
    WOPF = 0
    PFT = 0
    ROT = 1
    W4_1 = 10
    W4_2 = 30
    W_SPLITZ = 14
    DMAFIRST = 0
    DEVERY = 3
    PLAN = 0
    W_PRE = 8
    HOIST = 3
    VMA = 8
    DBG = 0

def wopol(): return P.WPOL if P.WOPOL == "same" else P.WOPOL
gate_ctr = [1000]
def newgate():
    gate_ctr[0] += 1
    return gate_ctr[0]

STV = 6
def stamp_txt():
    if not P.STAMP: return []
    return [("s_memtime s[96:97]" if P.CYC else "s_memrealtime s[96:97]"), "s_min_u32 m0, s98, 63", "s_waitcnt lgkmcnt(0)",
            f"v_writelane_b32 v{STV}, s96, m0", "s_add_u32 s98, s98, 1"]
def stamp(em):
    if P.STAMP:
        em.wait_ds(0)
        for t in stamp_txt(): em.raw(t)
def stamp_store(em):
    if not P.STAMP: return
    R = em.raw
    R("s_lshl_b32 s3, s2, 2")
    R(f"s_add_u32 s3, s3, s{sWAVE}")
    R("s_lshl_b32 s3, s3, 8")
    R("s_add_u32 s92, s70, 0x2000000")
    R("s_addc_u32 s93, s71, 0")
    R("s_and_b32 s93, s93, 0xffff")
    R("s_mov_b32 s94, 0x40000")
    R("s_mov_b32 s95, 0x20000")
    R("v_lshlrev_b32 v0, 2, v0")
    R(f"buffer_store_dword v{STV}, v0, s[92:95], s3 offen")
def bar(gate, pre=(), rd=(), drain=False, st=0):
    s1 = stamp_txt() if (st and P.STAMP >= st) else []
    s2 = stamp_txt() if (st and P.STAMP >= 2) else []
    return MItem('bar', texts=s2 + list(pre) + ["s_barrier"] + s1, rd=rd, wr=[gate], drain=drain or bool(s1))

def v3(op, d, a, b, c):
    return valu(f"{op} v{d}, v{a}, v{b}, v{c}", [a, b, c], [d])
def salu(text, rd=(), wr=()):
    return Op('salu', text, rd=rd, wr=wr, cost=text.count("\n") + 1)

def interleave(main, extra, start=0, every=3):
    out = []; e = list(extra)
    for i, o in enumerate(main):
        out.append(o)
        if e and i >= start and (i - start) % every == every - 1:
            out.append(e.pop(0))
    return out + e

def maxtree_ops(S):
    ops = []
    T = [T0, T1, T2, T3]
    for k in range(4): ops.append(v3("v_max3_f32", T[k], S+8*k, S+8*k+1, S+8*k+2))
    for k in range(4): ops.append(v3("v_max3_f32", T[k], T[k], S+8*k+3, S+8*k+4))
    for k in range(4): ops.append(v3("v_max3_f32", T[k], T[k], S+8*k+5, S+8*k+6))
    ops.append(v3("v_max3_f32", T0, T0, S+7, T1))
    ops.append(v3("v_max3_f32", T2, T2, S+23, T3))
    ops.append(v3("v_max3_f32", T0, T0, S+15, S+31))
    ops.append(valu(f"v_max_f32 v{T0}, v{T0}, v{T2}", [T0, T2], [T0]))
    ops.append(valu(f"v_mov_b32 v{T1}, v{T0}", [T0], [T1]))
    ops.append(valu(f"v_permlane32_swap_b32 v{T0}, v{T1}", [T0, T1], [T0, T1], kind='perm'))
    ops.append(valu(f"v_max_f32 v{DELTA}, v{T0}, v{T1}", [T0, T1], [DELTA]))
    return ops

def first_tile_ops(S):
    ops = []
    for i in range(16):
        ops.append(valu(f"v_sub_f32 v{NEGM+i}, 0, v{DELTA}", [DELTA], [NEGM+i]))
    for i in range(32):
        ops.append(valu(f"v_sub_f32 v{S+i}, v{S+i}, v{DELTA}", [S+i, DELTA], [S+i]))
    return ops

rare_blocks = []
def check_op(S, tag):
    regs = V(S, 32) + V(NEGM, 16) + V(OACC, 64) + [LA_, LB_, DELTA, ALPHA]
    rare_blocks.append((S, tag))
    t = f"v_cmp_lt_f32 vcc, s{sTHR}, v{DELTA}\n    s_cbranch_vccnz L_rare_{tag}\nL_back_{tag}:"
    op = Op('raw', t, rd=regs, wr=regs, cost=2)
    op.noraw = True
    return op
def emit_rare(em):
    R = em.raw
    for (S, tag) in rare_blocks:
        em.label(f"L_rare_{tag}")
        R("s_nop 15")
        R(f"v_max_f32 v{DELTA}, 0, v{DELTA}")
        R(f"v_sub_f32 v{ALPHA}, 0, v{DELTA}")
        R(f"v_exp_f32 v{ALPHA}, v{ALPHA}")
        for i in range(32): R(f"v_sub_f32 v{S+i}, v{S+i}, v{DELTA}")
        for i in range(16): R(f"v_sub_f32 v{NEGM+i}, v{NEGM+i}, v{DELTA}")
        for i in range(64): R(f"v_mul_f32 v{OACC+i}, v{ALPHA}, v{OACC+i}")
        R(f"v_mul_f32 v{LA_}, v{ALPHA}, v{LA_}")
        R(f"v_mul_f32 v{LB_}, v{ALPHA}, v{LB_}")
        R("s_nop 3")
        R(f"s_branch L_back_{tag}")

def exp_ops(S, first):
    def ex(i): return valu(f"v_exp_f32 v{S+i}, v{S+i}", [S+i], [S+i], kind='trans')
    def add(i):
        l = LA_ if i % 2 == 0 else LB_
        if i < 2 and first: return valu(f"v_mov_b32 v{l}, v{S+i}", [S+i], [l])
        return valu(f"v_add_f32 v{l}, v{l}, v{S+i}", [l, S+i], [l])
    def cvt(k): return valu(f"v_cvt_pk_bf16_f32 v{S+k}, v{S+2*k}, v{S+2*k+1}", [S+2*k, S+2*k+1], [S+k])
    out = []
    for k in range(17):
        if k < 16: out.append(ex(2*k))
        if k > 0: out.append(add(2*k-2))
        if k < 16: out.append(ex(2*k+1))
        if k > 0:
            out.append(add(2*k-1)); out.append(cvt(k-1))
    return out

def finalize_ops():
    ops = []
    ops.append(valu(f"v_add_f32 v{T2}, v{LA_}, v{LB_}", [LA_, LB_], [T2]))
    ops.append(valu(f"v_mov_b32 v{T3}, v{T2}", [T2], [T3]))
    ops.append(valu(f"v_permlane32_swap_b32 v{T2}, v{T3}", [T2, T3], [T2, T3], kind='perm'))
    ops.append(valu(f"v_add_f32 v{T2}, v{T2}, v{T3}", [T2, T3], [T2]))
    ops.append(valu(f"v_rcp_f32 v{AUX}, v{T2}", [T2], [AUX], kind='trans'))
    for k in range(33):
        if k < 32:
            a, b = OACC + 2*k, OACC + 2*k + 1
            ops.append(valu(f"v_mul_f32 v{a}, v{AUX}, v{a}", [AUX, a], [a]))
            ops.append(valu(f"v_mul_f32 v{b}, v{AUX}, v{b}", [AUX, b], [b]))
        if k > 0:
            kk = k - 1
            ops.append(valu(f"v_cvt_pk_bf16_f32 v{OP+kk}, v{OACC+2*kk}, v{OACC+2*kk+1}", [OACC+2*kk, OACC+2*kk+1], [OP+kk]))
    return ops

def qk_items(frags, Sdst, kslot, gate, negm):
    it = []
    for sub in range(2):
        for ks in range(8):
            frags.append(Frag([('b128', aK, K0 + kslot*SL + sub*512 + ks*32, 0)], gate))
            it.append(MItem('mfma', D=V(Sdst + 16*sub, 16), B=V(QR + 4*ks, 4), acc=(ks != 0), frag=len(frags)-1,
                            C=(V(NEGM, 16) if (ks == 0 and negm) else None)))
    return it
def opj_item(frags, ks, nt, woff, gate, addr):
    frags.append(Frag([('tr', addr, woff + t*2080 + nt*64, 2*t) for t in range(2)], gate))
    return MItem('mfma', D=AG(16*nt, 16), B=V(OP + 4*ks, 4), acc=True, frag=len(frags)-1)
def opj_items(frags, ks, woff, gate, addr=aWO):
    return [opj_item(frags, ks, nt, woff, gate, addr) for nt in range(16)]
def pv_items(frags, S, vslot, gate, first):
    it = []
    for s in range(4):
        for dt in range(4):
            frags.append(Frag([('tr', aV, vslot*SL + t*2080 + s*256 + dt*64, 2*t) for t in range(2)], gate))
            it.append(MItem('mfma', D=V(OACC + 16*dt, 16), B=V(S + 4*s, 4), acc=not (first and s == 0), frag=len(frags)-1))
    return it

def dma_pair(m0txt, voff, srdb, soff, off, pol, rd=(), wr=()):
    a = Op('m0', m0txt, rd=rd)
    b = Op('dma', f"buffer_load_dwordx4 v{voff}, {srd(srdb)}, {soff} offen" + (f" offset:{off}" if off else "") + f"{pol} lds", wr=wr)
    return [a, b]

def kvq_ops(slotbase, srdb, offreg, m0reg, lim, gate, done):
    if P.NODMA in (1, 3): lim = -100
    ops = [salu(f"s_cmp_le_i32 s{sT}, {lim}\n    s_cselect_b32 s{srdb+2}, 0x80000, 0\n    s_cselect_b32 s{m0reg}, s{sM0W}, s{sM0N}" + (f"\n    s_xor_b32 s{sKVT}, s{offreg}, s{sXR}" if P.TXOR else ""), rd=[gate])]
    for i in range(4):
        ops += dma_pair(f"s_add_u32 m0, s{m0reg}, {slotbase + 16*i}", vKV, srdb, f"s{sKVT if P.TXOR else offreg}", 1024*i, P.KVPOL)
    ops.append(salu(f"s_add_u32 s{offreg}, s{offreg}, 16384\n    s_and_b32 s{offreg}, s{offreg}, 0x7ffff", wr=[done]))
    return ops

def woq_ops(slotbase, lin):
    lim = 100 if P.NODMA in (1, 2) else 6
    ops = [salu(f"s_cmp_ge_i32 s{sT}, {lim}\n    s_cselect_b32 s{sWO+2}, 0x80000, 0")]
    for i in range(4):
        pr = dma_pair(f"s_add_u32 m0, s{sM0W}, {slotbase + 1040*i}", lin, sWO, f"s{sTMP}", 0, wopol())
        pr.insert(1, salu(f"s_add_u32 s{sTMP}, s{sWOOFF}, {4096*i}"))
        ops += pr
    ops.append(salu(f"s_add_u32 s{sWOOFF}, s{sWOOFF}, 16384\n    s_and_b32 s{sWOOFF}, s{sWOOFF}, 0x7ffff"))
    return ops

def insert_hoisted(seq, b, H):
    if H == 0:
        seq.append(b); return
    n = 0; i = len(seq)
    while n < H:
        i -= 1
        if isinstance(seq[i], MItem):
            assert seq[i].kind == 'mfma'
            n += 1
    b.hoist = H
    seq.insert(i, b)

def attention_head(em):
    seq = []; frags = []
    dA_prev = None
    Z3 = P.PLAN in (2, 4, 5)
    QZ = P.PLAN in (4, 5)
    KVA = P.PLAN == 4
    for j in range(8):
        p = j % 2
        gA = newgate(); gB = newgate(); dB = newgate(); dA = newgate(); gZ = newgate()
        WOQ = P.WOQ and P.PLAN == 0
        VW = "s_waitcnt vmcnt(12)" if WOQ else "s_waitcnt vmcnt(8)"
        b = bar(gB, pre=[VW], rd=[dA_prev] if dA_prev else [], st=2)
        insert_hoisted(seq, b, P.HOIST if j > 0 else 0)
        if not KVA:
            kq = kvq_ops(K0 + p*SL, sK, sKOFF, sM0K, 28, gB, newgate())
            if WOQ: kq += woq_ops(WO0 + (1-p)*SL, vLIN)
            kq.append(salu(f"s_add_u32 s{sT}, s{sT}, 1", wr=[dB]))
        else:
            kq = [salu(f"s_add_u32 s{sT}, s{sT}, 1", rd=[gB], wr=[dB])]
        mt = maxtree_ops(SR[p])
        if j == 0: mt += first_tile_ops(SR[p])
        seq += interleave(mt, kq, every=1 if WOQ else 2)
        seq += pv_items(frags, SR[1-p], 1-p, gB, j == 1)
        insert_hoisted(seq, bar(gA, pre=[] if Z3 else [VW], rd=[dB], st=1), P.HOIST)
        vq = kvq_ops(V0 + (1-p)*SL, sV, sVOFF, sM0V, 30, gA, dA)
        if KVA:
            vq = kvq_ops(K0 + p*SL, sK, sKOFF, sM0K, 29, gA, newgate()) + vq
        pre = finalize_ops() if j == 0 else [check_op(SR[p], f"{j}")]
        if P.TOUCH and j in (P.TOUCH, P.TOUCH + 1):
            L = f"L_tch{j}"
            t = (f"s_cmp_lg_u32 s{sCNT}, 4\n    s_cbranch_scc1 {L}\n    s_cmp_ge_u32 s{sWAVE}, 2\n    s_cbranch_scc1 {L}\n"
                 f"    s_lshl_b32 s{sTMP}, s{sWAVE}, 13\n    s_add_u32 s{sTMP}, s{sTMP}, s{sPF}\n    s_add_u32 s{sTMP}, s{sTMP}, {(j-P.TOUCH)*16384}\n"
                 f"    buffer_load_dword v{STV}, v{vLIN}, {srd(sWO)}, s{sTMP} offen\n{L}:")
            o = salu(t); o.cost = 2
            pre.append(o)
        qrd = []
        if j == 7:
            for ks in range(8):
                op = dsr128(V(QR + 4*ks, 4), aQB, ks*1024)
                op.rd.append(gZ if QZ else gA)
                qrd.append(op)
            if not QZ:
                pre += qrd; qrd = []
        if P.DMAFIRST:
            seq += interleave(vq, pre, every=2) if j == 0 else (vq + pre)
            ex = exp_ops(SR[p], j == 0)
        else:
            seq += pre
            ex = interleave(exp_ops(SR[p], j == 0), vq, every=P.DEVERY)
        if Z3:
            ms = opj_items(frags, j, p*SL, gA)
            insert_hoisted(ms, bar(gZ, pre=["s_waitcnt vmcnt(12)"], rd=[dA]), P.HOIST + (2 if qrd else 0))
            h = len(ex) if not qrd else max(len(ex) * 2 // 5, 1 + max(k for k, o in enumerate(ex) if dA in o.wr) if not P.DMAFIRST else 0)
            seq += ex[:h] + ms + qrd + ex[h:]
            seq += qk_items(frags, SR[1-p], 1-p, gZ, j != 7)
        else:
            if j == 0:
                ms = qk_items(frags, SR[1-p], 1-p, gA, True) + opj_items(frags, j, p*SL, gA)
            else:
                ms = opj_items(frags, j, p*SL, gA) + qk_items(frags, SR[1-p], 1-p, gA, j != 7)
            seq += ex + ms
        dA_prev = dA
    schedule(em, seq, frags, STG, NS, P.LA, budget=P.BUDGET, pair=P.PAIR)

def perm16(j): return 4*(j % 4) + j // 4

def dma_kv_full(slotbase, srdb, soff):
    ops = []
    for j in range(16):
        ops += dma_pair(f"s_mov_b32 m0, {slotbase + 1040*j - perm16(j)*256}", vKV, srdb, soff, perm16(j)*256, P.KVPOL)
    return ops
def dma_wo(slotbase, soffreg):
    ops = []
    for jj in range(4):
        for jh in range(4):
            j = jh*4 + jj
            pr = dma_pair(f"s_mov_b32 m0, {slotbase + 1040*j - jh*1024}", w_vlin, sWO, f"s{sTMP}", jh*1024, wopol())
            if jh == 0: pr.insert(1, salu(f"s_add_u32 s{sTMP}, s{soffreg}, {jj*4096}"))
            ops += pr
    return ops
def dma_wq(slotbase, colreg, const):
    ops = []
    for j in range(16):
        pr = dma_pair(f"s_mov_b32 m0, {slotbase + 1040*j}", w_vwq, sWQ, f"s{sTMP+1}", 0, P.WPOL)
        if P.WQLIN: pr.insert(1, salu(f"s_lshl_b32 s{sTMP+1}, s{colreg}, 10\n    s_add_u32 s{sTMP+1}, s{sTMP+1}, {const + perm16(j)*8192}\n    s_and_b32 s{sTMP+1}, s{sTMP+1}, 0x3fe000"))
        else: pr.insert(1, salu(f"s_add_u32 s{sTMP+1}, s{colreg}, {const + perm16(j)*8192}"))
        ops += pr
    return ops

loop_ctr = [0]
def tile_loop(kind, lds, soff_txt, srdb=None, voff=None, pol=""):
    loop_ctr[0] += 1
    L = f"L_tl{loop_ctr[0]}"
    A, B, C = 99, sTMP, 100
    t = [soff_txt, f"s_mov_b32 s{A}, {lds}", f"s_mov_b32 s{C}, 4", f"{L}:"]
    for i in range(4):
        if kind == 'wo':
            t += [f"s_add_u32 m0, s{A}, {3136*i}", "s_nop 0", f"buffer_load_dwordx4 v{w_vlin}, {srd(sWO)}, s{B} offen offset:{1024*i}{wopol()} lds"]
        elif kind == 'kv':
            t += [f"s_add_u32 m0, s{A}, {16*i}", "s_nop 0", f"buffer_load_dwordx4 v{vKV}, {srd(srdb)}, s{B} offen offset:{1024*i}{P.KVPOL} lds"]
        elif kind == 'x':
            t += [f"s_add_u32 m0, s{A}, {16*i}", "s_nop 0", f"buffer_load_dwordx4 v9, {srd(sX)}, s{B} offen offset:{1024*i}{P.XPOL} lds"]
        elif kind == 'wq':
            t += [f"s_add_u32 m0, s{A}, {1040*i}", f"s_add_u32 s{sTMP+1}, s{B}, {32768*i}", f"buffer_load_dwordx4 v{w_vwq}, {srd(sWQ)}, s{sTMP+1} offen{P.WPOL if P.W0POL == 'same' else P.W0POL} lds"]
    da, db = {'wo': (1040, 4096), 'kv': (4160, 4096 if P.KVLIN else 256), 'x': (4160, 4096), 'wq': (4160, 8192)}[kind]
    t += [f"s_add_u32 s{A}, s{A}, {da}", f"s_add_u32 s{B}, s{B}, {db}", f"s_sub_u32 s{C}, s{C}, 1", f"s_cmp_lg_u32 s{C}, 0", f"s_cbranch_scc1 {L}"]
    txt = "\n".join((x if x.endswith(":") else "    " + x) for x in t).lstrip()
    op = Op('raw', txt); op.ndma = 16
    return [op]

def qproj_items(frags, addr, base, gate, kq, acc_regs, xfrag, nmt):
    it = []
    for dt2 in range(2):
        for ks in range(8):
            frags.append(Frag([('tr', addr, base + t*1040 + ks*128 + dt2*64, 2*t) for t in range(2)], gate))
            for mt in range(nmt):
                it.append(MItem('mfma', D=acc_regs(dt2, mt), B=xfrag(mt, kq*8 + ks), acc=not (kq == 0 and ks == 0), frag=len(frags)-1))
    return it

def scale_cvt(a, dst):
    ops = []
    for k in range(9):
        if k < 8:
            if P.PKMUL:
                ops.append(valu(f"v_pk_mul_f32 v[{a+2*k}:{a+2*k+1}], v[{a+2*k}:{a+2*k+1}], s[{sC2}:{sC2+1}]", [a+2*k, a+2*k+1], [a+2*k, a+2*k+1]))
            else:
                ops.append(valu(f"v_mul_f32 v{a+2*k}, s{sC}, v{a+2*k}", [a+2*k], [a+2*k]))
                ops.append(valu(f"v_mul_f32 v{a+2*k+1}, s{sC}, v{a+2*k+1}", [a+2*k+1], [a+2*k+1]))
        if k > 0:
            kk = k - 1
            ops.append(valu(f"v_cvt_pk_bf16_f32 v{dst+kk}, v{a+2*kk}, v{a+2*kk+1}", [a+2*kk, a+2*kk+1], [dst+kk]))
    return ops

nonce_ctr = [0]
def nonce_op():
    nonce_ctr[0] += 1
    L = f"L_nn{nonce_ctr[0]}"
    t = (f"s_cmp_lg_u32 s{sT}, s94\n    s_cbranch_scc1 {L}\n    s_mov_b64 exec, 1\n"
         f"    buffer_atomic_cmpswap v[12:13], v14, s[84:87], 0 offen sc0 sc1\n    s_mov_b64 exec, -1\n{L}:")
    return [salu(t)] if P.FUSE else []

def wo_sel():
    lim = 100 if P.NODMA in (1, 2) else 6
    t = f"s_cmp_ge_i32 s{sT}, {lim}\n    s_cselect_b32 s{sWO+2}, 0x80000, 0\n    s_cselect_b32 s{sWOCUR}, s{sWOOFF}, s{sPF}"
    ops = nonce_op() + [salu(t)]
    if P.WOPF and not P.NODMA:
        ops.append(salu(f"s_sub_u32 s{sTMP}, s{sT}, {P.PFT-1}\n    s_cmp_lt_u32 s{sTMP}, 2\n    s_cselect_b32 s{sWO+2}, 0x80000, s{sWO+2}\n    s_cselect_b32 s{sTMP}, 16384, 0\n    s_add_u32 s{sPF}, s{sPF}, s{sTMP}"))
    return ops

def w3_acc(dt2, mt): return V(W_ACC + (dt2*3 + mt)*16, 16)
def w3_cv(dt2):
    ops = []
    for mt in range(3):
        a = w3_acc(dt2, mt)[0]
        ops += scale_cvt(a, a)
        for s2 in range(2):
            ops.append(dsw128(w_aQB, V(a + 4*s2, 4), mt*8192 + (dt2*2 + s2)*1024))
    return ops

def wave3_body(em):
    seq = []; frags = []
    lastB = None
    for kq in (1, 2, 3, 0):
        par = kq % 2
        gA = newgate(); gB = newgate(); dA = newgate(); dB = newgate(); gW = newgate(); dW = newgate()
        rdA = [lastB] if lastB else []
        wq = [salu(f"s_cmp_le_i32 s{sT}, {-100 if P.NODMA in (1, 2) else 20}\n    s_cselect_b32 s{sWQ+2}, s{sTMP+2}, 0")]
        if kq == 3:
            wq.append(salu(f"s_add_u32 s{sWQLIN}, s{sWQLIN}, 128\n    s_and_b32 s{sWQLIN}, s{sWQLIN}, 1023\n    s_xor_b32 s{sWQCOL}, s{sWQLIN}, s{sSW}"))
        wq += dma_wq(WQ0 + (1-par)*SL, sWQCOL, ((kq+1) % 4) * 128 * 8192)
        wo = wo_sel() + dma_wo(WO0 + par*SL, sWOCUR)
        wo.append(salu(f"s_add_u32 s{sWOOFF}, s{sWOOFF}, 16384\n    s_and_b32 s{sWOOFF}, s{sWOOFF}, 0x7ffff\n    s_add_u32 s{sT}, s{sT}, 1", wr=[dB]))
        vq = kvq_ops(V0 + (1-par)*SL, sV, sVOFF, sM0V, 30, gA, dA)
        if P.PLAN == 0:
            A = wq + vq; A[0].rd.append(gA)
            if P.WOQ:
                wo = nonce_op() + woq_ops(WO0 + par*SL, w_vlin) + [salu(f"s_add_u32 s{sT}, s{sT}, 1", wr=[dB])]
            B = kvq_ops(K0 + (1-par)*SL, sK, sKOFF, sM0K, 28, gB, newgate()) + wo
            wA, wB, nA = (28, 28, P.W_PRE) if P.WOQ else (40, 40, P.W_PRE)
            wW = (12 if P.WOQ else 24) + nA
        elif P.PLAN == 2:
            gZ = newgate(); dZ = newgate()
            A = wq + vq; A[0].rd.append(gA)
            Z = wo[:-1] + [salu(f"s_add_u32 s{sWOOFF}, s{sWOOFF}, 16384\n    s_and_b32 s{sWOOFF}, s{sWOOFF}, 0x7ffff", wr=[dZ])]; Z[0].rd.append(gZ)
            B = kvq_ops(K0 + (1-par)*SL, sK, sKOFF, sM0K, 28, gB, newgate()) + [salu(f"s_add_u32 s{sT}, s{sT}, 1", wr=[dB])]
            wA, wZ, wB, nA = 44, 60, 56, P.W_PRE
            wW = 24 + nA
        else:
            A = kvq_ops(K0 + par*SL, sK, sKOFF, sM0K, 29, gA, newgate()) + vq
            B = wq + wo; B[0].rd.append(gB)
            wA, wB, nA = 36, 40, 8
            wW = 24
            if P.PLAN == 3:
                gZ = newgate(); dZ = dA; Z = []
                wA, wZ = 40, 44
        seq.append(bar(gA, pre=stamp_txt() + [f"s_waitcnt vmcnt({wA})"], rd=rdA, drain=bool(P.STAMP)))
        items = qproj_items(frags, w_aWQ, par*SL, gW, kq, w3_acc, XF3, 3)
        cut = 0; cnt = 0
        while cnt < nA:
            if A[cut].kind == 'dma': cnt += 1
            cut += 1
        A1 = A[:cut] + [salu("s_nop 0", wr=[dW])]; A2 = A[cut:]
        if kq == 0:
            c = w3_cv(1) + [valu(f"v_xor_b32 v{w_aQB}, 0x1000, v{w_aQB}", [w_aQB], [w_aQB])]
            A2 = interleave(c, A2, every=1)
        seq += A1
        seq.append(MItem('bar', texts=[f"s_waitcnt vmcnt({wW})"], rd=[dW], wr=[gW]))
        seq += A2
        if P.PLAN in (2, 3):
            seq += items[:P.W_SPLITZ]
            seq.append(bar(gZ, pre=[f"s_waitcnt vmcnt({wZ})"], rd=[dA]))
            seq += Z
            seq += items[P.W_SPLITZ:P.W_SPLIT]
            seq.append(bar(gB, pre=[f"s_waitcnt vmcnt({wB})"], rd=[dZ]))
        else:
            seq += items[:P.W_SPLIT]
            seq.append(bar(gB, pre=[f"s_waitcnt vmcnt({wB})"], rd=[dA]))
        if kq == 3:
            B = interleave(B, w3_cv(0), every=1)
        seq += B
        seq += items[P.W_SPLIT:]
        lastB = dB
    schedule(em, seq, frags, W_STG, W_NS, P.W_LA, budget=P.W_BUDGET, pair=False)

def wave3_body4(em):
    seq = []; frags = []
    lastA = None
    for kq in (1, 2, 3, 0):
        par = kq % 2
        gA = newgate(); gB = newgate(); gZ = newgate(); dA = newgate(); dB = newgate(); gW = newgate(); dW = newgate()
        wq = [salu(f"s_cmp_le_i32 s{sT}, {-100 if P.NODMA in (1, 2) else 20}\n    s_cselect_b32 s{sWQ+2}, s{sTMP+2}, 0", rd=[gB])]
        if kq == 3:
            wq.append(salu(f"s_add_u32 s{sWQLIN}, s{sWQLIN}, 128\n    s_and_b32 s{sWQLIN}, s{sWQLIN}, 1023\n    s_xor_b32 s{sWQCOL}, s{sWQLIN}, s{sSW}"))
        wq += dma_wq(WQ0 + (1-par)*SL, sWQCOL, ((kq+1) % 4) * 128 * 8192)
        wo = wo_sel() + dma_wo(WO0 + par*SL, sWOCUR)
        wo.append(salu(f"s_add_u32 s{sWOOFF}, s{sWOOFF}, 16384\n    s_and_b32 s{sWOOFF}, s{sWOOFF}, 0x7ffff\n    s_add_u32 s{sT}, s{sT}, 1", wr=[dB]))
        B = wq + wo
        A = kvq_ops(K0 + (1-par)*SL, sK, sKOFF, sM0K, 29, gA, newgate()) + kvq_ops(V0 + par*SL, sV, sVOFF, sM0V, 30, gA, dA)
        items = qproj_items(frags, w_aWQ, par*SL, gW, kq, w3_acc, XF3, 3)
        seq.append(bar(gB, pre=["s_waitcnt vmcnt(40)"], rd=[lastA] if lastA else []))
        seq.append(MItem('bar', texts=["s_waitcnt vmcnt(24)"], wr=[gW]))
        seq += B
        seq += items[:P.W4_1]
        seq.append(bar(gA, pre=stamp_txt() + ["s_waitcnt vmcnt(40)"], rd=[dB], drain=bool(P.STAMP)))
        if kq == 0:
            c = w3_cv(1) + [valu(f"v_xor_b32 v{w_aQB}, 0x1000, v{w_aQB}", [w_aQB], [w_aQB], ), salu("s_nop 0", wr=[dW])]
            A = A + c
        seq += A
        seq += items[P.W4_1:P.W4_2]
        seq.append(bar(gZ, pre=["s_waitcnt vmcnt(44)"], rd=[dA] + ([dW] if kq == 0 else []), drain=(kq == 0)))
        if kq == 3:
            seq += w3_cv(0)
        seq += items[P.W4_2:]
        lastA = dA
    schedule(em, seq, frags, W_STG, W_NS, P.W_LA, budget=P.W_BUDGET, pair=False)

def wave3_body5(em):
    seq = []; frags = []
    lastB = None
    for kq in range(4):
        par = kq % 2
        gA = newgate(); gB = newgate(); gZ = newgate(); dA = newgate(); dB = newgate(); dZ = newgate(); gW = newgate(); dW = newgate(); dC = newgate()
        wq = [salu(f"s_cmp_le_i32 s{sT}, {-100 if P.NODMA in (1, 2) else 21}\n    s_cselect_b32 s{sWQ+2}, s{sTMP+2}, 0", rd=[gA])]
        if kq == 3:
            wq.append(salu(f"s_add_u32 s{sWQLIN}, s{sWQLIN}, 128\n    s_and_b32 s{sWQLIN}, s{sWQLIN}, 1023\n    s_xor_b32 s{sWQCOL}, s{sWQLIN}, s{sSW}"))
        wq += dma_wq(WQ0 + (1-par)*SL, sWQCOL, ((kq+1) % 4) * 128 * 8192)
        A = wq + kvq_ops(V0 + par*SL, sV, sVOFF, sM0V, 30, gA, dA)
        Z = wo_sel() + dma_wo(WO0 + (1-par)*SL, sWOCUR) + [salu(f"s_add_u32 s{sWOOFF}, s{sWOOFF}, 16384\n    s_and_b32 s{sWOOFF}, s{sWOOFF}, 0x7ffff", wr=[dZ])]
        Z[0].rd.append(gZ)
        B = kvq_ops(K0 + par*SL, sK, sKOFF, sM0K, 28, gB, newgate()) + [salu(f"s_add_u32 s{sT}, s{sT}, 1", wr=[dB])]
        nA = P.W_PRE
        seq.append(bar(gA, pre=stamp_txt() + ["s_waitcnt vmcnt(44)"], rd=[lastB] if lastB else [], drain=bool(P.STAMP)))
        items = qproj_items(frags, w_aWQ, par*SL, gW, kq, w3_acc, XF3, 3)
        cut = 0; cnt = 0
        while cnt < nA:
            if A[cut].kind == 'dma': cnt += 1
            cut += 1
        A1 = A[:cut] + [salu("s_nop 0", wr=[dW])]; A2 = A[cut:]
        if kq == 0:
            c = w3_cv(1) + [valu(f"v_xor_b32 v{w_aQB}, 0x1000, v{w_aQB}", [w_aQB], [w_aQB]), salu("s_nop 0", wr=[dC])]
            A2 = interleave(c, A2, every=1)
        seq += A1
        seq.append(MItem('bar', texts=[f"s_waitcnt vmcnt({24 + nA})"], rd=[dW], wr=[gW]))
        seq += A2
        seq += items[:P.W_SPLITZ]
        seq.append(bar(gZ, pre=["s_waitcnt vmcnt(60)"], rd=[dA] + ([dC] if kq == 0 else []), drain=(kq == 0)))
        seq += Z
        seq += items[P.W_SPLITZ:P.W_SPLIT]
        seq.append(bar(gB, pre=["s_waitcnt vmcnt(56)"], rd=[dZ]))
        if kq == 3:
            B = interleave(w3_cv(0), B, every=2)
        seq += B
        seq += items[P.W_SPLIT:]
        lastB = dB
    schedule(em, seq, frags, W_STG, W_NS, P.W_LA, budget=P.W_BUDGET, pair=False)

class VM:
    def __init__(self, em, init): self.em = em; self.q = list(init)
    def issue(self, tag, ops):
        n = 0
        for o in ops:
            self.em.emit(o)
            if o.kind == 'dma': n += 1
            n += getattr(o, 'ndma', 0)
        self.q.append((tag, n))
    def need(self, *tags):
        last = -1
        for i, (t, n) in enumerate(self.q):
            if t in tags: last = i
        if last >= 0:
            n = sum(c for (_, c) in self.q[last+1:])
            self.em.raw(f"s_waitcnt vmcnt({min(n, 63)})")
            self.q = self.q[last+1:]

def decode(R):
    if P.MAP == 1:
        R("s_and_b32 s3, s2, 7")
        R("s_bfe_u32 s4, s2, 0x40003")
        R("s_lshr_b32 s5, s2, 7")
        return
    R("s_and_b32 s3, s2, 7")
    R("s_lshr_b32 s4, s2, 3")
    R("s_lshr_b32 s5, s3, 2")
    R("s_and_b32 s3, s3, 3")
    R("s_lshl_b32 s3, s3, 1")
    R("s_lshr_b32 s6, s4, 4")
    R("s_add_u32 s3, s3, s6")
    R("s_and_b32 s4, s4, 15")
def member(hg): return hg if P.MAP == 1 else (hg // 2) + 128*(hg % 2)

def gen_main(em):
    R = em.raw
    em.label(f"{NAME}_kernel")
    R("s_cmp_ge_u32 s2, 256")
    R("s_cbranch_scc1 L_end")
    R("s_load_dwordx8 s[48:55], s[0:1], 0")
    R("s_load_dwordx2 s[56:57], s[0:1], 32")
    R("s_load_dwordx8 s[60:67], s[0:1], 40")
    R("s_load_dwordx2 s[68:69], s[0:1], 72")
    R("s_load_dwordx2 s[70:71], s[0:1], 96")
    if P.CPF:
        R("s_getpc_b64 s[78:79]")
        em.label("L_pc")
        R(f"s_sub_u32 s78, s78, L_pc-{NAME}_kernel")
        R("s_subb_u32 s79, s79, 0")
        R("s_lshr_b32 s3, s2, 3")
        R("s_lshl_b32 s3, s3, 11")
        R("v_lshlrev_b32 v28, 7, v0")
        R("v_add_u32 v28, s3, v28")
        R(f"v_min_u32 v28, L_code_end-{NAME}_kernel-4, v28")
        R("v_cmp_gt_u32 vcc, 16, v0")
        R("s_and_saveexec_b64 s[80:81], vcc")
        R("s_cbranch_execz L_nocpf")
        R("global_load_dword v10, v28, s[78:79]")
        em.label("L_nocpf")
        R("s_mov_b64 exec, s[80:81]")
    R("v_lshrrev_b32 v1, 6, v0")
    R("v_and_b32 v0, 63, v0")
    R(f"v_readfirstlane_b32 s{sWAVE}, v1")
    decode(R)
    R(f"s_mov_b32 s{sC}, {f32bits(C_SCALE):#x}")
    R(f"s_mov_b32 s{sC2}, {f32bits(C_SCALE):#x}")
    R(f"s_mov_b32 s{sC2+1}, {f32bits(C_SCALE):#x}")
    R(f"s_mov_b32 s{sTHR}, {f32bits(P.THR):#x}")
    R(f"s_mul_i32 s{sM0W}, s{sWAVE}, 4160")
    R(f"s_mov_b32 s{sM0N}, {M0_NULL:#x}")
    R("s_waitcnt lgkmcnt(0)")
    R("s_cmp_eq_u32 s5, 0")
    for i in range(5):
        R(f"s_cselect_b64 s[{48+2*i}:{49+2*i}], s[{48+2*i}:{49+2*i}], s[{60+2*i}:{61+2*i}]")
    R("s_lshl_b32 s6, s4, 22")
    R("s_lshl_b32 s7, s3, 19")
    R("s_add_u32 s6, s6, s7")
    for (d, p) in ((sK, 50), (sV, 52)):
        R(f"s_add_u32 s{d}, s{p}, s6")
        R(f"s_addc_u32 s{d+1}, s{p+1}, 0")
        R(f"s_and_b32 s{d+1}, s{d+1}, 0xffff")
        R(f"s_mov_b32 s{d+2}, 0x80000")
        R(f"s_mov_b32 s{d+3}, 0x20000")
    R("s_lshl_b32 s6, s3, 10")
    R(f"s_add_u32 s{sWQ}, s54, s6")
    R(f"s_addc_u32 s{sWQ+1}, s55, 0")
    R(f"s_and_b32 s{sWQ+1}, s{sWQ+1}, 0xffff")
    R(f"s_sub_u32 s{sWQ+2}, 0x400000, s6")
    R(f"s_mov_b32 s{sTMP+2}, s{sWQ+2}")
    R(f"s_mov_b32 s{sWQ+3}, 0x20000")
    R(f"s_add_u32 s{sWO}, s56, s7")
    R(f"s_addc_u32 s{sWO+1}, s57, 0")
    R(f"s_and_b32 s{sWO+1}, s{sWO+1}, 0xffff")
    R(f"s_mov_b32 s{sWO+2}, 0x80000")
    R(f"s_mov_b32 s{sWO+3}, 0x20000")
    R("s_mul_i32 s6, s4, 98304")
    R(f"s_add_u32 s{sX}, s48, s6")
    R(f"s_addc_u32 s{sX+1}, s49, 0")
    R(f"s_and_b32 s{sX+1}, s{sX+1}, 0xffff")
    R(f"s_mov_b32 s{sX+2}, 98304")
    R(f"s_mov_b32 s{sX+3}, 0x20000")
    R("s_mul_i32 s6, s2, 98304")
    R(f"s_add_u32 s{sWS}, s70, s6")
    R(f"s_addc_u32 s{sWS+1}, s71, 0")
    R(f"s_and_b32 s{sWS+1}, s{sWS+1}, 0xffff")
    R(f"s_mov_b32 s{sWS+2}, 98304")
    R(f"s_mov_b32 s{sWS+3}, 0x20000")
    R("v_bfe_u32 v20, v0, 2, 2")
    R("v_lshrrev_b32 v21, 5, v0")
    R("v_bfe_u32 v22, v0, 4, 1")
    R("v_and_b32 v23, 1, v0")
    R("v_bfe_u32 v24, v0, 1, 1")
    R("v_lshlrev_b32 v25, 2, v20")
    R("v_lshl_add_u32 v26, v21, 1, v25")
    R("v_mul_u32_u24 v26, 1040, v26")
    R("v_lshl_add_u32 v26, v22, 5, v26")
    R("v_lshl_add_u32 v26, v23, 4, v26")
    R("v_lshl_add_u32 v26, v24, 3, v26")
    R("v_and_b32 v27, 15, v0")
    R("v_mul_u32_u24 v27, 1040, v27")
    R("v_lshl_add_u32 v27, v22, 9, v27")
    R("v_lshl_add_u32 v27, v21, 4, v27")
    R("v_lshrrev_b32 v28, 4, v0")
    R("v_and_b32 v29, 15, v0")
    R("v_lshlrev_b32 v29, 4, v29")
    R(f"v_lshl_add_u32 v{vKV}, v28, 12, v29")
    if P.KVLIN: R(f"v_lshlrev_b32 v{vKV}, 4, v0")
    if P.ROT:
        R(f"s_and_b32 s{sROT}, s4, 3")
        R(f"s_lshl_b32 s{sROT}, s{sROT}, 17")
        R(f"s_bfe_u32 s{sSW}, s4, 0x10002")
        R(f"s_lshl_b32 s{sSW}, s{sSW}, 7")
    else:
        R(f"s_mov_b32 s{sROT}, 0")
        R(f"s_mov_b32 s{sSW}, 0")
    R(f"s_lshl_b32 s{sPF}, s4, 15")
    if P.TXOR:
        R(f"s_lshr_b32 s{sXR}, s4, 2")
        R(f"s_lshl_b32 s6, s3, 2")
        R(f"s_or_b32 s{sXR}, s{sXR}, s6")
        R(f"s_and_b32 s{sXR}, s{sXR}, 7")
        R(f"s_lshl_b32 s{sXR}, s{sXR}, 14")
    else:
        R(f"s_mov_b32 s{sXR}, 0")
    R(f"s_lshl_b32 s{sVOFF}, s{sWAVE}, {12 if P.KVLIN else 8}")
    R(f"s_add_u32 s{sVOFF}, s{sVOFF}, s{sROT}")
    R(f"s_add_u32 s{sKOFF}, s{sVOFF}, {(1 if P.PLAN in (1, 3, 4) else 2)*16384}")
    R(f"s_mov_b32 s{sT}, -1")
    if P.WOQ and P.PLAN == 0:
        R(f"s_lshl_b32 s{sWOOFF}, s{sWAVE}, 10")
        R(f"s_add_u32 s{sWOOFF}, s{sWOOFF}, s{sROT}")
        R(f"s_add_u32 s{sWOOFF}, s{sWOOFF}, {(-7*16384) & 0x7ffff:#x}")
        R(f"s_and_b32 s{sWOOFF}, s{sWOOFF}, 0x7ffff")
    if P.STAMP:
        R("s_mov_b32 s98, 0")
        R(f"v_mov_b32 v{STV}, 0")
    stamp(em)
    R(f"s_cmp_eq_u32 s{sWAVE}, 3")
    R("s_cbranch_scc0 L_att" if P.W3FIRST else "s_cbranch_scc1 L_wave3")
    em.mark_att = len(em.lines)
    em.label("L_att")

    R("v_and_b32 v28, 3, v0")
    R("v_lshl_add_u32 v28, v28, 2, v20")
    R("v_mul_u32_u24 v28, 1040, v28")
    R("v_lshl_add_u32 v28, v22, 8, v28")
    R(f"v_lshl_add_u32 v{aK}, v21, 4, v28")
    R("v_add_u32 v28, v25, v21")
    R("v_mul_u32_u24 v28, 1040, v28")
    R("v_and_b32 v29, 3, v0")
    R("v_lshl_add_u32 v29, v29, 3, v28")
    R("v_lshl_add_u32 v29, v22, 5, v29")
    R(f"v_add_u32 v{aV}, {V0}, v29")
    R("v_lshl_add_u32 v29, v23, 5, v28")
    R("v_lshl_add_u32 v29, v22, 4, v29")
    R("v_lshl_add_u32 v29, v24, 3, v29")
    R(f"v_add_u32 v{aWO}, {WO0}, v29")
    R(f"s_lshl_b32 s3, s{sWAVE}, 13")
    R(f"s_add_u32 s3, s3, {QB}")
    R(f"v_lshlrev_b32 v{aQB}, 4, v0")
    R(f"v_add_u32 v{aQB}, s3, v{aQB}")
    R(f"v_mov_b32 v{AUX}, v26")
    R(f"v_lshlrev_b32 v{vLIN}, {7 if P.TOUCH else 4}, v0")
    R(f"s_mul_i32 s3, s{sWAVE}, {SL}")
    R(f"v_add_u32 v{T2}, s3, v27")
    R(f"v_add_u32 v{T3}, {5*SL}, v{T2}")
    for i in range(8): R(f"v_mov_b32 v{16+i}, 0")
    R("s_nop 1")
    for nt in range(16):
        R(f"v_mfma_f32_32x32x16_bf16 a[{16*nt}:{16*nt+15}], v[16:19], v[20:23], 0")
    QA = SR[1]
    seq = []; frags = []
    tmpaddr = [T0, T1]
    for ti in range(8):
        if ti in (0, 2, 3, 6):
            g = newgate()
            xr = []
            if ti in (2, 3):
                for ks in range(16): xr += XFA(ks + 16*(ti-2))
            seq.append(bar(g, st=1, drain=True, rd=xr, pre=(["s_waitcnt vmcnt(0)"] if ti == 6 else [])))
            if ti in (0, 2):
                for ks in range(16):
                    op = dsr128(XFA(ks + 8*ti), T2 if ti == 0 else T3, ks*32)
                    op.rd.append(g)
                    seq.append(op)
        ta = tmpaddr[ti % 2]
        ga = newgate()
        seq.append(valu(f"v_add_u32 v{ta}, {WLOC[ti]}, v{AUX}", [AUX], [ta]))
        seq.append(MItem('bar', texts=[], rd=[ta], wr=[ga]))
        its = qproj_items(frags, ta, 0, ga, ti % 4, lambda dt2, mt: V(QA + 16*dt2, 16), lambda mt, ks: XFA(ks), 1)
        for it in its: it.rd.append(ta)
        seq += its[:8]
        if ti % 4 == 3: seq += scale_cvt(QA, QR + 16*(ti//4))
        seq += its[8:]
        if ti % 4 == 3: seq += scale_cvt(QA + 16, QR + 16*(ti//4) + 8)
    for i in range(64):
        seq.append(valu(f"v_mov_b32 v{OACC+i}, 0", [], [OACC+i]))
    for i in range(16):
        seq.append(valu(f"v_mov_b32 v{SR[1]+i}, 0", [], [SR[1]+i]))
    seq.append(valu(f"v_mov_b32 v{LA_}, 1.0", [], [LA_]))
    seq.append(valu(f"v_mov_b32 v{LB_}, 0", [], [LB_]))
    gA = newgate()
    seq.append(bar(gA, st=1))
    if P.PLAN in (1, 3, 4): seq += kvq_ops(K0+SL, sK, sKOFF, sM0K, 29, gA, newgate())
    dz = newgate()
    seq += kvq_ops(V0, sV, sVOFF, sM0V, 30, gA, dz)
    if P.PLAN in (2, 3, 4, 5): seq.append(bar(newgate(), rd=[dz]))
    seq += qk_items(frags, SR[0], 0, gA, False)
    schedule(em, seq, frags, STG, NS, P.LA, budget=P.BUDGET)
    R(f"s_mov_b32 s{sCNT}, 4")
    em.fence()
    em.label("L_att_loop")
    n0 = em.ninstr; nn0 = em.nops; w0 = em.waits
    attention_head(em)
    print(f"attention head body: {em.ninstr-n0} instrs, {em.nops-nn0} nop states, {em.waits-w0} waits", file=sys.stderr)
    R(f"s_sub_u32 s{sCNT}, s{sCNT}, 1")
    R(f"s_cmp_lg_u32 s{sCNT}, 0")
    em.fence()
    R("s_cbranch_scc1 L_att_loop")
    seq = []; frags = []
    gB = newgate(); g1 = newgate()
    WOQ = P.WOQ and P.PLAN == 0
    seq.append(bar(gB, pre=["s_waitcnt vmcnt(12)" if WOQ else "s_waitcnt vmcnt(0)"], st=2))
    dT = newgate()
    if WOQ:
        w = woq_ops(WO0 + SL, vLIN); w[0].rd.append(gB); w[-1].wr.append(dT)
        seq += w
    seq.append(valu(f"v_subrev_u32 v{T0}, {WO0}, v{aWO}", [aWO], [T0]))
    seq.append(valu(f"v_add_u32 v{DELTA}, {QB-WO0}, v{aWO}", [aWO], [DELTA]))
    seq.append(valu(f"v_lshlrev_b32 v{T1}, 4, v0", [], [T1]))
    seq.append(salu(f"s_lshl_b32 s3, s{sWAVE}, 15"))
    seq += pv_items(frags, SR[1], 1, gB, False)
    insert_hoisted(seq, bar(g1, st=1, rd=[T0, DELTA, dT], pre=(["s_waitcnt vmcnt(0)"] if WOQ else [])), P.HOIST)
    seq += finalize_ops()
    for nt in range(16):
        for ks in range(8):
            if ks < 4: seq.append(opj_item(frags, ks, nt, ks*SL, g1, aWO))
            elif ks < 7: seq.append(opj_item(frags, ks, nt, (ks-4)*SL, g1, T0))
            else: seq.append(opj_item(frags, ks, nt, 0, g1, DELTA))
        b = 176 + (nt % 4) * 16
        for r in range(16):
            seq.append(valu(f"v_accvgpr_read_b32 v{b+r}, a{16*nt+r}", AG(16*nt+r), [b+r]))
        for k in range(8):
            seq.append(valu(f"v_cvt_pk_bf16_f32 v{b+k}, v{b+2*k}, v{b+2*k+1}", [b+2*k, b+2*k+1], [b+k]))
        for q in range(2):
            off = (nt*2 + q) * 1024
            if off % 4096 == 0:
                seq.append(salu(f"s_add_u32 s4, s3, {off}"))
            seq.append(Op('vmem', f"buffer_store_dwordx4 v[{b+4*q}:{b+4*q+3}], v{T1}, {srd(sWS)}, s4 offen offset:{off % 4096}{P.STPOL}", rd=V(b+4*q, 4) + [T1], tag='store'))
    schedule(em, seq, frags, STG, NS, P.LA, budget=P.BUDGET)
    if P.FUSE:
        stamp(em)
        R("s_waitcnt vmcnt(0)")
        stamp(em)
        R("s_barrier")
        R("s_branch L_red")
        emit_rare(em)
        rare_blocks.clear()
    stamp(em)
    if P.STAMP: R("s_waitcnt vmcnt(0)")
    stamp(em)
    stamp_store(em)
    if P.DBG:
        R(f"s_cmp_lg_u32 s{sWAVE}, 0")
        R("s_cbranch_scc1 L_dbgskip")
        R("s_load_dwordx2 s[72:73], s[0:1], 88")
        R(f"v_readlane_b32 s76, v{STV}, 0")
        idx = [1, 5, 6, 14, 22, 30, 38, 40]
        for i, l in enumerate(idx): R(f"v_readlane_b32 s{80+i}, v{STV}, {l}")
        R("s_waitcnt lgkmcnt(0)")
        R("s_and_b32 s73, s73, 0xffff")
        R("s_mov_b32 s74, 256")
        R("s_mov_b32 s75, 0x20000")
        R("v_mov_b32 v1, 0")
        R("v_mov_b32 v2, 0")
        R("s_not_b32 s77, s76")
        R("v_writelane_b32 v2, s77, 8")
        R("v_writelane_b32 v2, s87, 9")
        for i in range(8):
            R(f"s_sub_u32 s{80+i}, s{80+i}, s76")
            R(f"v_writelane_b32 v1, s{80+i}, {i}")
        R("v_cmp_gt_u32 vcc, 40, v0")
        R("s_and_saveexec_b64 s[78:79], vcc")
        R("buffer_atomic_add v1, v0, s[72:75], 0 offen")
        R("buffer_atomic_umax v2, v0, s[72:75], 0 offen")
        R("s_waitcnt vmcnt(0)")
        em.label("L_dbgskip")
    R("s_endpgm")
    emit_rare(em)

    em.mark_w3 = len(em.lines)
    em.label("L_wave3")
    em.reset()
    R(f"v_lshlrev_b32 v{w_vlin}, 4, v0")
    R("v_lshrrev_b32 v28, 3, v0")
    R("v_and_b32 v29, 7, v0")
    R("v_lshlrev_b32 v29, 4, v29")
    R(f"v_lshl_add_u32 v{w_vwq}, v28, 17, v29")
    if P.WQLIN: R(f"v_lshlrev_b32 v{w_vwq}, 4, v0")
    R(f"v_add_u32 v{w_aWQ}, {WQ0}, v26")
    R(f"v_add_u32 v{w_aQB}, {QB}, v{w_vlin}")
    R(f"v_mov_b32 v{w_aX}, v27")
    R(f"v_add_u32 v8, {5*SL}, v27")
    R("v_and_b32 v29, 31, v0")
    R("v_lshlrev_b32 v29, 4, v29")
    R("v_lshl_add_u32 v9, v21, 14, v29")
    R(f"s_lshr_b32 s{sWQCOL}, s{sROT}, 9")
    R(f"s_lshl_b32 s3, s{sSW}, 5")
    R(f"v_add_u32 v{w_aQB}, s3, v{w_aQB}")
    vm = VM(em, [])
    def xt(mt, kh, loc): return tile_loop('x', loc, f"s_mov_b32 s{sTMP}, {mt*32768 + kh*512}")
    def w0(ti): return tile_loop('wq', WLOC[ti], f"s_add_u32 s{sTMP}, s{sWQCOL}, {(ti % 4)*128*8192 + (ti // 4)*128}")
    for mt in range(3): vm.issue("X0", xt(mt, 0, mt*SL))
    vm.issue("W0", w0(0)); vm.issue("W1", w0(1))
    for mt in range(3): vm.issue("X1", xt(mt, 1, (5+mt)*SL))
    vm.issue("W2", w0(2))
    vm.need("W1")
    R("s_barrier")
    for mt in range(3):
        for ks in range(16):
            em.emit(dsr128(XF3(mt, ks), w_aX, mt*SL + ks*32))
    em.wait_ds(0)
    vm.need("W2")
    R("s_barrier")
    vm.issue("W3", w0(3)); vm.issue("W4", w0(4)); vm.issue("W5", w0(5))
    vm.issue("K0", tile_loop('kv', K0, f"s_xor_b32 s{sTMP}, s{sROT}, s{sXR}", sK))
    if P.PLAN in (0, 2):
        vm.issue("K1", tile_loop('kv', K0+SL, f"s_add_u32 s{sTMP}, s{sROT}, 16384\n    s_xor_b32 s{sTMP}, s{sTMP}, s{sXR}", sK))
    for mt in range(3):
        for ks in range(16):
            em.emit(dsr128(XF3(mt, 16+ks), 8, mt*SL + ks*32))
    em.wait_ds(0)
    vm.need("W5")
    R("s_barrier")
    if P.FUSE:
        R("s_load_dwordx2 s[84:85], s[0:1], 88")
        R("s_memrealtime s[90:91]")
        R("v_mov_b32 v13, 0")
        R("v_mov_b32 v14, 252")
        R("s_bfe_u32 s94, s2, 0x40003")
        R("s_add_u32 s94, s94, 2")
        R("s_waitcnt lgkmcnt(0)")
        R("s_and_b32 s85, s85, 0xffff")
        R("s_mov_b32 s86, 256")
        R("s_mov_b32 s87, 0x20000")
        R("s_or_b32 s90, s90, 1")
        R("v_mov_b32 v12, s90")
        R("v_mov_b32 v15, s90")
    vm.issue("W6", w0(6)); vm.issue("W7", w0(7))
    R(f"s_add_u32 s{sWQLIN}, s{sWQCOL}, 256")
    R(f"s_and_b32 s{sWQLIN}, s{sWQLIN}, 1023")
    R(f"s_xor_b32 s{sWQCOL}, s{sWQLIN}, s{sSW}")
    vm.issue("U0", tile_loop('wq', WQ0, f"s_mov_b32 s{sTMP}, s{sWQCOL}"))
    if P.PLAN == 5:
        vm.issue("K1", tile_loop('kv', K0+SL, f"s_add_u32 s{sTMP}, s{sROT}, 16384\n    s_xor_b32 s{sTMP}, s{sTMP}, s{sXR}", sK))
        R(f"v_xor_b32 v{w_aQB}, 0x1000, v{w_aQB}")
    else:
        vm.issue("U1", tile_loop('wq', WQ0+SL, f"s_add_u32 s{sTMP}, s{sWQCOL}, {128*8192}"))
    vm.need("W7")
    R("s_barrier")
    if P.PLAN != 5:
        vm.need("U0")
        frags = []
        seq = qproj_items(frags, w_aWQ, 0, None, 0, w3_acc, XF3, 3)
        schedule(em, seq, frags, W_STG, W_NS, P.W_LA, budget=P.W_BUDGET, pair=False)
    if not (P.WOQ and P.PLAN == 0):
        R(f"s_add_u32 s{sWOOFF}, s{sROT}, {(-7*16384) & 0x7ffff:#x}")
        R(f"s_and_b32 s{sWOOFF}, s{sWOOFF}, 0x7ffff")
    R(f"s_mov_b32 s{sCNT}, 6")
    R("s_waitcnt vmcnt(16)" if P.PLAN == 5 else "s_waitcnt vmcnt(0)")
    if P.PLAN == 4:
        stamp(em)
        R("s_barrier")
        for o in kvq_ops(K0+SL, sK, sKOFF, sM0K, 29, 0, 0) + kvq_ops(V0, sV, sVOFF, sM0V, 30, 0, 0): em.emit(o)
        R("s_barrier")
    em.fence(2)
    em.label("L_w3_loop")
    n0 = em.ninstr; nn0 = em.nops; w0 = em.waits
    if P.PLAN == 4: wave3_body4(em)
    elif P.PLAN == 5: wave3_body5(em)
    else: wave3_body(em)
    print(f"wave3 body: {em.ninstr-n0} instrs, {em.nops-nn0} nop states, {em.waits-w0} waits", file=sys.stderr)
    R(f"s_sub_u32 s{sCNT}, s{sCNT}, 1")
    R(f"s_cmp_lg_u32 s{sCNT}, 0")
    em.fence(2)
    R("s_cbranch_scc1 L_w3_loop")
    if P.PLAN == 4:
        vm = VM(em, [("V23", 4), ("WQ", 16), ("WO24", 16), ("K25", 4), ("V24", 4)])
        R(f"s_add_u32 s3, s{sWOOFF}, {(26-17)*16384}\n    s_and_b32 s3, s3, 0x7ffff")
        for t in range(23, 32):
            if t > 23:
                stamp(em)
                vm.need(f"WO{t}")
                R("s_barrier")
                if t <= 29: vm.issue(f"K{t+2}", kvq_ops(K0 + (t % 2)*SL, sK, sKOFF, sM0K, 29, 0, 0))
                if t <= 30: vm.issue(f"V{t+1}", kvq_ops(V0 + ((t+1) % 2)*SL, sV, sVOFF, sM0V, 30, 0, 0))
                if t == 31:
                    vm.issue("TT", dma_wo(V0, 3))
                vm.need(f"K{t+1}")
                R("s_barrier")
            vm.need(f"V{t}")
            R("s_barrier")
            ops = dma_wo(WO0 + (t % 2)*SL, sWOOFF)
            ops.append(salu(f"s_add_u32 s{sWOOFF}, s{sWOOFF}, 16384\n    s_and_b32 s{sWOOFF}, s{sWOOFF}, 0x7ffff\n    s_add_u32 s{sT}, s{sT}, 1"))
            vm.issue(f"WO{t+2}", ops)
            if t in (23, 24):
                vm.issue("TT", dma_wo(WQ0 + (t-23)*SL, 3))
                R("s_add_u32 s3, s3, 16384")
            if t == 25:
                R(f"s_add_u32 s4, s3, {3*16384}")
                vm.issue("TT", dma_wo(QB, 4))
            if t in (29, 30):
                vm.issue("TT", dma_wo(K0 + (t-29)*SL, 3))
                R("s_add_u32 s3, s3, 16384")
        stamp(em)
        R("s_waitcnt vmcnt(0)")
        R("s_barrier")
        stamp(em)
        stamp_store(em)
        em.label("L_end")
        R("s_endpgm")
        return
    if P.PLAN == 0 and P.WOQ:
        vm = VM(em, [("K24", 4), ("WO23", 4), ("WQ", 16), ("V23", 4), ("K25", 4), ("WO24", 4)])
        R(f"s_add_u32 s3, s{sWOOFF}, {(26-17)*16384 - 3072}\n    s_and_b32 s3, s3, 0x7ffff")
        def tt(loc, k): return tile_loop('wo', loc, f"s_add_u32 s{sTMP}, s3, {k*16384}")
        for t in range(23, 32):
            stamp(em)
            vm.need(f"K{t+1}", f"WO{t}")
            R("s_barrier")
            if t <= 30:
                vm.issue(f"V{t+1}", kvq_ops(V0 + ((t+1) % 2)*SL, sV, sVOFF, sM0V, 30, 0, 0))
            ttl = {23: [(WQ0, 0)], 24: [(WQ0+SL, 1)], 25: [(QB, 5)], 30: [(K0, 2)], 31: [(K0+SL, 3), (V0, 4)]}.get(t, [])
            for (loc, k) in ttl: vm.issue("TT", tt(loc, k))
            vm.need(f"V{t}")
            R("s_barrier")
            if t <= 28:
                vm.issue(f"K{t+3}", kvq_ops(K0 + ((t+1) % 2)*SL, sK, sKOFF, sM0K, 28, 0, 0))
            vm.issue(f"WO{t+2}", woq_ops(WO0 + (t % 2)*SL, w_vlin))
            R(f"s_add_u32 s{sT}, s{sT}, 1")
    else:
        if P.PLAN == 0: vm = VM(em, [("K24", 4), ("WO23", 16), ("WQ", 16), ("V23", 4), ("K25", 4), ("WO24", 16)])
        elif P.PLAN in (2, 5): vm = VM(em, [("WO23", 16), ("K24", 4), ("WQ", 16), ("V23", 4), ("WO24", 16), ("K25", 4)])
        else: vm = VM(em, [("WQ", 16), ("WO23", 16), ("K24", 4), ("V23", 4), ("WQ", 16), ("WO24", 16)])
        R(f"s_add_u32 s3, s{sWOOFF}, {(26-17)*16384}\n    s_and_b32 s3, s3, 0x7ffff")
        for t in range(23, 32):
            stamp(em)
            if P.PLAN in (2, 3, 5): vm.need(f"WO{t}")
            else: vm.need(f"K{t+1}", f"WO{t}")
            R("s_barrier")
            if P.PLAN in (1, 3) and t <= 29:
                vm.issue(f"K{t+2}", kvq_ops(K0 + (t % 2)*SL, sK, sKOFF, sM0K, 29, 0, 0))
            if t <= 30:
                vm.issue(f"V{t+1}", kvq_ops(V0 + ((t+1) % 2)*SL, sV, sVOFF, sM0V, 30, 0, 0))
            if t == 31:
                vm.issue("TT32", tile_loop('wo', V0, f"s_mov_b32 s{sTMP}, s{3}"))
                R("s_add_u32 s3, s3, 16384")
            ops = tile_loop('wo', WO0 + (t % 2)*SL, f"s_mov_b32 s{sTMP}, s{sWOOFF}")
            ops.append(salu(f"s_add_u32 s{sWOOFF}, s{sWOOFF}, 16384\n    s_and_b32 s{sWOOFF}, s{sWOOFF}, 0x7ffff"))
            if P.PLAN in (2, 3, 5):
                if P.PLAN == 5 and t == 23:
                    em.nop(12)
                    for o in w3_cv(1): em.emit(o)
                    em.wait_ds(0)
                vm.need(f"K{t+1}")
                R("s_barrier")
                if P.PLAN in (2, 5): vm.issue(f"WO{t+2}", ops)
            vm.need(f"V{t}")
            R("s_barrier")
            if P.PLAN in (0, 2, 5) and t <= 28:
                vm.issue(f"K{t+3}", kvq_ops(K0 + ((t+1) % 2)*SL, sK, sKOFF, sM0K, 28, 0, 0))
            if P.PLAN not in (2, 5): vm.issue(f"WO{t+2}", ops)
            R(f"s_add_u32 s{sT}, s{sT}, 1")
            if t == 23:
                vm.issue("TT32", tile_loop('wo', WQ0, f"s_mov_b32 s{sTMP}, s{3}"))
                R("s_add_u32 s3, s3, 16384")
            if t == 24:
                vm.issue("TT32", tile_loop('wo', WQ0+SL, f"s_mov_b32 s{sTMP}, s{3}"))
                R("s_add_u32 s3, s3, 16384")
            if t == 25:
                R(f"s_add_u32 s4, s3, {3*16384}")
                vm.issue("TT32", tile_loop('wo', QB, f"s_mov_b32 s{sTMP}, s{4}"))
            if t in (29, 30):
                vm.issue("TT32", tile_loop('wo', K0 + (t-29)*SL, f"s_mov_b32 s{sTMP}, s{3}"))
                R("s_add_u32 s3, s3, 16384")
    stamp(em)
    R("s_waitcnt vmcnt(0)")
    R("s_barrier")
    if P.FUSE:
        fused_reduce(em)
        return
    stamp(em)
    stamp_store(em)
    em.label("L_end")
    R("s_endpgm")

def fused_reduce(em):
    R = em.raw
    decode(R)
    R("s_lshl_b32 s6, s5, 4")
    R("s_add_u32 s6, s6, s4")
    R("s_lshl_b32 s6, s6, 2")
    R("v_mov_b32 v14, 0")
    R("s_lshl_b32 s7, 1, s3")
    if P.MAP == 1:
        R("s_and_b32 s6, s2, 0xf8")
        R("v_add_u32 v15, s6, v0")
    else:
        R("s_lshl_b32 s6, s5, 2")
        R("s_lshl_b32 s92, s4, 3")
        R("s_add_u32 s6, s6, s92")
        R("v_lshrrev_b32 v15, 1, v0")
        R("v_and_b32 v13, 1, v0")
        R("v_lshl_add_u32 v15, v13, 7, v15")
        R("v_add_u32 v15, s6, v15")
    R("v_lshlrev_b32 v15, 7, v15")
    R("s_lshl_b32 s6, s2, 7")
    R("v_mov_b32 v13, s6")
    R("s_add_u32 s80, s70, 0x1800000")
    R("s_addc_u32 s81, s71, 0")
    R("s_and_b32 s81, s81, 0xffff")
    R("s_mov_b32 s82, 0x10000")
    R("s_mov_b32 s83, 0x20000")
    R("v_readfirstlane_b32 s95, v12")
    R("s_cmp_eq_u32 s95, 0")
    R("s_cselect_b32 s95, s90, s95")
    R("v_mov_b32 v12, s95")
    R("s_mov_b64 s[88:89], exec")
    R(f"s_mov_b32 s91, {P.SPIN}")
    R("s_mov_b32 s90, 0")
    R("s_barrier")
    R("s_mov_b64 exec, 1")
    R("buffer_store_dword v12, v13, s[80:83], 0 offen sc0 sc1")
    R("s_mov_b64 exec, 0xff")
    em.label("L_poll")
    R("buffer_load_dwordx2 v[10:11], v15, s[80:83], 0 offen sc0 sc1")
    R("s_waitcnt vmcnt(0)")
    R("v_cmp_eq_u32 vcc, s95, v10")
    R("s_nop 3")
    R("s_cmp_eq_u32 vcc_lo, 0xff")
    R("s_cbranch_scc1 L_go")
    R("s_cmp_lg_u32 s90, 0")
    R("s_cbranch_scc1 L_quit")
    R(f"s_sleep {P.PSLEEP}")
    R("s_sub_u32 s91, s91, 1")
    R("s_cmp_lg_u32 s91, 0")
    R("s_cbranch_scc1 L_poll")
    R("s_mov_b32 s90, 1")
    R("s_mov_b64 exec, 1")
    R("buffer_store_dword v12, v13, s[80:83], 0 offen offset:4 sc0 sc1")
    R("s_waitcnt vmcnt(0)")
    R("s_mov_b64 exec, 0xff")
    R("s_branch L_poll")
    em.label("L_quit")
    R("s_mov_b32 s93, 0")
    R("s_branch L_pub")
    em.label("L_go")
    R("v_cmp_eq_u32 vcc, s95, v11")
    R("s_nop 3")
    R("s_or_b32 s93, s7, vcc_lo")
    R("s_and_b32 s93, s93, 0xff")
    em.label("L_pub")
    R("s_mov_b64 exec, 1")
    R("v_mov_b32 v9, s93")
    R("ds_write_b32 v14, v9")
    R("s_mov_b64 exec, s[88:89]")
    R("s_waitcnt lgkmcnt(0)")
    em.label("L_red")
    R("s_load_dwordx2 s[8:9], s[0:1], 80")
    decode(R)
    R("v_and_b32 v2, 7, v0")
    R("v_bfe_u32 v3, v0, 3, 1")
    R("v_bfe_u32 v4, v0, 4, 1")
    R("v_lshrrev_b32 v5, 5, v0")
    R(f"s_lshl_b32 s6, s{sWAVE}, 3")
    R("v_add_u32 v2, s6, v2")
    R("v_lshlrev_b32 v7, 11, v5")
    R("v_lshl_add_u32 v7, v3, 10, v7")
    R("v_lshl_add_u32 v7, v4, 9, v7")
    R("v_lshl_add_u32 v7, v2, 4, v7")
    R("v_lshlrev_b32 v8, 11, v2")
    R("v_lshl_add_u32 v8, v5, 6, v8")
    R("v_lshl_add_u32 v8, v4, 5, v8")
    R("v_lshl_add_u32 v8, v3, 4, v8")
    R("v_mov_b32 v14, 0")
    if P.MAP == 1:
        R("s_and_b32 s14, s2, 0xf8")
    else:
        R("s_lshl_b32 s14, s5, 2")
        R("s_lshl_b32 s15, s4, 3")
        R("s_add_u32 s14, s14, s15")
    R("s_mul_i32 s14, s14, 98304")
    R("s_mul_i32 s15, s4, 96")
    R("s_lshl_b32 s15, s15, 11")
    R("s_lshl_b32 s16, s5, 10")
    R("s_add_u32 s15, s15, s16")
    R("s_mov_b32 s20, s70")
    R("s_and_b32 s21, s71, 0xffff")
    R(f"s_mov_b32 s22, {256*98304}")
    R("s_mov_b32 s23, 0x20000")
    R("s_waitcnt lgkmcnt(0)")
    R("s_mov_b32 s24, s8")
    R("s_and_b32 s25, s9, 0xffff")
    R(f"s_mov_b32 s26, {16*96*1024*2}")
    R("s_mov_b32 s27, 0x20000")
    em.label("L_round")
    R("s_barrier")
    R("ds_read_b32 v9, v14")
    R("s_waitcnt lgkmcnt(0)")
    R("v_readfirstlane_b32 s93, v9")
    stamp(em)
    em.label("L_slice")
    R("s_and_b32 s92, s93, 0xff")
    R("s_cmp_eq_u32 s92, 0")
    R("s_cbranch_scc1 L_nomore")
    R("s_ff1_i32_b32 s94, s92")
    R("s_bitset0_b32 s93, s94")
    R("s_lshl_b32 s16, s94, 12")
    R("s_add_u32 s16, s16, s14")
    for w in range(3):
        for hg in range(8):
            d = member(hg) * 98304 + w * 32768
            r = 16 + (w*8 + hg)*4
            R(f"s_add_u32 s17, s16, {d}")
            R(f"buffer_load_dwordx4 v[{r}:{r+3}], v7, s[20:23], s17 offen{P.RDPOL}")
    R("s_lshl_b32 s17, s94, 7")
    R("s_add_u32 s17, s17, s15")
    for w in range(3):
        acc = 120 + 8*w
        for hg in range(8):
            R(f"s_waitcnt vmcnt({23 - (w*8+hg) + w})")
            for k in range(4):
                src = 16 + (w*8 + hg)*4 + k
                if hg == 0:
                    R(f"v_lshlrev_b32 v{acc+2*k}, 16, v{src}")
                    R(f"v_and_b32 v{acc+2*k+1}, 0xffff0000, v{src}")
                else:
                    R(f"v_lshlrev_b32 v112, 16, v{src}")
                    R(f"v_and_b32 v113, 0xffff0000, v{src}")
                    R(f"v_add_f32 v{acc+2*k}, v{acc+2*k}, v112")
                    R(f"v_add_f32 v{acc+2*k+1}, v{acc+2*k+1}, v113")
        o = 148 + 4*w
        for k in range(4):
            R(f"v_cvt_pk_bf16_f32 v{o+k}, v{acc+2*k}, v{acc+2*k+1}")
        R(f"s_add_u32 s18, s17, {w*32*2048}")
        R(f"buffer_store_dwordx4 v[{o}:{o+3}], v8, s[24:27], s18 offen{P.OUTPOL}")
    R("s_branch L_slice")
    em.label("L_nomore")
    em.label("L_fin")
    if P.STAMP:
        R("s_waitcnt vmcnt(0)")
    stamp(em)
    stamp_store(em)
    em.label("L_end")
    R("s_endpgm")
    em.label("L_code_end")

def gen_reduce(em):
    R = em.raw
    em.lines.append(".p2align 8")
    em.lines.append(".globl reduce_kernel")
    em.lines.append(".type reduce_kernel,@function")
    em.label("reduce_kernel")
    R("s_cmp_ge_u32 s2, 768")
    R("s_cbranch_scc1 L_rend")
    R("s_load_dwordx2 s[4:5], s[0:1], 80")
    R("s_load_dwordx2 s[6:7], s[0:1], 96")
    if P.DBG:
        R("s_memrealtime s[40:41]")
        R("s_load_dwordx2 s[32:33], s[0:1], 88")
    R("v_lshrrev_b32 v1, 6, v0")
    R("v_and_b32 v0, 63, v0")
    R("s_and_b32 s8, s2, 7")
    R("s_lshr_b32 s9, s2, 3")
    R("s_mul_i32 s10, s9, 43691")
    R("s_lshr_b32 s10, s10, 17")
    R("s_mul_i32 s11, s10, 3")
    R("s_sub_u32 s11, s9, s11")
    R("s_lshr_b32 s12, s10, 4")
    R("s_and_b32 s13, s10, 15")
    R("v_and_b32 v2, 7, v0")
    R("v_bfe_u32 v3, v0, 3, 1")
    R("v_bfe_u32 v4, v0, 4, 1")
    R("v_lshrrev_b32 v5, 5, v0")
    R("v_lshl_add_u32 v2, v1, 3, v2")
    R("v_lshlrev_b32 v6, 11, v5")
    R("v_lshl_add_u32 v6, v3, 10, v6")
    R("v_lshl_add_u32 v6, v4, 9, v6")
    R("v_lshl_add_u32 v6, v2, 4, v6")
    R("s_lshl_b32 s14, s11, 15")
    R("s_lshl_b32 s15, s8, 12")
    R("s_add_u32 s14, s14, s15")
    R("s_lshl_b32 s15, s12, 2")
    R("s_lshl_b32 s16, s13, 3")
    R("s_add_u32 s15, s15, s16")
    R("s_mul_i32 s15, s15, 98304")
    R("s_add_u32 s14, s14, s15")
    R("s_waitcnt lgkmcnt(0)")
    R("s_mov_b32 s20, s6")
    R("s_and_b32 s21, s7, 0xffff")
    R(f"s_mov_b32 s22, {256*98304}")
    R("s_mov_b32 s23, 0x20000")
    R("s_mov_b32 s24, s4")
    R("s_and_b32 s25, s5, 0xffff")
    R(f"s_mov_b32 s26, {16*96*1024*2}")
    R("s_mov_b32 s27, 0x20000")
    for hg in range(8):
        d = ((hg // 2) + 128*(hg % 2)) * 98304
        R(f"s_add_u32 s17, s14, {d}")
        R(f"buffer_load_dwordx4 v[{8+4*hg}:{11+4*hg}], v6, s[20:23], s17 offen{P.RDPOL}")
    R("v_lshlrev_b32 v7, 11, v2")
    R("v_lshl_add_u32 v7, v5, 6, v7")
    R("v_lshl_add_u32 v7, v4, 5, v7")
    R("v_lshl_add_u32 v7, v3, 4, v7")
    R("s_mul_i32 s15, s13, 96")
    R("s_lshl_b32 s16, s11, 5")
    R("s_add_u32 s15, s15, s16")
    R("s_lshl_b32 s15, s15, 11")
    R("s_lshl_b32 s16, s12, 10")
    R("s_add_u32 s15, s15, s16")
    R("s_lshl_b32 s16, s8, 7")
    R("s_add_u32 s15, s15, s16")
    for hg in range(8):
        R(f"s_waitcnt vmcnt({7-hg})")
        for k in range(4):
            src = 8 + 4*hg + k
            if hg == 0:
                R(f"v_lshlrev_b32 v{40+2*k}, 16, v{src}")
                R(f"v_and_b32 v{41+2*k}, 0xffff0000, v{src}")
            else:
                R(f"v_lshlrev_b32 v48, 16, v{src}")
                R(f"v_and_b32 v49, 0xffff0000, v{src}")
                R(f"v_add_f32 v{40+2*k}, v{40+2*k}, v48")
                R(f"v_add_f32 v{41+2*k}, v{41+2*k}, v49")
    for k in range(4):
        R(f"v_cvt_pk_bf16_f32 v{52+k}, v{40+2*k}, v{41+2*k}")
    R("buffer_store_dwordx4 v[52:55], v7, s[24:27], s15 offen")
    if P.DBG:
        R("s_and_b32 s44, s2, 31")
        R("s_cmp_lg_u32 s44, 31")
        R("s_cbranch_scc1 L_rend")
        R("v_readfirstlane_b32 s44, v1")
        R("s_cmp_lg_u32 s44, 0")
        R("s_cbranch_scc1 L_rend")
        R("s_waitcnt vmcnt(0)")
        R("s_memrealtime s[42:43]")
        R("s_sub_u32 s36, s32, 512")
        R("s_subb_u32 s37, s33, 0")
        R("s_and_b32 s37, s37, 0xffff")
        R("s_mov_b32 s38, 256")
        R("s_mov_b32 s39, 0x20000")
        R("s_and_b32 s33, s33, 0xffff")
        R("s_mov_b32 s34, 256")
        R("s_mov_b32 s35, 0x20000")
        R("v_lshlrev_b32 v0, 2, v0")
        R("buffer_load_dword v1, v0, s[36:39], 0 offen")
        R("s_waitcnt vmcnt(0) lgkmcnt(0)")
        R("s_not_b32 s40, s40")
        R("v_writelane_b32 v1, s40, 10")
        R("v_writelane_b32 v1, s42, 11")
        R("v_cmp_gt_u32 vcc, 48, v0")
        R("s_and_saveexec_b64 s[44:45], vcc")
        R("buffer_atomic_umax v1, v0, s[32:35], 0 offen")
        R("s_waitcnt vmcnt(0)")
    em.label("L_rend")
    R("s_endpgm")
    em.label("L_code_end")

def build():
    ref = open(f"cdna_kernels/{NAME}.s.ref").read().splitlines()
    head = [l for l in ref if l.startswith(";") and "@launch" not in l]
    em = Em()
    if P.FUSE:
        P.STPOL = " sc1" if P.STPOL == " nt" else P.STPOL
        P.RDPOL = " sc1" if P.RDPOL == " nt" else P.RDPOL
    gen_main(em)
    if P.W3FIRST:
        L = em.lines
        tail = [x for x in L[em.mark_w3:] if x != "L_code_end:"]
        em.lines = L[:em.mark_att] + tail + L[em.mark_att:em.mark_w3]
        if P.FUSE: em.label("L_code_end")
    if not P.FUSE: gen_reduce(em)
    out = []
    out += head
    if P.FUSE:
        out.append(f"; @launch grid=(256,1,1) block=(256,1,1) lds={LDS_BYTES}")
    else:
        out.append(f"; @launch kernel={NAME}_kernel grid=(256,1,1) block=(256,1,1) lds={LDS_BYTES}")
        out.append(f"; @launch kernel=reduce_kernel grid=(768,1,1) block=(256,1,1) lds=0")
    out.append('.amdgcn_target "amdgcn-amd-amdhsa--gfx950"')
    out.append(".text")
    out.append(f".globl {NAME}_kernel")
    out.append(".p2align 8")
    out.append(f".type {NAME}_kernel,@function")
    out.append(em.text())
    out.append('.section .rodata,"a"')
    for (k, nv, ao) in ((f"{NAME}_kernel", 512, 256), ("reduce_kernel", 64, 64))[:1 if P.FUSE else 2]:
        out.append(".p2align 6")
        out.append(f".amdhsa_kernel {k}")
        out.append(f"  .amdhsa_next_free_vgpr {nv}")
        out.append("  .amdhsa_next_free_sgpr 102")
        out.append(f"  .amdhsa_accum_offset {ao}")
        out.append("  .amdhsa_group_segment_fixed_size 0")
        out.append("  .amdhsa_kernarg_size 104")
        out.append("  .amdhsa_user_sgpr_count 2")
        out.append("  .amdhsa_user_sgpr_kernarg_segment_ptr 1")
        out.append("  .amdhsa_system_sgpr_workgroup_id_x 1")
        out.append(".end_amdhsa_kernel")
    return "\n".join(out) + "\n"

if __name__ == "__main__":
    dst = sys.argv[1] if len(sys.argv) > 1 else f"cdna_kernels/{NAME}.s"
    for a in sys.argv[2:]:
        k, v = a.split("=")
        cur = getattr(P, k)
        setattr(P, k, type(cur)(v) if not isinstance(cur, str) else (" " + v.replace("+", " ") if v else ""))
    open(dst, "w").write(build())
```

```python
import sys, struct
from em import *
from sched import *

NAME = "concat_heads__gqa_block_cached__gqa_block_cached__near_ridge"
SL = 16640
K0, V0, WO0, WQ0, QB = 0, 2*SL, 4*SL, 6*SL, 8*SL
LDS_BYTES = 163840
M0_NULL = 0x30000
WLOC = [3*SL, 4*SL, QB, 3*SL, 4*SL, 2*SL, 5*SL, QB]
C_SCALE = 1.4426950408889634 / (128 ** 0.5)
def f32bits(x): return struct.unpack("<I", struct.pack("<f", x))[0]

sK, sV, sWQ, sWO, sX, sWS = 8, 12, 16, 20, 24, 28
sWAVE, sC, sTHR, sCNT = 32, 33, 34, 35
sM0W, sM0K, sM0V, sM0N = 36, 37, 38, 39
sT, sKOFF, sVOFF, sWOOFF, sWQCOL, sTMP = 40, 41, 42, 43, 44, 45
sPF, sWOCUR = 75, 76
sXR, sKVT = 77, 101
sC2 = 58
sROT, sSW, sWQLIN = 72, 73, 74
def srd(b): return f"s[{b}:{b+3}]"

aK, aV, aWO, aQB, vKV = 1, 2, 3, 4, 5
LA_, LB_, vLIN, DELTA = 7, 8, 9, 10
ALPHA = 11
T0, T1, T2, T3 = 11, 12, 13, 14
AUX = 15
STG = 16; NS = 8
OACC, QR, OP = 48, 112, 144
SR = [176, 208]
NEGM = 240
w_vlin, w_vwq, w_aWQ, w_aQB, w_aX = 2, 3, 4, 1, 7
W_STG = 16; W_NS = 4
W_ACC = 32
def XF3(mt, ks):
    if mt < 2: return AG(mt * 128 + ks * 4, 4)
    return V(128 + ks * 4, 4)
def XFA(ks):
    return V(48 + ks * 4, 4) if ks < 16 else V(144 + (ks - 16) * 4, 4)

class P:
    LA = 5
    BUDGET = 6.0
    W_LA = 6
    W_BUDGET = 6.0
    W_SPLIT = 30
    KVPOL = " nt"
    WPOL = ""
    WOPOL = "same"
    W0POL = "same"
    XPOL = " nt"
    STPOL = " nt"
    RDPOL = " nt"
    THR = 8.0
    STAMP = 0
    CYC = 0
    PAIR = 1
    NODMA = 0
    MAP = 0
    KVLIN = 0
    WQLIN = 0
    TXOR = 0
    WOQ = 0
    PKMUL = 0
    W3FIRST = 1
    FUSE = 1
    SPIN = 200000
    PSLEEP = 4
    OUTPOL = ""
    CPF = 1
    WOPF = 0
    PFT = 0
    ROT = 1
    W4_1 = 10
    W4_2 = 30
    W_SPLITZ = 14
    DMAFIRST = 0
    DEVERY = 3
    PLAN = 0
    W_PRE = 8
    HOIST = 3
    VMA = 8
    DBG = 0

def wopol(): return P.WPOL if P.WOPOL == "same" else P.WOPOL
gate_ctr = [1000]
def newgate():
    gate_ctr[0] += 1
    return gate_ctr[0]

STV = 6
def stamp_txt():
    if not P.STAMP: return []
    return [("s_memtime s[96:97]" if P.CYC else "s_memrealtime s[96:97]"), "s_min_u32 m0, s98, 63", "s_waitcnt lgkmcnt(0)",
            f"v_writelane_b32 v{STV}, s96, m0", "s_add_u32 s98, s98, 1"]
def stamp(em):
    if P.STAMP:
        em.wait_ds(0)
        for t in stamp_txt(): em.raw(t)
def stamp_store(em):
    if not P.STAMP: return
    R = em.raw
    R("s_lshl_b32 s3, s2, 2")
    R(f"s_add_u32 s3, s3, s{sWAVE}")
    R("s_lshl_b32 s3, s3, 8")
    R("s_add_u32 s92, s70, 0x2000000")
    R("s_addc_u32 s93, s71, 0")
    R("s_and_b32 s93, s93, 0xffff")
    R("s_mov_b32 s94, 0x40000")
    R("s_mov_b32 s95, 0x20000")
    R("v_lshlrev_b32 v0, 2, v0")
    R(f"buffer_store_dword v{STV}, v0, s[92:95], s3 offen")
def bar(gate, pre=(), rd=(), drain=False, st=0):
    s1 = stamp_txt() if (st and P.STAMP >= st) else []
    s2 = stamp_txt() if (st and P.STAMP >= 2) else []
    return MItem('bar', texts=s2 + list(pre) + ["s_barrier"] + s1, rd=rd, wr=[gate], drain=drain or bool(s1))

def v3(op, d, a, b, c):
    return valu(f"{op} v{d}, v{a}, v{b}, v{c}", [a, b, c], [d])
def salu(text, rd=(), wr=()):
    return Op('salu', text, rd=rd, wr=wr, cost=text.count("\n") + 1)

def interleave(main, extra, start=0, every=3):
    out = []; e = list(extra)
    for i, o in enumerate(main):
        out.append(o)
        if e and i >= start and (i - start) % every == every - 1:
            out.append(e.pop(0))
    return out + e

def maxtree_ops(S):
    ops = []
    T = [T0, T1, T2, T3]
    for k in range(4): ops.append(v3("v_max3_f32", T[k], S+8*k, S+8*k+1, S+8*k+2))
    for k in range(4): ops.append(v3("v_max3_f32", T[k], T[k], S+8*k+3, S+8*k+4))
    for k in range(4): ops.append(v3("v_max3_f32", T[k], T[k], S+8*k+5, S+8*k+6))
    ops.append(v3("v_max3_f32", T0, T0, S+7, T1))
    ops.append(v3("v_max3_f32", T2, T2, S+23, T3))
    ops.append(v3("v_max3_f32", T0, T0, S+15, S+31))
    ops.append(valu(f"v_max_f32 v{T0}, v{T0}, v{T2}", [T0, T2], [T0]))
    ops.append(valu(f"v_mov_b32 v{T1}, v{T0}", [T0], [T1]))
    ops.append(valu(f"v_permlane32_swap_b32 v{T0}, v{T1}", [T0, T1], [T0, T1], kind='perm'))
    ops.append(valu(f"v_max_f32 v{DELTA}, v{T0}, v{T1}", [T0, T1], [DELTA]))
    return ops

def first_tile_ops(S):
    ops = []
    for i in range(16):
        ops.append(valu(f"v_sub_f32 v{NEGM+i}, 0, v{DELTA}", [DELTA], [NEGM+i]))
    for i in range(32):
        ops.append(valu(f"v_sub_f32 v{S+i}, v{S+i}, v{DELTA}", [S+i, DELTA], [S+i]))
    return ops

rare_blocks = []
def check_op(S, tag):
    regs = V(S, 32) + V(NEGM, 16) + V(OACC, 64) + [LA_, LB_, DELTA, ALPHA]
    rare_blocks.append((S, tag))
    t = f"v_cmp_lt_f32 vcc, s{sTHR}, v{DELTA}\n    s_cbranch_vccnz L_rare_{tag}\nL_back_{tag}:"
    op = Op('raw', t, rd=regs, wr=regs, cost=2)
    op.noraw = True
    return op
def emit_rare(em):
    R = em.raw
    for (S, tag) in rare_blocks:
        em.label(f"L_rare_{tag}")
        R("s_nop 15")
        R(f"v_max_f32 v{DELTA}, 0, v{DELTA}")
        R(f"v_sub_f32 v{ALPHA}, 0, v{DELTA}")
        R(f"v_exp_f32 v{ALPHA}, v{ALPHA}")
        for i in range(32): R(f"v_sub_f32 v{S+i}, v{S+i}, v{DELTA}")
        for i in range(16): R(f"v_sub_f32 v{NEGM+i}, v{NEGM+i}, v{DELTA}")
        for i in range(64): R(f"v_mul_f32 v{OACC+i}, v{ALPHA}, v{OACC+i}")
        R(f"v_mul_f32 v{LA_}, v{ALPHA}, v{LA_}")
        R(f"v_mul_f32 v{LB_}, v{ALPHA}, v{LB_}")
        R("s_nop 3")
        R(f"s_branch L_back_{tag}")

def exp_ops(S, first):
    def ex(i): return valu(f"v_exp_f32 v{S+i}, v{S+i}", [S+i], [S+i], kind='trans')
    def add(i):
        l = LA_ if i % 2 == 0 else LB_
        if i < 2 and first: return valu(f"v_mov_b32 v{l}, v{S+i}", [S+i], [l])
        return valu(f"v_add_f32 v{l}, v{l}, v{S+i}", [l, S+i], [l])
    def cvt(k): return valu(f"v_cvt_pk_bf16_f32 v{S+k}, v{S+2*k}, v{S+2*k+1}", [S+2*k, S+2*k+1], [S+k])
    out = []
    for k in range(17):
        if k < 16: out.append(ex(2*k))
        if k > 0: out.append(add(2*k-2))
        if k < 16: out.append(ex(2*k+1))
        if k > 0:
            out.append(add(2*k-1)); out.append(cvt(k-1))
    return out

def finalize_ops():
    ops = []
    ops.append(valu(f"v_add_f32 v{T2}, v{LA_}, v{LB_}", [LA_, LB_], [T2]))
    ops.append(valu(f"v_mov_b32 v{T3}, v{T2}", [T2], [T3]))
    ops.append(valu(f"v_permlane32_swap_b32 v{T2}, v{T3}", [T2, T3], [T2, T3], kind='perm'))
    ops.append(valu(f"v_add_f32 v{T2}, v{T2}, v{T3}", [T2, T3], [T2]))
    ops.append(valu(f"v_rcp_f32 v{AUX}, v{T2}", [T2], [AUX], kind='trans'))
    for k in range(33):
        if k < 32:
            a, b = OACC + 2*k, OACC + 2*k + 1
            ops.append(valu(f"v_mul_f32 v{a}, v{AUX}, v{a}", [AUX, a], [a]))
            ops.append(valu(f"v_mul_f32 v{b}, v{AUX}, v{b}", [AUX, b], [b]))
        if k > 0:
            kk = k - 1
            ops.append(valu(f"v_cvt_pk_bf16_f32 v{OP+kk}, v{OACC+2*kk}, v{OACC+2*kk+1}", [OACC+2*kk, OACC+2*kk+1], [OP+kk]))
    return ops

def qk_items(frags, Sdst, kslot, gate, negm):
    it = []
    for sub in range(2):
        for ks in range(8):
            frags.append(Frag([('b128', aK, K0 + kslot*SL + sub*512 + ks*32, 0)], gate))
            it.append(MItem('mfma', D=V(Sdst + 16*sub, 16), B=V(QR + 4*ks, 4), acc=(ks != 0), frag=len(frags)-1,
                            C=(V(NEGM, 16) if (ks == 0 and negm) else None)))
    return it
def opj_item(frags, ks, nt, woff, gate, addr):
    frags.append(Frag([('tr', addr, woff + t*2080 + nt*64, 2*t) for t in range(2)], gate))
    return MItem('mfma', D=AG(16*nt, 16), B=V(OP + 4*ks, 4), acc=True, frag=len(frags)-1)
def opj_items(frags, ks, woff, gate, addr=aWO):
    return [opj_item(frags, ks, nt, woff, gate, addr) for nt in range(16)]
def pv_items(frags, S, vslot, gate, first):
    it = []
    for s in range(4):
        for dt in range(4):
            frags.append(Frag([('tr', aV, vslot*SL + t*2080 + s*256 + dt*64, 2*t) for t in range(2)], gate))
            it.append(MItem('mfma', D=V(OACC + 16*dt, 16), B=V(S + 4*s, 4), acc=not (first and s == 0), frag=len(frags)-1))
    return it

def dma_pair(m0txt, voff, srdb, soff, off, pol, rd=(), wr=()):
    a = Op('m0', m0txt, rd=rd)
    b = Op('dma', f"buffer_load_dwordx4 v{voff}, {srd(srdb)}, {soff} offen" + (f" offset:{off}" if off else "") + f"{pol} lds", wr=wr)
    return [a, b]

def kvq_ops(slotbase, srdb, offreg, m0reg, lim, gate, done):
    if P.NODMA in (1, 3): lim = -100
    ops = [salu(f"s_cmp_le_i32 s{sT}, {lim}\n    s_cselect_b32 s{srdb+2}, 0x80000, 0\n    s_cselect_b32 s{m0reg}, s{sM0W}, s{sM0N}" + (f"\n    s_xor_b32 s{sKVT}, s{offreg}, s{sXR}" if P.TXOR else ""), rd=[gate])]
    for i in range(4):
        ops += dma_pair(f"s_add_u32 m0, s{m0reg}, {slotbase + 16*i}", vKV, srdb, f"s{sKVT if P.TXOR else offreg}", 1024*i, P.KVPOL)
    ops.append(salu(f"s_add_u32 s{offreg}, s{offreg}, 16384\n    s_and_b32 s{offreg}, s{offreg}, 0x7ffff", wr=[done]))
    return ops

def woq_ops(slotbase, lin):
    lim = 100 if P.NODMA in (1, 2) else 6
    ops = [salu(f"s_cmp_ge_i32 s{sT}, {lim}\n    s_cselect_b32 s{sWO+2}, 0x80000, 0")]
    for i in range(4):
        pr = dma_pair(f"s_add_u32 m0, s{sM0W}, {slotbase + 1040*i}", lin, sWO, f"s{sTMP}", 0, wopol())
        pr.insert(1, salu(f"s_add_u32 s{sTMP}, s{sWOOFF}, {4096*i}"))
        ops += pr
    ops.append(salu(f"s_add_u32 s{sWOOFF}, s{sWOOFF}, 16384\n    s_and_b32 s{sWOOFF}, s{sWOOFF}, 0x7ffff"))
    return ops

def insert_hoisted(seq, b, H):
    if H == 0:
        seq.append(b); return
    n = 0; i = len(seq)
    while n < H:
        i -= 1
        if isinstance(seq[i], MItem):
            assert seq[i].kind == 'mfma'
            n += 1
    b.hoist = H
    seq.insert(i, b)

def attention_head(em):
    seq = []; frags = []
    dA_prev = None
    Z3 = P.PLAN in (2, 4, 5)
    QZ = P.PLAN in (4, 5)
    KVA = P.PLAN == 4
    for j in range(8):
        p = j % 2
        gA = newgate(); gB = newgate(); dB = newgate(); dA = newgate(); gZ = newgate()
        WOQ = P.WOQ and P.PLAN == 0
        VW = "s_waitcnt vmcnt(12)" if WOQ else "s_waitcnt vmcnt(8)"
        b = bar(gB, pre=[VW], rd=[dA_prev] if dA_prev else [], st=2)
        insert_hoisted(seq, b, P.HOIST if j > 0 else 0)
        if not KVA:
            kq = kvq_ops(K0 + p*SL, sK, sKOFF, sM0K, 28, gB, newgate())
            if WOQ: kq += woq_ops(WO0 + (1-p)*SL, vLIN)
            kq.append(salu(f"s_add_u32 s{sT}, s{sT}, 1", wr=[dB]))
        else:
            kq = [salu(f"s_add_u32 s{sT}, s{sT}, 1", rd=[gB], wr=[dB])]
        mt = maxtree_ops(SR[p])
        if j == 0: mt += first_tile_ops(SR[p])
        seq += interleave(mt, kq, every=1 if WOQ else 2)
        seq += pv_items(frags, SR[1-p], 1-p, gB, j == 1)
        insert_hoisted(seq, bar(gA, pre=[] if Z3 else [VW], rd=[dB], st=1), P.HOIST)
        vq = kvq_ops(V0 + (1-p)*SL, sV, sVOFF, sM0V, 30, gA, dA)
        if KVA:
            vq = kvq_ops(K0 + p*SL, sK, sKOFF, sM0K, 29, gA, newgate()) + vq
        pre = finalize_ops() if j == 0 else [check_op(SR[p], f"{j}")]
        qrd = []
        if j == 7:
            for ks in range(8):
                op = dsr128(V(QR + 4*ks, 4), aQB, ks*1024)
                op.rd.append(gZ if QZ else gA)
                qrd.append(op)
            if not QZ:
                pre += qrd; qrd = []
        if P.DMAFIRST:
            seq += interleave(vq, pre, every=2) if j == 0 else (vq + pre)
            ex = exp_ops(SR[p], j == 0)
        else:
            seq += pre
            ex = interleave(exp_ops(SR[p], j == 0), vq, every=P.DEVERY)
        if Z3:
            ms = opj_items(frags, j, p*SL, gA)
            insert_hoisted(ms, bar(gZ, pre=["s_waitcnt vmcnt(12)"], rd=[dA]), P.HOIST + (2 if qrd else 0))
            h = len(ex) if not qrd else max(len(ex) * 2 // 5, 1 + max(k for k, o in enumerate(ex) if dA in o.wr) if not P.DMAFIRST else 0)
            seq += ex[:h] + ms + qrd + ex[h:]
            seq += qk_items(frags, SR[1-p], 1-p, gZ, j != 7)
        else:
            if j == 0:
                ms = qk_items(frags, SR[1-p], 1-p, gA, True) + opj_items(frags, j, p*SL, gA)
            else:
                ms = opj_items(frags, j, p*SL, gA) + qk_items(frags, SR[1-p], 1-p, gA, j != 7)
            seq += ex + ms
        dA_prev = dA
    schedule(em, seq, frags, STG, NS, P.LA, budget=P.BUDGET, pair=P.PAIR)

def perm16(j): return 4*(j % 4) + j // 4

def dma_kv_full(slotbase, srdb, soff):
    ops = []
    for j in range(16):
        ops += dma_pair(f"s_mov_b32 m0, {slotbase + 1040*j - perm16(j)*256}", vKV, srdb, soff, perm16(j)*256, P.KVPOL)
    return ops
def dma_wo(slotbase, soffreg):
    ops = []
    for jj in range(4):
        for jh in range(4):
            j = jh*4 + jj
            pr = dma_pair(f"s_mov_b32 m0, {slotbase + 1040*j - jh*1024}", w_vlin, sWO, f"s{sTMP}", jh*1024, wopol())
            if jh == 0: pr.insert(1, salu(f"s_add_u32 s{sTMP}, s{soffreg}, {jj*4096}"))
            ops += pr
    return ops
def dma_wq(slotbase, colreg, const):
    ops = []
    for j in range(16):
        pr = dma_pair(f"s_mov_b32 m0, {slotbase + 1040*j}", w_vwq, sWQ, f"s{sTMP+1}", 0, P.WPOL)
        if P.WQLIN: pr.insert(1, salu(f"s_lshl_b32 s{sTMP+1}, s{colreg}, 10\n    s_add_u32 s{sTMP+1}, s{sTMP+1}, {const + perm16(j)*8192}\n    s_and_b32 s{sTMP+1}, s{sTMP+1}, 0x3fe000"))
        else: pr.insert(1, salu(f"s_add_u32 s{sTMP+1}, s{colreg}, {const + perm16(j)*8192}"))
        ops += pr
    return ops

loop_ctr = [0]
def tile_loop(kind, lds, soff_txt, srdb=None, voff=None, pol=""):
    loop_ctr[0] += 1
    L = f"L_tl{loop_ctr[0]}"
    A, B, C = 99, sTMP, 100
    t = [soff_txt, f"s_mov_b32 s{A}, {lds}", f"s_mov_b32 s{C}, 4", f"{L}:"]
    for i in range(4):
        if kind == 'wo':
            t += [f"s_add_u32 m0, s{A}, {3136*i}", "s_nop 0", f"buffer_load_dwordx4 v{w_vlin}, {srd(sWO)}, s{B} offen offset:{1024*i}{wopol()} lds"]
        elif kind == 'kv':
            t += [f"s_add_u32 m0, s{A}, {16*i}", "s_nop 0", f"buffer_load_dwordx4 v{vKV}, {srd(srdb)}, s{B} offen offset:{1024*i}{P.KVPOL} lds"]
        elif kind == 'x':
            t += [f"s_add_u32 m0, s{A}, {16*i}", "s_nop 0", f"buffer_load_dwordx4 v9, {srd(sX)}, s{B} offen offset:{1024*i}{P.XPOL} lds"]
        elif kind == 'wq':
            t += [f"s_add_u32 m0, s{A}, {1040*i}", f"s_add_u32 s{sTMP+1}, s{B}, {32768*i}", f"buffer_load_dwordx4 v{w_vwq}, {srd(sWQ)}, s{sTMP+1} offen{P.WPOL if P.W0POL == 'same' else P.W0POL} lds"]
    da, db = {'wo': (1040, 4096), 'kv': (4160, 4096 if P.KVLIN else 256), 'x': (4160, 4096), 'wq': (4160, 8192)}[kind]
    t += [f"s_add_u32 s{A}, s{A}, {da}", f"s_add_u32 s{B}, s{B}, {db}", f"s_sub_u32 s{C}, s{C}, 1", f"s_cmp_lg_u32 s{C}, 0", f"s_cbranch_scc1 {L}"]
    txt = "\n".join((x if x.endswith(":") else "    " + x) for x in t).lstrip()
    op = Op('raw', txt); op.ndma = 16
    return [op]

def qproj_items(frags, addr, base, gate, kq, acc_regs, xfrag, nmt):
    it = []
    for dt2 in range(2):
        for ks in range(8):
            frags.append(Frag([('tr', addr, base + t*1040 + ks*128 + dt2*64, 2*t) for t in range(2)], gate))
            for mt in range(nmt):
                it.append(MItem('mfma', D=acc_regs(dt2, mt), B=xfrag(mt, kq*8 + ks), acc=not (kq == 0 and ks == 0), frag=len(frags)-1))
    return it

def scale_cvt(a, dst):
    ops = []
    for k in range(9):
        if k < 8:
            if P.PKMUL:
                ops.append(valu(f"v_pk_mul_f32 v[{a+2*k}:{a+2*k+1}], v[{a+2*k}:{a+2*k+1}], s[{sC2}:{sC2+1}]", [a+2*k, a+2*k+1], [a+2*k, a+2*k+1]))
            else:
                ops.append(valu(f"v_mul_f32 v{a+2*k}, s{sC}, v{a+2*k}", [a+2*k], [a+2*k]))
                ops.append(valu(f"v_mul_f32 v{a+2*k+1}, s{sC}, v{a+2*k+1}", [a+2*k+1], [a+2*k+1]))
        if k > 0:
            kk = k - 1
            ops.append(valu(f"v_cvt_pk_bf16_f32 v{dst+kk}, v{a+2*kk}, v{a+2*kk+1}", [a+2*kk, a+2*kk+1], [dst+kk]))
    return ops

nonce_ctr = [0]
def nonce_op():
    nonce_ctr[0] += 1
    L = f"L_nn{nonce_ctr[0]}"
    t = (f"s_cmp_lg_u32 s{sT}, s94\n    s_cbranch_scc1 {L}\n    s_mov_b64 exec, 1\n"
         f"    buffer_atomic_cmpswap v[12:13], v14, s[84:87], 0 offen sc0 sc1\n    s_mov_b64 exec, -1\n{L}:")
    return [salu(t)] if P.FUSE else []

def wo_sel():
    lim = 100 if P.NODMA in (1, 2) else 6
    t = f"s_cmp_ge_i32 s{sT}, {lim}\n    s_cselect_b32 s{sWO+2}, 0x80000, 0\n    s_cselect_b32 s{sWOCUR}, s{sWOOFF}, s{sPF}"
    ops = nonce_op() + [salu(t)]
    if P.WOPF and not P.NODMA:
        ops.append(salu(f"s_sub_u32 s{sTMP}, s{sT}, {P.PFT-1}\n    s_cmp_lt_u32 s{sTMP}, 2\n    s_cselect_b32 s{sWO+2}, 0x80000, s{sWO+2}\n    s_cselect_b32 s{sTMP}, 16384, 0\n    s_add_u32 s{sPF}, s{sPF}, s{sTMP}"))
    return ops

def w3_acc(dt2, mt): return V(W_ACC + (dt2*3 + mt)*16, 16)
def w3_cv(dt2):
    ops = []
    for mt in range(3):
        a = w3_acc(dt2, mt)[0]
        ops += scale_cvt(a, a)
        for s2 in range(2):
            ops.append(dsw128(w_aQB, V(a + 4*s2, 4), mt*8192 + (dt2*2 + s2)*1024))
    return ops

def wave3_body(em):
    seq = []; frags = []
    lastB = None
    for kq in (1, 2, 3, 0):
        par = kq % 2
        gA = newgate(); gB = newgate(); dA = newgate(); dB = newgate(); gW = newgate(); dW = newgate()
        rdA = [lastB] if lastB else []
        wq = [salu(f"s_cmp_le_i32 s{sT}, {-100 if P.NODMA in (1, 2) else 20}\n    s_cselect_b32 s{sWQ+2}, s{sTMP+2}, 0")]
        if kq == 3:
            wq.append(salu(f"s_add_u32 s{sWQLIN}, s{sWQLIN}, 128\n    s_and_b32 s{sWQLIN}, s{sWQLIN}, 1023\n    s_xor_b32 s{sWQCOL}, s{sWQLIN}, s{sSW}"))
        wq += dma_wq(WQ0 + (1-par)*SL, sWQCOL, ((kq+1) % 4) * 128 * 8192)
        wo = wo_sel() + dma_wo(WO0 + par*SL, sWOCUR)
        wo.append(salu(f"s_add_u32 s{sWOOFF}, s{sWOOFF}, 16384\n    s_and_b32 s{sWOOFF}, s{sWOOFF}, 0x7ffff\n    s_add_u32 s{sT}, s{sT}, 1", wr=[dB]))
        vq = kvq_ops(V0 + (1-par)*SL, sV, sVOFF, sM0V, 30, gA, dA)
        if P.PLAN == 0:
            A = wq + vq; A[0].rd.append(gA)
            if P.WOQ:
                wo = nonce_op() + woq_ops(WO0 + par*SL, w_vlin) + [salu(f"s_add_u32 s{sT}, s{sT}, 1", wr=[dB])]
            B = kvq_ops(K0 + (1-par)*SL, sK, sKOFF, sM0K, 28, gB, newgate()) + wo
            wA, wB, nA = (28, 28, P.W_PRE) if P.WOQ else (40, 40, P.W_PRE)
            wW = (12 if P.WOQ else 24) + nA
        elif P.PLAN == 2:
            gZ = newgate(); dZ = newgate()
            A = wq + vq; A[0].rd.append(gA)
            Z = wo[:-1] + [salu(f"s_add_u32 s{sWOOFF}, s{sWOOFF}, 16384\n    s_and_b32 s{sWOOFF}, s{sWOOFF}, 0x7ffff", wr=[dZ])]; Z[0].rd.append(gZ)
            B = kvq_ops(K0 + (1-par)*SL, sK, sKOFF, sM0K, 28, gB, newgate()) + [salu(f"s_add_u32 s{sT}, s{sT}, 1", wr=[dB])]
            wA, wZ, wB, nA = 44, 60, 56, P.W_PRE
            wW = 24 + nA
        else:
            A = kvq_ops(K0 + par*SL, sK, sKOFF, sM0K, 29, gA, newgate()) + vq
            B = wq + wo; B[0].rd.append(gB)
            wA, wB, nA = 36, 40, 8
            wW = 24
            if P.PLAN == 3:
                gZ = newgate(); dZ = dA; Z = []
                wA, wZ = 40, 44
        seq.append(bar(gA, pre=stamp_txt() + [f"s_waitcnt vmcnt({wA})"], rd=rdA, drain=bool(P.STAMP)))
        items = qproj_items(frags, w_aWQ, par*SL, gW, kq, w3_acc, XF3, 3)
        cut = 0; cnt = 0
        while cnt < nA:
            if A[cut].kind == 'dma': cnt += 1
            cut += 1
        A1 = A[:cut] + [salu("s_nop 0", wr=[dW])]; A2 = A[cut:]
        if kq == 0:
            c = w3_cv(1) + [valu(f"v_xor_b32 v{w_aQB}, 0x1000, v{w_aQB}", [w_aQB], [w_aQB])]
            A2 = interleave(c, A2, every=1)
        seq += A1
        seq.append(MItem('bar', texts=[f"s_waitcnt vmcnt({wW})"], rd=[dW], wr=[gW]))
        seq += A2
        if P.PLAN in (2, 3):
            seq += items[:P.W_SPLITZ]
            seq.append(bar(gZ, pre=[f"s_waitcnt vmcnt({wZ})"], rd=[dA]))
            seq += Z
            seq += items[P.W_SPLITZ:P.W_SPLIT]
            seq.append(bar(gB, pre=[f"s_waitcnt vmcnt({wB})"], rd=[dZ]))
        else:
            seq += items[:P.W_SPLIT]
            seq.append(bar(gB, pre=[f"s_waitcnt vmcnt({wB})"], rd=[dA]))
        if kq == 3:
            B = interleave(B, w3_cv(0), every=1)
        seq += B
        seq += items[P.W_SPLIT:]
        lastB = dB
    schedule(em, seq, frags, W_STG, W_NS, P.W_LA, budget=P.W_BUDGET, pair=False)

def wave3_body4(em):
    seq = []; frags = []
    lastA = None
    for kq in (1, 2, 3, 0):
        par = kq % 2
        gA = newgate(); gB = newgate(); gZ = newgate(); dA = newgate(); dB = newgate(); gW = newgate(); dW = newgate()
        wq = [salu(f"s_cmp_le_i32 s{sT}, {-100 if P.NODMA in (1, 2) else 20}\n    s_cselect_b32 s{sWQ+2}, s{sTMP+2}, 0", rd=[gB])]
        if kq == 3:
            wq.append(salu(f"s_add_u32 s{sWQLIN}, s{sWQLIN}, 128\n    s_and_b32 s{sWQLIN}, s{sWQLIN}, 1023\n    s_xor_b32 s{sWQCOL}, s{sWQLIN}, s{sSW}"))
        wq += dma_wq(WQ0 + (1-par)*SL, sWQCOL, ((kq+1) % 4) * 128 * 8192)
        wo = wo_sel() + dma_wo(WO0 + par*SL, sWOCUR)
        wo.append(salu(f"s_add_u32 s{sWOOFF}, s{sWOOFF}, 16384\n    s_and_b32 s{sWOOFF}, s{sWOOFF}, 0x7ffff\n    s_add_u32 s{sT}, s{sT}, 1", wr=[dB]))
        B = wq + wo
        A = kvq_ops(K0 + (1-par)*SL, sK, sKOFF, sM0K, 29, gA, newgate()) + kvq_ops(V0 + par*SL, sV, sVOFF, sM0V, 30, gA, dA)
        items = qproj_items(frags, w_aWQ, par*SL, gW, kq, w3_acc, XF3, 3)
        seq.append(bar(gB, pre=["s_waitcnt vmcnt(40)"], rd=[lastA] if lastA else []))
        seq.append(MItem('bar', texts=["s_waitcnt vmcnt(24)"], wr=[gW]))
        seq += B
        seq += items[:P.W4_1]
        seq.append(bar(gA, pre=stamp_txt() + ["s_waitcnt vmcnt(40)"], rd=[dB], drain=bool(P.STAMP)))
        if kq == 0:
            c = w3_cv(1) + [valu(f"v_xor_b32 v{w_aQB}, 0x1000, v{w_aQB}", [w_aQB], [w_aQB], ), salu("s_nop 0", wr=[dW])]
            A = A + c
        seq += A
        seq += items[P.W4_1:P.W4_2]
        seq.append(bar(gZ, pre=["s_waitcnt vmcnt(44)"], rd=[dA] + ([dW] if kq == 0 else []), drain=(kq == 0)))
        if kq == 3:
            seq += w3_cv(0)
        seq += items[P.W4_2:]
        lastA = dA
    schedule(em, seq, frags, W_STG, W_NS, P.W_LA, budget=P.W_BUDGET, pair=False)

def wave3_body5(em):
    seq = []; frags = []
    lastB = None
    for kq in range(4):
        par = kq % 2
        gA = newgate(); gB = newgate(); gZ = newgate(); dA = newgate(); dB = newgate(); dZ = newgate(); gW = newgate(); dW = newgate(); dC = newgate()
        wq = [salu(f"s_cmp_le_i32 s{sT}, {-100 if P.NODMA in (1, 2) else 21}\n    s_cselect_b32 s{sWQ+2}, s{sTMP+2}, 0", rd=[gA])]
        if kq == 3:
            wq.append(salu(f"s_add_u32 s{sWQLIN}, s{sWQLIN}, 128\n    s_and_b32 s{sWQLIN}, s{sWQLIN}, 1023\n    s_xor_b32 s{sWQCOL}, s{sWQLIN}, s{sSW}"))
        wq += dma_wq(WQ0 + (1-par)*SL, sWQCOL, ((kq+1) % 4) * 128 * 8192)
        A = wq + kvq_ops(V0 + par*SL, sV, sVOFF, sM0V, 30, gA, dA)
        Z = wo_sel() + dma_wo(WO0 + (1-par)*SL, sWOCUR) + [salu(f"s_add_u32 s{sWOOFF}, s{sWOOFF}, 16384\n    s_and_b32 s{sWOOFF}, s{sWOOFF}, 0x7ffff", wr=[dZ])]
        Z[0].rd.append(gZ)
        B = kvq_ops(K0 + par*SL, sK, sKOFF, sM0K, 28, gB, newgate()) + [salu(f"s_add_u32 s{sT}, s{sT}, 1", wr=[dB])]
        nA = P.W_PRE
        seq.append(bar(gA, pre=stamp_txt() + ["s_waitcnt vmcnt(44)"], rd=[lastB] if lastB else [], drain=bool(P.STAMP)))
        items = qproj_items(frags, w_aWQ, par*SL, gW, kq, w3_acc, XF3, 3)
        cut = 0; cnt = 0
        while cnt < nA:
            if A[cut].kind == 'dma': cnt += 1
            cut += 1
        A1 = A[:cut] + [salu("s_nop 0", wr=[dW])]; A2 = A[cut:]
        if kq == 0:
            c = w3_cv(1) + [valu(f"v_xor_b32 v{w_aQB}, 0x1000, v{w_aQB}", [w_aQB], [w_aQB]), salu("s_nop 0", wr=[dC])]
            A2 = interleave(c, A2, every=1)
        seq += A1
        seq.append(MItem('bar', texts=[f"s_waitcnt vmcnt({24 + nA})"], rd=[dW], wr=[gW]))
        seq += A2
        seq += items[:P.W_SPLITZ]
        seq.append(bar(gZ, pre=["s_waitcnt vmcnt(60)"], rd=[dA] + ([dC] if kq == 0 else []), drain=(kq == 0)))
        seq += Z
        seq += items[P.W_SPLITZ:P.W_SPLIT]
        seq.append(bar(gB, pre=["s_waitcnt vmcnt(56)"], rd=[dZ]))
        if kq == 3:
            B = interleave(w3_cv(0), B, every=2)
        seq += B
        seq += items[P.W_SPLIT:]
        lastB = dB
    schedule(em, seq, frags, W_STG, W_NS, P.W_LA, budget=P.W_BUDGET, pair=False)

class VM:
    def __init__(self, em, init): self.em = em; self.q = list(init)
    def issue(self, tag, ops):
        n = 0
        for o in ops:
            self.em.emit(o)
            if o.kind == 'dma': n += 1
            n += getattr(o, 'ndma', 0)
        self.q.append((tag, n))
    def need(self, *tags):
        last = -1
        for i, (t, n) in enumerate(self.q):
            if t in tags: last = i
        if last >= 0:
            n = sum(c for (_, c) in self.q[last+1:])
            self.em.raw(f"s_waitcnt vmcnt({min(n, 63)})")
            self.q = self.q[last+1:]

def decode(R):
    if P.MAP == 1:
        R("s_and_b32 s3, s2, 7")
        R("s_bfe_u32 s4, s2, 0x40003")
        R("s_lshr_b32 s5, s2, 7")
        return
    R("s_and_b32 s3, s2, 7")
    R("s_lshr_b32 s4, s2, 3")
    R("s_lshr_b32 s5, s3, 2")
    R("s_and_b32 s3, s3, 3")
    R("s_lshl_b32 s3, s3, 1")
    R("s_lshr_b32 s6, s4, 4")
    R("s_add_u32 s3, s3, s6")
    R("s_and_b32 s4, s4, 15")
def member(hg): return hg if P.MAP == 1 else (hg // 2) + 128*(hg % 2)

def gen_main(em):
    R = em.raw
    em.label(f"{NAME}_kernel")
    R("s_cmp_ge_u32 s2, 256")
    R("s_cbranch_scc1 L_end")
    R("s_load_dwordx8 s[48:55], s[0:1], 0")
    R("s_load_dwordx2 s[56:57], s[0:1], 32")
    R("s_load_dwordx8 s[60:67], s[0:1], 40")
    R("s_load_dwordx2 s[68:69], s[0:1], 72")
    R("s_load_dwordx2 s[70:71], s[0:1], 96")
    if P.CPF:
        R("s_getpc_b64 s[78:79]")
        em.label("L_pc")
        R(f"s_sub_u32 s78, s78, L_pc-{NAME}_kernel")
        R("s_subb_u32 s79, s79, 0")
        R("s_lshr_b32 s3, s2, 3")
        R("s_lshl_b32 s3, s3, 11")
        R("v_lshlrev_b32 v28, 7, v0")
        R("v_add_u32 v28, s3, v28")
        R(f"v_min_u32 v28, L_code_end-{NAME}_kernel-4, v28")
        R("v_cmp_gt_u32 vcc, 16, v0")
        R("s_and_saveexec_b64 s[80:81], vcc")
        R("s_cbranch_execz L_nocpf")
        R("global_load_dword v10, v28, s[78:79]")
        em.label("L_nocpf")
        R("s_mov_b64 exec, s[80:81]")
    R("v_lshrrev_b32 v1, 6, v0")
    R("v_and_b32 v0, 63, v0")
    R(f"v_readfirstlane_b32 s{sWAVE}, v1")
    decode(R)
    R(f"s_mov_b32 s{sC}, {f32bits(C_SCALE):#x}")
    R(f"s_mov_b32 s{sC2}, {f32bits(C_SCALE):#x}")
    R(f"s_mov_b32 s{sC2+1}, {f32bits(C_SCALE):#x}")
    R(f"s_mov_b32 s{sTHR}, {f32bits(P.THR):#x}")
    R(f"s_mul_i32 s{sM0W}, s{sWAVE}, 4160")
    R(f"s_mov_b32 s{sM0N}, {M0_NULL:#x}")
    R("s_waitcnt lgkmcnt(0)")
    R("s_cmp_eq_u32 s5, 0")
    for i in range(5):
        R(f"s_cselect_b64 s[{48+2*i}:{49+2*i}], s[{48+2*i}:{49+2*i}], s[{60+2*i}:{61+2*i}]")
    R("s_lshl_b32 s6, s4, 22")
    R("s_lshl_b32 s7, s3, 19")
    R("s_add_u32 s6, s6, s7")
    for (d, p) in ((sK, 50), (sV, 52)):
        R(f"s_add_u32 s{d}, s{p}, s6")
        R(f"s_addc_u32 s{d+1}, s{p+1}, 0")
        R(f"s_and_b32 s{d+1}, s{d+1}, 0xffff")
        R(f"s_mov_b32 s{d+2}, 0x80000")
        R(f"s_mov_b32 s{d+3}, 0x20000")
    R("s_lshl_b32 s6, s3, 10")
    R(f"s_add_u32 s{sWQ}, s54, s6")
    R(f"s_addc_u32 s{sWQ+1}, s55, 0")
    R(f"s_and_b32 s{sWQ+1}, s{sWQ+1}, 0xffff")
    R(f"s_sub_u32 s{sWQ+2}, 0x400000, s6")
    R(f"s_mov_b32 s{sTMP+2}, s{sWQ+2}")
    R(f"s_mov_b32 s{sWQ+3}, 0x20000")
    R(f"s_add_u32 s{sWO}, s56, s7")
    R(f"s_addc_u32 s{sWO+1}, s57, 0")
    R(f"s_and_b32 s{sWO+1}, s{sWO+1}, 0xffff")
    R(f"s_mov_b32 s{sWO+2}, 0x80000")
    R(f"s_mov_b32 s{sWO+3}, 0x20000")
    R("s_mul_i32 s6, s4, 98304")
    R(f"s_add_u32 s{sX}, s48, s6")
    R(f"s_addc_u32 s{sX+1}, s49, 0")
    R(f"s_and_b32 s{sX+1}, s{sX+1}, 0xffff")
    R(f"s_mov_b32 s{sX+2}, 98304")
    R(f"s_mov_b32 s{sX+3}, 0x20000")
    R("s_mul_i32 s6, s2, 98304")
    R(f"s_add_u32 s{sWS}, s70, s6")
    R(f"s_addc_u32 s{sWS+1}, s71, 0")
    R(f"s_and_b32 s{sWS+1}, s{sWS+1}, 0xffff")
    R(f"s_mov_b32 s{sWS+2}, 98304")
    R(f"s_mov_b32 s{sWS+3}, 0x20000")
    R("v_bfe_u32 v20, v0, 2, 2")
    R("v_lshrrev_b32 v21, 5, v0")
    R("v_bfe_u32 v22, v0, 4, 1")
    R("v_and_b32 v23, 1, v0")
    R("v_bfe_u32 v24, v0, 1, 1")
    R("v_lshlrev_b32 v25, 2, v20")
    R("v_lshl_add_u32 v26, v21, 1, v25")
    R("v_mul_u32_u24 v26, 1040, v26")
    R("v_lshl_add_u32 v26, v22, 5, v26")
    R("v_lshl_add_u32 v26, v23, 4, v26")
    R("v_lshl_add_u32 v26, v24, 3, v26")
    R("v_and_b32 v27, 15, v0")
    R("v_mul_u32_u24 v27, 1040, v27")
    R("v_lshl_add_u32 v27, v22, 9, v27")
    R("v_lshl_add_u32 v27, v21, 4, v27")
    R("v_lshrrev_b32 v28, 4, v0")
    R("v_and_b32 v29, 15, v0")
    R("v_lshlrev_b32 v29, 4, v29")
    R(f"v_lshl_add_u32 v{vKV}, v28, 12, v29")
    if P.KVLIN: R(f"v_lshlrev_b32 v{vKV}, 4, v0")
    if P.ROT:
        R(f"s_and_b32 s{sROT}, s4, 3")
        R(f"s_lshl_b32 s{sROT}, s{sROT}, 17")
        R(f"s_bfe_u32 s{sSW}, s4, 0x10002")
        R(f"s_lshl_b32 s{sSW}, s{sSW}, 7")
    else:
        R(f"s_mov_b32 s{sROT}, 0")
        R(f"s_mov_b32 s{sSW}, 0")
    R(f"s_lshl_b32 s{sPF}, s4, 15")
    if P.TXOR:
        R(f"s_lshr_b32 s{sXR}, s4, 2")
        R(f"s_lshl_b32 s6, s3, 2")
        R(f"s_or_b32 s{sXR}, s{sXR}, s6")
        R(f"s_and_b32 s{sXR}, s{sXR}, 7")
        R(f"s_lshl_b32 s{sXR}, s{sXR}, 14")
    else:
        R(f"s_mov_b32 s{sXR}, 0")
    R(f"s_lshl_b32 s{sVOFF}, s{sWAVE}, {12 if P.KVLIN else 8}")
    R(f"s_add_u32 s{sVOFF}, s{sVOFF}, s{sROT}")
    R(f"s_add_u32 s{sKOFF}, s{sVOFF}, {(1 if P.PLAN in (1, 3, 4) else 2)*16384}")
    R(f"s_mov_b32 s{sT}, -1")
    if P.WOQ and P.PLAN == 0:
        R(f"s_lshl_b32 s{sWOOFF}, s{sWAVE}, 10")
        R(f"s_add_u32 s{sWOOFF}, s{sWOOFF}, s{sROT}")
        R(f"s_add_u32 s{sWOOFF}, s{sWOOFF}, {(-7*16384) & 0x7ffff:#x}")
        R(f"s_and_b32 s{sWOOFF}, s{sWOOFF}, 0x7ffff")
    if P.STAMP:
        R("s_mov_b32 s98, 0")
        R(f"v_mov_b32 v{STV}, 0")
    stamp(em)
    R(f"s_cmp_eq_u32 s{sWAVE}, 3")
    R("s_cbranch_scc0 L_att" if P.W3FIRST else "s_cbranch_scc1 L_wave3")
    em.mark_att = len(em.lines)
    em.label("L_att")

    R("v_and_b32 v28, 3, v0")
    R("v_lshl_add_u32 v28, v28, 2, v20")
    R("v_mul_u32_u24 v28, 1040, v28")
    R("v_lshl_add_u32 v28, v22, 8, v28")
    R(f"v_lshl_add_u32 v{aK}, v21, 4, v28")
    R("v_add_u32 v28, v25, v21")
    R("v_mul_u32_u24 v28, 1040, v28")
    R("v_and_b32 v29, 3, v0")
    R("v_lshl_add_u32 v29, v29, 3, v28")
    R("v_lshl_add_u32 v29, v22, 5, v29")
    R(f"v_add_u32 v{aV}, {V0}, v29")
    R("v_lshl_add_u32 v29, v23, 5, v28")
    R("v_lshl_add_u32 v29, v22, 4, v29")
    R("v_lshl_add_u32 v29, v24, 3, v29")
    R(f"v_add_u32 v{aWO}, {WO0}, v29")
    R(f"s_lshl_b32 s3, s{sWAVE}, 13")
    R(f"s_add_u32 s3, s3, {QB}")
    R(f"v_lshlrev_b32 v{aQB}, 4, v0")
    R(f"v_add_u32 v{aQB}, s3, v{aQB}")
    R(f"v_mov_b32 v{AUX}, v26")
    R(f"v_lshlrev_b32 v{vLIN}, 4, v0")
    R(f"s_mul_i32 s3, s{sWAVE}, {SL}")
    R(f"v_add_u32 v{T2}, s3, v27")
    R(f"v_add_u32 v{T3}, {5*SL}, v{T2}")
    for i in range(8): R(f"v_mov_b32 v{16+i}, 0")
    R("s_nop 1")
    for nt in range(16):
        R(f"v_mfma_f32_32x32x16_bf16 a[{16*nt}:{16*nt+15}], v[16:19], v[20:23], 0")
    QA = SR[1]
    seq = []; frags = []
    tmpaddr = [T0, T1]
    for ti in range(8):
        if ti in (0, 2, 3, 6):
            g = newgate()
            xr = []
            if ti in (2, 3):
                for ks in range(16): xr += XFA(ks + 16*(ti-2))
            seq.append(bar(g, st=1, drain=True, rd=xr, pre=(["s_waitcnt vmcnt(0)"] if ti == 6 else [])))
            if ti in (0, 2):
                for ks in range(16):
                    op = dsr128(XFA(ks + 8*ti), T2 if ti == 0 else T3, ks*32)
                    op.rd.append(g)
                    seq.append(op)
        ta = tmpaddr[ti % 2]
        ga = newgate()
        seq.append(valu(f"v_add_u32 v{ta}, {WLOC[ti]}, v{AUX}", [AUX], [ta]))
        seq.append(MItem('bar', texts=[], rd=[ta], wr=[ga]))
        its = qproj_items(frags, ta, 0, ga, ti % 4, lambda dt2, mt: V(QA + 16*dt2, 16), lambda mt, ks: XFA(ks), 1)
        for it in its: it.rd.append(ta)
        seq += its[:8]
        if ti % 4 == 3: seq += scale_cvt(QA, QR + 16*(ti//4))
        seq += its[8:]
        if ti % 4 == 3: seq += scale_cvt(QA + 16, QR + 16*(ti//4) + 8)
    for i in range(64):
        seq.append(valu(f"v_mov_b32 v{OACC+i}, 0", [], [OACC+i]))
    for i in range(16):
        seq.append(valu(f"v_mov_b32 v{SR[1]+i}, 0", [], [SR[1]+i]))
    seq.append(valu(f"v_mov_b32 v{LA_}, 1.0", [], [LA_]))
    seq.append(valu(f"v_mov_b32 v{LB_}, 0", [], [LB_]))
    gA = newgate()
    seq.append(bar(gA, st=1))
    if P.PLAN in (1, 3, 4): seq += kvq_ops(K0+SL, sK, sKOFF, sM0K, 29, gA, newgate())
    dz = newgate()
    seq += kvq_ops(V0, sV, sVOFF, sM0V, 30, gA, dz)
    if P.PLAN in (2, 3, 4, 5): seq.append(bar(newgate(), rd=[dz]))
    seq += qk_items(frags, SR[0], 0, gA, False)
    schedule(em, seq, frags, STG, NS, P.LA, budget=P.BUDGET)
    R(f"s_mov_b32 s{sCNT}, 4")
    em.fence()
    em.label("L_att_loop")
    n0 = em.ninstr; nn0 = em.nops; w0 = em.waits
    attention_head(em)
    print(f"attention head body: {em.ninstr-n0} instrs, {em.nops-nn0} nop states, {em.waits-w0} waits", file=sys.stderr)
    R(f"s_sub_u32 s{sCNT}, s{sCNT}, 1")
    R(f"s_cmp_lg_u32 s{sCNT}, 0")
    em.fence()
    R("s_cbranch_scc1 L_att_loop")
    seq = []; frags = []
    gB = newgate(); g1 = newgate()
    WOQ = P.WOQ and P.PLAN == 0
    seq.append(bar(gB, pre=["s_waitcnt vmcnt(12)" if WOQ else "s_waitcnt vmcnt(0)"], st=2))
    dT = newgate()
    if WOQ:
        w = woq_ops(WO0 + SL, vLIN); w[0].rd.append(gB); w[-1].wr.append(dT)
        seq += w
    seq.append(valu(f"v_subrev_u32 v{T0}, {WO0}, v{aWO}", [aWO], [T0]))
    seq.append(valu(f"v_add_u32 v{DELTA}, {QB-WO0}, v{aWO}", [aWO], [DELTA]))
    seq.append(valu(f"v_lshlrev_b32 v{T1}, 4, v0", [], [T1]))
    seq.append(salu(f"s_lshl_b32 s3, s{sWAVE}, 15"))
    seq += pv_items(frags, SR[1], 1, gB, False)
    insert_hoisted(seq, bar(g1, st=1, rd=[T0, DELTA, dT], pre=(["s_waitcnt vmcnt(0)"] if WOQ else [])), P.HOIST)
    seq += finalize_ops()
    for nt in range(16):
        for ks in range(8):
            if ks < 4: seq.append(opj_item(frags, ks, nt, ks*SL, g1, aWO))
            elif ks < 7: seq.append(opj_item(frags, ks, nt, (ks-4)*SL, g1, T0))
            else: seq.append(opj_item(frags, ks, nt, 0, g1, DELTA))
        b = 176 + (nt % 4) * 16
        for r in range(16):
            seq.append(valu(f"v_accvgpr_read_b32 v{b+r}, a{16*nt+r}", AG(16*nt+r), [b+r]))
        for k in range(8):
            seq.append(valu(f"v_cvt_pk_bf16_f32 v{b+k}, v{b+2*k}, v{b+2*k+1}", [b+2*k, b+2*k+1], [b+k]))
        for q in range(2):
            off = (nt*2 + q) * 1024
            if off % 4096 == 0:
                seq.append(salu(f"s_add_u32 s4, s3, {off}"))
            seq.append(Op('vmem', f"buffer_store_dwordx4 v[{b+4*q}:{b+4*q+3}], v{T1}, {srd(sWS)}, s4 offen offset:{off % 4096}{P.STPOL}", rd=V(b+4*q, 4) + [T1], tag='store'))
    schedule(em, seq, frags, STG, NS, P.LA, budget=P.BUDGET)
    if P.FUSE:
        stamp(em)
        R("s_waitcnt vmcnt(0)")
        stamp(em)
        R("s_barrier")
        R("s_branch L_red")
        emit_rare(em)
        rare_blocks.clear()
    stamp(em)
    if P.STAMP: R("s_waitcnt vmcnt(0)")
    stamp(em)
    stamp_store(em)
    if P.DBG:
        R(f"s_cmp_lg_u32 s{sWAVE}, 0")
        R("s_cbranch_scc1 L_dbgskip")
        R("s_load_dwordx2 s[72:73], s[0:1], 88")
        R(f"v_readlane_b32 s76, v{STV}, 0")
        idx = [1, 5, 6, 14, 22, 30, 38, 40]
        for i, l in enumerate(idx): R(f"v_readlane_b32 s{80+i}, v{STV}, {l}")
        R("s_waitcnt lgkmcnt(0)")
        R("s_and_b32 s73, s73, 0xffff")
        R("s_mov_b32 s74, 256")
        R("s_mov_b32 s75, 0x20000")
        R("v_mov_b32 v1, 0")
        R("v_mov_b32 v2, 0")
        R("s_not_b32 s77, s76")
        R("v_writelane_b32 v2, s77, 8")
        R("v_writelane_b32 v2, s87, 9")
        for i in range(8):
            R(f"s_sub_u32 s{80+i}, s{80+i}, s76")
            R(f"v_writelane_b32 v1, s{80+i}, {i}")
        R("v_cmp_gt_u32 vcc, 40, v0")
        R("s_and_saveexec_b64 s[78:79], vcc")
        R("buffer_atomic_add v1, v0, s[72:75], 0 offen")
        R("buffer_atomic_umax v2, v0, s[72:75], 0 offen")
        R("s_waitcnt vmcnt(0)")
        em.label("L_dbgskip")
    R("s_endpgm")
    emit_rare(em)

    em.mark_w3 = len(em.lines)
    em.label("L_wave3")
    em.reset()
    R(f"v_lshlrev_b32 v{w_vlin}, 4, v0")
    R("v_lshrrev_b32 v28, 3, v0")
    R("v_and_b32 v29, 7, v0")
    R("v_lshlrev_b32 v29, 4, v29")
    R(f"v_lshl_add_u32 v{w_vwq}, v28, 17, v29")
    if P.WQLIN: R(f"v_lshlrev_b32 v{w_vwq}, 4, v0")
    R(f"v_add_u32 v{w_aWQ}, {WQ0}, v26")
    R(f"v_add_u32 v{w_aQB}, {QB}, v{w_vlin}")
    R(f"v_mov_b32 v{w_aX}, v27")
    R(f"v_add_u32 v8, {5*SL}, v27")
    R("v_and_b32 v29, 31, v0")
    R("v_lshlrev_b32 v29, 4, v29")
    R("v_lshl_add_u32 v9, v21, 14, v29")
    R(f"s_lshr_b32 s{sWQCOL}, s{sROT}, 9")
    R(f"s_lshl_b32 s3, s{sSW}, 5")
    R(f"v_add_u32 v{w_aQB}, s3, v{w_aQB}")
    vm = VM(em, [])
    def xt(mt, kh, loc): return tile_loop('x', loc, f"s_mov_b32 s{sTMP}, {mt*32768 + kh*512}")
    def w0(ti): return tile_loop('wq', WLOC[ti], f"s_add_u32 s{sTMP}, s{sWQCOL}, {(ti % 4)*128*8192 + (ti // 4)*128}")
    for mt in range(3): vm.issue("X0", xt(mt, 0, mt*SL))
    vm.issue("W0", w0(0)); vm.issue("W1", w0(1))
    for mt in range(3): vm.issue("X1", xt(mt, 1, (5+mt)*SL))
    vm.issue("W2", w0(2))
    vm.need("W1")
    R("s_barrier")
    for mt in range(3):
        for ks in range(16):
            em.emit(dsr128(XF3(mt, ks), w_aX, mt*SL + ks*32))
    em.wait_ds(0)
    vm.need("W2")
    R("s_barrier")
    vm.issue("W3", w0(3)); vm.issue("W4", w0(4)); vm.issue("W5", w0(5))
    vm.issue("K0", tile_loop('kv', K0, f"s_xor_b32 s{sTMP}, s{sROT}, s{sXR}", sK))
    if P.PLAN in (0, 2):
        vm.issue("K1", tile_loop('kv', K0+SL, f"s_add_u32 s{sTMP}, s{sROT}, 16384\n    s_xor_b32 s{sTMP}, s{sTMP}, s{sXR}", sK))
    for mt in range(3):
        for ks in range(16):
            em.emit(dsr128(XF3(mt, 16+ks), 8, mt*SL + ks*32))
    em.wait_ds(0)
    vm.need("W5")
    R("s_barrier")
    if P.FUSE:
        R("s_load_dwordx2 s[84:85], s[0:1], 88")
        R("s_memrealtime s[90:91]")
        R("v_mov_b32 v13, 0")
        R("v_mov_b32 v14, 252")
        R("s_bfe_u32 s94, s2, 0x40003")
        R("s_add_u32 s94, s94, 2")
        R("s_waitcnt lgkmcnt(0)")
        R("s_and_b32 s85, s85, 0xffff")
        R("s_mov_b32 s86, 256")
        R("s_mov_b32 s87, 0x20000")
        R("s_or_b32 s90, s90, 1")
        R("v_mov_b32 v12, s90")
        R("v_mov_b32 v15, s90")
    vm.issue("W6", w0(6)); vm.issue("W7", w0(7))
    R(f"s_add_u32 s{sWQLIN}, s{sWQCOL}, 256")
    R(f"s_and_b32 s{sWQLIN}, s{sWQLIN}, 1023")
    R(f"s_xor_b32 s{sWQCOL}, s{sWQLIN}, s{sSW}")
    vm.issue("U0", tile_loop('wq', WQ0, f"s_mov_b32 s{sTMP}, s{sWQCOL}"))
    if P.PLAN == 5:
        vm.issue("K1", tile_loop('kv', K0+SL, f"s_add_u32 s{sTMP}, s{sROT}, 16384\n    s_xor_b32 s{sTMP}, s{sTMP}, s{sXR}", sK))
        R(f"v_xor_b32 v{w_aQB}, 0x1000, v{w_aQB}")
    else:
        vm.issue("U1", tile_loop('wq', WQ0+SL, f"s_add_u32 s{sTMP}, s{sWQCOL}, {128*8192}"))
    vm.need("W7")
    R("s_barrier")
    if P.PLAN != 5:
        vm.need("U0")
        frags = []
        seq = qproj_items(frags, w_aWQ, 0, None, 0, w3_acc, XF3, 3)
        schedule(em, seq, frags, W_STG, W_NS, P.W_LA, budget=P.W_BUDGET, pair=False)
    if not (P.WOQ and P.PLAN == 0):
        R(f"s_add_u32 s{sWOOFF}, s{sROT}, {(-7*16384) & 0x7ffff:#x}")
        R(f"s_and_b32 s{sWOOFF}, s{sWOOFF}, 0x7ffff")
    R(f"s_mov_b32 s{sCNT}, 6")
    R("s_waitcnt vmcnt(16)" if P.PLAN == 5 else "s_waitcnt vmcnt(0)")
    if P.PLAN == 4:
        stamp(em)
        R("s_barrier")
        for o in kvq_ops(K0+SL, sK, sKOFF, sM0K, 29, 0, 0) + kvq_ops(V0, sV, sVOFF, sM0V, 30, 0, 0): em.emit(o)
        R("s_barrier")
    em.fence(2)
    em.label("L_w3_loop")
    n0 = em.ninstr; nn0 = em.nops; w0 = em.waits
    if P.PLAN == 4: wave3_body4(em)
    elif P.PLAN == 5: wave3_body5(em)
    else: wave3_body(em)
    print(f"wave3 body: {em.ninstr-n0} instrs, {em.nops-nn0} nop states, {em.waits-w0} waits", file=sys.stderr)
    R(f"s_sub_u32 s{sCNT}, s{sCNT}, 1")
    R(f"s_cmp_lg_u32 s{sCNT}, 0")
    em.fence(2)
    R("s_cbranch_scc1 L_w3_loop")
    if P.PLAN == 4:
        vm = VM(em, [("V23", 4), ("WQ", 16), ("WO24", 16), ("K25", 4), ("V24", 4)])
        R(f"s_add_u32 s3, s{sWOOFF}, {(26-17)*16384}\n    s_and_b32 s3, s3, 0x7ffff")
        for t in range(23, 32):
            if t > 23:
                stamp(em)
                vm.need(f"WO{t}")
                R("s_barrier")
                if t <= 29: vm.issue(f"K{t+2}", kvq_ops(K0 + (t % 2)*SL, sK, sKOFF, sM0K, 29, 0, 0))
                if t <= 30: vm.issue(f"V{t+1}", kvq_ops(V0 + ((t+1) % 2)*SL, sV, sVOFF, sM0V, 30, 0, 0))
                if t == 31:
                    vm.issue("TT", dma_wo(V0, 3))
                vm.need(f"K{t+1}")
                R("s_barrier")
            vm.need(f"V{t}")
            R("s_barrier")
            ops = dma_wo(WO0 + (t % 2)*SL, sWOOFF)
            ops.append(salu(f"s_add_u32 s{sWOOFF}, s{sWOOFF}, 16384\n    s_and_b32 s{sWOOFF}, s{sWOOFF}, 0x7ffff\n    s_add_u32 s{sT}, s{sT}, 1"))
            vm.issue(f"WO{t+2}", ops)
            if t in (23, 24):
                vm.issue("TT", dma_wo(WQ0 + (t-23)*SL, 3))
                R("s_add_u32 s3, s3, 16384")
            if t == 25:
                R(f"s_add_u32 s4, s3, {3*16384}")
                vm.issue("TT", dma_wo(QB, 4))
            if t in (29, 30):
                vm.issue("TT", dma_wo(K0 + (t-29)*SL, 3))
                R("s_add_u32 s3, s3, 16384")
        stamp(em)
        R("s_waitcnt vmcnt(0)")
        R("s_barrier")
        stamp(em)
        stamp_store(em)
        em.label("L_end")
        R("s_endpgm")
        return
    if P.PLAN == 0 and P.WOQ:
        vm = VM(em, [("K24", 4), ("WO23", 4), ("WQ", 16), ("V23", 4), ("K25", 4), ("WO24", 4)])
        R(f"s_add_u32 s3, s{sWOOFF}, {(26-17)*16384 - 3072}\n    s_and_b32 s3, s3, 0x7ffff")
        def tt(loc, k): return tile_loop('wo', loc, f"s_add_u32 s{sTMP}, s3, {k*16384}")
        for t in range(23, 32):
            stamp(em)
            vm.need(f"K{t+1}", f"WO{t}")
            R("s_barrier")
            if t <= 30:
                vm.issue(f"V{t+1}", kvq_ops(V0 + ((t+1) % 2)*SL, sV, sVOFF, sM0V, 30, 0, 0))
            ttl = {23: [(WQ0, 0)], 24: [(WQ0+SL, 1)], 25: [(QB, 5)], 30: [(K0, 2)], 31: [(K0+SL, 3), (V0, 4)]}.get(t, [])
            for (loc, k) in ttl: vm.issue("TT", tt(loc, k))
            vm.need(f"V{t}")
            R("s_barrier")
            if t <= 28:
                vm.issue(f"K{t+3}", kvq_ops(K0 + ((t+1) % 2)*SL, sK, sKOFF, sM0K, 28, 0, 0))
            vm.issue(f"WO{t+2}", woq_ops(WO0 + (t % 2)*SL, w_vlin))
            R(f"s_add_u32 s{sT}, s{sT}, 1")
    else:
        if P.PLAN == 0: vm = VM(em, [("K24", 4), ("WO23", 16), ("WQ", 16), ("V23", 4), ("K25", 4), ("WO24", 16)])
        elif P.PLAN in (2, 5): vm = VM(em, [("WO23", 16), ("K24", 4), ("WQ", 16), ("V23", 4), ("WO24", 16), ("K25", 4)])
        else: vm = VM(em, [("WQ", 16), ("WO23", 16), ("K24", 4), ("V23", 4), ("WQ", 16), ("WO24", 16)])
        R(f"s_add_u32 s3, s{sWOOFF}, {(26-17)*16384}\n    s_and_b32 s3, s3, 0x7ffff")
        for t in range(23, 32):
            stamp(em)
            if P.PLAN in (2, 3, 5): vm.need(f"WO{t}")
            else: vm.need(f"K{t+1}", f"WO{t}")
            R("s_barrier")
            if P.PLAN in (1, 3) and t <= 29:
                vm.issue(f"K{t+2}", kvq_ops(K0 + (t % 2)*SL, sK, sKOFF, sM0K, 29, 0, 0))
            if t <= 30:
                vm.issue(f"V{t+1}", kvq_ops(V0 + ((t+1) % 2)*SL, sV, sVOFF, sM0V, 30, 0, 0))
            if t == 31:
                vm.issue("TT32", tile_loop('wo', V0, f"s_mov_b32 s{sTMP}, s{3}"))
                R("s_add_u32 s3, s3, 16384")
            ops = tile_loop('wo', WO0 + (t % 2)*SL, f"s_mov_b32 s{sTMP}, s{sWOOFF}")
            ops.append(salu(f"s_add_u32 s{sWOOFF}, s{sWOOFF}, 16384\n    s_and_b32 s{sWOOFF}, s{sWOOFF}, 0x7ffff"))
            if P.PLAN in (2, 3, 5):
                if P.PLAN == 5 and t == 23:
                    em.nop(12)
                    for o in w3_cv(1): em.emit(o)
                    em.wait_ds(0)
                vm.need(f"K{t+1}")
                R("s_barrier")
                if P.PLAN in (2, 5): vm.issue(f"WO{t+2}", ops)
            vm.need(f"V{t}")
            R("s_barrier")
            if P.PLAN in (0, 2, 5) and t <= 28:
                vm.issue(f"K{t+3}", kvq_ops(K0 + ((t+1) % 2)*SL, sK, sKOFF, sM0K, 28, 0, 0))
            if P.PLAN not in (2, 5): vm.issue(f"WO{t+2}", ops)
            R(f"s_add_u32 s{sT}, s{sT}, 1")
            if t == 23:
                vm.issue("TT32", tile_loop('wo', WQ0, f"s_mov_b32 s{sTMP}, s{3}"))
                R("s_add_u32 s3, s3, 16384")
            if t == 24:
                vm.issue("TT32", tile_loop('wo', WQ0+SL, f"s_mov_b32 s{sTMP}, s{3}"))
                R("s_add_u32 s3, s3, 16384")
            if t == 25:
                R(f"s_add_u32 s4, s3, {3*16384}")
                vm.issue("TT32", tile_loop('wo', QB, f"s_mov_b32 s{sTMP}, s{4}"))
            if t in (29, 30):
                vm.issue("TT32", tile_loop('wo', K0 + (t-29)*SL, f"s_mov_b32 s{sTMP}, s{3}"))
                R("s_add_u32 s3, s3, 16384")
    stamp(em)
    R("s_waitcnt vmcnt(0)")
    R("s_barrier")
    if P.FUSE:
        fused_reduce(em)
        return
    stamp(em)
    stamp_store(em)
    em.label("L_end")
    R("s_endpgm")

def fused_reduce(em):
    R = em.raw
    decode(R)
    R("s_lshl_b32 s6, s5, 4")
    R("s_add_u32 s6, s6, s4")
    R("s_lshl_b32 s6, s6, 2")
    R("v_mov_b32 v14, 0")
    R("s_lshl_b32 s7, 1, s3")
    if P.MAP == 1:
        R("s_and_b32 s6, s2, 0xf8")
        R("v_add_u32 v15, s6, v0")
    else:
        R("s_lshl_b32 s6, s5, 2")
        R("s_lshl_b32 s92, s4, 3")
        R("s_add_u32 s6, s6, s92")
        R("v_lshrrev_b32 v15, 1, v0")
        R("v_and_b32 v13, 1, v0")
        R("v_lshl_add_u32 v15, v13, 7, v15")
        R("v_add_u32 v15, s6, v15")
    R("v_lshlrev_b32 v15, 7, v15")
    R("s_lshl_b32 s6, s2, 7")
    R("v_mov_b32 v13, s6")
    R("s_add_u32 s80, s70, 0x1800000")
    R("s_addc_u32 s81, s71, 0")
    R("s_and_b32 s81, s81, 0xffff")
    R("s_mov_b32 s82, 0x10000")
    R("s_mov_b32 s83, 0x20000")
    R("v_readfirstlane_b32 s95, v12")
    R("s_cmp_eq_u32 s95, 0")
    R("s_cselect_b32 s95, s90, s95")
    R("v_mov_b32 v12, s95")
    R("s_mov_b64 s[88:89], exec")
    R(f"s_mov_b32 s91, {P.SPIN}")
    R("s_mov_b32 s90, 0")
    R("s_barrier")
    R("s_mov_b64 exec, 1")
    R("buffer_store_dword v12, v13, s[80:83], 0 offen sc0 sc1")
    R("s_mov_b64 exec, 0xff")
    em.label("L_poll")
    R("buffer_load_dwordx2 v[10:11], v15, s[80:83], 0 offen sc0 sc1")
    R("s_waitcnt vmcnt(0)")
    R("v_cmp_eq_u32 vcc, s95, v10")
    R("s_nop 3")
    R("s_cmp_eq_u32 vcc_lo, 0xff")
    R("s_cbranch_scc1 L_go")
    R("s_cmp_lg_u32 s90, 0")
    R("s_cbranch_scc1 L_quit")
    R(f"s_sleep {P.PSLEEP}")
    R("s_sub_u32 s91, s91, 1")
    R("s_cmp_lg_u32 s91, 0")
    R("s_cbranch_scc1 L_poll")
    R("s_mov_b32 s90, 1")
    R("s_mov_b64 exec, 1")
    R("buffer_store_dword v12, v13, s[80:83], 0 offen offset:4 sc0 sc1")
    R("s_waitcnt vmcnt(0)")
    R("s_mov_b64 exec, 0xff")
    R("s_branch L_poll")
    em.label("L_quit")
    R("s_mov_b32 s93, 0")
    R("s_branch L_pub")
    em.label("L_go")
    R("v_cmp_eq_u32 vcc, s95, v11")
    R("s_nop 3")
    R("s_or_b32 s93, s7, vcc_lo")
    R("s_and_b32 s93, s93, 0xff")
    em.label("L_pub")
    R("s_mov_b64 exec, 1")
    R("v_mov_b32 v9, s93")
    R("ds_write_b32 v14, v9")
    R("s_mov_b64 exec, s[88:89]")
    R("s_waitcnt lgkmcnt(0)")
    em.label("L_red")
    R("s_load_dwordx2 s[8:9], s[0:1], 80")
    decode(R)
    R("v_and_b32 v2, 7, v0")
    R("v_bfe_u32 v3, v0, 3, 1")
    R("v_bfe_u32 v4, v0, 4, 1")
    R("v_lshrrev_b32 v5, 5, v0")
    R(f"s_lshl_b32 s6, s{sWAVE}, 3")
    R("v_add_u32 v2, s6, v2")
    R("v_lshlrev_b32 v7, 11, v5")
    R("v_lshl_add_u32 v7, v3, 10, v7")
    R("v_lshl_add_u32 v7, v4, 9, v7")
    R("v_lshl_add_u32 v7, v2, 4, v7")
    R("v_lshlrev_b32 v8, 11, v2")
    R("v_lshl_add_u32 v8, v5, 6, v8")
    R("v_lshl_add_u32 v8, v4, 5, v8")
    R("v_lshl_add_u32 v8, v3, 4, v8")
    R("v_mov_b32 v14, 0")
    if P.MAP == 1:
        R("s_and_b32 s14, s2, 0xf8")
    else:
        R("s_lshl_b32 s14, s5, 2")
        R("s_lshl_b32 s15, s4, 3")
        R("s_add_u32 s14, s14, s15")
    R("s_mul_i32 s14, s14, 98304")
    R("s_mul_i32 s15, s4, 96")
    R("s_lshl_b32 s15, s15, 11")
    R("s_lshl_b32 s16, s5, 10")
    R("s_add_u32 s15, s15, s16")
    R("s_mov_b32 s20, s70")
    R("s_and_b32 s21, s71, 0xffff")
    R(f"s_mov_b32 s22, {256*98304}")
    R("s_mov_b32 s23, 0x20000")
    R("s_waitcnt lgkmcnt(0)")
    R("s_mov_b32 s24, s8")
    R("s_and_b32 s25, s9, 0xffff")
    R(f"s_mov_b32 s26, {16*96*1024*2}")
    R("s_mov_b32 s27, 0x20000")
    em.label("L_round")
    R("s_barrier")
    R("ds_read_b32 v9, v14")
    R("s_waitcnt lgkmcnt(0)")
    R("v_readfirstlane_b32 s93, v9")
    stamp(em)
    em.label("L_slice")
    R("s_and_b32 s92, s93, 0xff")
    R("s_cmp_eq_u32 s92, 0")
    R("s_cbranch_scc1 L_nomore")
    R("s_ff1_i32_b32 s94, s92")
    R("s_bitset0_b32 s93, s94")
    R("s_lshl_b32 s16, s94, 12")
    R("s_add_u32 s16, s16, s14")
    for w in range(3):
        for hg in range(8):
            d = member(hg) * 98304 + w * 32768
            r = 16 + (w*8 + hg)*4
            R(f"s_add_u32 s17, s16, {d}")
            R(f"buffer_load_dwordx4 v[{r}:{r+3}], v7, s[20:23], s17 offen{P.RDPOL}")
    R("s_lshl_b32 s17, s94, 7")
    R("s_add_u32 s17, s17, s15")
    for w in range(3):
        acc = 120 + 8*w
        for hg in range(8):
            R(f"s_waitcnt vmcnt({23 - (w*8+hg) + w})")
            for k in range(4):
                src = 16 + (w*8 + hg)*4 + k
                if hg == 0:
                    R(f"v_lshlrev_b32 v{acc+2*k}, 16, v{src}")
                    R(f"v_and_b32 v{acc+2*k+1}, 0xffff0000, v{src}")
                else:
                    R(f"v_lshlrev_b32 v112, 16, v{src}")
                    R(f"v_and_b32 v113, 0xffff0000, v{src}")
                    R(f"v_add_f32 v{acc+2*k}, v{acc+2*k}, v112")
                    R(f"v_add_f32 v{acc+2*k+1}, v{acc+2*k+1}, v113")
        o = 148 + 4*w
        for k in range(4):
            R(f"v_cvt_pk_bf16_f32 v{o+k}, v{acc+2*k}, v{acc+2*k+1}")
        R(f"s_add_u32 s18, s17, {w*32*2048}")
        R(f"buffer_store_dwordx4 v[{o}:{o+3}], v8, s[24:27], s18 offen{P.OUTPOL}")
    R("s_branch L_slice")
    em.label("L_nomore")
    em.label("L_fin")
    if P.STAMP:
        R("s_waitcnt vmcnt(0)")
    stamp(em)
    stamp_store(em)
    em.label("L_end")
    R("s_endpgm")
    em.label("L_code_end")

def gen_reduce(em):
    R = em.raw
    em.lines.append(".p2align 8")
    em.lines.append(".globl reduce_kernel")
    em.lines.append(".type reduce_kernel,@function")
    em.label("reduce_kernel")
    R("s_cmp_ge_u32 s2, 768")
    R("s_cbranch_scc1 L_rend")
    R("s_load_dwordx2 s[4:5], s[0:1], 80")
    R("s_load_dwordx2 s[6:7], s[0:1], 96")
    if P.DBG:
        R("s_memrealtime s[40:41]")
        R("s_load_dwordx2 s[32:33], s[0:1], 88")
    R("v_lshrrev_b32 v1, 6, v0")
    R("v_and_b32 v0, 63, v0")
    R("s_and_b32 s8, s2, 7")
    R("s_lshr_b32 s9, s2, 3")
    R("s_mul_i32 s10, s9, 43691")
    R("s_lshr_b32 s10, s10, 17")
    R("s_mul_i32 s11, s10, 3")
    R("s_sub_u32 s11, s9, s11")
    R("s_lshr_b32 s12, s10, 4")
    R("s_and_b32 s13, s10, 15")
    R("v_and_b32 v2, 7, v0")
    R("v_bfe_u32 v3, v0, 3, 1")
    R("v_bfe_u32 v4, v0, 4, 1")
    R("v_lshrrev_b32 v5, 5, v0")
    R("v_lshl_add_u32 v2, v1, 3, v2")
    R("v_lshlrev_b32 v6, 11, v5")
    R("v_lshl_add_u32 v6, v3, 10, v6")
    R("v_lshl_add_u32 v6, v4, 9, v6")
    R("v_lshl_add_u32 v6, v2, 4, v6")
    R("s_lshl_b32 s14, s11, 15")
    R("s_lshl_b32 s15, s8, 12")
    R("s_add_u32 s14, s14, s15")
    R("s_lshl_b32 s15, s12, 2")
    R("s_lshl_b32 s16, s13, 3")
    R("s_add_u32 s15, s15, s16")
    R("s_mul_i32 s15, s15, 98304")
    R("s_add_u32 s14, s14, s15")
    R("s_waitcnt lgkmcnt(0)")
    R("s_mov_b32 s20, s6")
    R("s_and_b32 s21, s7, 0xffff")
    R(f"s_mov_b32 s22, {256*98304}")
    R("s_mov_b32 s23, 0x20000")
    R("s_mov_b32 s24, s4")
    R("s_and_b32 s25, s5, 0xffff")
    R(f"s_mov_b32 s26, {16*96*1024*2}")
    R("s_mov_b32 s27, 0x20000")
    for hg in range(8):
        d = ((hg // 2) + 128*(hg % 2)) * 98304
        R(f"s_add_u32 s17, s14, {d}")
        R(f"buffer_load_dwordx4 v[{8+4*hg}:{11+4*hg}], v6, s[20:23], s17 offen{P.RDPOL}")
    R("v_lshlrev_b32 v7, 11, v2")
    R("v_lshl_add_u32 v7, v5, 6, v7")
    R("v_lshl_add_u32 v7, v4, 5, v7")
    R("v_lshl_add_u32 v7, v3, 4, v7")
    R("s_mul_i32 s15, s13, 96")
    R("s_lshl_b32 s16, s11, 5")
    R("s_add_u32 s15, s15, s16")
    R("s_lshl_b32 s15, s15, 11")
    R("s_lshl_b32 s16, s12, 10")
    R("s_add_u32 s15, s15, s16")
    R("s_lshl_b32 s16, s8, 7")
    R("s_add_u32 s15, s15, s16")
    for hg in range(8):
        R(f"s_waitcnt vmcnt({7-hg})")
        for k in range(4):
            src = 8 + 4*hg + k
            if hg == 0:
                R(f"v_lshlrev_b32 v{40+2*k}, 16, v{src}")
                R(f"v_and_b32 v{41+2*k}, 0xffff0000, v{src}")
            else:
                R(f"v_lshlrev_b32 v48, 16, v{src}")
                R(f"v_and_b32 v49, 0xffff0000, v{src}")
                R(f"v_add_f32 v{40+2*k}, v{40+2*k}, v48")
                R(f"v_add_f32 v{41+2*k}, v{41+2*k}, v49")
    for k in range(4):
        R(f"v_cvt_pk_bf16_f32 v{52+k}, v{40+2*k}, v{41+2*k}")
    R("buffer_store_dwordx4 v[52:55], v7, s[24:27], s15 offen")
    if P.DBG:
        R("s_and_b32 s44, s2, 31")
        R("s_cmp_lg_u32 s44, 31")
        R("s_cbranch_scc1 L_rend")
        R("v_readfirstlane_b32 s44, v1")
        R("s_cmp_lg_u32 s44, 0")
        R("s_cbranch_scc1 L_rend")
        R("s_waitcnt vmcnt(0)")
        R("s_memrealtime s[42:43]")
        R("s_sub_u32 s36, s32, 512")
        R("s_subb_u32 s37, s33, 0")
        R("s_and_b32 s37, s37, 0xffff")
        R("s_mov_b32 s38, 256")
        R("s_mov_b32 s39, 0x20000")
        R("s_and_b32 s33, s33, 0xffff")
        R("s_mov_b32 s34, 256")
        R("s_mov_b32 s35, 0x20000")
        R("v_lshlrev_b32 v0, 2, v0")
        R("buffer_load_dword v1, v0, s[36:39], 0 offen")
        R("s_waitcnt vmcnt(0) lgkmcnt(0)")
        R("s_not_b32 s40, s40")
        R("v_writelane_b32 v1, s40, 10")
        R("v_writelane_b32 v1, s42, 11")
        R("v_cmp_gt_u32 vcc, 48, v0")
        R("s_and_saveexec_b64 s[44:45], vcc")
        R("buffer_atomic_umax v1, v0, s[32:35], 0 offen")
        R("s_waitcnt vmcnt(0)")
    em.label("L_rend")
    R("s_endpgm")
    em.label("L_code_end")

def build():
    ref = open(f"cdna_kernels/{NAME}.s.ref").read().splitlines()
    head = [l for l in ref if l.startswith(";") and "@launch" not in l]
    em = Em()
    if P.FUSE:
        P.STPOL = " sc1" if P.STPOL == " nt" else P.STPOL
        P.RDPOL = " sc1" if P.RDPOL == " nt" else P.RDPOL
    gen_main(em)
    if P.W3FIRST:
        L = em.lines
        tail = [x for x in L[em.mark_w3:] if x != "L_code_end:"]
        em.lines = L[:em.mark_att] + tail + L[em.mark_att:em.mark_w3]
        if P.FUSE: em.label("L_code_end")
    if not P.FUSE: gen_reduce(em)
    out = []
    out += head
    if P.FUSE:
        out.append(f"; @launch grid=(256,1,1) block=(256,1,1) lds={LDS_BYTES}")
    else:
        out.append(f"; @launch kernel={NAME}_kernel grid=(256,1,1) block=(256,1,1) lds={LDS_BYTES}")
        out.append(f"; @launch kernel=reduce_kernel grid=(768,1,1) block=(256,1,1) lds=0")
    out.append('.amdgcn_target "amdgcn-amd-amdhsa--gfx950"')
    out.append(".text")
    out.append(f".globl {NAME}_kernel")
    out.append(".p2align 8")
    out.append(f".type {NAME}_kernel,@function")
    out.append(em.text())
    out.append('.section .rodata,"a"')
    for (k, nv, ao) in ((f"{NAME}_kernel", 512, 256), ("reduce_kernel", 64, 64))[:1 if P.FUSE else 2]:
        out.append(".p2align 6")
        out.append(f".amdhsa_kernel {k}")
        out.append(f"  .amdhsa_next_free_vgpr {nv}")
        out.append("  .amdhsa_next_free_sgpr 102")
        out.append(f"  .amdhsa_accum_offset {ao}")
        out.append("  .amdhsa_group_segment_fixed_size 0")
        out.append("  .amdhsa_kernarg_size 104")
        out.append("  .amdhsa_user_sgpr_count 2")
        out.append("  .amdhsa_user_sgpr_kernarg_segment_ptr 1")
        out.append("  .amdhsa_system_sgpr_workgroup_id_x 1")
        out.append(".end_amdhsa_kernel")
    return "\n".join(out) + "\n"

if __name__ == "__main__":
    dst = sys.argv[1] if len(sys.argv) > 1 else f"cdna_kernels/{NAME}.s"
    for a in sys.argv[2:]:
        k, v = a.split("=")
        cur = getattr(P, k)
        setattr(P, k, type(cur)(v) if not isinstance(cur, str) else (" " + v.replace("+", " ") if v else ""))
    open(dst, "w").write(build())
```

```python
import sys, struct
from em import *
from sched import *

NAME = "concat_heads__gqa_block_cached__gqa_block_cached__near_ridge"
SL = 16640
K0, V0, WO0, WQ0, QB = 0, 2*SL, 4*SL, 6*SL, 8*SL
LDS_BYTES = 163840
M0_NULL = 0x30000
WLOC = [3*SL, 4*SL, QB, 3*SL, 4*SL, 2*SL, 5*SL, QB]
C_SCALE = 1.4426950408889634 / (128 ** 0.5)
def f32bits(x): return struct.unpack("<I", struct.pack("<f", x))[0]

sK, sV, sWQ, sWO, sX, sWS = 8, 12, 16, 20, 24, 28
sWAVE, sC, sTHR, sCNT = 32, 33, 34, 35
sM0W, sM0K, sM0V, sM0N = 36, 37, 38, 39
sT, sKOFF, sVOFF, sWOOFF, sWQCOL, sTMP = 40, 41, 42, 43, 44, 45
sPF, sWOCUR = 75, 76
sXR, sKVT = 77, 101
sC2 = 58
sROT, sSW, sWQLIN = 72, 73, 74
def srd(b): return f"s[{b}:{b+3}]"

aK, aV, aWO, aQB, vKV = 1, 2, 3, 4, 5
LA_, LB_, vLIN, DELTA = 7, 8, 9, 10
ALPHA = 11
T0, T1, T2, T3 = 11, 12, 13, 14
AUX = 15
STG = 16; NS = 8
OACC, QR, OP = 48, 112, 144
SR = [176, 208]
NEGM = 240
w_vlin, w_vwq, w_aWQ, w_aQB, w_aX = 2, 3, 4, 1, 7
W_STG = 16; W_NS = 4
W_ACC = 32
def XF3(mt, ks):
    if mt < 2: return AG(mt * 128 + ks * 4, 4)
    return V(128 + ks * 4, 4)
def XFA(ks):
    return V(48 + ks * 4, 4) if ks < 16 else V(144 + (ks - 16) * 4, 4)

class P:
    LA = 5
    BUDGET = 6.0
    W_LA = 6
    W_BUDGET = 6.0
    W_SPLIT = 30
    KVPOL = " nt"
    WPOL = ""
    WOPOL = "same"
    W0POL = "same"
    XPOL = " nt"
    STPOL = " nt"
    RDPOL = " nt"
    THR = 8.0
    STAMP = 0
    CYC = 0
    PAIR = 1
    NODMA = 0
    TLB = 0
    TOUCH = 0
    MAP = 0
    KVLIN = 0
    WQLIN = 0
    TXOR = 0
    WOQ = 0
    PKMUL = 0
    W3FIRST = 1
    FUSE = 1
    SPIN = 200000
    PSLEEP = 4
    OUTPOL = ""
    CPF = 1
    WOPF = 0
    PFT = 0
    ROT = 1
    W4_1 = 10
    W4_2 = 30
    W_SPLITZ = 14
    DMAFIRST = 0
    DEVERY = 3
    PLAN = 0
    W_PRE = 8
    HOIST = 3
    VMA = 8
    DBG = 0

def wopol(): return P.WPOL if P.WOPOL == "same" else P.WOPOL
gate_ctr = [1000]
def newgate():
    gate_ctr[0] += 1
    return gate_ctr[0]

STV = 6
def stamp_txt():
    if not P.STAMP: return []
    return [("s_memtime s[96:97]" if P.CYC else "s_memrealtime s[96:97]"), "s_min_u32 m0, s98, 63", "s_waitcnt lgkmcnt(0)",
            f"v_writelane_b32 v{STV}, s96, m0", "s_add_u32 s98, s98, 1"]
def stamp(em):
    if P.STAMP:
        em.wait_ds(0)
        for t in stamp_txt(): em.raw(t)
def stamp_store(em):
    if not P.STAMP: return
    R = em.raw
    R("s_lshl_b32 s3, s2, 2")
    R(f"s_add_u32 s3, s3, s{sWAVE}")
    R("s_lshl_b32 s3, s3, 8")
    R("s_add_u32 s92, s70, 0x2000000")
    R("s_addc_u32 s93, s71, 0")
    R("s_and_b32 s93, s93, 0xffff")
    R("s_mov_b32 s94, 0x40000")
    R("s_mov_b32 s95, 0x20000")
    R("v_lshlrev_b32 v0, 2, v0")
    R(f"buffer_store_dword v{STV}, v0, s[92:95], s3 offen")
def bar(gate, pre=(), rd=(), drain=False, st=0):
    s1 = stamp_txt() if (st and P.STAMP >= st) else []
    s2 = stamp_txt() if (st and P.STAMP >= 2) else []
    return MItem('bar', texts=s2 + list(pre) + ["s_barrier"] + s1, rd=rd, wr=[gate], drain=drain or bool(s1))

def v3(op, d, a, b, c):
    return valu(f"{op} v{d}, v{a}, v{b}, v{c}", [a, b, c], [d])
def salu(text, rd=(), wr=()):
    return Op('salu', text, rd=rd, wr=wr, cost=text.count("\n") + 1)

def interleave(main, extra, start=0, every=3):
    out = []; e = list(extra)
    for i, o in enumerate(main):
        out.append(o)
        if e and i >= start and (i - start) % every == every - 1:
            out.append(e.pop(0))
    return out + e

def maxtree_ops(S):
    ops = []
    T = [T0, T1, T2, T3]
    for k in range(4): ops.append(v3("v_max3_f32", T[k], S+8*k, S+8*k+1, S+8*k+2))
    for k in range(4): ops.append(v3("v_max3_f32", T[k], T[k], S+8*k+3, S+8*k+4))
    for k in range(4): ops.append(v3("v_max3_f32", T[k], T[k], S+8*k+5, S+8*k+6))
    ops.append(v3("v_max3_f32", T0, T0, S+7, T1))
    ops.append(v3("v_max3_f32", T2, T2, S+23, T3))
    ops.append(v3("v_max3_f32", T0, T0, S+15, S+31))
    ops.append(valu(f"v_max_f32 v{T0}, v{T0}, v{T2}", [T0, T2], [T0]))
    ops.append(valu(f"v_mov_b32 v{T1}, v{T0}", [T0], [T1]))
    ops.append(valu(f"v_permlane32_swap_b32 v{T0}, v{T1}", [T0, T1], [T0, T1], kind='perm'))
    ops.append(valu(f"v_max_f32 v{DELTA}, v{T0}, v{T1}", [T0, T1], [DELTA]))
    return ops

def first_tile_ops(S):
    ops = []
    for i in range(16):
        ops.append(valu(f"v_sub_f32 v{NEGM+i}, 0, v{DELTA}", [DELTA], [NEGM+i]))
    for i in range(32):
        ops.append(valu(f"v_sub_f32 v{S+i}, v{S+i}, v{DELTA}", [S+i, DELTA], [S+i]))
    return ops

rare_blocks = []
def check_op(S, tag):
    regs = V(S, 32) + V(NEGM, 16) + V(OACC, 64) + [LA_, LB_, DELTA, ALPHA]
    rare_blocks.append((S, tag))
    t = f"v_cmp_lt_f32 vcc, s{sTHR}, v{DELTA}\n    s_cbranch_vccnz L_rare_{tag}\nL_back_{tag}:"
    op = Op('raw', t, rd=regs, wr=regs, cost=2)
    op.noraw = True
    return op
def emit_rare(em):
    R = em.raw
    for (S, tag) in rare_blocks:
        em.label(f"L_rare_{tag}")
        R("s_nop 15")
        R(f"v_max_f32 v{DELTA}, 0, v{DELTA}")
        R(f"v_sub_f32 v{ALPHA}, 0, v{DELTA}")
        R(f"v_exp_f32 v{ALPHA}, v{ALPHA}")
        for i in range(32): R(f"v_sub_f32 v{S+i}, v{S+i}, v{DELTA}")
        for i in range(16): R(f"v_sub_f32 v{NEGM+i}, v{NEGM+i}, v{DELTA}")
        for i in range(64): R(f"v_mul_f32 v{OACC+i}, v{ALPHA}, v{OACC+i}")
        R(f"v_mul_f32 v{LA_}, v{ALPHA}, v{LA_}")
        R(f"v_mul_f32 v{LB_}, v{ALPHA}, v{LB_}")
        R("s_nop 3")
        R(f"s_branch L_back_{tag}")

def exp_ops(S, first):
    def ex(i): return valu(f"v_exp_f32 v{S+i}, v{S+i}", [S+i], [S+i], kind='trans')
    def add(i):
        l = LA_ if i % 2 == 0 else LB_
        if i < 2 and first: return valu(f"v_mov_b32 v{l}, v{S+i}", [S+i], [l])
        return valu(f"v_add_f32 v{l}, v{l}, v{S+i}", [l, S+i], [l])
    def cvt(k): return valu(f"v_cvt_pk_bf16_f32 v{S+k}, v{S+2*k}, v{S+2*k+1}", [S+2*k, S+2*k+1], [S+k])
    out = []
    for k in range(17):
        if k < 16: out.append(ex(2*k))
        if k > 0: out.append(add(2*k-2))
        if k < 16: out.append(ex(2*k+1))
        if k > 0:
            out.append(add(2*k-1)); out.append(cvt(k-1))
    return out

def finalize_ops():
    ops = []
    ops.append(valu(f"v_add_f32 v{T2}, v{LA_}, v{LB_}", [LA_, LB_], [T2]))
    ops.append(valu(f"v_mov_b32 v{T3}, v{T2}", [T2], [T3]))
    ops.append(valu(f"v_permlane32_swap_b32 v{T2}, v{T3}", [T2, T3], [T2, T3], kind='perm'))
    ops.append(valu(f"v_add_f32 v{T2}, v{T2}, v{T3}", [T2, T3], [T2]))
    ops.append(valu(f"v_rcp_f32 v{AUX}, v{T2}", [T2], [AUX], kind='trans'))
    for k in range(33):
        if k < 32:
            a, b = OACC + 2*k, OACC + 2*k + 1
            ops.append(valu(f"v_mul_f32 v{a}, v{AUX}, v{a}", [AUX, a], [a]))
            ops.append(valu(f"v_mul_f32 v{b}, v{AUX}, v{b}", [AUX, b], [b]))
        if k > 0:
            kk = k - 1
            ops.append(valu(f"v_cvt_pk_bf16_f32 v{OP+kk}, v{OACC+2*kk}, v{OACC+2*kk+1}", [OACC+2*kk, OACC+2*kk+1], [OP+kk]))
    return ops

def qk_items(frags, Sdst, kslot, gate, negm):
    it = []
    for sub in range(2):
        for ks in range(8):
            frags.append(Frag([('b128', aK, K0 + kslot*SL + sub*512 + ks*32, 0)], gate))
            it.append(MItem('mfma', D=V(Sdst + 16*sub, 16), B=V(QR + 4*ks, 4), acc=(ks != 0), frag=len(frags)-1,
                            C=(V(NEGM, 16) if (ks == 0 and negm) else None)))
    return it
def opj_item(frags, ks, nt, woff, gate, addr):
    frags.append(Frag([('tr', addr, woff + t*2080 + nt*64, 2*t) for t in range(2)], gate))
    return MItem('mfma', D=AG(16*nt, 16), B=V(OP + 4*ks, 4), acc=True, frag=len(frags)-1)
def opj_items(frags, ks, woff, gate, addr=aWO):
    return [opj_item(frags, ks, nt, woff, gate, addr) for nt in range(16)]
def pv_items(frags, S, vslot, gate, first):
    it = []
    for s in range(4):
        for dt in range(4):
            frags.append(Frag([('tr', aV, vslot*SL + t*2080 + s*256 + dt*64, 2*t) for t in range(2)], gate))
            it.append(MItem('mfma', D=V(OACC + 16*dt, 16), B=V(S + 4*s, 4), acc=not (first and s == 0), frag=len(frags)-1))
    return it

def dma_pair(m0txt, voff, srdb, soff, off, pol, rd=(), wr=()):
    a = Op('m0', m0txt, rd=rd)
    b = Op('dma', f"buffer_load_dwordx4 v{voff}, {srd(srdb)}, {soff} offen" + (f" offset:{off}" if off else "") + f"{pol} lds", wr=wr)
    return [a, b]

def kvq_ops(slotbase, srdb, offreg, m0reg, lim, gate, done):
    if P.NODMA in (1, 3): lim = -100
    ops = [salu(f"s_cmp_le_i32 s{sT}, {lim}\n    s_cselect_b32 s{srdb+2}, 0x80000, 0\n    s_cselect_b32 s{m0reg}, s{sM0W}, s{sM0N}" + (f"\n    s_xor_b32 s{sKVT}, s{offreg}, s{sXR}" if P.TXOR else ""), rd=[gate])]
    for i in range(4):
        ops += dma_pair(f"s_add_u32 m0, s{m0reg}, {slotbase + 16*i}", vKV, srdb, f"s{sKVT if P.TXOR else offreg}", 1024*i, P.KVPOL)
    ops.append(salu(f"s_add_u32 s{offreg}, s{offreg}, 16384\n    s_and_b32 s{offreg}, s{offreg}, 0x7ffff", wr=[done]))
    return ops

def woq_ops(slotbase, lin):
    lim = 100 if P.NODMA in (1, 2) else 6
    ops = [salu(f"s_cmp_ge_i32 s{sT}, {lim}\n    s_cselect_b32 s{sWO+2}, 0x80000, 0")]
    for i in range(4):
        pr = dma_pair(f"s_add_u32 m0, s{sM0W}, {slotbase + 1040*i}", lin, sWO, f"s{sTMP}", 0, wopol())
        pr.insert(1, salu(f"s_add_u32 s{sTMP}, s{sWOOFF}, {4096*i}"))
        ops += pr
    ops.append(salu(f"s_add_u32 s{sWOOFF}, s{sWOOFF}, 16384\n    s_and_b32 s{sWOOFF}, s{sWOOFF}, 0x7ffff"))
    return ops

def insert_hoisted(seq, b, H):
    if H == 0:
        seq.append(b); return
    n = 0; i = len(seq)
    while n < H:
        i -= 1
        if isinstance(seq[i], MItem):
            assert seq[i].kind == 'mfma'
            n += 1
    b.hoist = H
    seq.insert(i, b)

def attention_head(em):
    seq = []; frags = []
    dA_prev = None
    Z3 = P.PLAN in (2, 4, 5)
    QZ = P.PLAN in (4, 5)
    KVA = P.PLAN == 4
    for j in range(8):
        p = j % 2
        gA = newgate(); gB = newgate(); dB = newgate(); dA = newgate(); gZ = newgate()
        WOQ = P.WOQ and P.PLAN == 0
        VW = "s_waitcnt vmcnt(12)" if WOQ else "s_waitcnt vmcnt(8)"
        b = bar(gB, pre=[VW], rd=[dA_prev] if dA_prev else [], st=2)
        insert_hoisted(seq, b, P.HOIST if j > 0 else 0)
        if not KVA:
            kq = kvq_ops(K0 + p*SL, sK, sKOFF, sM0K, 28, gB, newgate())
            if WOQ: kq += woq_ops(WO0 + (1-p)*SL, vLIN)
            kq.append(salu(f"s_add_u32 s{sT}, s{sT}, 1", wr=[dB]))
        else:
            kq = [salu(f"s_add_u32 s{sT}, s{sT}, 1", rd=[gB], wr=[dB])]
        mt = maxtree_ops(SR[p])
        if j == 0: mt += first_tile_ops(SR[p])
        seq += interleave(mt, kq, every=1 if WOQ else 2)
        seq += pv_items(frags, SR[1-p], 1-p, gB, j == 1)
        insert_hoisted(seq, bar(gA, pre=[] if Z3 else [VW], rd=[dB], st=1), P.HOIST)
        vq = kvq_ops(V0 + (1-p)*SL, sV, sVOFF, sM0V, 30, gA, dA)
        if KVA:
            vq = kvq_ops(K0 + p*SL, sK, sKOFF, sM0K, 29, gA, newgate()) + vq
        pre = finalize_ops() if j == 0 else [check_op(SR[p], f"{j}")]
        if P.TOUCH and j in (P.TOUCH, P.TOUCH + 1):
            L = f"L_tch{j}"
            t = (f"s_cmp_lg_u32 s{sCNT}, 4\n    s_cbranch_scc1 {L}\n    s_cmp_ge_u32 s{sWAVE}, 2\n    s_cbranch_scc1 {L}\n"
                 f"    s_lshl_b32 s{sTMP}, s{sWAVE}, 13\n    s_add_u32 s{sTMP}, s{sTMP}, s{sPF}\n    s_add_u32 s{sTMP}, s{sTMP}, {(j-P.TOUCH)*16384}\n"
                 f"    buffer_load_dword v{STV}, v{vLIN}, {srd(sWO)}, s{sTMP} offen\n{L}:")
            o = salu(t); o.cost = 2
            pre.append(o)
        qrd = []
        if j == 7:
            for ks in range(8):
                op = dsr128(V(QR + 4*ks, 4), aQB, ks*1024)
                op.rd.append(gZ if QZ else gA)
                qrd.append(op)
            if not QZ:
                pre += qrd; qrd = []
        if P.DMAFIRST:
            seq += interleave(vq, pre, every=2) if j == 0 else (vq + pre)
            ex = exp_ops(SR[p], j == 0)
        else:
            seq += pre
            ex = interleave(exp_ops(SR[p], j == 0), vq, every=P.DEVERY)
        if Z3:
            ms = opj_items(frags, j, p*SL, gA)
            insert_hoisted(ms, bar(gZ, pre=["s_waitcnt vmcnt(12)"], rd=[dA]), P.HOIST + (2 if qrd else 0))
            h = len(ex) if not qrd else max(len(ex) * 2 // 5, 1 + max(k for k, o in enumerate(ex) if dA in o.wr) if not P.DMAFIRST else 0)
            seq += ex[:h] + ms + qrd + ex[h:]
            seq += qk_items(frags, SR[1-p], 1-p, gZ, j != 7)
        else:
            if j == 0:
                ms = qk_items(frags, SR[1-p], 1-p, gA, True) + opj_items(frags, j, p*SL, gA)
            else:
                ms = opj_items(frags, j, p*SL, gA) + qk_items(frags, SR[1-p], 1-p, gA, j != 7)
            seq += ex + ms
        dA_prev = dA
    schedule(em, seq, frags, STG, NS, P.LA, budget=P.BUDGET, pair=P.PAIR)

def perm16(j): return 4*(j % 4) + j // 4

def dma_kv_full(slotbase, srdb, soff):
    ops = []
    for j in range(16):
        ops += dma_pair(f"s_mov_b32 m0, {slotbase + 1040*j - perm16(j)*256}", vKV, srdb, soff, perm16(j)*256, P.KVPOL)
    return ops
def dma_wo(slotbase, soffreg):
    ops = []
    for jj in range(4):
        for jh in range(4):
            j = jh*4 + jj
            pr = dma_pair(f"s_mov_b32 m0, {slotbase + 1040*j - jh*1024}", w_vlin, sWO, f"s{sTMP}", jh*1024, wopol())
            if jh == 0: pr.insert(1, salu(f"s_add_u32 s{sTMP}, s{soffreg}, {jj*4096}"))
            ops += pr
    return ops
def dma_wq(slotbase, colreg, const):
    ops = []
    for j in range(16):
        pr = dma_pair(f"s_mov_b32 m0, {slotbase + 1040*j}", w_vwq, sWQ, f"s{sTMP+1}", 0, P.WPOL)
        if P.WQLIN: pr.insert(1, salu(f"s_lshl_b32 s{sTMP+1}, s{colreg}, 10\n    s_add_u32 s{sTMP+1}, s{sTMP+1}, {const + perm16(j)*8192}\n    s_and_b32 s{sTMP+1}, s{sTMP+1}, 0x3fe000"))
        else: pr.insert(1, salu(f"s_add_u32 s{sTMP+1}, s{colreg}, {const + perm16(j)*8192}"))
        ops += pr
    return ops

loop_ctr = [0]
def tile_loop(kind, lds, soff_txt, srdb=None, voff=None, pol=""):
    loop_ctr[0] += 1
    L = f"L_tl{loop_ctr[0]}"
    A, B, C = 99, sTMP, 100
    t = [soff_txt, f"s_mov_b32 s{A}, {lds}", f"s_mov_b32 s{C}, 4", f"{L}:"]
    for i in range(4):
        if kind == 'wo':
            t += [f"s_add_u32 m0, s{A}, {3136*i}", "s_nop 0", f"buffer_load_dwordx4 v{w_vlin}, {srd(sWO)}, s{B} offen offset:{1024*i}{wopol()} lds"]
        elif kind == 'kv':
            t += [f"s_add_u32 m0, s{A}, {16*i}", "s_nop 0", f"buffer_load_dwordx4 v{vKV}, {srd(srdb)}, s{B} offen offset:{1024*i}{P.KVPOL} lds"]
        elif kind == 'x':
            t += [f"s_add_u32 m0, s{A}, {16*i}", "s_nop 0", f"buffer_load_dwordx4 v9, {srd(sX)}, s{B} offen offset:{1024*i}{P.XPOL} lds"]
        elif kind == 'wq':
            t += [f"s_add_u32 m0, s{A}, {1040*i}", f"s_add_u32 s{sTMP+1}, s{B}, {32768*i}", f"buffer_load_dwordx4 v{w_vwq}, {srd(sWQ)}, s{sTMP+1} offen{P.WPOL if P.W0POL == 'same' else P.W0POL} lds"]
    da, db = {'wo': (1040, 4096), 'kv': (4160, 4096 if P.KVLIN else 256), 'x': (4160, 4096), 'wq': (4160, 8192)}[kind]
    t += [f"s_add_u32 s{A}, s{A}, {da}", f"s_add_u32 s{B}, s{B}, {db}", f"s_sub_u32 s{C}, s{C}, 1", f"s_cmp_lg_u32 s{C}, 0", f"s_cbranch_scc1 {L}"]
    txt = "\n".join((x if x.endswith(":") else "    " + x) for x in t).lstrip()
    op = Op('raw', txt); op.ndma = 16
    return [op]

def qproj_items(frags, addr, base, gate, kq, acc_regs, xfrag, nmt):
    it = []
    for dt2 in range(2):
        for ks in range(8):
            frags.append(Frag([('tr', addr, base + t*1040 + ks*128 + dt2*64, 2*t) for t in range(2)], gate))
            for mt in range(nmt):
                it.append(MItem('mfma', D=acc_regs(dt2, mt), B=xfrag(mt, kq*8 + ks), acc=not (kq == 0 and ks == 0), frag=len(frags)-1))
    return it

def scale_cvt(a, dst):
    ops = []
    for k in range(9):
        if k < 8:
            if P.PKMUL:
                ops.append(valu(f"v_pk_mul_f32 v[{a+2*k}:{a+2*k+1}], v[{a+2*k}:{a+2*k+1}], s[{sC2}:{sC2+1}]", [a+2*k, a+2*k+1], [a+2*k, a+2*k+1]))
            else:
                ops.append(valu(f"v_mul_f32 v{a+2*k}, s{sC}, v{a+2*k}", [a+2*k], [a+2*k]))
                ops.append(valu(f"v_mul_f32 v{a+2*k+1}, s{sC}, v{a+2*k+1}", [a+2*k+1], [a+2*k+1]))
        if k > 0:
            kk = k - 1
            ops.append(valu(f"v_cvt_pk_bf16_f32 v{dst+kk}, v{a+2*kk}, v{a+2*kk+1}", [a+2*kk, a+2*kk+1], [dst+kk]))
    return ops

nonce_ctr = [0]
def nonce_op():
    nonce_ctr[0] += 1
    L = f"L_nn{nonce_ctr[0]}"
    t = (f"s_cmp_lg_u32 s{sT}, s94\n    s_cbranch_scc1 {L}\n    s_mov_b64 exec, 1\n"
         f"    buffer_atomic_cmpswap v[12:13], v14, s[84:87], 0 offen sc0 sc1\n    s_mov_b64 exec, -1\n{L}:")
    return [salu(t)] if P.FUSE else []

def wo_sel():
    lim = 100 if P.NODMA in (1, 2) else 6
    t = f"s_cmp_ge_i32 s{sT}, {lim}\n    s_cselect_b32 s{sWO+2}, 0x80000, 0\n    s_cselect_b32 s{sWOCUR}, s{sWOOFF}, s{sPF}"
    ops = nonce_op() + [salu(t)]
    if P.WOPF and not P.NODMA:
        ops.append(salu(f"s_sub_u32 s{sTMP}, s{sT}, {P.PFT-1}\n    s_cmp_lt_u32 s{sTMP}, 2\n    s_cselect_b32 s{sWO+2}, 0x80000, s{sWO+2}\n    s_cselect_b32 s{sTMP}, 16384, 0\n    s_add_u32 s{sPF}, s{sPF}, s{sTMP}"))
    return ops

def w3_acc(dt2, mt): return V(W_ACC + (dt2*3 + mt)*16, 16)
def w3_cv(dt2):
    ops = []
    for mt in range(3):
        a = w3_acc(dt2, mt)[0]
        ops += scale_cvt(a, a)
        for s2 in range(2):
            ops.append(dsw128(w_aQB, V(a + 4*s2, 4), mt*8192 + (dt2*2 + s2)*1024))
    return ops

def wave3_body(em):
    seq = []; frags = []
    lastB = None
    for kq in (1, 2, 3, 0):
        par = kq % 2
        gA = newgate(); gB = newgate(); dA = newgate(); dB = newgate(); gW = newgate(); dW = newgate()
        rdA = [lastB] if lastB else []
        wq = [salu(f"s_cmp_le_i32 s{sT}, {-100 if P.NODMA in (1, 2) else 20}\n    s_cselect_b32 s{sWQ+2}, s{sTMP+2}, 0")]
        if kq == 3:
            wq.append(salu(f"s_add_u32 s{sWQLIN}, s{sWQLIN}, 128\n    s_and_b32 s{sWQLIN}, s{sWQLIN}, 1023\n    s_xor_b32 s{sWQCOL}, s{sWQLIN}, s{sSW}"))
        wq += dma_wq(WQ0 + (1-par)*SL, sWQCOL, ((kq+1) % 4) * 128 * 8192)
        wo = wo_sel() + dma_wo(WO0 + par*SL, sWOCUR)
        wo.append(salu(f"s_add_u32 s{sWOOFF}, s{sWOOFF}, 16384\n    s_and_b32 s{sWOOFF}, s{sWOOFF}, 0x7ffff\n    s_add_u32 s{sT}, s{sT}, 1", wr=[dB]))
        vq = kvq_ops(V0 + (1-par)*SL, sV, sVOFF, sM0V, 30, gA, dA)
        if P.PLAN == 0:
            A = wq + vq; A[0].rd.append(gA)
            if P.WOQ:
                wo = nonce_op() + woq_ops(WO0 + par*SL, w_vlin) + [salu(f"s_add_u32 s{sT}, s{sT}, 1", wr=[dB])]
            B = kvq_ops(K0 + (1-par)*SL, sK, sKOFF, sM0K, 28, gB, newgate()) + wo
            wA, wB, nA = (28, 28, P.W_PRE) if P.WOQ else (40, 40, P.W_PRE)
            wW = (12 if P.WOQ else 24) + nA
        elif P.PLAN == 2:
            gZ = newgate(); dZ = newgate()
            A = wq + vq; A[0].rd.append(gA)
            Z = wo[:-1] + [salu(f"s_add_u32 s{sWOOFF}, s{sWOOFF}, 16384\n    s_and_b32 s{sWOOFF}, s{sWOOFF}, 0x7ffff", wr=[dZ])]; Z[0].rd.append(gZ)
            B = kvq_ops(K0 + (1-par)*SL, sK, sKOFF, sM0K, 28, gB, newgate()) + [salu(f"s_add_u32 s{sT}, s{sT}, 1", wr=[dB])]
            wA, wZ, wB, nA = 44, 60, 56, P.W_PRE
            wW = 24 + nA
        else:
            A = kvq_ops(K0 + par*SL, sK, sKOFF, sM0K, 29, gA, newgate()) + vq
            B = wq + wo; B[0].rd.append(gB)
            wA, wB, nA = 36, 40, 8
            wW = 24
            if P.PLAN == 3:
                gZ = newgate(); dZ = dA; Z = []
                wA, wZ = 40, 44
        seq.append(bar(gA, pre=stamp_txt() + [f"s_waitcnt vmcnt({wA})"], rd=rdA, drain=bool(P.STAMP)))
        items = qproj_items(frags, w_aWQ, par*SL, gW, kq, w3_acc, XF3, 3)
        cut = 0; cnt = 0
        while cnt < nA:
            if A[cut].kind == 'dma': cnt += 1
            cut += 1
        A1 = A[:cut] + [salu("s_nop 0", wr=[dW])]; A2 = A[cut:]
        if kq == 0:
            c = w3_cv(1) + [valu(f"v_xor_b32 v{w_aQB}, 0x1000, v{w_aQB}", [w_aQB], [w_aQB])]
            A2 = interleave(c, A2, every=1)
        seq += A1
        seq.append(MItem('bar', texts=[f"s_waitcnt vmcnt({wW})"], rd=[dW], wr=[gW]))
        seq += A2
        if P.PLAN in (2, 3):
            seq += items[:P.W_SPLITZ]
            seq.append(bar(gZ, pre=[f"s_waitcnt vmcnt({wZ})"], rd=[dA]))
            seq += Z
            seq += items[P.W_SPLITZ:P.W_SPLIT]
            seq.append(bar(gB, pre=[f"s_waitcnt vmcnt({wB})"], rd=[dZ]))
        else:
            seq += items[:P.W_SPLIT]
            seq.append(bar(gB, pre=[f"s_waitcnt vmcnt({wB})"], rd=[dA]))
        if kq == 3:
            B = interleave(B, w3_cv(0), every=1)
        seq += B
        seq += items[P.W_SPLIT:]
        lastB = dB
    schedule(em, seq, frags, W_STG, W_NS, P.W_LA, budget=P.W_BUDGET, pair=False)

def wave3_body4(em):
    seq = []; frags = []
    lastA = None
    for kq in (1, 2, 3, 0):
        par = kq % 2
        gA = newgate(); gB = newgate(); gZ = newgate(); dA = newgate(); dB = newgate(); gW = newgate(); dW = newgate()
        wq = [salu(f"s_cmp_le_i32 s{sT}, {-100 if P.NODMA in (1, 2) else 20}\n    s_cselect_b32 s{sWQ+2}, s{sTMP+2}, 0", rd=[gB])]
        if kq == 3:
            wq.append(salu(f"s_add_u32 s{sWQLIN}, s{sWQLIN}, 128\n    s_and_b32 s{sWQLIN}, s{sWQLIN}, 1023\n    s_xor_b32 s{sWQCOL}, s{sWQLIN}, s{sSW}"))
        wq += dma_wq(WQ0 + (1-par)*SL, sWQCOL, ((kq+1) % 4) * 128 * 8192)
        wo = wo_sel() + dma_wo(WO0 + par*SL, sWOCUR)
        wo.append(salu(f"s_add_u32 s{sWOOFF}, s{sWOOFF}, 16384\n    s_and_b32 s{sWOOFF}, s{sWOOFF}, 0x7ffff\n    s_add_u32 s{sT}, s{sT}, 1", wr=[dB]))
        B = wq + wo
        A = kvq_ops(K0 + (1-par)*SL, sK, sKOFF, sM0K, 29, gA, newgate()) + kvq_ops(V0 + par*SL, sV, sVOFF, sM0V, 30, gA, dA)
        items = qproj_items(frags, w_aWQ, par*SL, gW, kq, w3_acc, XF3, 3)
        seq.append(bar(gB, pre=["s_waitcnt vmcnt(40)"], rd=[lastA] if lastA else []))
        seq.append(MItem('bar', texts=["s_waitcnt vmcnt(24)"], wr=[gW]))
        seq += B
        seq += items[:P.W4_1]
        seq.append(bar(gA, pre=stamp_txt() + ["s_waitcnt vmcnt(40)"], rd=[dB], drain=bool(P.STAMP)))
        if kq == 0:
            c = w3_cv(1) + [valu(f"v_xor_b32 v{w_aQB}, 0x1000, v{w_aQB}", [w_aQB], [w_aQB], ), salu("s_nop 0", wr=[dW])]
            A = A + c
        seq += A
        seq += items[P.W4_1:P.W4_2]
        seq.append(bar(gZ, pre=["s_waitcnt vmcnt(44)"], rd=[dA] + ([dW] if kq == 0 else []), drain=(kq == 0)))
        if kq == 3:
            seq += w3_cv(0)
        seq += items[P.W4_2:]
        lastA = dA
    schedule(em, seq, frags, W_STG, W_NS, P.W_LA, budget=P.W_BUDGET, pair=False)

def wave3_body5(em):
    seq = []; frags = []
    lastB = None
    for kq in range(4):
        par = kq % 2
        gA = newgate(); gB = newgate(); gZ = newgate(); dA = newgate(); dB = newgate(); dZ = newgate(); gW = newgate(); dW = newgate(); dC = newgate()
        wq = [salu(f"s_cmp_le_i32 s{sT}, {-100 if P.NODMA in (1, 2) else 21}\n    s_cselect_b32 s{sWQ+2}, s{sTMP+2}, 0", rd=[gA])]
        if kq == 3:
            wq.append(salu(f"s_add_u32 s{sWQLIN}, s{sWQLIN}, 128\n    s_and_b32 s{sWQLIN}, s{sWQLIN}, 1023\n    s_xor_b32 s{sWQCOL}, s{sWQLIN}, s{sSW}"))
        wq += dma_wq(WQ0 + (1-par)*SL, sWQCOL, ((kq+1) % 4) * 128 * 8192)
        A = wq + kvq_ops(V0 + par*SL, sV, sVOFF, sM0V, 30, gA, dA)
        Z = wo_sel() + dma_wo(WO0 + (1-par)*SL, sWOCUR) + [salu(f"s_add_u32 s{sWOOFF}, s{sWOOFF}, 16384\n    s_and_b32 s{sWOOFF}, s{sWOOFF}, 0x7ffff", wr=[dZ])]
        Z[0].rd.append(gZ)
        B = kvq_ops(K0 + par*SL, sK, sKOFF, sM0K, 28, gB, newgate()) + [salu(f"s_add_u32 s{sT}, s{sT}, 1", wr=[dB])]
        nA = P.W_PRE
        seq.append(bar(gA, pre=stamp_txt() + ["s_waitcnt vmcnt(44)"], rd=[lastB] if lastB else [], drain=bool(P.STAMP)))
        items = qproj_items(frags, w_aWQ, par*SL, gW, kq, w3_acc, XF3, 3)
        cut = 0; cnt = 0
        while cnt < nA:
            if A[cut].kind == 'dma': cnt += 1
            cut += 1
        A1 = A[:cut] + [salu("s_nop 0", wr=[dW])]; A2 = A[cut:]
        if kq == 0:
            c = w3_cv(1) + [valu(f"v_xor_b32 v{w_aQB}, 0x1000, v{w_aQB}", [w_aQB], [w_aQB]), salu("s_nop 0", wr=[dC])]
            A2 = interleave(c, A2, every=1)
        seq += A1
        seq.append(MItem('bar', texts=[f"s_waitcnt vmcnt({24 + nA})"], rd=[dW], wr=[gW]))
        seq += A2
        seq += items[:P.W_SPLITZ]
        seq.append(bar(gZ, pre=["s_waitcnt vmcnt(60)"], rd=[dA] + ([dC] if kq == 0 else []), drain=(kq == 0)))
        seq += Z
        seq += items[P.W_SPLITZ:P.W_SPLIT]
        seq.append(bar(gB, pre=["s_waitcnt vmcnt(56)"], rd=[dZ]))
        if kq == 3:
            B = interleave(w3_cv(0), B, every=2)
        seq += B
        seq += items[P.W_SPLIT:]
        lastB = dB
    schedule(em, seq, frags, W_STG, W_NS, P.W_LA, budget=P.W_BUDGET, pair=False)

class VM:
    def __init__(self, em, init): self.em = em; self.q = list(init)
    def issue(self, tag, ops):
        n = 0
        for o in ops:
            self.em.emit(o)
            if o.kind == 'dma': n += 1
            n += getattr(o, 'ndma', 0)
        self.q.append((tag, n))
    def need(self, *tags):
        last = -1
        for i, (t, n) in enumerate(self.q):
            if t in tags: last = i
        if last >= 0:
            n = sum(c for (_, c) in self.q[last+1:])
            self.em.raw(f"s_waitcnt vmcnt({min(n, 63)})")
            self.q = self.q[last+1:]

def decode(R):
    if P.MAP == 1:
        R("s_and_b32 s3, s2, 7")
        R("s_bfe_u32 s4, s2, 0x40003")
        R("s_lshr_b32 s5, s2, 7")
        return
    R("s_and_b32 s3, s2, 7")
    R("s_lshr_b32 s4, s2, 3")
    R("s_lshr_b32 s5, s3, 2")
    R("s_and_b32 s3, s3, 3")
    R("s_lshl_b32 s3, s3, 1")
    R("s_lshr_b32 s6, s4, 4")
    R("s_add_u32 s3, s3, s6")
    R("s_and_b32 s4, s4, 15")
def member(hg): return hg if P.MAP == 1 else (hg // 2) + 128*(hg % 2)

def gen_main(em):
    R = em.raw
    em.label(f"{NAME}_kernel")
    R("s_cmp_ge_u32 s2, 256")
    R("s_cbranch_scc1 L_end")
    R("s_load_dwordx8 s[48:55], s[0:1], 0")
    R("s_load_dwordx2 s[56:57], s[0:1], 32")
    R("s_load_dwordx8 s[60:67], s[0:1], 40")
    R("s_load_dwordx2 s[68:69], s[0:1], 72")
    R("s_load_dwordx2 s[70:71], s[0:1], 96")
    if P.CPF:
        R("s_getpc_b64 s[78:79]")
        em.label("L_pc")
        R(f"s_sub_u32 s78, s78, L_pc-{NAME}_kernel")
        R("s_subb_u32 s79, s79, 0")
        R("s_lshr_b32 s3, s2, 3")
        R("s_lshl_b32 s3, s3, 11")
        R("v_lshlrev_b32 v28, 7, v0")
        R("v_add_u32 v28, s3, v28")
        R(f"v_min_u32 v28, L_code_end-{NAME}_kernel-4, v28")
        R("v_cmp_gt_u32 vcc, 16, v0")
        R("s_and_saveexec_b64 s[80:81], vcc")
        R("s_cbranch_execz L_nocpf")
        R("global_load_dword v10, v28, s[78:79]")
        em.label("L_nocpf")
        R("s_mov_b64 exec, s[80:81]")
    R("v_lshrrev_b32 v1, 6, v0")
    R("v_and_b32 v0, 63, v0")
    R(f"v_readfirstlane_b32 s{sWAVE}, v1")
    decode(R)
    R(f"s_mov_b32 s{sC}, {f32bits(C_SCALE):#x}")
    R(f"s_mov_b32 s{sC2}, {f32bits(C_SCALE):#x}")
    R(f"s_mov_b32 s{sC2+1}, {f32bits(C_SCALE):#x}")
    R(f"s_mov_b32 s{sTHR}, {f32bits(P.THR):#x}")
    R(f"s_mul_i32 s{sM0W}, s{sWAVE}, 4160")
    R(f"s_mov_b32 s{sM0N}, {M0_NULL:#x}")
    R("s_waitcnt lgkmcnt(0)")
    R("s_cmp_eq_u32 s5, 0")
    for i in range(5):
        R(f"s_cselect_b64 s[{48+2*i}:{49+2*i}], s[{48+2*i}:{49+2*i}], s[{60+2*i}:{61+2*i}]")
    R("s_lshl_b32 s6, s4, 22")
    R("s_lshl_b32 s7, s3, 19")
    R("s_add_u32 s6, s6, s7")
    for (d, p) in ((sK, 50), (sV, 52)):
        R(f"s_add_u32 s{d}, s{p}, s6")
        R(f"s_addc_u32 s{d+1}, s{p+1}, 0")
        R(f"s_and_b32 s{d+1}, s{d+1}, 0xffff")
        R(f"s_mov_b32 s{d+2}, 0x80000")
        R(f"s_mov_b32 s{d+3}, 0x20000")
    R("s_lshl_b32 s6, s3, 10")
    R(f"s_add_u32 s{sWQ}, s54, s6")
    R(f"s_addc_u32 s{sWQ+1}, s55, 0")
    R(f"s_and_b32 s{sWQ+1}, s{sWQ+1}, 0xffff")
    R(f"s_sub_u32 s{sWQ+2}, 0x400000, s6")
    R(f"s_mov_b32 s{sTMP+2}, s{sWQ+2}")
    R(f"s_mov_b32 s{sWQ+3}, 0x20000")
    R(f"s_add_u32 s{sWO}, s56, s7")
    R(f"s_addc_u32 s{sWO+1}, s57, 0")
    R(f"s_and_b32 s{sWO+1}, s{sWO+1}, 0xffff")
    R(f"s_mov_b32 s{sWO+2}, 0x80000")
    R(f"s_mov_b32 s{sWO+3}, 0x20000")
    R("s_mul_i32 s6, s4, 98304")
    R(f"s_add_u32 s{sX}, s48, s6")
    R(f"s_addc_u32 s{sX+1}, s49, 0")
    R(f"s_and_b32 s{sX+1}, s{sX+1}, 0xffff")
    R(f"s_mov_b32 s{sX+2}, 98304")
    R(f"s_mov_b32 s{sX+3}, 0x20000")
    R("s_mul_i32 s6, s2, 98304")
    R(f"s_add_u32 s{sWS}, s70, s6")
    R(f"s_addc_u32 s{sWS+1}, s71, 0")
    R(f"s_and_b32 s{sWS+1}, s{sWS+1}, 0xffff")
    R(f"s_mov_b32 s{sWS+2}, 98304")
    R(f"s_mov_b32 s{sWS+3}, 0x20000")
    R("v_bfe_u32 v20, v0, 2, 2")
    R("v_lshrrev_b32 v21, 5, v0")
    R("v_bfe_u32 v22, v0, 4, 1")
    R("v_and_b32 v23, 1, v0")
    R("v_bfe_u32 v24, v0, 1, 1")
    R("v_lshlrev_b32 v25, 2, v20")
    R("v_lshl_add_u32 v26, v21, 1, v25")
    R("v_mul_u32_u24 v26, 1040, v26")
    R("v_lshl_add_u32 v26, v22, 5, v26")
    R("v_lshl_add_u32 v26, v23, 4, v26")
    R("v_lshl_add_u32 v26, v24, 3, v26")
    R("v_and_b32 v27, 15, v0")
    R("v_mul_u32_u24 v27, 1040, v27")
    R("v_lshl_add_u32 v27, v22, 9, v27")
    R("v_lshl_add_u32 v27, v21, 4, v27")
    R("v_lshrrev_b32 v28, 4, v0")
    R("v_and_b32 v29, 15, v0")
    R("v_lshlrev_b32 v29, 4, v29")
    R(f"v_lshl_add_u32 v{vKV}, v28, 12, v29")
    if P.KVLIN: R(f"v_lshlrev_b32 v{vKV}, 4, v0")
    if P.ROT:
        R(f"s_and_b32 s{sROT}, s4, 3")
        R(f"s_lshl_b32 s{sROT}, s{sROT}, 17")
        R(f"s_bfe_u32 s{sSW}, s4, 0x10002")
        R(f"s_lshl_b32 s{sSW}, s{sSW}, 7")
    else:
        R(f"s_mov_b32 s{sROT}, 0")
        R(f"s_mov_b32 s{sSW}, 0")
    R(f"s_lshl_b32 s{sPF}, s4, 15")
    if P.TXOR:
        R(f"s_lshr_b32 s{sXR}, s4, 2")
        R(f"s_lshl_b32 s6, s3, 2")
        R(f"s_or_b32 s{sXR}, s{sXR}, s6")
        R(f"s_and_b32 s{sXR}, s{sXR}, 7")
        R(f"s_lshl_b32 s{sXR}, s{sXR}, 14")
    else:
        R(f"s_mov_b32 s{sXR}, 0")
    R(f"s_lshl_b32 s{sVOFF}, s{sWAVE}, {12 if P.KVLIN else 8}")
    R(f"s_add_u32 s{sVOFF}, s{sVOFF}, s{sROT}")
    R(f"s_add_u32 s{sKOFF}, s{sVOFF}, {(1 if P.PLAN in (1, 3, 4) else 2)*16384}")
    R(f"s_mov_b32 s{sT}, -1")
    if P.WOQ and P.PLAN == 0:
        R(f"s_lshl_b32 s{sWOOFF}, s{sWAVE}, 10")
        R(f"s_add_u32 s{sWOOFF}, s{sWOOFF}, s{sROT}")
        R(f"s_add_u32 s{sWOOFF}, s{sWOOFF}, {(-7*16384) & 0x7ffff:#x}")
        R(f"s_and_b32 s{sWOOFF}, s{sWOOFF}, 0x7ffff")
    if P.STAMP:
        R("s_mov_b32 s98, 0")
        R(f"v_mov_b32 v{STV}, 0")
    stamp(em)
    R(f"s_cmp_eq_u32 s{sWAVE}, 3")
    R("s_cbranch_scc0 L_att" if P.W3FIRST else "s_cbranch_scc1 L_wave3")
    em.mark_att = len(em.lines)
    em.label("L_att")

    R("v_and_b32 v28, 3, v0")
    R("v_lshl_add_u32 v28, v28, 2, v20")
    R("v_mul_u32_u24 v28, 1040, v28")
    R("v_lshl_add_u32 v28, v22, 8, v28")
    R(f"v_lshl_add_u32 v{aK}, v21, 4, v28")
    R("v_add_u32 v28, v25, v21")
    R("v_mul_u32_u24 v28, 1040, v28")
    R("v_and_b32 v29, 3, v0")
    R("v_lshl_add_u32 v29, v29, 3, v28")
    R("v_lshl_add_u32 v29, v22, 5, v29")
    R(f"v_add_u32 v{aV}, {V0}, v29")
    R("v_lshl_add_u32 v29, v23, 5, v28")
    R("v_lshl_add_u32 v29, v22, 4, v29")
    R("v_lshl_add_u32 v29, v24, 3, v29")
    R(f"v_add_u32 v{aWO}, {WO0}, v29")
    R(f"s_lshl_b32 s3, s{sWAVE}, 13")
    R(f"s_add_u32 s3, s3, {QB}")
    R(f"v_lshlrev_b32 v{aQB}, 4, v0")
    R(f"v_add_u32 v{aQB}, s3, v{aQB}")
    R(f"v_mov_b32 v{AUX}, v26")
    R(f"v_lshlrev_b32 v{vLIN}, {7 if P.TOUCH else 4}, v0")
    R(f"s_mul_i32 s3, s{sWAVE}, {SL}")
    R(f"v_add_u32 v{T2}, s3, v27")
    R(f"v_add_u32 v{T3}, {5*SL}, v{T2}")
    for i in range(8): R(f"v_mov_b32 v{16+i}, 0")
    R("s_nop 1")
    for nt in range(16):
        R(f"v_mfma_f32_32x32x16_bf16 a[{16*nt}:{16*nt+15}], v[16:19], v[20:23], 0")
    if P.TLB:
        R(f"s_cmp_lg_u32 s{sWAVE}, 1")
        R("s_cbranch_scc1 L_notlb")
        if P.TLB > 1: R(f"s_sleep {P.TLB}")
        R("v_lshlrev_b32 v24, 16, v0")
        for i, sr in enumerate([sWQ, sK, sV, sWO, sWS]):
            R(f"buffer_load_dword v{240+i}, v24, {srd(sr)}, 0 offen" + (" nt" if sr in (sK, sV) else ""))
        em.label("L_notlb")
    QA = SR[1]
    seq = []; frags = []
    tmpaddr = [T0, T1]
    for ti in range(8):
        if ti in (0, 2, 3, 6):
            g = newgate()
            xr = []
            if ti in (2, 3):
                for ks in range(16): xr += XFA(ks + 16*(ti-2))
            seq.append(bar(g, st=1, drain=True, rd=xr, pre=(["s_waitcnt vmcnt(0)"] if ti == 6 else [])))
            if ti in (0, 2):
                for ks in range(16):
                    op = dsr128(XFA(ks + 8*ti), T2 if ti == 0 else T3, ks*32)
                    op.rd.append(g)
                    seq.append(op)
        ta = tmpaddr[ti % 2]
        ga = newgate()
        seq.append(valu(f"v_add_u32 v{ta}, {WLOC[ti]}, v{AUX}", [AUX], [ta]))
        seq.append(MItem('bar', texts=[], rd=[ta], wr=[ga]))
        its = qproj_items(frags, ta, 0, ga, ti % 4, lambda dt2, mt: V(QA + 16*dt2, 16), lambda mt, ks: XFA(ks), 1)
        for it in its: it.rd.append(ta)
        seq += its[:8]
        if ti % 4 == 3: seq += scale_cvt(QA, QR + 16*(ti//4))
        seq += its[8:]
        if ti % 4 == 3: seq += scale_cvt(QA + 16, QR + 16*(ti//4) + 8)
    for i in range(64):
        seq.append(valu(f"v_mov_b32 v{OACC+i}, 0", [], [OACC+i]))
    for i in range(16):
        seq.append(valu(f"v_mov_b32 v{SR[1]+i}, 0", [], [SR[1]+i]))
    seq.append(valu(f"v_mov_b32 v{LA_}, 1.0", [], [LA_]))
    seq.append(valu(f"v_mov_b32 v{LB_}, 0", [], [LB_]))
    gA = newgate()
    seq.append(bar(gA, st=1))
    if P.PLAN in (1, 3, 4): seq += kvq_ops(K0+SL, sK, sKOFF, sM0K, 29, gA, newgate())
    dz = newgate()
    seq += kvq_ops(V0, sV, sVOFF, sM0V, 30, gA, dz)
    if P.PLAN in (2, 3, 4, 5): seq.append(bar(newgate(), rd=[dz]))
    seq += qk_items(frags, SR[0], 0, gA, False)
    schedule(em, seq, frags, STG, NS, P.LA, budget=P.BUDGET)
    R(f"s_mov_b32 s{sCNT}, 4")
    em.fence()
    em.label("L_att_loop")
    n0 = em.ninstr; nn0 = em.nops; w0 = em.waits
    attention_head(em)
    print(f"attention head body: {em.ninstr-n0} instrs, {em.nops-nn0} nop states, {em.waits-w0} waits", file=sys.stderr)
    R(f"s_sub_u32 s{sCNT}, s{sCNT}, 1")
    R(f"s_cmp_lg_u32 s{sCNT}, 0")
    em.fence()
    R("s_cbranch_scc1 L_att_loop")
    seq = []; frags = []
    gB = newgate(); g1 = newgate()
    WOQ = P.WOQ and P.PLAN == 0
    seq.append(bar(gB, pre=["s_waitcnt vmcnt(12)" if WOQ else "s_waitcnt vmcnt(0)"], st=2))
    dT = newgate()
    if WOQ:
        w = woq_ops(WO0 + SL, vLIN); w[0].rd.append(gB); w[-1].wr.append(dT)
        seq += w
    seq.append(valu(f"v_subrev_u32 v{T0}, {WO0}, v{aWO}", [aWO], [T0]))
    seq.append(valu(f"v_add_u32 v{DELTA}, {QB-WO0}, v{aWO}", [aWO], [DELTA]))
    seq.append(valu(f"v_lshlrev_b32 v{T1}, 4, v0", [], [T1]))
    seq.append(salu(f"s_lshl_b32 s3, s{sWAVE}, 15"))
    seq += pv_items(frags, SR[1], 1, gB, False)
    insert_hoisted(seq, bar(g1, st=1, rd=[T0, DELTA, dT], pre=(["s_waitcnt vmcnt(0)"] if WOQ else [])), P.HOIST)
    seq += finalize_ops()
    for nt in range(16):
        for ks in range(8):
            if ks < 4: seq.append(opj_item(frags, ks, nt, ks*SL, g1, aWO))
            elif ks < 7: seq.append(opj_item(frags, ks, nt, (ks-4)*SL, g1, T0))
            else: seq.append(opj_item(frags, ks, nt, 0, g1, DELTA))
        b = 176 + (nt % 4) * 16
        for r in range(16):
            seq.append(valu(f"v_accvgpr_read_b32 v{b+r}, a{16*nt+r}", AG(16*nt+r), [b+r]))
        for k in range(8):
            seq.append(valu(f"v_cvt_pk_bf16_f32 v{b+k}, v{b+2*k}, v{b+2*k+1}", [b+2*k, b+2*k+1], [b+k]))
        for q in range(2):
            off = (nt*2 + q) * 1024
            if off % 4096 == 0:
                seq.append(salu(f"s_add_u32 s4, s3, {off}"))
            seq.append(Op('vmem', f"buffer_store_dwordx4 v[{b+4*q}:{b+4*q+3}], v{T1}, {srd(sWS)}, s4 offen offset:{off % 4096}{P.STPOL}", rd=V(b+4*q, 4) + [T1], tag='store'))
    schedule(em, seq, frags, STG, NS, P.LA, budget=P.BUDGET)
    if P.FUSE:
        stamp(em)
        R("s_waitcnt vmcnt(0)")
        stamp(em)
        R("s_barrier")
        R("s_branch L_red")
        emit_rare(em)
        rare_blocks.clear()
    stamp(em)
    if P.STAMP: R("s_waitcnt vmcnt(0)")
    stamp(em)
    stamp_store(em)
    if P.DBG and not P.FUSE:
        R(f"s_cmp_lg_u32 s{sWAVE}, 0")
        R("s_cbranch_scc1 L_dbgskip")
        R("s_load_dwordx2 s[72:73], s[0:1], 88")
        R(f"v_readlane_b32 s76, v{STV}, 0")
        idx = [1, 5, 6, 14, 22, 30, 38, 40]
        for i, l in enumerate(idx): R(f"v_readlane_b32 s{80+i}, v{STV}, {l}")
        R("s_waitcnt lgkmcnt(0)")
        R("s_and_b32 s73, s73, 0xffff")
        R("s_mov_b32 s74, 256")
        R("s_mov_b32 s75, 0x20000")
        R("v_mov_b32 v1, 0")
        R("v_mov_b32 v2, 0")
        R("s_not_b32 s77, s76")
        R("v_writelane_b32 v2, s77, 8")
        R("v_writelane_b32 v2, s87, 9")
        for i in range(8):
            R(f"s_sub_u32 s{80+i}, s{80+i}, s76")
            R(f"v_writelane_b32 v1, s{80+i}, {i}")
        R("v_cmp_gt_u32 vcc, 40, v0")
        R("s_and_saveexec_b64 s[78:79], vcc")
        R("buffer_atomic_add v1, v0, s[72:75], 0 offen")
        R("buffer_atomic_umax v2, v0, s[72:75], 0 offen")
        R("s_waitcnt vmcnt(0)")
        em.label("L_dbgskip")
    R("s_endpgm")
    emit_rare(em)

    em.mark_w3 = len(em.lines)
    em.label("L_wave3")
    em.reset()
    R(f"v_lshlrev_b32 v{w_vlin}, 4, v0")
    R("v_lshrrev_b32 v28, 3, v0")
    R("v_and_b32 v29, 7, v0")
    R("v_lshlrev_b32 v29, 4, v29")
    R(f"v_lshl_add_u32 v{w_vwq}, v28, 17, v29")
    if P.WQLIN: R(f"v_lshlrev_b32 v{w_vwq}, 4, v0")
    R(f"v_add_u32 v{w_aWQ}, {WQ0}, v26")
    R(f"v_add_u32 v{w_aQB}, {QB}, v{w_vlin}")
    R(f"v_mov_b32 v{w_aX}, v27")
    R(f"v_add_u32 v8, {5*SL}, v27")
    R("v_and_b32 v29, 31, v0")
    R("v_lshlrev_b32 v29, 4, v29")
    R("v_lshl_add_u32 v9, v21, 14, v29")
    R(f"s_lshr_b32 s{sWQCOL}, s{sROT}, 9")
    R(f"s_lshl_b32 s3, s{sSW}, 5")
    R(f"v_add_u32 v{w_aQB}, s3, v{w_aQB}")
    vm = VM(em, [])
    def xt(mt, kh, loc): return tile_loop('x', loc, f"s_mov_b32 s{sTMP}, {mt*32768 + kh*512}")
    def w0(ti): return tile_loop('wq', WLOC[ti], f"s_add_u32 s{sTMP}, s{sWQCOL}, {(ti % 4)*128*8192 + (ti // 4)*128}")
    for mt in range(3): vm.issue("X0", xt(mt, 0, mt*SL))
    vm.issue("W0", w0(0)); vm.issue("W1", w0(1))
    for mt in range(3): vm.issue("X1", xt(mt, 1, (5+mt)*SL))
    vm.issue("W2", w0(2))
    vm.need("W1")
    R("s_barrier")
    for mt in range(3):
        for ks in range(16):
            em.emit(dsr128(XF3(mt, ks), w_aX, mt*SL + ks*32))
    em.wait_ds(0)
    vm.need("W2")
    R("s_barrier")
    vm.issue("W3", w0(3)); vm.issue("W4", w0(4)); vm.issue("W5", w0(5))
    vm.issue("K0", tile_loop('kv', K0, f"s_xor_b32 s{sTMP}, s{sROT}, s{sXR}", sK))
    if P.PLAN in (0, 2):
        vm.issue("K1", tile_loop('kv', K0+SL, f"s_add_u32 s{sTMP}, s{sROT}, 16384\n    s_xor_b32 s{sTMP}, s{sTMP}, s{sXR}", sK))
    for mt in range(3):
        for ks in range(16):
            em.emit(dsr128(XF3(mt, 16+ks), 8, mt*SL + ks*32))
    em.wait_ds(0)
    vm.need("W5")
    R("s_barrier")
    if P.FUSE:
        R("s_load_dwordx2 s[84:85], s[0:1], 88")
        R("s_memrealtime s[90:91]")
        R("v_mov_b32 v13, 0")
        R("v_mov_b32 v14, 252")
        R("s_bfe_u32 s94, s2, 0x40003")
        R("s_add_u32 s94, s94, 2")
        R("s_waitcnt lgkmcnt(0)")
        R("s_and_b32 s85, s85, 0xffff")
        R("s_mov_b32 s86, 256")
        R("s_mov_b32 s87, 0x20000")
        R("s_or_b32 s90, s90, 1")
        R("v_mov_b32 v12, s90")
        R("v_mov_b32 v15, s90")
    vm.issue("W6", w0(6)); vm.issue("W7", w0(7))
    R(f"s_add_u32 s{sWQLIN}, s{sWQCOL}, 256")
    R(f"s_and_b32 s{sWQLIN}, s{sWQLIN}, 1023")
    R(f"s_xor_b32 s{sWQCOL}, s{sWQLIN}, s{sSW}")
    vm.issue("U0", tile_loop('wq', WQ0, f"s_mov_b32 s{sTMP}, s{sWQCOL}"))
    if P.PLAN == 5:
        vm.issue("K1", tile_loop('kv', K0+SL, f"s_add_u32 s{sTMP}, s{sROT}, 16384\n    s_xor_b32 s{sTMP}, s{sTMP}, s{sXR}", sK))
        R(f"v_xor_b32 v{w_aQB}, 0x1000, v{w_aQB}")
    else:
        vm.issue("U1", tile_loop('wq', WQ0+SL, f"s_add_u32 s{sTMP}, s{sWQCOL}, {128*8192}"))
    vm.need("W7")
    R("s_barrier")
    if P.PLAN != 5:
        vm.need("U0")
        frags = []
        seq = qproj_items(frags, w_aWQ, 0, None, 0, w3_acc, XF3, 3)
        schedule(em, seq, frags, W_STG, W_NS, P.W_LA, budget=P.W_BUDGET, pair=False)
    if not (P.WOQ and P.PLAN == 0):
        R(f"s_add_u32 s{sWOOFF}, s{sROT}, {(-7*16384) & 0x7ffff:#x}")
        R(f"s_and_b32 s{sWOOFF}, s{sWOOFF}, 0x7ffff")
    R(f"s_mov_b32 s{sCNT}, 6")
    R("s_waitcnt vmcnt(16)" if P.PLAN == 5 else "s_waitcnt vmcnt(0)")
    if P.PLAN == 4:
        stamp(em)
        R("s_barrier")
        for o in kvq_ops(K0+SL, sK, sKOFF, sM0K, 29, 0, 0) + kvq_ops(V0, sV, sVOFF, sM0V, 30, 0, 0): em.emit(o)
        R("s_barrier")
    em.fence(2)
    em.label("L_w3_loop")
    n0 = em.ninstr; nn0 = em.nops; w0 = em.waits
    if P.PLAN == 4: wave3_body4(em)
    elif P.PLAN == 5: wave3_body5(em)
    else: wave3_body(em)
    print(f"wave3 body: {em.ninstr-n0} instrs, {em.nops-nn0} nop states, {em.waits-w0} waits", file=sys.stderr)
    R(f"s_sub_u32 s{sCNT}, s{sCNT}, 1")
    R(f"s_cmp_lg_u32 s{sCNT}, 0")
    em.fence(2)
    R("s_cbranch_scc1 L_w3_loop")
    if P.PLAN == 4:
        vm = VM(em, [("V23", 4), ("WQ", 16), ("WO24", 16), ("K25", 4), ("V24", 4)])
        R(f"s_add_u32 s3, s{sWOOFF}, {(26-17)*16384}\n    s_and_b32 s3, s3, 0x7ffff")
        for t in range(23, 32):
            if t > 23:
                stamp(em)
                vm.need(f"WO{t}")
                R("s_barrier")
                if t <= 29: vm.issue(f"K{t+2}", kvq_ops(K0 + (t % 2)*SL, sK, sKOFF, sM0K, 29, 0, 0))
                if t <= 30: vm.issue(f"V{t+1}", kvq_ops(V0 + ((t+1) % 2)*SL, sV, sVOFF, sM0V, 30, 0, 0))
                if t == 31:
                    vm.issue("TT", dma_wo(V0, 3))
                vm.need(f"K{t+1}")
                R("s_barrier")
            vm.need(f"V{t}")
            R("s_barrier")
            ops = dma_wo(WO0 + (t % 2)*SL, sWOOFF)
            ops.append(salu(f"s_add_u32 s{sWOOFF}, s{sWOOFF}, 16384\n    s_and_b32 s{sWOOFF}, s{sWOOFF}, 0x7ffff\n    s_add_u32 s{sT}, s{sT}, 1"))
            vm.issue(f"WO{t+2}", ops)
            if t in (23, 24):
                vm.issue("TT", dma_wo(WQ0 + (t-23)*SL, 3))
                R("s_add_u32 s3, s3, 16384")
            if t == 25:
                R(f"s_add_u32 s4, s3, {3*16384}")
                vm.issue("TT", dma_wo(QB, 4))
            if t in (29, 30):
                vm.issue("TT", dma_wo(K0 + (t-29)*SL, 3))
                R("s_add_u32 s3, s3, 16384")
        stamp(em)
        R("s_waitcnt vmcnt(0)")
        R("s_barrier")
        stamp(em)
        stamp_store(em)
        em.label("L_end")
        R("s_endpgm")
        return
    if P.PLAN == 0 and P.WOQ:
        vm = VM(em, [("K24", 4), ("WO23", 4), ("WQ", 16), ("V23", 4), ("K25", 4), ("WO24", 4)])
        R(f"s_add_u32 s3, s{sWOOFF}, {(26-17)*16384 - 3072}\n    s_and_b32 s3, s3, 0x7ffff")
        def tt(loc, k): return tile_loop('wo', loc, f"s_add_u32 s{sTMP}, s3, {k*16384}")
        for t in range(23, 32):
            stamp(em)
            vm.need(f"K{t+1}", f"WO{t}")
            R("s_barrier")
            if t <= 30:
                vm.issue(f"V{t+1}", kvq_ops(V0 + ((t+1) % 2)*SL, sV, sVOFF, sM0V, 30, 0, 0))
            ttl = {23: [(WQ0, 0)], 24: [(WQ0+SL, 1)], 25: [(QB, 5)], 30: [(K0, 2)], 31: [(K0+SL, 3), (V0, 4)]}.get(t, [])
            for (loc, k) in ttl: vm.issue("TT", tt(loc, k))
            vm.need(f"V{t}")
            R("s_barrier")
            if t <= 28:
                vm.issue(f"K{t+3}", kvq_ops(K0 + ((t+1) % 2)*SL, sK, sKOFF, sM0K, 28, 0, 0))
            vm.issue(f"WO{t+2}", woq_ops(WO0 + (t % 2)*SL, w_vlin))
            R(f"s_add_u32 s{sT}, s{sT}, 1")
    else:
        if P.PLAN == 0: vm = VM(em, [("K24", 4), ("WO23", 16), ("WQ", 16), ("V23", 4), ("K25", 4), ("WO24", 16)])
        elif P.PLAN in (2, 5): vm = VM(em, [("WO23", 16), ("K24", 4), ("WQ", 16), ("V23", 4), ("WO24", 16), ("K25", 4)])
        else: vm = VM(em, [("WQ", 16), ("WO23", 16), ("K24", 4), ("V23", 4), ("WQ", 16), ("WO24", 16)])
        R(f"s_add_u32 s3, s{sWOOFF}, {(26-17)*16384}\n    s_and_b32 s3, s3, 0x7ffff")
        for t in range(23, 32):
            stamp(em)
            if P.PLAN in (2, 3, 5): vm.need(f"WO{t}")
            else: vm.need(f"K{t+1}", f"WO{t}")
            R("s_barrier")
            if P.PLAN in (1, 3) and t <= 29:
                vm.issue(f"K{t+2}", kvq_ops(K0 + (t % 2)*SL, sK, sKOFF, sM0K, 29, 0, 0))
            if t <= 30:
                vm.issue(f"V{t+1}", kvq_ops(V0 + ((t+1) % 2)*SL, sV, sVOFF, sM0V, 30, 0, 0))
            if t == 31:
                vm.issue("TT32", tile_loop('wo', V0, f"s_mov_b32 s{sTMP}, s{3}"))
                R("s_add_u32 s3, s3, 16384")
            ops = tile_loop('wo', WO0 + (t % 2)*SL, f"s_mov_b32 s{sTMP}, s{sWOOFF}")
            ops.append(salu(f"s_add_u32 s{sWOOFF}, s{sWOOFF}, 16384\n    s_and_b32 s{sWOOFF}, s{sWOOFF}, 0x7ffff"))
            if P.PLAN in (2, 3, 5):
                if P.PLAN == 5 and t == 23:
                    em.nop(12)
                    for o in w3_cv(1): em.emit(o)
                    em.wait_ds(0)
                vm.need(f"K{t+1}")
                R("s_barrier")
                if P.PLAN in (2, 5): vm.issue(f"WO{t+2}", ops)
            vm.need(f"V{t}")
            R("s_barrier")
            if P.PLAN in (0, 2, 5) and t <= 28:
                vm.issue(f"K{t+3}", kvq_ops(K0 + ((t+1) % 2)*SL, sK, sKOFF, sM0K, 28, 0, 0))
            if P.PLAN not in (2, 5): vm.issue(f"WO{t+2}", ops)
            R(f"s_add_u32 s{sT}, s{sT}, 1")
            if t == 23:
                vm.issue("TT32", tile_loop('wo', WQ0, f"s_mov_b32 s{sTMP}, s{3}"))
                R("s_add_u32 s3, s3, 16384")
            if t == 24:
                vm.issue("TT32", tile_loop('wo', WQ0+SL, f"s_mov_b32 s{sTMP}, s{3}"))
                R("s_add_u32 s3, s3, 16384")
            if t == 25:
                R(f"s_add_u32 s4, s3, {3*16384}")
                vm.issue("TT32", tile_loop('wo', QB, f"s_mov_b32 s{sTMP}, s{4}"))
            if t in (29, 30):
                vm.issue("TT32", tile_loop('wo', K0 + (t-29)*SL, f"s_mov_b32 s{sTMP}, s{3}"))
                R("s_add_u32 s3, s3, 16384")
    stamp(em)
    R("s_waitcnt vmcnt(0)")
    R("s_barrier")
    if P.FUSE:
        fused_reduce(em)
        return
    stamp(em)
    stamp_store(em)
    em.label("L_end")
    R("s_endpgm")

def fused_reduce(em):
    R = em.raw
    decode(R)
    R("s_lshl_b32 s6, s5, 4")
    R("s_add_u32 s6, s6, s4")
    R("s_lshl_b32 s6, s6, 2")
    R("v_mov_b32 v14, 0")
    R("s_lshl_b32 s7, 1, s3")
    if P.MAP == 1:
        R("s_and_b32 s6, s2, 0xf8")
        R("v_add_u32 v15, s6, v0")
    else:
        R("s_lshl_b32 s6, s5, 2")
        R("s_lshl_b32 s92, s4, 3")
        R("s_add_u32 s6, s6, s92")
        R("v_lshrrev_b32 v15, 1, v0")
        R("v_and_b32 v13, 1, v0")
        R("v_lshl_add_u32 v15, v13, 7, v15")
        R("v_add_u32 v15, s6, v15")
    R("v_lshlrev_b32 v15, 7, v15")
    R("s_lshl_b32 s6, s2, 7")
    R("v_mov_b32 v13, s6")
    R("s_add_u32 s80, s70, 0x1800000")
    R("s_addc_u32 s81, s71, 0")
    R("s_and_b32 s81, s81, 0xffff")
    R("s_mov_b32 s82, 0x10000")
    R("s_mov_b32 s83, 0x20000")
    R("v_readfirstlane_b32 s95, v12")
    R("s_cmp_eq_u32 s95, 0")
    R("s_cselect_b32 s95, s90, s95")
    R("v_mov_b32 v12, s95")
    R("s_mov_b64 s[88:89], exec")
    R(f"s_mov_b32 s91, {P.SPIN}")
    R("s_mov_b32 s90, 0")
    R("s_barrier")
    R("s_mov_b64 exec, 1")
    R("buffer_store_dword v12, v13, s[80:83], 0 offen sc0 sc1")
    R("s_mov_b64 exec, 0xff")
    em.label("L_poll")
    R("buffer_load_dwordx2 v[10:11], v15, s[80:83], 0 offen sc0 sc1")
    R("s_waitcnt vmcnt(0)")
    R("v_cmp_eq_u32 vcc, s95, v10")
    R("s_nop 3")
    R("s_cmp_eq_u32 vcc_lo, 0xff")
    R("s_cbranch_scc1 L_go")
    R("s_cmp_lg_u32 s90, 0")
    R("s_cbranch_scc1 L_quit")
    R(f"s_sleep {P.PSLEEP}")
    R("s_sub_u32 s91, s91, 1")
    R("s_cmp_lg_u32 s91, 0")
    R("s_cbranch_scc1 L_poll")
    R("s_mov_b32 s90, 1")
    R("s_mov_b64 exec, 1")
    R("buffer_store_dword v12, v13, s[80:83], 0 offen offset:4 sc0 sc1")
    R("s_waitcnt vmcnt(0)")
    R("s_mov_b64 exec, 0xff")
    R("s_branch L_poll")
    em.label("L_quit")
    R("s_mov_b32 s93, 0")
    R("s_branch L_pub")
    em.label("L_go")
    R("v_cmp_eq_u32 vcc, s95, v11")
    R("s_nop 3")
    R("s_or_b32 s93, s7, vcc_lo")
    R("s_and_b32 s93, s93, 0xff")
    em.label("L_pub")
    R("s_mov_b64 exec, 1")
    R("v_mov_b32 v9, s93")
    R("ds_write_b32 v14, v9")
    R("s_mov_b64 exec, s[88:89]")
    R("s_waitcnt lgkmcnt(0)")
    em.label("L_red")
    R("s_load_dwordx2 s[8:9], s[0:1], 80")
    decode(R)
    R("v_and_b32 v2, 7, v0")
    R("v_bfe_u32 v3, v0, 3, 1")
    R("v_bfe_u32 v4, v0, 4, 1")
    R("v_lshrrev_b32 v5, 5, v0")
    R(f"s_lshl_b32 s6, s{sWAVE}, 3")
    R("v_add_u32 v2, s6, v2")
    R("v_lshlrev_b32 v7, 11, v5")
    R("v_lshl_add_u32 v7, v3, 10, v7")
    R("v_lshl_add_u32 v7, v4, 9, v7")
    R("v_lshl_add_u32 v7, v2, 4, v7")
    R("v_lshlrev_b32 v8, 11, v2")
    R("v_lshl_add_u32 v8, v5, 6, v8")
    R("v_lshl_add_u32 v8, v4, 5, v8")
    R("v_lshl_add_u32 v8, v3, 4, v8")
    R("v_mov_b32 v14, 0")
    if P.MAP == 1:
        R("s_and_b32 s14, s2, 0xf8")
    else:
        R("s_lshl_b32 s14, s5, 2")
        R("s_lshl_b32 s15, s4, 3")
        R("s_add_u32 s14, s14, s15")
    R("s_mul_i32 s14, s14, 98304")
    R("s_mul_i32 s15, s4, 96")
    R("s_lshl_b32 s15, s15, 11")
    R("s_lshl_b32 s16, s5, 10")
    R("s_add_u32 s15, s15, s16")
    R("s_mov_b32 s20, s70")
    R("s_and_b32 s21, s71, 0xffff")
    R(f"s_mov_b32 s22, {256*98304}")
    R("s_mov_b32 s23, 0x20000")
    R("s_waitcnt lgkmcnt(0)")
    R("s_mov_b32 s24, s8")
    R("s_and_b32 s25, s9, 0xffff")
    R(f"s_mov_b32 s26, {16*96*1024*2}")
    R("s_mov_b32 s27, 0x20000")
    em.label("L_round")
    R("s_barrier")
    R("ds_read_b32 v9, v14")
    R("s_waitcnt lgkmcnt(0)")
    R("v_readfirstlane_b32 s93, v9")
    stamp(em)
    em.label("L_slice")
    R("s_and_b32 s92, s93, 0xff")
    R("s_cmp_eq_u32 s92, 0")
    R("s_cbranch_scc1 L_nomore")
    R("s_ff1_i32_b32 s94, s92")
    R("s_bitset0_b32 s93, s94")
    R("s_lshl_b32 s16, s94, 12")
    R("s_add_u32 s16, s16, s14")
    for w in range(3):
        for hg in range(8):
            d = member(hg) * 98304 + w * 32768
            r = 16 + (w*8 + hg)*4
            R(f"s_add_u32 s17, s16, {d}")
            R(f"buffer_load_dwordx4 v[{r}:{r+3}], v7, s[20:23], s17 offen{P.RDPOL}")
    R("s_lshl_b32 s17, s94, 7")
    R("s_add_u32 s17, s17, s15")
    for w in range(3):
        acc = 120 + 8*w
        for hg in range(8):
            R(f"s_waitcnt vmcnt({23 - (w*8+hg) + w})")
            for k in range(4):
                src = 16 + (w*8 + hg)*4 + k
                if hg == 0:
                    R(f"v_lshlrev_b32 v{acc+2*k}, 16, v{src}")
                    R(f"v_and_b32 v{acc+2*k+1}, 0xffff0000, v{src}")
                else:
                    R(f"v_lshlrev_b32 v112, 16, v{src}")
                    R(f"v_and_b32 v113, 0xffff0000, v{src}")
                    R(f"v_add_f32 v{acc+2*k}, v{acc+2*k}, v112")
                    R(f"v_add_f32 v{acc+2*k+1}, v{acc+2*k+1}, v113")
        o = 148 + 4*w
        for k in range(4):
            R(f"v_cvt_pk_bf16_f32 v{o+k}, v{acc+2*k}, v{acc+2*k+1}")
        R(f"s_add_u32 s18, s17, {w*32*2048}")
        R(f"buffer_store_dwordx4 v[{o}:{o+3}], v8, s[24:27], s18 offen{P.OUTPOL}")
    R("s_branch L_slice")
    em.label("L_nomore")
    em.label("L_fin")
    if P.STAMP:
        R("s_waitcnt vmcnt(0)")
    stamp(em)
    stamp_store(em)
    if P.DBG:
        R(f"s_cmp_lg_u32 s{sWAVE}, 0")
        R("s_cbranch_scc1 L_end")
        R("s_load_dwordx2 s[72:73], s[0:1], 88")
        R(f"v_readlane_b32 s76, v{STV}, 0")
        idx = [1, 5, 6, 14, 22, 30, 38, 39, 40, 41, 42]
        for i, l in enumerate(idx): R(f"v_readlane_b32 s{80+i}, v{STV}, {l}")
        R("s_waitcnt lgkmcnt(0)")
        R("s_and_b32 s73, s73, 0xffff")
        R("s_mov_b32 s74, 256")
        R("s_mov_b32 s75, 0x20000")
        R("v_mov_b32 v1, 0")
        R("v_mov_b32 v2, 0")
        R("s_not_b32 s77, s76")
        R("v_writelane_b32 v2, s77, 11")
        R("v_writelane_b32 v2, s90, 12")
        R("v_writelane_b32 v2, s76, 13")
        R("v_writelane_b32 v2, s86, 14")
        for i in range(11):
            R(f"s_sub_u32 s{80+i}, s{80+i}, s76")
            R(f"v_writelane_b32 v1, s{80+i}, {i}")
        R("v_cmp_gt_u32 vcc, 60, v0")
        R("s_and_saveexec_b64 s[78:79], vcc")
        R("buffer_atomic_add v1, v0, s[72:75], 0 offen")
        R("buffer_atomic_umax v2, v0, s[72:75], 0 offen")
        R("s_waitcnt vmcnt(0)")
    em.label("L_end")
    R("s_endpgm")
    em.label("L_code_end")

def gen_reduce(em):
    R = em.raw
    em.lines.append(".p2align 8")
    em.lines.append(".globl reduce_kernel")
    em.lines.append(".type reduce_kernel,@function")
    em.label("reduce_kernel")
    R("s_cmp_ge_u32 s2, 768")
    R("s_cbranch_scc1 L_rend")
    R("s_load_dwordx2 s[4:5], s[0:1], 80")
    R("s_load_dwordx2 s[6:7], s[0:1], 96")
    if P.DBG:
        R("s_memrealtime s[40:41]")
        R("s_load_dwordx2 s[32:33], s[0:1], 88")
    R("v_lshrrev_b32 v1, 6, v0")
    R("v_and_b32 v0, 63, v0")
    R("s_and_b32 s8, s2, 7")
    R("s_lshr_b32 s9, s2, 3")
    R("s_mul_i32 s10, s9, 43691")
    R("s_lshr_b32 s10, s10, 17")
    R("s_mul_i32 s11, s10, 3")
    R("s_sub_u32 s11, s9, s11")
    R("s_lshr_b32 s12, s10, 4")
    R("s_and_b32 s13, s10, 15")
    R("v_and_b32 v2, 7, v0")
    R("v_bfe_u32 v3, v0, 3, 1")
    R("v_bfe_u32 v4, v0, 4, 1")
    R("v_lshrrev_b32 v5, 5, v0")
    R("v_lshl_add_u32 v2, v1, 3, v2")
    R("v_lshlrev_b32 v6, 11, v5")
    R("v_lshl_add_u32 v6, v3, 10, v6")
    R("v_lshl_add_u32 v6, v4, 9, v6")
    R("v_lshl_add_u32 v6, v2, 4, v6")
    R("s_lshl_b32 s14, s11, 15")
    R("s_lshl_b32 s15, s8, 12")
    R("s_add_u32 s14, s14, s15")
    R("s_lshl_b32 s15, s12, 2")
    R("s_lshl_b32 s16, s13, 3")
    R("s_add_u32 s15, s15, s16")
    R("s_mul_i32 s15, s15, 98304")
    R("s_add_u32 s14, s14, s15")
    R("s_waitcnt lgkmcnt(0)")
    R("s_mov_b32 s20, s6")
    R("s_and_b32 s21, s7, 0xffff")
    R(f"s_mov_b32 s22, {256*98304}")
    R("s_mov_b32 s23, 0x20000")
    R("s_mov_b32 s24, s4")
    R("s_and_b32 s25, s5, 0xffff")
    R(f"s_mov_b32 s26, {16*96*1024*2}")
    R("s_mov_b32 s27, 0x20000")
    for hg in range(8):
        d = ((hg // 2) + 128*(hg % 2)) * 98304
        R(f"s_add_u32 s17, s14, {d}")
        R(f"buffer_load_dwordx4 v[{8+4*hg}:{11+4*hg}], v6, s[20:23], s17 offen{P.RDPOL}")
    R("v_lshlrev_b32 v7, 11, v2")
    R("v_lshl_add_u32 v7, v5, 6, v7")
    R("v_lshl_add_u32 v7, v4, 5, v7")
    R("v_lshl_add_u32 v7, v3, 4, v7")
    R("s_mul_i32 s15, s13, 96")
    R("s_lshl_b32 s16, s11, 5")
    R("s_add_u32 s15, s15, s16")
    R("s_lshl_b32 s15, s15, 11")
    R("s_lshl_b32 s16, s12, 10")
    R("s_add_u32 s15, s15, s16")
    R("s_lshl_b32 s16, s8, 7")
    R("s_add_u32 s15, s15, s16")
    for hg in range(8):
        R(f"s_waitcnt vmcnt({7-hg})")
        for k in range(4):
            src = 8 + 4*hg + k
            if hg == 0:
                R(f"v_lshlrev_b32 v{40+2*k}, 16, v{src}")
                R(f"v_and_b32 v{41+2*k}, 0xffff0000, v{src}")
            else:
                R(f"v_lshlrev_b32 v48, 16, v{src}")
                R(f"v_and_b32 v49, 0xffff0000, v{src}")
                R(f"v_add_f32 v{40+2*k}, v{40+2*k}, v48")
                R(f"v_add_f32 v{41+2*k}, v{41+2*k}, v49")
    for k in range(4):
        R(f"v_cvt_pk_bf16_f32 v{52+k}, v{40+2*k}, v{41+2*k}")
    R("buffer_store_dwordx4 v[52:55], v7, s[24:27], s15 offen")
    if P.DBG:
        R("s_and_b32 s44, s2, 31")
        R("s_cmp_lg_u32 s44, 31")
        R("s_cbranch_scc1 L_rend")
        R("v_readfirstlane_b32 s44, v1")
        R("s_cmp_lg_u32 s44, 0")
        R("s_cbranch_scc1 L_rend")
        R("s_waitcnt vmcnt(0)")
        R("s_memrealtime s[42:43]")
        R("s_sub_u32 s36, s32, 512")
        R("s_subb_u32 s37, s33, 0")
        R("s_and_b32 s37, s37, 0xffff")
        R("s_mov_b32 s38, 256")
        R("s_mov_b32 s39, 0x20000")
        R("s_and_b32 s33, s33, 0xffff")
        R("s_mov_b32 s34, 256")
        R("s_mov_b32 s35, 0x20000")
        R("v_lshlrev_b32 v0, 2, v0")
        R("buffer_load_dword v1, v0, s[36:39], 0 offen")
        R("s_waitcnt vmcnt(0) lgkmcnt(0)")
        R("s_not_b32 s40, s40")
        R("v_writelane_b32 v1, s40, 10")
        R("v_writelane_b32 v1, s42, 11")
        R("v_cmp_gt_u32 vcc, 48, v0")
        R("s_and_saveexec_b64 s[44:45], vcc")
        R("buffer_atomic_umax v1, v0, s[32:35], 0 offen")
        R("s_waitcnt vmcnt(0)")
    em.label("L_rend")
    R("s_endpgm")
    em.label("L_code_end")

def build():
    ref = open(f"cdna_kernels/{NAME}.s.ref").read().splitlines()
    head = [l for l in ref if l.startswith(";") and "@launch" not in l]
    em = Em()
    if P.FUSE:
        P.STPOL = " sc1" if P.STPOL == " nt" else P.STPOL
        P.RDPOL = " sc1" if P.RDPOL == " nt" else P.RDPOL
    gen_main(em)
    if P.W3FIRST:
        L = em.lines
        tail = [x for x in L[em.mark_w3:] if x != "L_code_end:"]
        em.lines = L[:em.mark_att] + tail + L[em.mark_att:em.mark_w3]
        if P.FUSE: em.label("L_code_end")
    if not P.FUSE: gen_reduce(em)
    out = []
    out += head
    if P.FUSE:
        out.append(f"; @launch grid=(256,1,1) block=(256,1,1) lds={LDS_BYTES}")
    else:
        out.append(f"; @launch kernel={NAME}_kernel grid=(256,1,1) block=(256,1,1) lds={LDS_BYTES}")
        out.append(f"; @launch kernel=reduce_kernel grid=(768,1,1) block=(256,1,1) lds=0")
    out.append('.amdgcn_target "amdgcn-amd-amdhsa--gfx950"')
    out.append(".text")
    out.append(f".globl {NAME}_kernel")
    out.append(".p2align 8")
    out.append(f".type {NAME}_kernel,@function")
    out.append(em.text())
    out.append('.section .rodata,"a"')
    for (k, nv, ao) in ((f"{NAME}_kernel", 512, 256), ("reduce_kernel", 64, 64))[:1 if P.FUSE else 2]:
        out.append(".p2align 6")
        out.append(f".amdhsa_kernel {k}")
        out.append(f"  .amdhsa_next_free_vgpr {nv}")
        out.append("  .amdhsa_next_free_sgpr 102")
        out.append(f"  .amdhsa_accum_offset {ao}")
        out.append("  .amdhsa_group_segment_fixed_size 0")
        out.append("  .amdhsa_kernarg_size 104")
        out.append("  .amdhsa_user_sgpr_count 2")
        out.append("  .amdhsa_user_sgpr_kernarg_segment_ptr 1")
        out.append("  .amdhsa_system_sgpr_workgroup_id_x 1")
        out.append(".end_amdhsa_kernel")
    return "\n".join(out) + "\n"

if __name__ == "__main__":
    dst = sys.argv[1] if len(sys.argv) > 1 else f"cdna_kernels/{NAME}.s"
    for a in sys.argv[2:]:
        k, v = a.split("=")
        cur = getattr(P, k)
        setattr(P, k, type(cur)(v) if not isinstance(cur, str) else (" " + v.replace("+", " ") if v else ""))
    open(dst, "w").write(build())
```
